```python
import torch

def _softmax(x, axis=-1):
    return torch.softmax(x, dim=axis)
def _gelu(x):
    return torch.nn.functional.gelu(x, approximate="tanh")
def _silu(x):
    return torch.nn.functional.silu(x)
def _sigmoid(x):
    return torch.sigmoid(x)
def _layernorm(x, axis=-1, eps=1e-5):
    m = x.mean(dim=axis, keepdim=True)
    v = x.var(dim=axis, keepdim=True, unbiased=False)
    return (x - m) / torch.sqrt(v + eps)
def _scatter_add(tgt, idx, src, axis=0):
    return tgt.clone().index_add_(axis, idx, src)
def _segment_sum(src, seg, n):
    out = torch.zeros((n,) + src.shape[1:], dtype=src.dtype)
    return out.index_add_(0, seg, src)
def _pad(x, pw):
    flat = tuple(v for pair in reversed(pw) for v in pair)
    return torch.nn.functional.pad(x, flat)

kernel_name = 'gather_scatter__molecular_angular_gemnet__graph'

def setup_inputs():

    _w = (lambda a: (lambda t: t.to(torch.bfloat16) if t.is_floating_point() else t)(torch.as_tensor(a)))
    N, deg, De, L = 10000, 64, 4, 1
    E = N * deg
    T = E * deg
    NR = 8
    dist = torch.rand(E).to(float)
    angle = (torch.rand(T) * torch.pi).to(float)
    centers = torch.linspace(0.0, 1.0, NR).to(float)
    ang_freq = torch.arange(1, L + 1).to(float)
    return {
        "m": _w((lambda *s: torch.randn(*s, dtype=torch.bfloat16) * 0.05)(E, De)),
        "idx_in": _w((lambda lo, hi, *s: torch.randint(lo, hi, s))(0, E, T).to(torch.int64)),
        "idx_out": _w((lambda lo, hi, *s: torch.randint(lo, hi, s))(0, E, T).to(torch.int64)),
        "dist": _w(dist),
        "angle": _w(angle),
        "centers": _w(centers),
        "ang_freq": _w(ang_freq),
        "w_rbf": _w((lambda *s: torch.randn(*s, dtype=torch.bfloat16) * 0.2)(NR, De)),
        "w_sbf": _w((lambda *s: torch.randn(*s, dtype=torch.bfloat16) * 0.2)(NR * L, De)),
        "w_down": _w((lambda *s: torch.randn(*s, dtype=torch.bfloat16) * 0.2)(De, De)),
        "w_up": _w((lambda *s: torch.randn(*s, dtype=torch.bfloat16) * 0.2)(De, De)),
    }

def reference(m, idx_in, idx_out, dist, angle, centers, ang_freq, w_rbf, w_sbf, w_down, w_up):
    E, De = m.shape[0], m.shape[1]
    NR = centers.shape[0]
    L = ang_freq.shape[0]
    rbf = torch.exp(-10.0 * (dist[:, None] - centers[None, :]) ** 2)
    cbf = torch.cos(ang_freq[None, :] * angle[:, None])
    rbf_t = rbf[idx_out]
    sbf = torch.reshape(rbf_t[:, :, None] * cbf[:, None, :], (-1, NR * L))
    x = (m[idx_in] @ w_down) * (sbf @ w_sbf)
    agg = _segment_sum(x, idx_out, E)
    return m + (agg @ w_up) * (rbf @ w_rbf)
```

```python
import re

TRANS = ('v_exp_f32', 'v_log_f32', 'v_rcp_f32', 'v_rsq_f32', 'v_sqrt_f32', 'v_sin_f32', 'v_cos_f32')


def regs_of(tok):
    tok = tok.strip()
    tok = re.sub(r'^-', '', tok)
    m = re.fullmatch(r'abs\((.*)\)', tok)
    if m:
        tok = m.group(1)
    m = re.fullmatch(r'([vsa])(\d+)', tok)
    if m:
        return {(m.group(1), int(m.group(2)))}
    m = re.fullmatch(r'([vsa])\[(\d+):(\d+)\]', tok)
    if m:
        return {(m.group(1), i) for i in range(int(m.group(2)), int(m.group(3)) + 1)}
    if tok in ('vcc', 'vcc_lo', 'vcc_hi'):
        return {('s', 'vcc')}
    if tok in ('exec', 'exec_lo', 'exec_hi'):
        return {('s', 'exec')}
    if tok == 'm0':
        return {('s', 'm0')}
    return set()


class Ins:
    def __init__(self, text):
        self.text = text
        t = text.split(';')[0].strip()
        parts = t.split(None, 1)
        self.op = parts[0]
        rest = parts[1] if len(parts) > 1 else ''
        toks = [x.strip() for x in rest.split(',')] if rest else []
        ops = []
        for x in toks:
            ops.append(x.split()[0] if x else x)
        self.ops = ops
        op = self.op
        self.is_mfma = op.startswith('v_mfma')
        self.is_valu = op.startswith('v_') and not self.is_mfma
        self.is_ds = op.startswith('ds_')
        self.is_vmem = op.startswith(('buffer_', 'global_'))
        self.is_salu = op.startswith('s_')
        self.is_dpp = '_dpp' in op or 'row_' in rest or 'quad_perm' in rest or 'wave_' in rest
        self.is_sdwa_dst = 'dst_sel:BYTE' in rest or 'dst_sel:WORD' in rest
        self.is_trans = op.replace('_e32', '').replace('_e64', '') in TRANS
        self.w = set()
        self.r = set()
        R = [regs_of(x) for x in ops]
        if self.is_valu or self.is_mfma:
            nw = 1
            if re.match(r'v_(add|sub|subrev|addc|subb)_co_u32', op):
                nw = 2
            if op.startswith('v_swap'):
                nw = 2
            for x in R[:nw]:
                self.w |= x
            for x in R[nw:]:
                self.r |= x
            if op.startswith(('v_swap', 'v_fmac', 'v_dot2c', 'v_writelane')) or 'UNUSED_PRESERVE' in rest or self.is_dpp:
                self.r |= self.w
            if op.startswith('v_cmpx'):
                self.w |= {('s', 'exec')}
            if self.is_mfma:
                self.srcc = R[3]
                self.srcab = R[1] | R[2]
        elif self.is_ds:
            if re.match(r'ds_(read|bpermute|permute|swizzle)', op) or '_rtn_' in op:
                self.w |= R[0]
                for x in R[1:]:
                    self.r |= x
            else:
                for x in R:
                    self.r |= x
        elif self.is_vmem:
            if '_load_' in op and ' lds' not in rest:
                self.w |= R[0]
                for x in R[1:]:
                    self.r |= x
                if 'd16' in op:
                    self.r |= R[0]
            else:
                for x in R:
                    self.r |= x
            self.wide_store = ('store_dwordx4' in op or 'store_dwordx3' in op)
            self.sdata = R[0] if op.startswith('buffer_') else (R[1] if len(R) > 1 else set())
        elif self.is_salu:
            if op.startswith(('s_cmp', 's_cbranch', 's_branch', 's_waitcnt', 's_nop', 's_barrier', 's_endpgm', 's_setprio', 's_bitcmp', 's_sleep')):
                for x in R:
                    self.r |= x
            else:
                if R:
                    self.w |= R[0]
                for x in R[1:]:
                    self.r |= x
                if 'saveexec' in op:
                    self.w |= {('s', 'exec')}

    def states(self):
        if self.op == 's_nop':
            return int(self.ops[0], 0) + 1
        return 1


def need(p, c):
    n = 0
    vs = lambda S: {x for x in S if x[0] in 'va'}
    ss = lambda S: {x for x in S if x[0] == 's'}
    if p.is_valu:
        if c.is_mfma and vs(p.w) & c.r:
            n = max(n, 2)
        if c.is_mfma and ('s', 'exec') in p.w:
            n = max(n, 4)
        if c.is_valu and c.is_dpp and vs(p.w) & c.r:
            n = max(n, 2)
        if c.is_valu and c.is_dpp and ('s', 'exec') in p.w:
            n = max(n, 5)
        if p.is_trans and c.is_valu and vs(p.w) & (c.r | c.w):
            n = max(n, 1)
        if p.is_sdwa_dst and c.is_valu and vs(p.w) & (c.r | c.w):
            n = max(n, 1)
        if c.is_valu and c.op.startswith(('v_readlane', 'v_readfirstlane')) and vs(p.w) & c.r:
            n = max(n, 1)
        if c.is_valu and c.op.startswith('v_permlane') and vs(p.w) & (c.r | c.w):
            n = max(n, 2)
        sw = ss(p.w)
        if c.is_valu and (sw - {('s', 'exec')}) & c.r:
            n = max(n, 4 if c.op.startswith(('v_readlane', 'v_writelane')) else 2)
        if c.is_valu and ('s', 'exec') in sw:
            if ('s', 'exec') in c.r:
                n = max(n, 2)
            if c.op.startswith(('v_readlane', 'v_writelane', 'v_readfirstlane', 'v_permlane')):
                n = max(n, 4)
        if c.is_vmem and sw & c.r:
            n = max(n, 5)
    if p.is_mfma:
        D = p.w
        if c.is_mfma:
            if D & c.srcab:
                n = max(n, 5)
            if D & c.srcc:
                n = max(n, 2 if D == c.srcc else 4)
            if D & c.w and not (D & c.srcc):
                n = max(n, 4)
        elif (c.is_valu or c.is_ds or c.is_vmem) and D & (c.r | c.w):
            n = max(n, 5)
        if c.is_valu and p.srcc & c.w:
            n = max(n, 1)
    if p.is_vmem and getattr(p, 'wide_store', False):
        if p.sdata & c.w:
            n = max(n, 2)
    if p.is_salu and ('s', 'm0') in p.w:
        if (c.is_vmem and ' lds' in c.text) or 'addtid' in c.op or c.op.startswith('s_movrel'):
            n = max(n, 1)
    return n


class Asm:
    def __init__(self):
        self.lines = []
        self.hist = []
        self.vm = []
        self.nops = 0

    def raw(self, s):
        self.lines.append(s)

    def c(self, s):
        self.lines.append('    ; ' + s)

    def label(self, name):
        self.lines.append(name + ':')

    def reset(self):
        self.hist = []
        self.vm = []

    def fence(self, n=5):
        self('s_nop %d' % (n - 1))

    def __call__(self, text, tag=None):
        ins = Ins(text)
        dist = 0
        pad = 0
        for p in reversed(self.hist):
            k = need(p, ins)
            if k - dist > pad:
                pad = k - dist
            dist += p.states()
            if dist >= 8:
                break
        if pad > 0:
            nop = Ins('s_nop %d' % (pad - 1))
            self.lines.append('    ' + nop.text)
            self.hist.append(nop)
            self.nops += 1
        self.lines.append('    ' + text)
        self.hist.append(ins)
        self.hist = self.hist[-12:]
        if ins.is_vmem:
            self.vm.append(tag)
            assert len(self.vm) <= 63, 'too many outstanding vmem'

    def wait_vm(self, tags):
        if not isinstance(tags, (set, list, tuple)) or isinstance(tags, tuple):
            tags = [tags]
        last = -1
        for i, t in enumerate(self.vm):
            if t in tags:
                last = i
        if last < 0:
            return
        n = len(self.vm) - 1 - last
        self('s_waitcnt vmcnt(%d)' % n)
        self.vm = self.vm[last + 1:]

    def text(self):
        return '\n'.join(self.lines) + '\n'


def vr(a, n=1):
    return 'v%d' % a if n == 1 else 'v[%d:%d]' % (a, a + n - 1)


def sr(a, n=1):
    return 's%d' % a if n == 1 else 's[%d:%d]' % (a, a + n - 1)
```

```python
from asmlib import vr, sr

MF = 'v_mfma_f32_4x4x4_16b_bf16'


def gen_p2(a, G):
    name = 'gs_acc_kernel'
    CFG = G.CFG
    SEL, ANDOR, XANDN = G.SEL, G.ANDOR, G.XANDN
    G.kernel_head(a, name)
    T16, LANE4, T4, THR, CB, TB, MO, FA = 0, 1, 2, 3, 4, 5, 6, 7
    KAD, KCM, KCE, KSG = 8, 9, 10, 11
    ID, NID = 12, 14
    W = [16, 20, 24, 28]
    B = [32, 33, 34, 35]
    EC = [36, 37, 38, 39]
    EN = [40, 41, 42, 43]
    MP = [44 + 4 * n for n in range(5)]
    D = [64 + 4 * n for n in range(5)]
    M, OLD, NEW, OLD2 = 84, 86, 88, 90
    X, N, DL = 92, 96, 100
    AO = [104, 105]
    AI, C, NV, U = 106, 107, 108, 109
    e = list(range(110, 120))
    sW, sQ, sOB, sSP, sSlow, sBase, sLB, sTab, sMD, sN = 32, 33, 34, 35, 36, 37, 38, 39, 40, 41
    sP = [44, 45, 46, 47]
    sPH = 42
    a('s_cmp_ge_u32 s2, 256')
    a('s_cbranch_scc1 L2_end')
    a('s_load_dwordx2 s[30:31], s[0:1], 104')
    a('v_lshrrev_b32 v16, 6, v0')
    a('v_and_b32 v17, 63, v0')
    a(f'v_readfirstlane_b32 s{sW}, v16')
    a(f's_bfe_u32 s{sQ}, s2, 0x20001')
    a(f's_and_b32 s{sOB}, s2, 1')
    a(f's_lshl_b32 s{sOB}, s{sOB}, 5')
    a('s_lshr_b32 s3, s2, 3')
    a(f's_add_u32 s{sOB}, s{sOB}, s3')
    a(f'v_lshlrev_b32 v{LANE4}, 2, v17')
    a(f'v_and_b32 v{T4}, 12, v{LANE4}')
    a(f'v_sub_u32 v{THR}, 16, v{T4}')
    a(f'v_and_b32 v18, 0xf0, v{LANE4}')
    a('v_add_u32 v18, v18, v16')
    a(f's_mov_b32 s3, {G.REC_CH}')
    a(f'v_mul_lo_u32 v{CB}, v18, s3')
    a(f'v_or_b32 v{CB}, 0xf0000000, v{CB}')
    a(f'v_mul_u32_u24 v{TB}, {G.TAB_CH}, v18')
    a(f'v_mul_u32_u24 v{MO}, 5120, v16')
    a(f'v_lshl_add_u32 v{MO}, v17, 4, v{MO}')
    a(f'v_add_u32 v{FA}, {G.M_BASE}, v{MO}')
    G.ident(a, ID, 18, 0)
    G.ident(a, NID, 18, 0, neg=True)
    a(f'v_lshlrev_b32 v{T16}, 4, v0')
    a(f'v_mov_b32 v{KAD}, 0x1fff8')
    a(f'v_mov_b32 v{KCM}, 0x07ff0000')
    a(f'v_mov_b32 v{KCE}, 0x38000000')
    a(f'v_mov_b32 v{KSG}, 0x80000000')
    for k in range(4):
        a(f's_mov_b32 s{sP[k]}, {0x04000c0c | (k << 16):#x}')
    a(f's_mul_i32 s{sLB}, s{sW}, 1280')
    a(f's_add_u32 s{sLB}, s{sLB}, {G.M_BASE // 4}')
    a(f's_mul_i32 s{sTab}, s{sQ}, {4 * 65 * 8}')
    a(f's_lshl_b32 s3, s{sOB}, 3')
    a(f's_add_u32 s{sTab}, s{sTab}, s3')
    a(f's_mul_i32 s{sMD}, s{sQ}, {16 * 80000}')
    a(f's_mov_b32 s{sSlow}, 0')
    a(f's_mov_b32 s{sSP}, 0')
    a(f's_mov_b32 s{sPH}, 0')
    a('s_waitcnt lgkmcnt(0)')
    G.srd(a, 8, 30, G.REC_OFF, G.REC_SZ)
    G.srd(a, 12, 30, G.TAB_OFF, G.TAB_SZ)
    G.srd(a, 24, 30, G.TAB_OFF, G.TAB_SZ)
    G.srd(a, 16, 30, G.MD_OFF, G.MD_SZ)
    G.srd(a, 20, 30, G.PART_OFF, 80000)
    a(f's_lshl_b32 s3, s{sQ}, 6')
    a(f's_add_u32 s3, s3, s{sOB}')
    a('s_mul_i32 s3, s3, 80000')
    a('s_add_u32 s20, s20, s3')
    a('s_addc_u32 s21, s21, 0')

    def load_desc(soff):
        for k in range(5):
            if k:
                a(f'v_add_u32 v{e[k]}, {k * 256 * G.TAB_CH:#x}, v{TB}')
            a(f'buffer_load_dwordx4 {vr(D[k], 4)}, v{e[k] if k else TB}, s[12:15], s{soff} offen')

    def load_m():
        for n in range(5):
            if n == 4:
                a(f's_add_u32 s3, s{sMD}, 4096')
                a(f'buffer_load_dwordx4 {vr(MP[n], 4)}, v{MO}, s[16:19], s3 offen')
            else:
                a(f'buffer_load_dwordx4 {vr(MP[n], 4)}, v{MO}, s[16:19], s{sMD} offen offset:{n * 1024}')
        a(f's_add_u32 s{sMD}, s{sMD}, 80000')

    def fill(n):
        a(f'ds_write_b128 v{FA}, {vr(MP[n], 4)} offset:{n * 1024}')

    ool = []
    uid = [0]

    def expand(j, pbit, early=None):
        uid[0] += 1
        u = uid[0]
        s_, e_, p_, d_, hi, lo, ent, ad, cb = e[:9]
        a(f's_mov_b32 s{sBase}, s{sLB}')
        a(f's_add_u32 s48, s{sLB}, 257')
        for k in range(5):
            if j & 1:
                a(f'v_lshrrev_b32 v{s_}, 16, v{D[k] + (j >> 1)}')
                a(f'v_lshrrev_b32 v{e_}, 16, v{D[k] + 2 + (j >> 1)}')
            else:
                a(f'v_and_b32 v{s_}, 0xffff, v{D[k] + (j >> 1)}')
                a(f'v_and_b32 v{e_}, 0xffff, v{D[k] + 2 + (j >> 1)}')
            a(f'v_and_b32 v{p_}, -4, v{s_}')
            a(f'v_add_u32 v{p_}, v{p_}, v{T4}')
            if k:
                a(f'v_add_u32 v{cb}, {k * 256 * G.REC_CH:#x}, v{CB}')
            a.label(f'L2_x{u}_{k}')
            a(f'v_sub_u32 v{d_}, v{e_}, v{p_}')
            a(f'v_sub_u32 v{lo}, v{s_}, v{p_}')
            a(f'v_med3_i32 v{hi}, v{d_}, 0, 4')
            a(f'v_max_i32 v{lo}, 0, v{lo}')
            a(f'v_cmp_gt_i32 vcc, v{hi}, v{lo}')
            a(f'v_mad_u32_u24 v{ent}, v{p_}, 5, v{cb if k else CB}')
            a(f'v_bfm_b32 v{hi}, v{hi}, 28')
            a(f'v_bfm_b32 v{lo}, v{lo}, 28')
            a(f'v_mbcnt_lo_u32_b32 v{ad}, vcc_lo, 0')
            a(f'v_mbcnt_hi_u32_b32 v{ad}, vcc_hi, v{ad}')
            a(f'v_bitop3_b32 v{ent}, v{hi}, v{lo}, v{ent} bitop3:{XANDN:#x}')
            a(f'v_add_lshl_u32 v{ad}, v{ad}, s{sBase}, 2')
            a(f's_bcnt1_i32_b64 s{sN}, vcc')
            a('s_mov_b64 exec, vcc')
            a(f'ds_write_b32 v{ad}, v{ent}')
            a('s_mov_b64 exec, -1')
            a(f'v_cmp_gt_i32 vcc, v{d_}, v{THR}')
            a(f's_add_u32 s{sBase}, s{sBase}, s{sN}')
            a(f's_min_u32 s{sBase}, s{sBase}, s48')
            a(f's_cbranch_vccnz L2_xe{u}_{k}')
            a.label(f'L2_xr{u}_{k}')
            ool.append([f'L2_xe{u}_{k}:',
                        f's_cmp_ge_u32 s{sBase}, s48',
                        f's_cbranch_scc1 L2_xr{u}_{k}',
                        f'v_add_u32 v{p_}, 16, v{p_}',
                        f's_branch L2_x{u}_{k}'])
            if early and k < len(early):
                fill(early[k])
        a(f's_lshl_b32 s3, s{sBase}, 2')
        a(f'v_add_u32 v{ad}, s3, v{LANE4}')
        a(f'v_mov_b32 v{ent}, -1')
        a(f'ds_write_b32 v{ad}, v{ent}')
        a(f's_lshl_b32 s3, s{sLB}, 2')
        a(f'v_add_u32 v{ad}, s3, v{LANE4}')
        a(f'ds_read2st64_b32 {vr(EN[0], 2)}, v{ad} offset0:0 offset1:1')
        a(f'ds_read2st64_b32 {vr(EN[2], 2)}, v{ad} offset0:2 offset1:3')
        a(f's_sub_u32 s{sN}, s{sBase}, s{sLB}')
        a(f's_sub_u32 s3, s{sN}, 192')
        a('s_cmp_gt_u32 s3, 64')
        a(f's_cbranch_scc1 L2_xf{u}')
        a.label(f'L2_xg{u}')
        blk = [f'L2_xf{u}:',
               f's_cmp_le_u32 s{sN}, 256',
               f's_cbranch_scc1 L2_xh{u}',
               f's_add_u32 s3, s{sPH}, {pbit}',
               f's_bitset1_b32 s{sSlow}, s3',
               f's_mov_b32 s{sN}, 0',
               f'L2_xh{u}:',
               f's_lshl_b32 s{sN}, s{sN}, 2',
               's_waitcnt lgkmcnt(0)']
        for g in range(4):
            blk += [f'v_add_u32 v{ad}, {256 * g}, v{LANE4}',
                    f'v_cmp_gt_u32 vcc, s{sN}, v{ad}',
                    's_nop 1',
                    f'v_cndmask_b32 v{EN[g]}, -1, v{EN[g]}, vcc']
        blk += [f's_branch L2_xg{u}']
        ool.append(blk)

    def load_rec(g):
        a(f'v_and_b32 v{U}, 0x0fffffff, v{EN[g]}')
        a(f'v_mov_b32 v{EC[g]}, v{EN[g]}')
        a(f'buffer_load_dwordx4 {vr(W[g], 4)}, v{U}, s[8:11], 0 offen')
        a(f'buffer_load_dword v{B[g]}, v{U}, s[8:11], 0 offen offset:16')

    def dec_addr(j):
        g, k = j >> 2, j & 3
        w = W[g] + k
        a(f'v_and_b32 v{NV}, {1 << (28 + k):#x}, v{EC[g]}')
        a(f'v_lshrrev_b32 v{AI}, 14, v{w}')
        a(f'v_bitop3_b32 v{AI}, v{AI}, v{KAD}, v{NV} bitop3:{ANDOR:#x}')
        a(f'ds_read_b64 {vr(M, 2)}, v{AI} offset:{G.M_OFFS}')

    def dec_rest(j):
        g, k = j >> 2, j & 3
        w = W[g] + k
        a(f'v_perm_b32 v{C}, v{w}, v{B[g]}, s{sP[k]}')
        a(f'v_bitop3_b32 v{AO[j & 1]}, v{w}, v{KAD}, v{NV} bitop3:{ANDOR:#x}')
        a(f'v_bitop3_b32 v{C}, v{C}, v{KCM}, v{KCE} bitop3:{ANDOR:#x}')
        a(f'v_bitop3_b32 v{C}, v{w}, v{KSG}, v{C} bitop3:{ANDOR:#x}')
        if k == 3:
            load_rec(g)

    def check(j):
        uid[0] += 1
        u = uid[0]
        a(f'v_cmpx_ne_u64 vcc, {vr(OLD2, 2)}, {vr(OLD, 2)}')
        a(f's_cbranch_execz L2_c{u}')
        a(f'{MF} {vr(DL, 4)}, {vr(NID, 2)}, {vr(OLD, 2)}, 0')
        a(f'{MF} {vr(DL, 4)}, {vr(ID, 2)}, {vr(OLD2, 2)}, {vr(DL, 4)}')
        a(f'v_cvt_pk_bf16_f32 v{DL}, v{DL}, v{DL + 1}')
        a(f'v_cvt_pk_bf16_f32 v{DL + 1}, v{DL + 2}, v{DL + 3}')
        a(f'ds_pk_add_bf16 v{AO[j & 1]}, v{DL}')
        a(f'ds_pk_add_bf16 v{AO[j & 1]}, v{DL + 1} offset:4')
        a.label(f'L2_c{u}')
        a('s_mov_b64 exec, -1')

    def main_phase(nvm):
        a(f's_waitcnt vmcnt({nvm})')
        dec_addr(0)
        dec_rest(0)
        for j in range(16):
            a(f's_waitcnt lgkmcnt({1 if j else 0})')
            a(f'{MF} {vr(X, 4)}, {vr(ID, 2)}, {vr(M, 2)}, 0')
            if j:
                a('s_waitcnt lgkmcnt(0)')
                check(j - 1)
            a(f'ds_read_b64 {vr(OLD, 2)}, v{AO[j & 1]}')
            for n in range(4):
                a(f'v_mul_f32 v{X + n}, v{C}, v{X + n}')
            if j < 15:
                if (j + 1) & 3 == 0:
                    a(f's_waitcnt vmcnt({nvm})')
                dec_addr(j + 1)
                a('s_waitcnt lgkmcnt(1)')
            else:
                a('s_waitcnt lgkmcnt(0)')
            a(f'{MF} {vr(N, 4)}, {vr(ID, 2)}, {vr(OLD, 2)}, {vr(X, 4)}')
            if j < 15:
                dec_rest(j + 1)
            a(f'v_cvt_pk_bf16_f32 v{NEW}, v{N}, v{N + 1}')
            a(f'v_cvt_pk_bf16_f32 v{NEW + 1}, v{N + 2}, v{N + 3}')
            a(f'ds_wrxchg_rtn_b64 {vr(OLD2, 2)}, v{AO[j & 1]}, {vr(NEW, 2)}')
        a('s_waitcnt lgkmcnt(0)')
        check(15)
        a.vm = []

    load_desc(sTab)
    load_m()
    for n in range(4):
        a(f'v_mov_b32 v{X + n}, 0')
    for n in range(4):
        a(f'ds_write_b128 v{T16}, {vr(X, 4)} offset:{n * 16384}')
    a(f'v_add_u32 v{U}, 0x10000, v{T16}')
    a(f'v_cmp_gt_u32 vcc, 80000, v{U}')
    a('s_mov_b64 exec, vcc')
    a(f'ds_write_b128 v{U}, {vr(X, 4)}')
    a('s_mov_b64 exec, -1')
    a('s_waitcnt vmcnt(5)')
    expand(0, 0)
    a('s_waitcnt lgkmcnt(0)')
    for g in range(4):
        load_rec(g)
    a('s_waitcnt vmcnt(8)')
    expand(1, 1, early=[2, 3, 4])
    fill(0)
    fill(1)
    load_m()
    a('s_waitcnt lgkmcnt(0)')
    a('s_barrier')
    a.vm = []
    a.label('L2_loop')
    for jj in range(4):
        a.c(f'==== phase jj={jj}')
        main_phase(16 if jj == 2 else 11)
        a(f's_bitcmp1_b32 s{sSlow}, s{sPH}')
        a('s_cbranch_scc1 L2_slow')
        a.label(f'L2_ret{jj}')
        if jj == 3:
            a(f's_cmp_eq_u32 s{sSP}, 3')
            a('s_cbranch_scc1 L2_done')
            a(f's_add_u32 s{sSP}, s{sSP}, 1')
        a('s_barrier')
        a('s_waitcnt vmcnt(8)')
        expand((jj + 2) & 3, 2, early=[2, 3, 4])
        fill(0)
        fill(1)
        if jj == 1:
            a(f's_cmp_eq_u32 s{sSP}, 3')
            a('s_cselect_b32 s14, 0, s14')
            a(f's_mul_i32 s3, s{sSP}, {65 * 8}')
            a(f's_add_u32 s3, s3, {65 * 8}')
            a(f's_add_u32 s49, s3, s{sTab}')
            load_desc(49)
        load_m()
        a(f's_add_u32 s{sPH}, s{sPH}, 1')
        a('s_waitcnt lgkmcnt(0)')
        a('s_barrier')
        a.vm = []
    a('s_branch L2_loop')
    a.label('L2_done')
    a('s_waitcnt lgkmcnt(0)')
    a('s_barrier')
    a(f'v_add_u32 v{e[4]}, 0x10000, v{T16}')
    a('s_waitcnt vmcnt(0)')
    for n in range(4):
        a(f'ds_read_b128 {vr(MP[n], 4)}, v{T16} offset:{n * 16384}')
    a(f'ds_read_b128 {vr(MP[4], 4)}, v{e[4]}')
    for n in range(1, 4):
        a(f'v_add_u32 v{e[n]}, {n * 16384}, v{T16}')
    for n in range(5):
        a(f's_waitcnt lgkmcnt({4 - n})')
        a(f'buffer_store_dwordx4 {vr(MP[n], 4)}, v{e[n] if n else T16}, s[20:23], 0 offen')
    a.label('L2_end')
    a('s_endpgm')

    a.label('L2_slow')
    a.reset()
    sC, sS, sE, sO = 50, 51, 52, 53
    p_, t_, wa, ba, w_, b_ = e[:6]
    a(f's_mov_b32 s{sC}, s{sW}')
    a(f's_lshr_b32 s3, s{sPH}, 2')
    a(f's_mul_i32 s{sO}, s3, {65 * 8}')
    a(f's_add_u32 s{sO}, s{sO}, s{sTab}')
    a(f's_and_b32 s3, s{sPH}, 2')
    a('s_lshl_b32 s3, s3, 1')
    a(f's_add_u32 s{sO}, s{sO}, s3')
    a(f's_and_b32 s54, s{sPH}, 1')
    a('s_lshl_b32 s54, s54, 4')
    a.label('L2_sl_seg')
    a(f's_mul_i32 s3, s{sC}, {G.TAB_CH}')
    a(f's_add_u32 s3, s3, s{sO}')
    a('s_add_u32 s55, s3, 8')
    a(f's_buffer_load_dword s{sS}, s[24:27], s3')
    a(f's_buffer_load_dword s{sE}, s[24:27], s55')
    a(f's_mul_i32 s56, s{sC}, {G.REC_CH}')
    a('s_waitcnt lgkmcnt(0)')
    a(f's_lshr_b32 s{sS}, s{sS}, s54')
    a(f's_and_b32 s{sS}, s{sS}, 0xffff')
    a(f's_lshr_b32 s{sE}, s{sE}, s54')
    a(f's_and_b32 s{sE}, s{sE}, 0xffff')
    a.label('L2_sl_rec')
    a(f's_cmp_ge_u32 s{sS}, s{sE}')
    a('s_cbranch_scc1 L2_sl_next')
    a(f'v_lshrrev_b32 v{p_}, 2, v{LANE4}')
    a(f'v_add_u32 v{p_}, s{sS}, v{p_}')
    a(f'v_and_b32 v{t_}, -4, v{p_}')
    a(f'v_lshl_add_u32 v{wa}, v{p_}, 2, v{t_}')
    a(f'v_lshl_add_u32 v{ba}, v{t_}, 2, v{p_}')
    a(f'v_cmp_gt_u32 vcc, s{sE}, v{p_}')
    a('s_mov_b64 exec, vcc')
    a(f'buffer_load_dword v{w_}, v{wa}, s[8:11], s56 offen')
    a(f'buffer_load_ubyte v{b_}, v{ba}, s[8:11], s56 offen offset:16')
    a('s_waitcnt vmcnt(0)')
    a(f'v_lshrrev_b32 v{AI}, 14, v{w_}')
    a(f'v_and_b32 v{AI}, v{KAD}, v{AI}')
    a(f'ds_read_b64 {vr(M, 2)}, v{AI} offset:{G.M_OFFS}')
    a(f'v_perm_b32 v{C}, v{w_}, v{b_}, s{sP[0]}')
    a(f'v_and_b32 v{AO[0]}, v{KAD}, v{w_}')
    a(f'v_bitop3_b32 v{C}, v{C}, v{KCM}, v{KCE} bitop3:{ANDOR:#x}')
    a(f'v_bitop3_b32 v{C}, v{w_}, v{KSG}, v{C} bitop3:{ANDOR:#x}')
    a('s_waitcnt lgkmcnt(0)')
    a(f'{MF} {vr(X, 4)}, {vr(ID, 2)}, {vr(M, 2)}, 0')
    for n in range(4):
        a(f'v_mul_f32 v{X + n}, v{C}, v{X + n}')
    a(f'v_cvt_pk_bf16_f32 v{NEW}, v{X}, v{X + 1}')
    a(f'v_cvt_pk_bf16_f32 v{NEW + 1}, v{X + 2}, v{X + 3}')
    a(f'ds_pk_add_bf16 v{AO[0]}, v{NEW}')
    a(f'ds_pk_add_bf16 v{AO[0]}, v{NEW + 1} offset:4')
    a('s_mov_b64 exec, -1')
    a(f's_add_u32 s{sS}, s{sS}, 64')
    a('s_branch L2_sl_rec')
    a.label('L2_sl_next')
    a(f's_add_u32 s{sC}, s{sC}, 16')
    a(f's_cmp_lt_u32 s{sC}, {G.NCH}')
    a('s_cbranch_scc1 L2_sl_seg')
    a('s_waitcnt lgkmcnt(0)')
    a(f's_and_b32 s3, s{sPH}, 3')
    for jj in range(3):
        a(f's_cmp_eq_u32 s3, {jj}')
        a(f's_cbranch_scc1 L2_ret{jj}')
    a('s_branch L2_ret3')
    for blk in ool:
        for ln in blk:
            if ln.endswith(':'):
                a.label(ln[:-1])
                a.reset()
            else:
                a(ln)
    return name
```

```python
import sys
from asmlib import Asm, vr, sr

NAME = 'gather_scatter__molecular_angular_gemnet__graph'
E = 640000
T = 40960000
CH = 32768
NCH = T // CH
REC_CH = CH * 5
TAB_CH = 16 * 65 * 8
REC_OFF = 0
REC_SZ = NCH * REC_CH
TAB_OFF = REC_SZ
TAB_SZ = NCH * TAB_CH
MD_OFF = TAB_OFF + TAB_SZ
MD_SZ = E * 8
PART_OFF = MD_OFF + MD_SZ + 4096
PART_SZ = 4 * E * 8
WT_OFF = PART_OFF + PART_SZ
WT_SZ = 256
KBIAS = 2048
M_BASE = 80000
M_OFFS = M_BASE - KBIAS * 8

CFG = dict(
    ld_pol=' nt',
    st_pol=' sc1',
    p1_wgs=250,
    ab_nofix=0, ab_norec=0, ab_nomain=0, ab_nom=0, stamp=0, dup2=0,
)
for arg in sys.argv[2:]:
    k, v = arg.split('=', 1)
    CFG[k] = type(CFG[k])(v.replace('_', ' ')) if isinstance(CFG.get(k), str) else int(v)

SEL = 0xCA
ANDOR = 0xEA
XANDN = 0x9A


def srd(a, d, base, off, size):
    if off:
        a(f's_add_u32 s{d}, s{base}, {off:#x}')
        a(f's_addc_u32 s{d+1}, s{base+1}, 0')
    else:
        a(f's_mov_b32 s{d}, s{base}')
        a(f's_mov_b32 s{d+1}, s{base+1}')
    a(f's_mov_b32 s{d+2}, {size:#x}')
    a(f's_mov_b32 s{d+3}, 0x20000')


def kernel_head(a, name):
    a.raw('.text')
    a.raw(f'.globl {name}')
    a.raw('.p2align 8')
    a.raw(f'.type {name},@function')
    a.label(name)
    a.reset()


def kernel_desc(a, name, vgpr, sgpr=96):
    a.raw('.p2align 6')
    a.raw(f'.amdhsa_kernel {name}')
    a.raw(f'  .amdhsa_next_free_vgpr {vgpr}')
    a.raw(f'  .amdhsa_next_free_sgpr {sgpr}')
    a.raw(f'  .amdhsa_accum_offset {(vgpr + 3) // 4 * 4}')
    a.raw('  .amdhsa_group_segment_fixed_size 0')
    a.raw('  .amdhsa_kernarg_size 112')
    a.raw('  .amdhsa_user_sgpr_count 2')
    a.raw('  .amdhsa_user_sgpr_kernarg_segment_ptr 1')
    a.raw('  .amdhsa_system_sgpr_workgroup_id_x 1')
    a.raw('  .amdhsa_float_denorm_mode_32 3')
    a.raw('.end_amdhsa_kernel')


def wave_scan(a, regs):
    for sh in (1, 2, 4, 8):
        for x in regs:
            a(f'v_add_u32_dpp v{x}, v{x}, v{x} row_shr:{sh} row_mask:0xf bank_mask:0xf bound_ctrl:1')
    for x in regs:
        a(f'v_add_u32_dpp v{x}, v{x}, v{x} row_bcast:15 row_mask:0xa bank_mask:0xf')
    for x in regs:
        a(f'v_add_u32_dpp v{x}, v{x}, v{x} row_bcast:31 row_mask:0xc bank_mask:0xf')


def gen_p1(a):
    name = 'gs_sort_kernel'
    NW = CFG['p1_wgs']
    NK = NCH // NW
    kernel_head(a, name)
    a('s_cmp_ge_u32 s2, 256')
    a('s_cbranch_scc1 L1_end')
    a('s_load_dwordx4 s[4:7], s[0:1], 8')
    a('s_load_dwordx2 s[28:29], s[0:1], 32')
    a('s_load_dwordx2 s[30:31], s[0:1], 104')
    a(f's_cmp_ge_u32 s2, {NW}')
    a('s_cbranch_scc1 L1_md')
    T16, T8, ONE, K1F, K87, KFC, K78 = 0, 1, 2, 3, 4, 5, 6
    t = list(range(7, 16))
    a('v_lshrrev_b32 v7, 6, v0')
    a(f'v_lshlrev_b32 v{T8}, 3, v0')
    a('v_readfirstlane_b32 s32, v7')
    a(f'v_lshlrev_b32 v{T16}, 4, v0')
    a('s_waitcnt lgkmcnt(0)')
    srd(a, 8, 4, 0, T * 4)
    srd(a, 12, 6, 0, T * 4)
    srd(a, 16, 28, 0, T * 2)
    srd(a, 20, 30, REC_OFF, REC_SZ)
    srd(a, 24, 30, TAB_OFF, TAB_SZ)
    sW, sI, sA, sR, sT, sTmp = 32, 33, 34, 35, 36, 37
    sKB, sP1, sP3 = 40, 41, 42
    a(f's_mul_i32 s{sI}, s2, {CH * 4}')
    a(f's_mul_i32 s{sA}, s2, {CH * 2}')
    a(f's_mul_i32 s{sR}, s2, {REC_CH}')
    a(f's_mul_i32 s{sT}, s2, {TAB_CH}')
    a(f's_lshl_b32 s{sTmp}, s{sW}, 3')
    a(f's_add_u32 s{sT}, s{sT}, s{sTmp}')

    pool = [16 + 4 * i for i in range(28)]
    items = []
    for k in range(NK):
        for o in range(4):
            items += [(k, 'I', 2 * o), (k, 'O', 2 * o), (k, 'A', o), (k, 'I', 2 * o + 1), (k, 'O', 2 * o + 1)]
    where = {}
    st = dict(next=0, tmp=0)

    def soff(base, off):
        r = 44 + st['tmp'] % 4
        st['tmp'] += 1
        a(f's_add_u32 s{r}, s{base}, {off:#x}')
        return r

    def issue(n, limit):
        while n > 0 and st['next'] < min(limit, len(items)) and pool:
            it = items[st['next']]
            st['next'] += 1
            n -= 1
            b = pool.pop(0)
            where[it] = b
            k, kind, j = it
            if kind == 'A':
                for h in range(2):
                    r = soff(sA, k * NW * CH * 2 + (2 * j + h) * 8192)
                    a(f'buffer_load_dwordx2 {vr(b + 2 * h, 2)}, v{T8}, s[16:19], s{r} offen{CFG["ld_pol"]}', tag=it)
            else:
                r = soff(sI, k * NW * CH * 4 + j * 16384)
                s = 8 if kind == 'I' else 12
                a(f'buffer_load_dwordx4 {vr(b, 4)}, v{T16}, s[{s}:{s+3}], s{r} offen{CFG["ld_pol"]}', tag=it)

    issue(28, 28)
    a(f'v_mov_b32 v{ONE}, 1')
    a(f'v_mov_b32 v{K1F}, 0x1ffff')
    a(f'v_mov_b32 v{K87}, 0x80000007')
    a(f'v_mov_b32 v{KFC}, 0xfc')
    a(f'v_mov_b32 v{K78}, 0x78')
    a(f's_mov_b32 s{sKB}, {KBIAS << 17:#x}')
    a(f's_mov_b32 s{sP1}, 0x010c0c01')
    a(f's_mov_b32 s{sP3}, 0x030c0c03')
    for i in range(4):
        a(f'v_mov_b32 v{8 + i}, 0')
    a(f'ds_write_b128 v{T16}, v[8:11]')
    a('s_waitcnt lgkmcnt(0)')
    a('s_barrier')

    pend_st = []

    def store(n):
        while n > 0 and pend_st:
            b, off = pend_st.pop(0)
            n -= 1
            r = soff(sR, off)
            a(f'buffer_store_dwordx4 {vr(b, 4)}, v{T16}, s[20:23], s{r} offen{CFG["st_pol"]}', tag='st')
            pool.append(b)

    for k in range(NK):
        a.c(f'==== chunk {k}: pass A')
        if pend_st:
            store(2)
            issue(2, (k + 1) * 20)
        for j in range(8):
            store(1)
            I, O, A = where[(k, 'I', j)], where[(k, 'O', j)], where[(k, 'A', j // 2)] + 2 * (j & 1)
            a.wait_vm([(k, 'I', j), (k, 'O', j), (k, 'A', j // 2)])
            for p in range(2):
                a(f'v_lshlrev_b32 v{t[2*p]}, 16, v{A+p}')
                a(f'v_and_b32 v{t[2*p+1]}, 0xffff0000, v{A+p}')
            for p in range(4):
                a(f'v_mul_f32 v{t[p]}, 0.15915494, v{t[p]}')
            for r in range(4):
                u, x, y = t[4], t[5], t[6]
                a(f'v_cos_f32 v{t[r]}, v{t[r]}')
                a(f'v_lshl_add_u32 v{u}, v{I+r}, 11, s{sKB}')
                a(f'v_lshrrev_b32 v{x}, 3, v{O+r}')
                a(f'v_lshlrev_b16 v{y}, 3, v{O+r}')
                a(f'v_bitop3_b32 v{x}, v{K78}, v{y}, v{x} bitop3:{SEL:#x}')
                a(f'v_bitop3_b32 v{I+r}, v{K1F}, v{x}, v{u} bitop3:{SEL:#x}')
                a(f'v_lshrrev_b32 v{u}, 3, v{u}')
                a(f'v_lshrrev_b32 v{y}, 2, v{O+r}')
                a(f'v_bitop3_b32 v{u}, v{KFC}, v{y}, v{u} bitop3:{SEL:#x}')
                a(f'v_and_b32 v{O+r}, 0x3fff, v{u}')
                a(f'ds_add_u32 v{O+r}, v{ONE}')
                if r & 1:
                    p = r >> 1
                    a(f'v_cvt_pk_bf16_f32 v{A+p}, v{t[2*p]}, v{t[2*p+1]}')
                    a(f'v_perm_b32 v{x}, v{A+p}, v{A+p}, s{sP1}')
                    a(f'v_bitop3_b32 v{I+r-1}, v{K87}, v{x}, v{I+r-1} bitop3:{SEL:#x}')
                    a(f'v_perm_b32 v{y}, v{A+p}, v{A+p}, s{sP3}')
                    a(f'v_bitop3_b32 v{I+r}, v{K87}, v{y}, v{I+r} bitop3:{SEL:#x}')
        assert not pend_st
        lim = (k + 1) * 20 + 18
        a.c('scan')
        a(f'v_lshrrev_b32 v8, 2, v{T16}')
        a(f'v_and_b32 v7, 0x3c00, v{T16}')
        a(f'v_bitop3_b32 v7, v{KFC}, v8, v7 bitop3:{ANDOR:#x}')
        a('s_waitcnt lgkmcnt(0)')
        a('s_barrier')
        a('ds_read2st64_b32 v[8:9], v7 offset0:0 offset1:1')
        a('ds_read2st64_b32 v[10:11], v7 offset0:2 offset1:3')
        issue(1, lim)
        a('s_waitcnt lgkmcnt(0)')
        a('v_lshl_or_b32 v12, v9, 16, v8')
        a('v_lshl_or_b32 v13, v11, 16, v10')
        a('v_mov_b32 v14, v12')
        a('v_mov_b32 v15, v13')
        wave_scan(a, [14, 15])
        a('v_readlane_b32 s48, v14, 63')
        a('v_readlane_b32 s49, v15, 63')
        a(f's_lshl_b32 s54, s{sW}, 2')
        a('v_mov_b32 v8, s54')
        a('s_and_b32 s50, s48, 0xffff')
        a('s_lshr_b32 s51, s48, 16')
        a('s_and_b32 s52, s49, 0xffff')
        a('s_lshr_b32 s53, s49, 16')
        a('s_add_u32 s51, s51, s50')
        a('s_add_u32 s52, s52, s51')
        a('s_add_u32 s53, s53, s52')
        a('v_mov_b32 v9, s53')
        a('s_mov_b64 exec, 1')
        a('ds_write_b32 v8, v9 offset:16384')
        a('s_mov_b64 exec, -1')
        a('v_and_b32 v8, 60, v7')
        a('s_waitcnt lgkmcnt(0)')
        a('s_barrier')
        a('ds_read_b32 v9, v8 offset:16384')
        a('s_waitcnt lgkmcnt(0)')
        for sh in (1, 2, 4, 8):
            a(f'v_add_u32_dpp v9, v9, v9 row_shr:{sh} row_mask:0xf bank_mask:0xf bound_ctrl:1')
        a(f'v_readlane_b32 s54, v9, s{sW}')
        a('s_sub_u32 s54, s54, s53')
        a('s_add_u32 s50, s50, s54')
        a('s_add_u32 s51, s51, s54')
        a('s_add_u32 s52, s52, s54')
        a('s_pack_ll_b32_b16 s48, s54, s50')
        a('s_pack_ll_b32_b16 s49, s51, s52')
        a('v_add_u32 v14, s48, v14')
        a('v_add_u32 v15, s49, v15')
        a('v_sub_u32 v12, v14, v12')
        a('v_sub_u32 v13, v15, v13')
        a('v_and_b32 v8, 0xffff, v12')
        a('v_lshrrev_b32 v9, 16, v12')
        a('v_and_b32 v10, 0xffff, v13')
        a('v_lshrrev_b32 v11, 16, v13')
        a('ds_write2st64_b32 v7, v8, v9 offset0:0 offset1:1')
        a('ds_write2st64_b32 v7, v10, v11 offset0:2 offset1:3')
        a('s_waitcnt lgkmcnt(0)')
        a('s_barrier')
        a.c('pass B')
        for j in range(8):
            O = where[(k, 'O', j)]
            for r in range(4):
                a(f'ds_add_rtn_u32 v{O+r}, v{O+r}, v{ONE}')
            if j == 0:
                r = soff(sT, k * NW * TAB_CH)
                a(f'buffer_store_dwordx2 v[12:13], v{T8}, s[24:27], s{r} offen', tag='tab')
                a('s_bitset0_b64 exec, 63')
                a('s_not_b64 exec, exec')
                a(f'buffer_store_dwordx2 v[14:15], v{T8}, s[24:27], s{r} offen offset:8', tag='tab')
                a('s_mov_b64 exec, -1')
            else:
                issue(1, lim)
        a('s_waitcnt lgkmcnt(0)')
        a('s_barrier')
        a.c('scatter')
        n0 = st['next']
        for j in range(8):
            I, O, A = where[(k, 'I', j)], where[(k, 'O', j)], where[(k, 'A', j // 2)] + 2 * (j & 1)
            for r in range(4):
                x, y = t[(2 * r) % 4], t[(2 * r + 1) % 4]
                a(f'v_and_b32 v{x}, -4, v{O+r}')
                a(f'v_lshl_add_u32 v{y}, v{O+r}, 2, v{x}')
                a(f'ds_write_b32 v{y}, v{I+r}')
                a(f'v_lshl_add_u32 v{x}, v{x}, 2, v{O+r}')
                a(f'ds_write_b8{"_d16_hi" if r & 1 else ""} v{x}, v{A + (r >> 1)} offset:16')
            pool.append(I)
            pool.append(O)
            if j & 1:
                pool.append(where[(k, 'A', j // 2)])
            want = n0 + ((lim - n0) * (j + 1) + 7) // 8
            issue(want - st['next'], lim)
        a(f'v_add_u32 v7, 0x10000, v{T16}')
        a(f'v_add_u32 v12, 0x20000, v{T16}')
        if k + 1 < NK:
            for i in range(4):
                a(f'v_mov_b32 v{8 + i}, 0')
        a('s_waitcnt lgkmcnt(0)')
        a('s_barrier')
        a.c('flush')
        for j in range(10):
            b = pool.pop(0)
            base = (T16, 7, 12)[j // 4]
            a(f'ds_read_b128 {vr(b, 4)}, v{base} offset:{(j % 4) * 16384}')
            if j == 0 and k + 1 < NK:
                a(f'ds_write_b128 v{T16}, v[8:11]')
            pend_st.append((b, k * NW * REC_CH + j * 16384))
        if k + 1 < NK:
            a('s_waitcnt lgkmcnt(0)')
            a('s_barrier')
        else:
            for j in range(10):
                a(f's_waitcnt lgkmcnt({9 - j})')
                store(1)
    a.label('L1_end')
    a('s_endpgm')

    a.label('L1_md')
    a.reset()
    a('s_load_dwordx2 s[52:53], s[0:1], 0')
    a('s_load_dwordx4 s[36:39], s[0:1], 56')
    a('s_load_dwordx4 s[40:43], s[0:1], 72')
    a('s_waitcnt lgkmcnt(0)')
    srd(a, 8, 52, 0, E * 8)
    srd(a, 12, 30, MD_OFF, MD_SZ)
    srd(a, 16, 40, 0, 32)
    srd(a, 20, 38, 0, 64)
    srd(a, 24, 36, 0, 64)
    srd(a, 44, 42, 0, 32)
    srd(a, 48, 30, WT_OFF, WT_SZ)
    a('v_and_b32 v1, 3, v0')
    a('v_lshlrev_b32 v2, 1, v1')

    def load_wt(dst, s, k0):
        for k in range(4):
            a(f'buffer_load_ushort v{(dst + (k >> 1)) + 30 * (k & 1)}, v2, s[{s}:{s+3}], 0 offen offset:{(k0 + k) * 8}', tag='w')
    for i in (18, 19):
        a(f'v_mov_b32 v{i}, 0')
    load_wt(4, 16, 0)
    load_wt(8, 20, 0)
    load_wt(10, 20, 4)
    load_wt(12, 24, 0)
    load_wt(14, 24, 4)
    load_wt(16, 44, 0)
    a('v_lshlrev_b32 v3, 6, v0')
    a.wait_vm('w')
    for i in (4, 5, 8, 9, 10, 11, 12, 13, 14, 15, 16, 17):
        a(f'v_lshl_or_b32 v{i}, v{i + 30}, 16, v{i}')
    a('buffer_store_dwordx4 v[8:11], v3, s[48:51], 0 offen', tag='st')
    a('buffer_store_dwordx4 v[12:15], v3, s[48:51], 0 offen offset:16', tag='st')
    a('buffer_store_dwordx4 v[16:19], v3, s[48:51], 0 offen offset:32', tag='st')
    a('v_lshrrev_b32 v1, 4, v0')
    a('v_and_b32 v2, 15, v0')
    a('v_lshlrev_b32 v6, 9, v2')
    a('v_lshl_add_u32 v6, v1, 3, v6')
    a('s_mov_b32 s33, 80000')
    a('v_mul_lo_u32 v7, v1, s33')
    a('v_lshl_add_u32 v7, v2, 3, v7')
    a(f's_sub_u32 s32, s2, {NW}')
    a.label('L1_mdloop')
    a.vm = []
    a(f's_mul_i32 s33, s32, {25 * 8192}')
    a(f's_mul_i32 s34, s32, {25 * 128}')
    for n in range(25):
        a(f'buffer_load_dwordx2 {vr(20 + 2 * n, 2)}, v6, s[8:11], s33 offen', tag=n)
        a('s_add_u32 s33, s33, 8192')
    for n in range(25):
        a.wait_vm([n])
        d = 72 + 4 * (n % 4)
        a(f'v_mfma_f32_4x4x4_16b_bf16 {vr(d, 4)}, v[4:5], {vr(20 + 2 * n, 2)}, 0')
        a(f'v_cvt_pk_bf16_f32 v{20 + 2 * n}, v{d}, v{d+1}')
        a(f'v_cvt_pk_bf16_f32 v{21 + 2 * n}, v{d+2}, v{d+3}')
        a(f'buffer_store_dwordx2 {vr(20 + 2 * n, 2)}, v7, s[12:15], s34 offen offset:{n * 128}', tag='st')
    a('s_waitcnt vmcnt(0)')
    a(f's_add_u32 s32, s32, {256 - NW}')
    a('s_cmp_lt_u32 s32, 25')
    a('s_cbranch_scc1 L1_mdloop')
    a('s_endpgm')
    return name


def ident(a, d, tmp, lane, neg=False):
    one = 0xbf80 if neg else 0x3f80
    a(f'v_and_b32 v{tmp}, 3, v{lane}')
    a(f'v_lshlrev_b32 v{tmp}, 4, v{tmp}')
    a(f'v_mov_b32 v{d}, {one:#x}')
    a(f'v_mov_b32 v{d+1}, 0')
    a(f'v_lshlrev_b64 {vr(d, 2)}, v{tmp}, {vr(d, 2)}')


def gen_p3(a):
    name = 'gs_final_kernel'
    kernel_head(a, name)
    a('s_cmp_ge_u32 s2, 1250')
    a('s_cbranch_scc1 L3_end')
    a('s_load_dwordx2 s[4:5], s[0:1], 0')
    a('s_load_dwordx2 s[6:7], s[0:1], 24')
    a('s_load_dwordx2 s[28:29], s[0:1], 40')
    a('s_load_dwordx2 s[30:31], s[0:1], 88')
    a('s_load_dwordx2 s[32:33], s[0:1], 104')
    a('s_lshl_b32 s3, s2, 8')
    a('v_add_u32 v1, s3, v0')
    a('v_lshlrev_b32 v2, 4, v1')
    a('v_lshlrev_b32 v3, 2, v1')
    a('v_bfe_u32 v4, v1, 3, 6')
    a('s_mov_b32 s3, 80000')
    a('v_mul_lo_u32 v4, v4, s3')
    a('v_lshrrev_b32 v5, 9, v1')
    a('v_lshl_add_u32 v4, v5, 7, v4')
    a('v_and_b32 v5, 7, v1')
    a('v_lshl_add_u32 v4, v5, 4, v4')
    a('v_and_b32 v5, 3, v0')
    a('v_lshlrev_b32 v5, 6, v5')
    a('s_waitcnt lgkmcnt(0)')
    a('s_load_dwordx4 s[36:39], s[28:29], 0')
    srd(a, 8, 4, 0, E * 8)
    srd(a, 12, 6, 0, E * 2)
    srd(a, 16, 30, 0, E * 8)
    srd(a, 20, 32, PART_OFF, PART_SZ)
    srd(a, 24, 32, WT_OFF, WT_SZ)
    a('buffer_load_dword v6, v3, s[12:15], 0 offen', tag='d')
    a('buffer_load_dwordx4 v[8:11], v5, s[24:27], 0 offen', tag='w')
    a('buffer_load_dwordx4 v[12:15], v5, s[24:27], 0 offen offset:16', tag='w')
    a('buffer_load_dwordx2 v[16:17], v5, s[24:27], 0 offen offset:32', tag='w')
    for q in range(4):
        a(f's_mov_b32 s{40+q}, {q * E * 8}')
        a(f'buffer_load_dwordx4 {vr(20 + 4 * q, 4)}, v4, s[20:23], s{40+q} offen', tag='p')
    a('buffer_load_dwordx4 v[36:39], v2, s[8:11], 0 offen', tag='m')
    ident(a, 18, 7, 0)
    a('s_waitcnt lgkmcnt(0)')
    for n in range(4):
        a(f's_lshl_b32 s{44 + 2 * n}, s{36 + n}, 16')
        a(f's_and_b32 s{45 + 2 * n}, s{36 + n}, 0xffff0000')
    a.wait_vm('d')
    RB = [40, 44]
    for r in range(2):
        if r == 0:
            a('v_lshlrev_b32 v7, 16, v6')
        else:
            a('v_and_b32 v7, 0xffff0000, v6')
        X = 48

        def rnd():
            for n in range(4):
                a(f'v_cvt_pk_bf16_f32 v{56 + n}, v{X + 2 * n}, v{X + 2 * n + 1}')
            for n in range(4):
                a(f'v_lshlrev_b32 v{X + 2 * n}, 16, v{56 + n}')
                a(f'v_and_b32 v{X + 2 * n + 1}, 0xffff0000, v{56 + n}')
        for n in range(8):
            a(f'v_subrev_f32 v{X + n}, s{44 + n}, v7')
        rnd()
        for n in range(8):
            a(f'v_mul_f32 v{X + n}, v{X + n}, v{X + n}')
        rnd()
        for n in range(8):
            a(f'v_mul_f32 v{X + n}, 0xc1200000, v{X + n}')
        rnd()
        for n in range(8):
            a(f'v_mul_f32 v{X + n}, 0x3fb8aa3b, v{X + n}')
        for n in range(8):
            a(f'v_exp_f32 v{X + n}, v{X + n}')
        for n in range(4):
            a(f'v_cvt_pk_bf16_f32 v{RB[r] + n}, v{X + 2 * n}, v{X + 2 * n + 1}')
    a.wait_vm('w')
    G = [48, 52]
    H = [56, 60]
    S = [64, 68]
    mf = 'v_mfma_f32_4x4x4_16b_bf16'
    for r in range(2):
        a(f'{mf} {vr(G[r], 4)}, v[8:9], {vr(RB[r], 2)}, 0')
        a(f'{mf} {vr(H[r], 4)}, v[12:13], {vr(RB[r], 2)}, 0')
    for r in range(2):
        a(f'{mf} {vr(G[r], 4)}, v[10:11], {vr(RB[r] + 2, 2)}, {vr(G[r], 4)}')
        a(f'{mf} {vr(H[r], 4)}, v[14:15], {vr(RB[r] + 2, 2)}, {vr(H[r], 4)}')
    a.wait_vm('p')
    for q in range(4):
        for r in range(2):
            a(f'{mf} {vr(S[r], 4)}, v[18:19], {vr(20 + 4 * q + 2 * r, 2)}, {vr(S[r], 4) if q else 0}')
    for r in range(2):
        for n in range(4):
            a(f'v_mul_f32 v{S[r] + n}, v{S[r] + n}, v{G[r] + n}')
        a(f'v_cvt_pk_bf16_f32 v{20 + 2 * r}, v{S[r]}, v{S[r] + 1}')
        a(f'v_cvt_pk_bf16_f32 v{21 + 2 * r}, v{S[r] + 2}, v{S[r] + 3}')
    for r in range(2):
        a(f'{mf} {vr(G[r], 4)}, v[16:17], {vr(20 + 2 * r, 2)}, 0')
    for r in range(2):
        for n in range(4):
            a(f'v_mul_f32 v{G[r] + n}, v{G[r] + n}, v{H[r] + n}')
    a.wait_vm('m')
    for r in range(2):
        a(f'{mf} {vr(S[r], 4)}, v[18:19], {vr(36 + 2 * r, 2)}, {vr(G[r], 4)}')
    for r in range(2):
        a(f'v_cvt_pk_bf16_f32 v{24 + 2 * r}, v{S[r]}, v{S[r] + 1}')
        a(f'v_cvt_pk_bf16_f32 v{25 + 2 * r}, v{S[r] + 2}, v{S[r] + 3}')
    a('buffer_store_dwordx4 v[24:27], v2, s[16:19], 0 offen', tag='st')
    a.label('L3_end')
    a('s_endpgm')
    return name


from p2 import gen_p2


def main():
    a = Asm()
    ref = open('/code/' + NAME + '.s.ref').read().splitlines()
    for ln in ref:
        if ln.startswith('; Override') or not ln.startswith(';'):
            break
        a.raw(ln)
    a.raw('; @launch kernel=gs_sort_kernel grid=(256,1,1) block=(1024,1,1) lds=163840')
    a.raw('; @launch kernel=gs_acc_kernel grid=(256,1,1) block=(1024,1,1) lds=163840')
    if CFG['dup2']:
        a.raw('; @launch kernel=gs_acc_kernel grid=(256,1,1) block=(1024,1,1) lds=163840')
    a.raw('; @launch kernel=gs_final_kernel grid=(1250,1,1) block=(256,1,1) lds=0')
    a.raw('.amdgcn_target "amdgcn-amd-amdhsa--gfx950"')
    k1 = gen_p1(a)
    k2 = gen_p2(a, sys.modules[__name__])
    k3 = gen_p3(a)
    a.raw('.section .rodata,"a"')
    kernel_desc(a, k1, 128)
    kernel_desc(a, k2, 128)
    kernel_desc(a, k3, 72, 64)
    out = sys.argv[1] if len(sys.argv) > 1 else '/code/' + NAME + '.s'
    open(out, 'w').write(a.text())


if __name__ == '__main__':
    main()
```

```python
from asmlib import vr, sr

MF = 'v_mfma_f32_4x4x4_16b_bf16'


def gen_p2(a, G):
    name = 'gs_acc_kernel'
    CFG = G.CFG
    SEL, ANDOR, XANDN = G.SEL, G.ANDOR, G.XANDN
    G.kernel_head(a, name)
    T16, LANE4, T4, THR, CB, TB, MO, FA = 0, 1, 2, 3, 4, 5, 6, 7
    KAD, KCM, KCE, KSG = 8, 9, 10, 11
    ID, NID = 12, 14
    W = [16, 20, 24, 28]
    B = [32, 33, 34, 35]
    EC = [36, 37, 38, 39]
    EN = [40, 41, 42, 43]
    MP = [44 + 4 * n for n in range(5)]
    D = [64 + 4 * n for n in range(5)]
    M, OLD, NEW, OLD2 = 84, 86, 88, 90
    X, N, DL = 92, 96, 100
    AO = [104, 105]
    AI, C, NV, U = 106, 107, 108, 109
    e = list(range(110, 120))
    sW, sQ, sOB, sSP, sSlow, sBase, sLB, sTab, sMD, sN = 32, 33, 34, 35, 36, 37, 38, 39, 40, 41
    sP = [44, 45, 46, 47]
    sPH = 42
    a('s_cmp_ge_u32 s2, 256')
    a('s_cbranch_scc1 L2_end')
    a('s_load_dwordx2 s[30:31], s[0:1], 104')
    a('v_lshrrev_b32 v16, 6, v0')
    a('v_and_b32 v17, 63, v0')
    a(f'v_readfirstlane_b32 s{sW}, v16')
    a(f's_bfe_u32 s{sQ}, s2, 0x20001')
    a(f's_and_b32 s{sOB}, s2, 1')
    a(f's_lshl_b32 s{sOB}, s{sOB}, 5')
    a('s_lshr_b32 s3, s2, 3')
    a(f's_add_u32 s{sOB}, s{sOB}, s3')
    a(f'v_lshlrev_b32 v{LANE4}, 2, v17')
    a(f'v_and_b32 v{T4}, 12, v{LANE4}')
    a(f'v_sub_u32 v{THR}, 16, v{T4}')
    a('v_lshrrev_b32 v18, 2, v17')
    a('v_mul_u32_u24 v19, 80, v16')
    a('v_add_u32 v18, v18, v19')
    a(f's_mov_b32 s3, {G.REC_CH}')
    a(f'v_mul_lo_u32 v{CB}, v18, s3')
    a(f'v_or_b32 v{CB}, 0xf0000000, v{CB}')
    a(f'v_mul_u32_u24 v{TB}, {G.TAB_CH}, v18')
    a(f'v_mul_u32_u24 v{MO}, 5120, v16')
    a(f'v_lshl_add_u32 v{MO}, v17, 4, v{MO}')
    a(f'v_add_u32 v{FA}, {G.M_BASE}, v{MO}')
    G.ident(a, ID, 18, 0)
    G.ident(a, NID, 18, 0, neg=True)
    a(f'v_lshlrev_b32 v{T16}, 4, v0')
    a(f'v_mov_b32 v{KAD}, 0x1fff8')
    a(f'v_mov_b32 v{KCM}, 0x07ff0000')
    a(f'v_mov_b32 v{KCE}, 0x38000000')
    a(f'v_mov_b32 v{KSG}, 0x80000000')
    for k in range(4):
        a(f's_mov_b32 s{sP[k]}, {0x04000c0c | (k << 16):#x}')
    a(f's_mul_i32 s{sLB}, s{sW}, 1280')
    a(f's_add_u32 s{sLB}, s{sLB}, {G.M_BASE // 4}')
    a(f's_mul_i32 s{sTab}, s{sQ}, {4 * 65 * 8}')
    a(f's_lshl_b32 s3, s{sOB}, 3')
    a(f's_add_u32 s{sTab}, s{sTab}, s3')
    a(f's_mul_i32 s{sMD}, s{sQ}, {16 * 80000}')
    a(f's_mov_b32 s{sSlow}, 0')
    a(f's_mov_b32 s{sSP}, 0')
    a(f's_mov_b32 s{sPH}, 0')
    a('s_waitcnt lgkmcnt(0)')
    G.srd(a, 8, 30, G.REC_OFF, G.REC_SZ)
    G.srd(a, 12, 30, G.TAB_OFF, G.TAB_SZ)
    G.srd(a, 24, 30, G.TAB_OFF, G.TAB_SZ)
    G.srd(a, 16, 30, G.MD_OFF, G.MD_SZ)
    G.srd(a, 20, 30, G.PART_OFF, 80000)
    a(f's_lshl_b32 s3, s{sQ}, 6')
    a(f's_add_u32 s3, s3, s{sOB}')
    a('s_mul_i32 s3, s3, 80000')
    a('s_add_u32 s20, s20, s3')
    a('s_addc_u32 s21, s21, 0')

    def load_desc(soff):
        for k in range(5):
            if k:
                a(f'v_add_u32 v{e[k]}, {k * 16 * G.TAB_CH:#x}, v{TB}')
            a(f'buffer_load_dwordx4 {vr(D[k], 4)}, v{e[k] if k else TB}, s[12:15], s{soff} offen')

    def load_m():
        for n in range(5):
            if n == 4:
                a(f's_add_u32 s3, s{sMD}, 4096')
                a(f'buffer_load_dwordx4 {vr(MP[n], 4)}, v{MO}, s[16:19], s3 offen')
            else:
                a(f'buffer_load_dwordx4 {vr(MP[n], 4)}, v{MO}, s[16:19], s{sMD} offen offset:{n * 1024}')
        a(f's_add_u32 s{sMD}, s{sMD}, {0x10000000 if CFG["ab_nom"] else 80000}')

    def fill(n):
        a(f'ds_write_b128 v{FA}, {vr(MP[n], 4)} offset:{n * 1024}')

    ool = []
    uid = [0]

    def expand(j, pbit, early=None):
        uid[0] += 1
        u = uid[0]
        s_, e_, p_, d_, hi, lo, ent, ad, cb = e[:9]
        a(f's_mov_b32 s{sBase}, s{sLB}')
        a(f's_add_u32 s48, s{sLB}, 257')
        for k in range(5):
            if j & 1:
                a(f'v_lshrrev_b32 v{s_}, 16, v{D[k] + (j >> 1)}')
                a(f'v_lshrrev_b32 v{e_}, 16, v{D[k] + 2 + (j >> 1)}')
            else:
                a(f'v_and_b32 v{s_}, 0xffff, v{D[k] + (j >> 1)}')
                a(f'v_and_b32 v{e_}, 0xffff, v{D[k] + 2 + (j >> 1)}')
            a(f'v_and_b32 v{p_}, -4, v{s_}')
            a(f'v_add_u32 v{p_}, v{p_}, v{T4}')
            if k:
                a(f'v_add_u32 v{cb}, {k * 16 * G.REC_CH:#x}, v{CB}')
            a.label(f'L2_x{u}_{k}')
            a(f'v_sub_u32 v{d_}, v{e_}, v{p_}')
            a(f'v_sub_u32 v{lo}, v{s_}, v{p_}')
            a(f'v_med3_i32 v{hi}, v{d_}, 0, 4')
            a(f'v_max_i32 v{lo}, 0, v{lo}')
            a(f'v_cmp_gt_i32 vcc, v{hi}, v{lo}')
            a(f'v_mad_u32_u24 v{ent}, v{p_}, 5, v{cb if k else CB}')
            a(f'v_bfm_b32 v{hi}, v{hi}, 28')
            a(f'v_bfm_b32 v{lo}, v{lo}, 28')
            a(f'v_mbcnt_lo_u32_b32 v{ad}, vcc_lo, 0')
            a(f'v_mbcnt_hi_u32_b32 v{ad}, vcc_hi, v{ad}')
            a(f'v_bitop3_b32 v{ent}, v{hi}, v{lo}, v{ent} bitop3:{XANDN:#x}')
            a(f'v_add_lshl_u32 v{ad}, v{ad}, s{sBase}, 2')
            a(f's_bcnt1_i32_b64 s{sN}, vcc')
            a('s_mov_b64 exec, vcc')
            a(f'ds_write_b32 v{ad}, v{ent}')
            a('s_mov_b64 exec, -1')
            a(f'v_cmp_gt_i32 vcc, v{d_}, v{THR}')
            a(f's_add_u32 s{sBase}, s{sBase}, s{sN}')
            a(f's_min_u32 s{sBase}, s{sBase}, s48')
            a(f's_cbranch_vccnz L2_xe{u}_{k}')
            a.label(f'L2_xr{u}_{k}')
            ool.append([f'L2_xe{u}_{k}:',
                        f's_cmp_ge_u32 s{sBase}, s48',
                        f's_cbranch_scc1 L2_xr{u}_{k}',
                        f'v_add_u32 v{p_}, 16, v{p_}',
                        f's_branch L2_x{u}_{k}'])
            if early and k < len(early):
                fill(early[k])
        a(f's_lshl_b32 s3, s{sBase}, 2')
        a(f'v_add_u32 v{ad}, s3, v{LANE4}')
        a(f'v_mov_b32 v{ent}, -1')
        a(f'ds_write_b32 v{ad}, v{ent}')
        a(f's_lshl_b32 s3, s{sLB}, 2')
        a(f'v_add_u32 v{ad}, s3, v{LANE4}')
        a(f'ds_read2st64_b32 {vr(EN[0], 2)}, v{ad} offset0:0 offset1:1')
        a(f'ds_read2st64_b32 {vr(EN[2], 2)}, v{ad} offset0:2 offset1:3')
        a(f's_sub_u32 s{sN}, s{sBase}, s{sLB}')
        a(f's_sub_u32 s3, s{sN}, 192')
        a('s_cmp_gt_u32 s3, 64')
        a(f's_cbranch_scc1 L2_xf{u}')
        a.label(f'L2_xg{u}')
        blk = [f'L2_xf{u}:',
               f's_cmp_le_u32 s{sN}, 256',
               f's_cbranch_scc1 L2_xh{u}',
               f's_add_u32 s3, s{sPH}, {pbit}',
               f's_bitset1_b32 s{sSlow}, s3',
               f's_mov_b32 s{sN}, 0',
               f'L2_xh{u}:',
               f's_lshl_b32 s{sN}, s{sN}, 2',
               's_waitcnt lgkmcnt(0)']
        for g in range(4):
            blk += [f'v_add_u32 v{ad}, {256 * g}, v{LANE4}',
                    f'v_cmp_gt_u32 vcc, s{sN}, v{ad}',
                    's_nop 1',
                    f'v_cndmask_b32 v{EN[g]}, -1, v{EN[g]}, vcc']
        blk += [f's_branch L2_xg{u}']
        ool.append(blk)

    def load_rec(g):
        a(f'v_and_b32 v{U}, {0xffff if CFG["ab_norec"] else 0x0fffffff:#x}, v{EN[g]}')
        a(f'v_mov_b32 v{EC[g]}, v{EN[g]}')
        a(f'buffer_load_dwordx4 {vr(W[g], 4)}, v{U}, s[8:11], 0 offen')
        a(f'buffer_load_dword v{B[g]}, v{U}, s[8:11], 0 offen offset:16')

    def dec_addr(j):
        g, k = j >> 2, j & 3
        w = W[g] + k
        a(f'v_and_b32 v{NV}, {1 << (28 + k):#x}, v{EC[g]}')
        a(f'v_lshrrev_b32 v{AI}, 14, v{w}')
        a(f'v_bitop3_b32 v{AI}, v{AI}, v{KAD}, v{NV} bitop3:{ANDOR:#x}')
        a(f'ds_read_b64 {vr(M, 2)}, v{AI} offset:{G.M_OFFS}')

    def dec_rest(j):
        g, k = j >> 2, j & 3
        w = W[g] + k
        a(f'v_perm_b32 v{C}, v{w}, v{B[g]}, s{sP[k]}')
        a(f'v_bitop3_b32 v{AO[j & 1]}, v{w}, v{KAD}, v{NV} bitop3:{ANDOR:#x}')
        a(f'v_bitop3_b32 v{C}, v{C}, v{KCM}, v{KCE} bitop3:{ANDOR:#x}')
        a(f'v_bitop3_b32 v{C}, v{w}, v{KSG}, v{C} bitop3:{ANDOR:#x}')
        if k == 3:
            load_rec(g)

    def check(j):
        if CFG['ab_nofix']:
            a('s_nop 2')
            return
        uid[0] += 1
        u = uid[0]
        a(f'v_cmpx_ne_u64 vcc, {vr(OLD2, 2)}, {vr(OLD, 2)}')
        a(f's_cbranch_execz L2_c{u}')
        a(f'{MF} {vr(DL, 4)}, {vr(NID, 2)}, {vr(OLD, 2)}, 0')
        a(f'{MF} {vr(DL, 4)}, {vr(ID, 2)}, {vr(OLD2, 2)}, {vr(DL, 4)}')
        a(f'v_cvt_pk_bf16_f32 v{DL}, v{DL}, v{DL + 1}')
        a(f'v_cvt_pk_bf16_f32 v{DL + 1}, v{DL + 2}, v{DL + 3}')
        a(f'ds_pk_add_bf16 v{AO[j & 1]}, v{DL}')
        a(f'ds_pk_add_bf16 v{AO[j & 1]}, v{DL + 1} offset:4')
        a.label(f'L2_c{u}')
        a('s_mov_b64 exec, -1')

    def main_phase(nvm):
        if CFG['ab_nomain']:
            for g in range(4):
                a(f's_waitcnt vmcnt({nvm})')
                load_rec(g)
            a.vm = []
            return
        a(f's_waitcnt vmcnt({nvm})')
        dec_addr(0)
        dec_rest(0)
        for j in range(16):
            a(f's_waitcnt lgkmcnt({1 if j else 0})')
            a(f'{MF} {vr(X, 4)}, {vr(ID, 2)}, {vr(M, 2)}, 0')
            if j:
                a('s_waitcnt lgkmcnt(0)')
                check(j - 1)
            a(f'ds_read_b64 {vr(OLD, 2)}, v{AO[j & 1]}')
            for n in range(4):
                a(f'v_mul_f32 v{X + n}, v{C}, v{X + n}')
            if j < 15:
                if (j + 1) & 3 == 0:
                    a(f's_waitcnt vmcnt({nvm})')
                dec_addr(j + 1)
                a('s_waitcnt lgkmcnt(1)')
            else:
                a('s_waitcnt lgkmcnt(0)')
            a(f'{MF} {vr(N, 4)}, {vr(ID, 2)}, {vr(OLD, 2)}, {vr(X, 4)}')
            if j < 15:
                dec_rest(j + 1)
            a(f'v_cvt_pk_bf16_f32 v{NEW}, v{N}, v{N + 1}')
            a(f'v_cvt_pk_bf16_f32 v{NEW + 1}, v{N + 2}, v{N + 3}')
            a(f'ds_wrxchg_rtn_b64 {vr(OLD2, 2)}, v{AO[j & 1]}, {vr(NEW, 2)}')
        a('s_waitcnt lgkmcnt(0)')
        check(15)
        a.vm = []

    def stamp(i):
        if not CFG['stamp']:
            return
        a('s_memtime s[70:71]')
        a('s_waitcnt lgkmcnt(0)')
        a('s_sub_u32 s72, s70, s73')
        a('s_mov_b32 s73, s70')
        a(f's_add_u32 s{60 + i}, s{60 + i}, s72')

    if CFG['stamp']:
        for i in range(8):
            a(f's_mov_b32 s{60 + i}, 0')
        a('s_mov_b32 s73, 0')
        stamp(7)
    load_desc(sTab)
    load_m()
    for n in range(4):
        a(f'v_mov_b32 v{X + n}, 0')
    for n in range(4):
        a(f'ds_write_b128 v{T16}, {vr(X, 4)} offset:{n * 16384}')
    a(f'v_add_u32 v{U}, 0x10000, v{T16}')
    a(f'v_cmp_gt_u32 vcc, 80000, v{U}')
    a('s_mov_b64 exec, vcc')
    a(f'ds_write_b128 v{U}, {vr(X, 4)}')
    a('s_mov_b64 exec, -1')
    a('s_waitcnt vmcnt(5)')
    expand(0, 0)
    a('s_waitcnt lgkmcnt(0)')
    for g in range(4):
        load_rec(g)
    a('s_waitcnt vmcnt(8)')
    expand(1, 1, early=[2, 3, 4])
    fill(0)
    fill(1)
    load_m()
    a('s_waitcnt lgkmcnt(0)')
    a('s_barrier')
    a.vm = []
    stamp(0)
    a.label('L2_loop')
    for jj in range(4):
        a.c(f'==== phase jj={jj}')
        main_phase(16 if jj == 2 else 11)
        a(f's_bitcmp1_b32 s{sSlow}, s{sPH}')
        a('s_cbranch_scc1 L2_slow')
        a.label(f'L2_ret{jj}')
        stamp(1)
        if jj == 3:
            a(f's_cmp_eq_u32 s{sSP}, 3')
            a('s_cbranch_scc1 L2_done')
            a(f's_add_u32 s{sSP}, s{sSP}, 1')
        a('s_barrier')
        stamp(2)
        a('s_waitcnt vmcnt(8)')
        stamp(3)
        expand((jj + 2) & 3, 2, early=[2, 3, 4])
        fill(0)
        fill(1)
        if jj == 1:
            a(f's_cmp_eq_u32 s{sSP}, 3')
            a('s_cselect_b32 s14, 0, s14')
            a(f's_mul_i32 s3, s{sSP}, {65 * 8}')
            a(f's_add_u32 s3, s3, {65 * 8}')
            a(f's_add_u32 s49, s3, s{sTab}')
            load_desc(49)
        load_m()
        a(f's_add_u32 s{sPH}, s{sPH}, 1')
        a('s_waitcnt lgkmcnt(0)')
        stamp(4)
        a('s_barrier')
        stamp(5)
        a.vm = []
    a('s_branch L2_loop')
    a.label('L2_done')
    a('s_waitcnt lgkmcnt(0)')
    a('s_barrier')
    a(f'v_add_u32 v{e[4]}, 0x10000, v{T16}')
    a('s_waitcnt vmcnt(0)')
    for n in range(4):
        a(f'ds_read_b128 {vr(MP[n], 4)}, v{T16} offset:{n * 16384}')
    a(f'ds_read_b128 {vr(MP[4], 4)}, v{e[4]}')
    for n in range(1, 4):
        a(f'v_add_u32 v{e[n]}, {n * 16384}, v{T16}')
    for n in range(5):
        a(f's_waitcnt lgkmcnt({4 - n})')
        a(f'buffer_store_dwordx4 {vr(MP[n], 4)}, v{e[n] if n else T16}, s[20:23], 0 offen')
    if CFG['stamp']:
        a('s_waitcnt vmcnt(0)')
        stamp(6)
        a('s_load_dwordx2 s[74:75], s[0:1], 96')
        a('s_waitcnt lgkmcnt(0)')
        G.srd(a, 76, 74, 0, 256)
        a(f's_cmp_lg_u32 s2, {CFG["stamp"]}')
        a('s_cbranch_scc1 L2_end')
        a(f's_and_b32 s3, s{sW}, 3')
        a('s_cmp_lg_u32 s3, 0')
        a('s_cbranch_scc1 L2_end')
        a(f's_lshl_b32 s3, s{sW}, 3')
        a('v_mov_b32 v20, 0')
        for i in range(8):
            a(f'v_mov_b32 v21, s{60 + i}')
            a(f'buffer_store_dword v21, v20, s[76:79], s3 offen offset:{4 * i}')
    a.label('L2_end')
    a('s_endpgm')

    a.label('L2_slow')
    a.reset()
    sC, sS, sE, sO = 50, 51, 52, 53
    p_, t_, wa, ba, w_, b_ = e[:6]
    a(f's_mul_i32 s{sC}, s{sW}, 80')
    a(f's_add_u32 s57, s{sC}, 80')
    a(f's_min_u32 s57, s57, {G.NCH}')
    a(f's_lshr_b32 s3, s{sPH}, 2')
    a(f's_mul_i32 s{sO}, s3, {65 * 8}')
    a(f's_add_u32 s{sO}, s{sO}, s{sTab}')
    a(f's_and_b32 s3, s{sPH}, 2')
    a('s_lshl_b32 s3, s3, 1')
    a(f's_add_u32 s{sO}, s{sO}, s3')
    a(f's_and_b32 s54, s{sPH}, 1')
    a('s_lshl_b32 s54, s54, 4')
    a.label('L2_sl_seg')
    a(f's_mul_i32 s3, s{sC}, {G.TAB_CH}')
    a(f's_add_u32 s3, s3, s{sO}')
    a('s_add_u32 s55, s3, 8')
    a(f's_buffer_load_dword s{sS}, s[24:27], s3')
    a(f's_buffer_load_dword s{sE}, s[24:27], s55')
    a(f's_mul_i32 s56, s{sC}, {G.REC_CH}')
    a('s_waitcnt lgkmcnt(0)')
    a(f's_lshr_b32 s{sS}, s{sS}, s54')
    a(f's_and_b32 s{sS}, s{sS}, 0xffff')
    a(f's_lshr_b32 s{sE}, s{sE}, s54')
    a(f's_and_b32 s{sE}, s{sE}, 0xffff')
    a.label('L2_sl_rec')
    a(f's_cmp_ge_u32 s{sS}, s{sE}')
    a('s_cbranch_scc1 L2_sl_next')
    a(f'v_lshrrev_b32 v{p_}, 2, v{LANE4}')
    a(f'v_add_u32 v{p_}, s{sS}, v{p_}')
    a(f'v_and_b32 v{t_}, -4, v{p_}')
    a(f'v_lshl_add_u32 v{wa}, v{p_}, 2, v{t_}')
    a(f'v_lshl_add_u32 v{ba}, v{t_}, 2, v{p_}')
    a(f'v_cmp_gt_u32 vcc, s{sE}, v{p_}')
    a('s_mov_b64 exec, vcc')
    a(f'buffer_load_dword v{w_}, v{wa}, s[8:11], s56 offen')
    a(f'buffer_load_ubyte v{b_}, v{ba}, s[8:11], s56 offen offset:16')
    a('s_waitcnt vmcnt(0)')
    a(f'v_lshrrev_b32 v{AI}, 14, v{w_}')
    a(f'v_and_b32 v{AI}, v{KAD}, v{AI}')
    a(f'ds_read_b64 {vr(M, 2)}, v{AI} offset:{G.M_OFFS}')
    a(f'v_perm_b32 v{C}, v{w_}, v{b_}, s{sP[0]}')
    a(f'v_and_b32 v{AO[0]}, v{KAD}, v{w_}')
    a(f'v_bitop3_b32 v{C}, v{C}, v{KCM}, v{KCE} bitop3:{ANDOR:#x}')
    a(f'v_bitop3_b32 v{C}, v{w_}, v{KSG}, v{C} bitop3:{ANDOR:#x}')
    a('s_waitcnt lgkmcnt(0)')
    a(f'{MF} {vr(X, 4)}, {vr(ID, 2)}, {vr(M, 2)}, 0')
    for n in range(4):
        a(f'v_mul_f32 v{X + n}, v{C}, v{X + n}')
    a(f'v_cvt_pk_bf16_f32 v{NEW}, v{X}, v{X + 1}')
    a(f'v_cvt_pk_bf16_f32 v{NEW + 1}, v{X + 2}, v{X + 3}')
    a(f'ds_pk_add_bf16 v{AO[0]}, v{NEW}')
    a(f'ds_pk_add_bf16 v{AO[0]}, v{NEW + 1} offset:4')
    a('s_mov_b64 exec, -1')
    a(f's_add_u32 s{sS}, s{sS}, 64')
    a('s_branch L2_sl_rec')
    a.label('L2_sl_next')
    a(f's_add_u32 s{sC}, s{sC}, 1')
    a(f's_cmp_lt_u32 s{sC}, s57')
    a('s_cbranch_scc1 L2_sl_seg')
    a('s_waitcnt lgkmcnt(0)')
    a(f's_and_b32 s3, s{sPH}, 3')
    for jj in range(3):
        a(f's_cmp_eq_u32 s3, {jj}')
        a(f's_cbranch_scc1 L2_ret{jj}')
    a('s_branch L2_ret3')
    for blk in ool:
        for ln in blk:
            if ln.endswith(':'):
                a.label(ln[:-1])
                a.reset()
            else:
                a(ln)
    return name
```

```python
import re

TRANS = ('v_exp_f32', 'v_log_f32', 'v_rcp_f32', 'v_rsq_f32', 'v_sqrt_f32', 'v_sin_f32', 'v_cos_f32')


def regs_of(tok):
    tok = tok.strip()
    tok = re.sub(r'^-', '', tok)
    m = re.fullmatch(r'abs\((.*)\)', tok)
    if m:
        tok = m.group(1)
    m = re.fullmatch(r'([vsa])(\d+)', tok)
    if m:
        return {(m.group(1), int(m.group(2)))}
    m = re.fullmatch(r'([vsa])\[(\d+):(\d+)\]', tok)
    if m:
        return {(m.group(1), i) for i in range(int(m.group(2)), int(m.group(3)) + 1)}
    if tok in ('vcc', 'vcc_lo', 'vcc_hi'):
        return {('s', 'vcc')}
    if tok in ('exec', 'exec_lo', 'exec_hi'):
        return {('s', 'exec')}
    if tok == 'm0':
        return {('s', 'm0')}
    return set()


class Ins:
    def __init__(self, text):
        self.text = text
        t = text.split(';')[0].strip()
        parts = t.split(None, 1)
        self.op = parts[0]
        rest = parts[1] if len(parts) > 1 else ''
        toks = [x.strip() for x in rest.split(',')] if rest else []
        ops = []
        for x in toks:
            ops.append(x.split()[0] if x else x)
        self.ops = ops
        op = self.op
        self.is_mfma = op.startswith('v_mfma')
        self.is_valu = op.startswith('v_') and not self.is_mfma
        self.is_ds = op.startswith('ds_')
        self.is_vmem = op.startswith(('buffer_', 'global_'))
        self.is_salu = op.startswith('s_')
        self.is_dpp = '_dpp' in op or 'row_' in rest or 'quad_perm' in rest or 'wave_' in rest
        self.is_sdwa_dst = 'dst_sel:BYTE' in rest or 'dst_sel:WORD' in rest
        self.is_trans = op.replace('_e32', '').replace('_e64', '') in TRANS
        self.w = set()
        self.r = set()
        R = [regs_of(x) for x in ops]
        if self.is_valu or self.is_mfma:
            nw = 1
            if re.match(r'v_(add|sub|subrev|addc|subb)_co_u32', op):
                nw = 2
            if op.startswith('v_swap'):
                nw = 2
            for x in R[:nw]:
                self.w |= x
            for x in R[nw:]:
                self.r |= x
            if op.startswith(('v_swap', 'v_fmac', 'v_dot2c', 'v_writelane')) or 'UNUSED_PRESERVE' in rest or self.is_dpp:
                self.r |= self.w
            if op.startswith('v_cmpx'):
                self.w |= {('s', 'exec')}
            if self.is_mfma:
                self.srcc = R[3]
                self.srcab = R[1] | R[2]
        elif self.is_ds:
            if re.match(r'ds_(read|bpermute|permute|swizzle)', op) or '_rtn_' in op:
                self.w |= R[0]
                for x in R[1:]:
                    self.r |= x
            else:
                for x in R:
                    self.r |= x
        elif self.is_vmem:
            if '_load_' in op and ' lds' not in rest:
                self.w |= R[0]
                for x in R[1:]:
                    self.r |= x
                if 'd16' in op:
                    self.r |= R[0]
            else:
                for x in R:
                    self.r |= x
            self.wide_store = ('store_dwordx4' in op or 'store_dwordx3' in op)
            self.sdata = (R[0] if R else set()) if op.startswith('buffer_') else (R[1] if len(R) > 1 else set())
        elif self.is_salu:
            if op.startswith(('s_cmp', 's_cbranch', 's_branch', 's_waitcnt', 's_nop', 's_barrier', 's_endpgm', 's_setprio', 's_bitcmp', 's_sleep')):
                for x in R:
                    self.r |= x
            else:
                if R:
                    self.w |= R[0]
                for x in R[1:]:
                    self.r |= x
                if 'saveexec' in op:
                    self.w |= {('s', 'exec')}

    def states(self):
        if self.op == 's_nop':
            return int(self.ops[0], 0) + 1
        return 1


def need(p, c):
    n = 0
    vs = lambda S: {x for x in S if x[0] in 'va'}
    ss = lambda S: {x for x in S if x[0] == 's'}
    if p.is_valu:
        if c.is_mfma and vs(p.w) & c.r:
            n = max(n, 2)
        if c.is_mfma and ('s', 'exec') in p.w:
            n = max(n, 4)
        if c.is_valu and c.is_dpp and vs(p.w) & c.r:
            n = max(n, 2)
        if c.is_valu and c.is_dpp and ('s', 'exec') in p.w:
            n = max(n, 5)
        if p.is_trans and c.is_valu and vs(p.w) & (c.r | c.w):
            n = max(n, 1)
        if p.is_sdwa_dst and c.is_valu and vs(p.w) & (c.r | c.w):
            n = max(n, 1)
        if c.is_valu and c.op.startswith(('v_readlane', 'v_readfirstlane')) and vs(p.w) & c.r:
            n = max(n, 1)
        if c.is_valu and c.op.startswith('v_permlane') and vs(p.w) & (c.r | c.w):
            n = max(n, 2)
        sw = ss(p.w)
        if c.is_valu and (sw - {('s', 'exec')}) & c.r:
            n = max(n, 4 if c.op.startswith(('v_readlane', 'v_writelane')) else 2)
        if c.is_valu and ('s', 'exec') in sw:
            if ('s', 'exec') in c.r:
                n = max(n, 2)
            if c.op.startswith(('v_readlane', 'v_writelane', 'v_readfirstlane', 'v_permlane')):
                n = max(n, 4)
        if c.is_vmem and sw & c.r:
            n = max(n, 5)
    if p.is_mfma:
        D = p.w
        if c.is_mfma:
            if D & c.srcab:
                n = max(n, 5)
            if D & c.srcc:
                n = max(n, 2 if D == c.srcc else 4)
            if D & c.w and not (D & c.srcc):
                n = max(n, 4)
        elif (c.is_valu or c.is_ds or c.is_vmem) and D & (c.r | c.w):
            n = max(n, 5)
        if c.is_valu and p.srcc & c.w:
            n = max(n, 1)
    if p.is_vmem and getattr(p, 'wide_store', False):
        if p.sdata & c.w:
            n = max(n, 2)
    if p.is_salu and ('s', 'm0') in p.w:
        if (c.is_vmem and ' lds' in c.text) or 'addtid' in c.op or c.op.startswith('s_movrel'):
            n = max(n, 1)
    return n


class Asm:
    def __init__(self):
        self.lines = []
        self.hist = []
        self.vm = []
        self.lg = []
        self.nops = 0
        self.nvm = 0
        self.nld = 0

    def raw(self, s):
        self.lines.append(s)

    def c(self, s):
        self.lines.append('    ; ' + s)

    def label(self, name):
        self.lines.append(name + ':')

    def reset(self):
        self.hist = []
        self.vm = []
        self.lg = []

    def fence(self, n=5):
        self('s_nop %d' % (n - 1))

    def __call__(self, text, tag=None):
        ins = Ins(text)
        dist = 0
        pad = 0
        for p in reversed(self.hist):
            k = need(p, ins)
            if k - dist > pad:
                pad = k - dist
            dist += p.states()
            if dist >= 8:
                break
        if pad > 0:
            nop = Ins('s_nop %d' % (pad - 1))
            self.lines.append('    ' + nop.text)
            self.hist.append(nop)
            self.nops += 1
        self.lines.append('    ' + text)
        self.hist.append(ins)
        self.hist = self.hist[-12:]
        if ins.is_vmem:
            self.vm.append(tag)
            self.nvm += 1
            self.nld += '_load_' in ins.op
            assert len(self.vm) <= 63, 'too many outstanding vmem'
        if ins.is_ds:
            self.lg.append(tag)
        if ins.op == 's_waitcnt':
            m = re.search(r'lgkmcnt\((\d+)\)', text)
            if m:
                n = int(m.group(1))
                self.lg = self.lg[len(self.lg) - n:] if n < len(self.lg) else self.lg
                if n == 0:
                    self.lg = []
            m = re.search(r'vmcnt\((\d+)\)', text)
            if m:
                n = int(m.group(1))
                self.vm = self.vm[len(self.vm) - n:] if n < len(self.vm) else self.vm
                if n == 0:
                    self.vm = []

    def wait_lg(self, *tags):
        last = -1
        for i, t in enumerate(self.lg):
            if t in tags:
                last = i
        if last < 0:
            return
        n = min(len(self.lg) - 1 - last, 14)
        self('s_waitcnt lgkmcnt(%d)' % n)

    def wait_vm(self, tags):
        if not isinstance(tags, (set, list, tuple)) or isinstance(tags, tuple):
            tags = [tags]
        last = -1
        for i, t in enumerate(self.vm):
            if (any(x in tags for x in t) if isinstance(t, frozenset) else t in tags):
                last = i
        if last < 0:
            return
        n = len(self.vm) - 1 - last
        self('s_waitcnt vmcnt(%d)' % n)

    def text(self):
        return '\n'.join(self.lines) + '\n'


def vr(a, n=1):
    return 'v%d' % a if n == 1 else 'v[%d:%d]' % (a, a + n - 1)


def sr(a, n=1):
    return 's%d' % a if n == 1 else 's[%d:%d]' % (a, a + n - 1)


def merge_vm(v1, v2):
    y = {}
    for vm in (v1, v2):
        for i, t in enumerate(vm):
            for x in (t if isinstance(t, frozenset) else [t]):
                n = len(vm) - 1 - i
                y[x] = min(y.get(x, n), n)
    if not y:
        return []
    m = max(y.values())
    return [frozenset(t for t in y if y[t] == n) for n in range(m, -1, -1)]
```

```python
from asmlib import vr, sr

MF = 'v_mfma_f32_4x4x4_16b_bf16'


def gen_p1(a, G):
    name = 'gs_sort_kernel'
    CFG = G.CFG
    SEL, ANDOR = G.SEL, G.ANDOR
    srd, tl_mark = G.srd, G.tl_mark
    T, E, CH, BLK = G.T, G.E, G.CH, G.BLK
    NW, NK = 256, 5
    G.kernel_head(a, name)
    a('s_cmp_ge_u32 s2, 256')
    a('s_cbranch_scc1 L1_end')
    G.tl_start(a)
    if CFG['wgx']:
        a(f's_xor_b32 s2, s2, {CFG["wgx"]}')
    a('s_load_dwordx4 s[4:7], s[0:1], 8')
    a('s_load_dwordx2 s[28:29], s[0:1], 32')
    a('s_load_dwordx2 s[30:31], s[0:1], 104')
    a('s_load_dwordx2 s[56:57], s[0:1], 96')
    a('s_load_dwordx2 s[86:87], s[0:1], 0')
    a('s_load_dwordx4 s[60:63], s[0:1], 56')
    a('s_load_dwordx4 s[64:67], s[0:1], 72')
    T16, T8, ONE, K1F, K87, KFC, K78 = 0, 1, 2, 3, 4, 5, 6
    t = list(range(7, 16))
    sW, sI, sA, sR, sT, sTmp, sI4, sA4 = 32, 33, 34, 35, 36, 37, 38, 39
    sKB, sP1, sP3, sNQ, sM10, sI5, sA5, sTK = 40, 41, 42, 43, 55, 58, 59, 84
    a('v_lshrrev_b32 v7, 6, v0')
    a(f'v_lshlrev_b32 v{T8}, 3, v0')
    a(f'v_readfirstlane_b32 s{sW}, v7')
    a(f'v_lshlrev_b32 v{T16}, 4, v0')
    IL = CFG['il']
    CUT = [int(x) for x in CFG['cut'].split()]
    assert sum(CUT) == 528 and sorted(CUT) == CUT and CUT[2] <= 256

    def qoff(k, j):
        if not IL:
            return ((2, j) if j >= 5 else (1, j)) if k == NK - 1 else (0, k * NW * 8 + j)
        if k == NK - 1 and j >= 5:
            return 2, 9472 + sum(CUT[::-1][:j - 5])
        return 0, (k * 8 + j) * NW
    a(f's_mul_i32 s{sI}, s2, {16384 if IL else CH * 4}')
    a(f's_mul_i32 s{sA}, s2, {8192 if IL else CH * 2}')
    a('s_waitcnt lgkmcnt(0)')
    srd(a, 8, 4, 0, T * 4)
    srd(a, 12, 6, 0, T * 4)
    srd(a, 16, 28, 0, T * 2)

    pool = [16 + 4 * i for i in range(28)]
    items = []
    for k in range(NK):
        for o in range(4):
            items += [(k, 'I', 2 * o), (k, 'O', 2 * o), (k, 'A', o), (k, 'I', 2 * o + 1), (k, 'O', 2 * o + 1)]
    where = {}
    st = dict(next=0, tmp=0)

    def soff(base, off):
        r = 44 + st['tmp'] % 4
        st['tmp'] += 1
        a(f's_add_u32 s{r}, s{base}, {off:#x}')
        return r

    def gate(j, word):
        a(f's_cmp_le_u32 s{sNQ}, {j}')
        a(f's_cselect_b32 s{word}, 0, s{word}')

    def issue(n, limit):
        while n > 0 and st['next'] < min(limit, len(items)) and pool:
            it = items[st['next']]
            st['next'] += 1
            n -= 1
            b = pool.pop(0)
            where[it] = b
            k, kind, j = it
            lastk = k == NK - 1
            if kind == 'A':
                for h in range(2):
                    if lastk and 2 * j + h >= 5:
                        assert st.get('assigned') or not CFG['dyn']
                        gate(2 * j + h, 18)
                    bs, qo = qoff(k, 2 * j + h)
                    r = soff((sA, sA4, sA5)[bs], qo * 8192)
                    a(f'buffer_load_dwordx2 {vr(b + 2 * h, 2)}, v{T8}, s[16:19], s{r} offen{CFG["ld_pol"]}', tag=it)
            else:
                s = 8 if kind == 'I' else 12
                if lastk and j >= 5:
                    gate(j, s + 2)
                bs, qo = qoff(k, j)
                r = soff((sI, sI4, sI5)[bs], qo * 16384)
                a(f'buffer_load_dwordx4 {vr(b, 4)}, v{T16}, s[{s}:{s+3}], s{r} offen{CFG["ld_pol"]}', tag=it)

    issue(CFG['p1_first'], 20)
    srd(a, 68, 62, 0, 64)
    srd(a, 72, 60, 0, 64)
    srd(a, 20, 66, 0, 32)
    srd(a, 80, 64, 0, 32)
    srd(a, 24, 30, G.WT_OFF, G.WT_SZ)
    a(f'v_lshrrev_b32 v2, 3, v{T16}')
    a('v_and_b32 v2, 6, v2')
    a(f'v_lshlrev_b32 v3, 2, v{T16}')
    a(f's_lshl_b32 s3, s{sW}, 8')
    a('s_add_u32 s3, s3, s2')
    a('s_cmp_lg_u32 s3, 254')
    a('s_cbranch_scc1 L1_wt')
    vm = list(a.vm)
    assert min(pool) <= 96 and all(b in pool for b in range(96, 128, 4))

    def load_wt(dst, s, k0):
        for k in range(4):
            a(f'buffer_load_ushort v{(dst + (k >> 1)) + 12 * (k & 1)}, v2, s[{s}:{s+3}], 0 offen offset:{(k0 + k) * 8}', tag='w')
    load_wt(96, 68, 0)
    load_wt(98, 68, 4)
    load_wt(100, 72, 0)
    load_wt(102, 72, 4)
    load_wt(104, 20, 0)
    load_wt(106, 80, 0)
    a.wait_vm('w')
    for i in range(96, 108):
        a(f'v_lshl_or_b32 v{i}, v{i + 12}, 16, v{i}')
    for n in range(3):
        a(f'buffer_store_dwordx4 {vr(96 + 4 * n, 4)}, v3, s[24:27], 0 offen offset:{16 * n} sc1', tag='st')
    a.vm = vm
    a.label('L1_wt')
    srd(a, 20, 30, G.REC_OFF, G.REC_SZ)
    srd(a, 24, 30, G.TAB_OFF, G.TAB_SZ)
    srd(a, 80, 86, 0, E * 8)
    mc = {}

    MCN = CFG['mcn']
    MCP = 5120 // MCN
    MCH = (MCP + 15) // 16
    sMC = sTK if MCN < 256 else 2

    def mcopy_load():
        mc['b'] = [pool.pop(0) for _ in range(MCH)]
        a(f'v_lshrrev_b32 v15, 2, v{T16}')
        a(f'v_and_b32 v15, v{KFC}, v15')
        a(f's_cmp_ge_u32 s{sMC}, {MCN}')
        a('s_cselect_b32 s82, 0, s82')
        for h in range(MCH):
            a(f's_and_b32 s3, s{sMC}, {MCN // 64 - 1}')
            a(f's_mul_i32 s3, s3, {MCP}')
            a(f's_add_u32 s3, s3, s{sW}')
            if h:
                a(f's_add_u32 s3, s3, {16 * h}')
            if 16 * h + 16 > MCP:
                a(f's_cmp_ge_u32 s{sW}, {MCP - 16 * h}')
                a('s_cselect_b32 s82, 0, s82')
            a('s_mul_i32 s4, s3, 205')
            a('s_lshr_b32 s4, s4, 10')
            a('s_mul_i32 s5, s4, 5')
            a('s_sub_u32 s5, s3, s5')
            a('s_lshl_b32 s6, s4, 1')
            a('s_add_u32 s6, s6, s5')
            a('s_add_u32 s7, s6, s4')
            a('s_add_u32 s7, s7, 30')
            a('s_cmp_lt_u32 s5, 2')
            a('s_cselect_b32 s6, s6, s7')
            a('s_lshl_b32 s6, s6, 10')
            a(f's_lshr_b32 s7, s{sMC}, {(MCN // 64).bit_length() - 1}')
            a('s_mul_i32 s7, s7, 80000')
            a('s_add_u32 s6, s6, s7')
            for jd in range(4):
                a(f'buffer_load_dword v{mc["b"][h] + jd}, v15, s[80:83], s6 offen offset:{256 * jd}', tag='mc')

    def mcopy_store():
        srd(a, 80, 30, G.MD_OFF, MCP * 1024)
        a(f's_min_u32 s3, s{sMC}, {MCN - 1}')
        a(f's_mul_i32 s3, s3, {MCP * 1024}')
        a('s_add_u32 s80, s80, s3')
        a('s_addc_u32 s81, s81, 0')
        a(f's_cmp_ge_u32 s{sMC}, {MCN}')
        a('s_cselect_b32 s82, 0, s82')
        a.wait_vm('mc')
        for h in range(MCH):
            a(f'v_add_u32 v9, {h * 16384}, v{T16}')
            a(f'buffer_store_dwordx4 {vr(mc["b"][h], 4)}, v9, s[80:83], 0 offen sc1', tag='st')
        pool.extend(mc['b'])
    a(f's_mul_i32 s{sR}, s2, {BLK}')
    a(f's_and_b32 s{sTmp}, s{sW}, 3')
    a(f's_lshl_b32 s{sTmp}, s{sTmp}, 3')
    a(f's_mov_b32 s{sT}, s{sTmp}' if CFG['tabx'] else f's_add_u32 s{sT}, s{sR}, s{sTmp}')
    a(f's_lshr_b32 s{sTmp}, s{sW}, 2')
    a(f's_mul_i32 s{sTmp}, s{sTmp}, 2080')
    a(f's_add_u32 s{sT}, s{sT}, s{sTmp}')
    a(f's_and_b32 s{sTmp}, s2, 3')
    a(f's_lshl_b32 s{sTmp}, s{sTmp}, 5')
    a(f's_add_u32 s{sT}, s{sT}, s{sTmp}')
    a('s_mul_i32 s4, s2, 5')
    a('s_add_u32 s4, s4, 8192')
    a(f's_lshl_b32 s{sI4}, s4, 14')
    a(f's_lshl_b32 s{sA4}, s4, 13')

    def assign():
        n3, n2, n1 = CUT
        a(f's_min_u32 s4, s{sTK}, {n3}')
        a(f's_min_u32 s5, s{sTK}, {n2}')
        a(f's_min_u32 s6, s{sTK}, {n1}')
        a('s_add_u32 s4, s4, s5')
        a('s_add_u32 s4, s4, s6')
        a(f's_add_u32 s4, s4, {8192 + 1280 - 5}')
        if IL:
            a(f's_mov_b32 s4, s{sTK}')
        a(f's_lshl_b32 s{sI5}, s4, 14')
        a(f's_lshl_b32 s{sA5}, s4, 13')
        a(f's_mov_b32 s{sNQ}, 5')
        for n in CUT:
            a(f's_cmp_lt_u32 s{sTK}, {n}')
            a(f's_addc_u32 s{sNQ}, s{sNQ}, 0')
    if not CFG['dyn']:
        a('s_lshr_b32 s3, s2, 1')
        a('s_and_b32 s4, s2, 1')
        a('s_lshl_b32 s4, s4, 7')
        a(f's_add_u32 s{sTK}, s3, s4')
        assign()
    a(f'v_mov_b32 v{ONE}, 1')
    a(f'v_mov_b32 v{K87}, 0x80000007')
    a(f'v_mov_b32 v{KFC}, 0xfc')
    a(f'v_mov_b32 v{K78}, 0x78')
    a(f's_mov_b32 s{sKB}, {G.KBIAS << 3}')
    a(f's_mov_b32 s{sM10}, -10000')
    a(f's_mov_b32 s{sP1}, 0x010c0c01')
    a(f's_mov_b32 s{sP3}, 0x030c0c03')
    for i in range(4):
        a(f'v_mov_b32 v{8 + i}, 0')
    a(f'ds_write_b128 v{T16}, v[8:11]')
    srd(a, 68, 30, G.FLAG_OFF, 128)
    a('s_lshl_b32 s3, s2, 7')
    a('s_add_u32 s68, s68, s3')
    a('s_addc_u32 s69, s69, 0')
    a(f's_cmp_lg_u32 s{sW}, 0')
    a('s_cbranch_scc1 L1_fl')
    vm = list(a.vm)
    a(f'buffer_store_dwordx4 v[8:11], v{T16}, s[68:71], 0 offen sc1')
    a.vm = vm
    a.label('L1_fl')
    a('s_waitcnt lgkmcnt(0)')
    a('s_barrier')

    pend_st = []
    uid = [0]

    def store(n):
        while n > 0 and pend_st:
            b, off = pend_st.pop(0)
            n -= 1
            r = soff(sR, off)
            a(f'buffer_store_dwordx4 {vr(b, 4)}, v{T16}, s[20:23], s{r} offen{CFG["st_pol"]}', tag='st')
            pool.append(b)

    class skip_quad:
        def __init__(self, on, j):
            self.on, self.j = on and j >= 5, j

        def __enter__(self):
            if self.on:
                uid[0] += 1
                self.l = f'L1_s{uid[0]}'
                a(f's_cmp_le_u32 s{sNQ}, {self.j}')
                a(f's_cbranch_scc1 {self.l}')

        def __exit__(self, *x):
            if self.on:
                a.label(self.l)

    for k in range(NK):
        tl_mark(a, 76, k * 6 + 4, 0, 8)
        a.c(f'==== chunk {k}: pass A')
        lim = (k + 1) * 20 + 18
        last = k == NK - 1

        def mix(n):
            for _ in range(n):
                store(1)
                issue(1, lim)
        sa = [int(x) for x in CFG['sa']]
        sb = [int(x) for x in CFG['sb']]
        la = [int(x) for x in CFG['la']]
        lb = [int(x) for x in CFG['lb']]
        if last:
            mix(2)
        for j in range(8):
            if CFG['p1prio']:
                if j & 1 == 0:
                    a(f's_setprio {3 - j // 2}')
            if k == 0:
                issue(3 if j & 1 else 2, 24)
            elif not last:
                mix(sa[j])
            else:
                store(la[j])
                if j == 4:
                    mcopy_load()
            if CFG['dyn'] and k == NK - 2 and j == CFG['tkpos']:
                srd(a, 68, 56, 0, 256)
                a('v_mov_b32 v3, 1')
                a(f's_cmp_lg_u32 s{sW}, {CFG["tkwave"]}')
                a('s_cbranch_scc1 L1_tk')
                vm = list(a.vm)
                a('s_mov_b64 exec, 1')
                a('buffer_atomic_add v3, off, s[68:71], 0 sc0')
                a('s_mov_b64 exec, -1')
                a.vm = vm
                st['tkn'] = a.nvm
                a.label('L1_tk')
            I, O, A = where[(k, 'I', j)], where[(k, 'O', j)], where[(k, 'A', j // 2)] + 2 * (j & 1)
            a.wait_vm([(k, 'I', j), (k, 'O', j), (k, 'A', j // 2)])
            with skip_quad(last, j):
                for p in range(2):
                    a(f'v_lshlrev_b32 v{t[2*p]}, 16, v{A+p}')
                    a(f'v_and_b32 v{t[2*p+1]}, 0xffff0000, v{A+p}')
                for p in range(4):
                    a(f'v_mul_f32 v{t[p]}, 0.15915494, v{t[p]}')
                for r in range(4):
                    u, x, y, ib = t[4], t[5], t[6], t[7]
                    a(f'v_mul_hi_u32_u24 v{ib}, 429497, v{I+r}')
                    a(f'v_lshrrev_b32 v{x}, 3, v{O+r}')
                    a(f'v_cos_f32 v{t[r]}, v{t[r]}')
                    a(f'v_lshlrev_b16 v{y}, 3, v{O+r}')
                    a(f'v_mad_i32_i24 v{u}, v{ib}, s{sM10}, v{I+r}')
                    a(f'v_bitop3_b32 v{x}, v{K78}, v{y}, v{x} bitop3:{SEL:#x}')
                    a(f'v_lshl_add_u32 v{u}, v{u}, 17, s{sKB}')
                    a(f'v_lshlrev_b16 v{ib}, 8, v{ib}')
                    a(f'v_lshrrev_b32 v{y}, 2, v{O+r}')
                    a(f'v_add_u32 v{I+r}, v{x}, v{u}')
                    a(f'v_bitop3_b32 v{O+r}, v{KFC}, v{y}, v{ib} bitop3:{ANDOR:#x}')
                    a(f'ds_add_u32 v{O+r}, v{ONE}')
                    if r & 1:
                        p = r >> 1
                        a(f'v_cvt_pk_bf16_f32 v{A+p}, v{t[2*p]}, v{t[2*p+1]}')
                        a(f'v_perm_b32 v{x}, v{A+p}, v{A+p}, s{sP1}')
                        a(f'v_bitop3_b32 v{I+r-1}, v{K87}, v{x}, v{I+r-1} bitop3:{SEL:#x}')
                        a(f'v_perm_b32 v{y}, v{A+p}, v{A+p}, s{sP3}')
                        a(f'v_bitop3_b32 v{I+r}, v{K87}, v{y}, v{I+r} bitop3:{SEL:#x}')
        tl_mark(a, 76, k * 6 + 0, 0, 8)
        a.c('scan')
        a(f'v_lshrrev_b32 v8, 2, v{T16}')
        a(f'v_and_b32 v7, 0x3c00, v{T16}')
        a(f'v_bitop3_b32 v7, v{KFC}, v8, v7 bitop3:{ANDOR:#x}')
        a('s_waitcnt lgkmcnt(0)')
        a('s_barrier')
        a('ds_read2st64_b32 v[8:9], v7 offset0:0 offset1:1')
        a('ds_read2st64_b32 v[10:11], v7 offset0:2 offset1:3')
        mix((lb if last else sb)[0])
        a('s_waitcnt lgkmcnt(0)')
        a('v_lshl_or_b32 v12, v9, 16, v8')
        a('v_lshl_or_b32 v13, v11, 16, v10')
        a('v_mov_b32 v14, v12')
        a('v_mov_b32 v15, v13')
        G.wave_scan(a, [14, 15])
        a('v_readlane_b32 s48, v14, 63')
        a('v_readlane_b32 s49, v15, 63')
        a(f's_lshl_b32 s54, s{sW}, 2')
        a('v_mov_b32 v8, s54')
        a('s_and_b32 s50, s48, 0xffff')
        a('s_lshr_b32 s51, s48, 16')
        a('s_and_b32 s52, s49, 0xffff')
        a('s_lshr_b32 s53, s49, 16')
        a('s_add_u32 s51, s51, s50')
        a('s_add_u32 s52, s52, s51')
        a('s_add_u32 s53, s53, s52')
        a('v_mov_b32 v9, s53')
        a('s_mov_b64 exec, 1')
        a('ds_write_b32 v8, v9 offset:16384')
        if CFG['dyn'] and k == NK - 2:
            a(f's_waitcnt vmcnt({a.nvm - st["tkn"]})')
            a('ds_write_b32 v8, v3 offset:16448')
        a('s_mov_b64 exec, -1')
        a('v_and_b32 v8, 60, v7')
        a('s_waitcnt lgkmcnt(0)')
        a('s_barrier')
        a('ds_read_b32 v9, v8 offset:16384')
        if CFG['dyn'] and k == NK - 2:
            a('ds_read_b32 v10, v8 offset:16448')
        mix((lb if last else sb)[1])
        a('s_waitcnt lgkmcnt(0)')
        if CFG['dyn'] and k == NK - 2:
            a(f'v_readlane_b32 s{sTK}, v10, {CFG["tkwave"]}')
            assign()
            st['assigned'] = True
        for sh in (1, 2, 4, 8):
            a(f'v_add_u32_dpp v9, v9, v9 row_shr:{sh} row_mask:0xf bank_mask:0xf bound_ctrl:1')
        a(f'v_readlane_b32 s54, v9, s{sW}')
        a('s_sub_u32 s54, s54, s53')
        a('s_add_u32 s50, s50, s54')
        a('s_add_u32 s51, s51, s54')
        a('s_add_u32 s52, s52, s54')
        a('s_pack_ll_b32_b16 s48, s54, s50')
        a('s_pack_ll_b32_b16 s49, s51, s52')
        a('v_add_u32 v14, s48, v14')
        a('v_add_u32 v15, s49, v15')
        a('v_sub_u32 v12, v14, v12')
        a('v_sub_u32 v13, v15, v13')
        a('v_and_b32 v8, 0xffff, v12')
        a('v_lshrrev_b32 v9, 16, v12')
        a('v_and_b32 v10, 0xffff, v13')
        a('v_lshrrev_b32 v11, 16, v13')
        a('ds_write2st64_b32 v7, v8, v9 offset0:0 offset1:1')
        a('ds_write2st64_b32 v7, v10, v11 offset0:2 offset1:3')
        if CFG['tabx']:
            a(f'v_and_b32 v8, 0x3f0, v{T16}')
            a(f'v_lshl_add_u32 v8, v8, 1, s{sT}')
            a('ds_write_b64 v8, v[12:13] offset:20480')
            a('s_bitset0_b64 exec, 63')
            a('s_not_b64 exec, exec')
            a('ds_write_b64 v8, v[14:15] offset:20512')
            a('s_mov_b64 exec, -1')
        a('s_waitcnt lgkmcnt(0)')
        a('s_barrier')
        tl_mark(a, 76, k * 6 + 1, 0, 8)
        a.c('pass B')
        for j in range(8):
            if CFG['p1prio'] and j & 1 == 0:
                a(f's_setprio {3 - j // 2}')
            O = where[(k, 'O', j)]
            with skip_quad(last, j):
                for r in range(4):
                    a(f'ds_add_rtn_u32 v{O+r}, v{O+r}, v{ONE}')
            if CFG['tabx']:
                if j == 0:
                    a(f'ds_read_b128 v[12:15], v{T16} offset:20480', tag='tab')
                    a(f'v_cmp_gt_u32 vcc, {G.TAB_CH + 128}, v{T16}')
                if j == 2:
                    uid[0] += 1
                    a.wait_lg('tab')
                    a(f's_cbranch_vccz L1_p{uid[0]}')
                    vm, nvm = list(a.vm), a.nvm
                    r = soff(sR, k * NW * BLK)
                    a('s_mov_b64 exec, vcc')
                    a(f'buffer_store_dwordx4 v[12:15], v{T16}, s[24:27], s{r} offen{CFG["st_pol"]}')
                    a('s_mov_b64 exec, -1')
                    a.vm, a.nvm = vm, nvm
                    a.label(f'L1_p{uid[0]}')
            elif j == 0:
                r = soff(sT, k * NW * BLK)
                a(f'v_and_b32 v11, 0x3f0, v{T16}')
                a('v_add_u32 v11, v11, v11')
                a(f'buffer_store_dwordx2 v[12:13], v11, s[24:27], s{r} offen', tag='tab')
                a('s_bitset0_b64 exec, 63')
                a('s_not_b64 exec, exec')
                a(f'buffer_store_dwordx2 v[14:15], v11, s[24:27], s{r} offen offset:32', tag='tab')
                a('s_mov_b64 exec, -1')
                uid[0] += 1
                a(f'v_cmp_le_u32 vcc, s{sTmp}, v{T16}')
                a(f'v_add_u32 v10, {G.TAB_CH}, v{T16}')
                a(f's_cmp_lg_u32 s{sW}, 0')
                a(f'v_cndmask_b32 v10, v{T16}, v10, vcc')
                a(f's_cbranch_scc1 L1_p{uid[0]}')
                vm, nvm = list(a.vm), a.nvm
                r = soff(sR, k * NW * BLK)
                a('s_mov_b64 exec, 0xff')
                a(f'buffer_store_dwordx4 v[12:15], v10, s[24:27], s{r} offen')
                a('s_mov_b64 exec, -1')
                a.vm, a.nvm = vm, nvm
                a.label(f'L1_p{uid[0]}')
            mix((lb if last else sb)[2 + j])
            if last and j == 4:
                mcopy_store()
        a('s_waitcnt lgkmcnt(0)')
        a('s_barrier')
        tl_mark(a, 76, k * 6 + 2, 0, 8)
        a.c('scatter')
        n0 = st['next']
        ns0 = len(pend_st)
        for j in range(8):
            if CFG['p1prio'] and j & 1 == 0:
                a(f's_setprio {3 - j // 2}')
            I, O, A = where[(k, 'I', j)], where[(k, 'O', j)], where[(k, 'A', j // 2)] + 2 * (j & 1)
            with skip_quad(last, j):
                for r in range(4):
                    x, y = t[(2 * r) % 4], t[(2 * r + 1) % 4]
                    a(f'v_and_b32 v{x}, -4, v{O+r}')
                    a(f'v_lshl_add_u32 v{y}, v{O+r}, 2, v{x}')
                    a(f'ds_write_b32 v{y}, v{I+r}')
                    a(f'v_lshl_add_u32 v{x}, v{x}, 2, v{O+r}')
                    a(f'ds_write_b8{"_d16_hi" if r & 1 else ""} v{x}, v{A + (r >> 1)} offset:16')
            pool.append(I)
            pool.append(O)
            if j & 1:
                pool.append(where[(k, 'A', j // 2)])
            nd = CFG['scd']
            store(len(pend_st) - (ns0 - (ns0 * min(j + 1, nd) + nd - 1) // nd))
            want = n0 + ((lim - n0) * min(j + 1, nd) + nd - 1) // nd
            issue(want - st['next'], lim)
        a(f'v_add_u32 v7, 0x10000, v{T16}')
        a(f'v_add_u32 v12, 0x20000, v{T16}')
        if not last:
            for i in range(4):
                a(f'v_mov_b32 v{8 + i}, 0')
        a('s_waitcnt lgkmcnt(0)')
        a('s_barrier')
        tl_mark(a, 76, k * 6 + 3, 0, 14)
        assert not pend_st
        a.c('flush')
        for j in range(10):
            b = pool.pop(0)
            base = (T16, 7, 12)[j // 4]
            a(f'ds_read_b128 {vr(b, 4)}, v{base} offset:{(j % 4) * 16384}')
            if j == 0 and not last:
                a(f'ds_write_b128 v{T16}, v[8:11]')
            pend_st.append((b, k * NW * BLK + j * 16384))
        if not last:
            a('s_waitcnt lgkmcnt(0)')
            a('s_barrier')
        else:
            for j in range(10):
                if j >= 7:
                    a(f's_cmp_le_u32 s{sNQ}, {j - 2}')
                    a('s_cbranch_scc1 L1_fin')
                a(f's_waitcnt lgkmcnt({9 - j})')
                store(1)
    a.label('L1_fin')
    a.reset()
    G.tl_end(a)
    a.label('L1_end')
    a('s_endpgm')
    return name
```

```python
from asmlib import vr, sr, merge_vm

MF = 'v_mfma_f32_4x4x4_16b_bf16'


def gen_p2(a, G):
    name = 'gs_acc_kernel'
    CFG = G.CFG
    SEL, ANDOR = G.SEL, G.ANDOR
    ORAND = 0xA8
    G.kernel_head(a, name)
    DS = 1
    NR = DS + 1
    NA = 2
    LA, SHL, CBA, FA, CBB, KAD, KCM, PA = 0, 1, 2, 3, 4, 5, 6, 7
    WD, ID, NID = 8, 10, 12
    C = [14, 15]
    W = [16, 22, 28, 34]
    B = [w + 4 for w in W]
    EC = [w + 5 for w in W]
    EN = [40, 41, 42, 43]
    ES, KF0, NV, AI = 44, 45, 46, 47
    DA, DB = 48, 64
    OLD = [68, 70]
    OLD2 = [72, 74]
    X = [76, 80]
    P = 84
    RT = 88
    AOR = [[92, 93], [94, 95]]
    xm, xo, xa, xd = 96, 97, 98, 99
    xc, xl, xe, xt = RT, RT + 1, RT + 2, RT + 3
    MR = [[100, 102], [104, 106]]
    MP = [108 + 4 * n for n in range(5)]

    def AO(b):
        return AOR[b % NA]
    sW, sQ, sOB, sSP, sSlow, sBase, sTab, sMD, sN, sPH, sM0 = 32, 33, 34, 35, 36, 37, 39, 40, 41, 42, 38
    sP = [44, 45, 46, 47]
    PEND, TMP, INJ, OVF, INJ1 = 's[80:81]', 's[82:83]', 's[84:85]', 's[58:59]', 's[48:49]'
    rpos = [int(x) for x in CFG['rpos'].split()]
    dpos = [int(x) for x in CFG['dpos'].split()]
    mpos = [int(x) for x in CFG['mpos'].split()]
    assert dpos[0] >= 1 and dpos[1] >= 1 and max(rpos[:3]) <= 6 and rpos[3] >= 7
    order = [7, 0, 1, 2, 3, 4, 5, 6]
    ng = 8 - DS
    gs = {}
    nb = 0
    for i in range(ng):
        n = 2 if i >= ng - DS else 1
        gs[order[i]] = list(range(nb, nb + n))
        nb += n
    assert nb == 8
    b1_step = order[ng]

    def blk(p):
        return 4 * (p & 3) + (p >> 2)

    def dblk(p):
        return ((blk(p + 1) - blk(p)) * 81920) & 0xffffffff

    a('s_cmp_ge_u32 s2, 256')
    a('s_cbranch_scc1 L2_end')
    G.tl_start(a)
    if CFG['pprio']:
        a('s_setprio 3')
    a('s_load_dwordx2 s[30:31], s[0:1], 104')
    a('s_load_dwordx2 s[28:29], s[0:1], 0')
    a('s_load_dwordx2 s[6:7], s[0:1], 40')
    a('v_lshrrev_b32 v16, 6, v0')
    a('v_and_b32 v17, 63, v0')
    a(f'v_readfirstlane_b32 s{sW}, v16')
    a(f's_bfe_u32 s{sQ}, s2, 0x20001')
    a(f's_and_b32 s{sOB}, s2, 1')
    a(f's_lshl_b32 s{sOB}, s{sOB}, 5')
    a('s_lshr_b32 s4, s2, 3')
    a(f's_add_u32 s{sOB}, s{sOB}, s4')
    a('v_and_b32 v22, 3, v0')
    a('v_mul_u32_u24 v19, 80, v16')
    if CFG['dq']:
        a('v_lshrrev_b32 v18, 2, v17')
        a('v_lshl_add_u32 v18, v22, 4, v18')
        a('v_add_u32 v18, v18, v19')
    else:
        a('v_add_u32 v18, v17, v19')
    a(f'v_mul_u32_u24 v{CBA}, {G.BLK}, v18')
    a('v_lshrrev_b32 v18, 2, v17')
    a('v_add3_u32 v18, v18, v19, 64')
    a(f'v_mul_u32_u24 v{CBB}, {G.BLK}, v18')
    a(f'v_lshl_add_u32 v20, v22, 4, v{CBB}')
    a('v_and_b32 v18, 3, v18')
    a('v_lshl_add_u32 v20, v18, 5, v20')
    a(f'v_lshl_add_u32 v25, v22, 5, v{CBA}')
    a(f's_mul_i32 s{sTab}, s{sQ}, 2080')
    a(f's_lshl_b32 s3, s{sOB}, 5')
    a(f's_add_u32 s{sTab}, s{sTab}, s3')
    a(f's_mul_i32 s{sMD}, s{sQ}, {16 * 81920}')
    a(f's_mul_i32 s3, s{sW}, 5120')
    a(f'v_lshl_add_u32 v{FA}, v17, 4, s3')
    a(f's_lshl_b32 s{sM0}, s{sW}, 11')
    a(f's_mul_i32 s69, s{sW}, 3072')
    a('s_waitcnt lgkmcnt(0)')
    G.srd(a, 12, 30, G.TAB_OFF, G.TAB_SZ)
    for k in (0, 2, 1, 3) if not CFG['dq'] else range(4):
        if CFG['dq']:
            a(f'v_subrev_u32 v25, {(64 - 16 * k) * G.BLK:#x}, v20')
            a(f'buffer_load_dwordx4 {vr(DA + 4 * k, 4)}, v25, s[12:15], s{sTab} offen', tag='D')
        else:
            a(f'buffer_load_dwordx4 {vr(DA + 4 * k, 4)}, v25, s[12:15], s{sTab} offen offset:{16 * k}', tag='D')
    a(f'buffer_load_dwordx4 {vr(DB, 4)}, v20, s[12:15], s{sTab} offen', tag='D')
    G.srd(a, 16, 30, G.MD_OFF, G.MD_SZ)
    G.srd(a, 24, 30, G.WT_OFF, G.WT_SZ)
    a('v_lshlrev_b32 v21, 6, v22')
    a(f'buffer_load_dwordx2 {vr(WD, 2)}, v21, s[24:27], 0 offen offset:40', tag='D')

    st = dict(inloop=False)

    def load_m(n):
        if CFG['ab_nom'] and st['inloop']:
            return
        if n == 4:
            a(f's_add_u32 s3, s{sMD}, 4096')
            a(f'buffer_load_dwordx4 {vr(MP[n], 4)}, v{FA}, s[16:19], s3 offen', tag=('M', n))
        else:
            a(f'buffer_load_dwordx4 {vr(MP[n], 4)}, v{FA}, s[16:19], s{sMD} offen offset:{n * 1024}', tag=('M', n))

    def fill(n):
        a.wait_vm([('M', n)])
        m0 = sM0 if n < 2 else 69
        if st.get('m0') != m0:
            a(f's_mov_b32 m0, s{m0}')
            st['m0'] = m0
        for jd in range(4):
            if CFG['ab'] & 8 and st['inloop']:
                continue
            a(f'ds_write_addtid_b32 v{MP[n] + jd} offset:{(n * 1024 if n < 2 else 32768 + (n - 2) * 1024) + 256 * jd}', tag='F')

    def next_m(p):
        a(f's_add_u32 s{sMD}, s{sMD}, {dblk(p):#x}')

    if CFG['pprio']:
        a('s_setprio 2')
    for n in (4, 2, 3, 0, 1):
        load_m(n)
    next_m(0)
    if CFG['pprio']:
        a('s_setprio 1')
    a(f'v_mad_u32_u24 v{CBB}, v22, 20, v{CBB}')
    a(f'v_or_b32 v{CBB}, 0xf0000000, v{CBB}')
    a(f'v_or_b32 v{CBA}, 0xf0000000, v{CBA}')
    a('v_lshlrev_b32 v23, 2, v22')
    a(f'v_sub_u32 v{SHL}, 28, v23')
    G.ident(a, ID, 18, 0)
    G.ident(a, NID, 18, 0, neg=True)
    a('v_lshlrev_b32 v24, 4, v0')
    a(f'v_lshl_add_u32 v{LA}, v17, 2, s{sM0}')
    a(f'v_mov_b32 v{KF0}, 0xf0000000')
    a(f'v_mov_b32 v{KAD}, 0x1fff8')
    a(f'v_mov_b32 v{KCM}, 0x07ff0000')
    for k in range(4):
        a(f's_mov_b32 s{sP[k]}, {0x04000c0c | (k << 16):#x}')
    a(f's_mov_b32 s{sSlow}, 0')
    a(f's_mov_b32 s{sPH}, 0')
    a(f's_mov_b64 {PEND}, 0')
    a(f's_mov_b64 {INJ}, 0')
    a(f's_mov_b64 {INJ1}, 0')
    if CFG['fuse']:
        a('s_load_dwordx4 s[96:99], s[6:7], 0')
        a('s_load_dwordx2 s[4:5], s[0:1], 24')
        a('s_waitcnt lgkmcnt(0)')
    G.srd(a, 8, 30, G.REC_OFF, G.REC_SZ)
    G.srd(a, 20, 30, G.PART_OFF, 80000)
    a(f's_lshl_b32 s3, s{sQ}, 6')
    a(f's_add_u32 s3, s3, s{sOB}')
    a('s_mul_i32 s3, s3, 80000')
    a('s_add_u32 s20, s20, s3')
    a('s_addc_u32 s21, s21, 0')

    ool = []
    uid = [0]

    XAND = 0x6A
    sOv = 43

    def x_pre(j):
        uid[0] += 1
        u = uid[0]
        rs, re_ = DA + 2 * j, DA + 8 + 2 * j
        a.wait_vm('D')
        a(f'v_sub_u16 v{xc}, v{re_}, v{rs}')
        a(f'v_and_b32 v{xl}, 3, v{rs}')
        a(f'v_add3_u32 v{xd}, v{xc}, v{xl}, 3')
        a(f'v_and_b32 v{xd}, -4, v{xd}')
        a(f'v_max_u32 v{xd}, 4, v{xd}')
        fill = [f'v_and_b32 v{xo}, 0xfffc, v{rs}',
                f'v_bfm_b32 v{xm}, v{xc}, v{xl}',
                f'v_mad_u32_u24 v{xo}, v{xo}, 5, v{CBA}',
                f'v_cmp_lt_u32 vcc, 16, v{xd}',
                f'v_sub_u32 v{xa}, s{sM0}, v{xd}',
                f'v_lshrrev_b64 {vr(rs, 2)}, 16, {vr(rs, 2)}',
                f'v_lshrrev_b64 {vr(re_, 2)}, 16, {vr(re_, 2)}',
                f's_mov_b32 s{sOv}, 0']
        a(fill.pop(0))
        a(fill.pop(0))
        a(f'v_add_u32_dpp v{xt}, v{xd}, v{xd} row_shr:1 row_mask:0xf bank_mask:0xf bound_ctrl:1')
        for m in ('row_shr:2 row_mask:0xf bank_mask:0xf bound_ctrl:1', 'row_shr:4 row_mask:0xf bank_mask:0xf bound_ctrl:1',
                  'row_shr:8 row_mask:0xf bank_mask:0xf bound_ctrl:1', 'row_bcast:15 row_mask:0xa bank_mask:0xf',
                  'row_bcast:31 row_mask:0xc bank_mask:0xf'):
            for _ in range(2):
                if fill:
                    a(fill.pop(0))
            a(f'v_add_u32_dpp v{xt}, v{xt}, v{xt} {m}')
        a(f'v_add_u32 v{xa}, v{xa}, v{xt}')
        a(f'v_readlane_b32 s{sBase}, v{xt}, 63')
        a(f's_cbranch_vccnz L2_xo{u}')
        a.label(f'L2_xp{u}')
        ool.append([f'L2_xo{u}:',
                    f'v_cmp_lt_u32 vcc, 20, v{xd}',
                    f's_mov_b32 s{sOv}, 1',
                    f's_cbranch_vccz L2_xp{u}',
                    f'v_cmp_lt_u32 vcc, 32, v{xd}',
                    f'v_cmp_lt_u32 {OVF}, 31, v{xc}',
                    f's_mov_b32 s{sOv}, 2',
                    f's_or_b64 vcc, vcc, {OVF}',
                    f's_cbranch_scc0 L2_xp{u}',
                    f's_mov_b32 s{sBase}, 0x10000',
                    f's_branch L2_xp{u}'])

    def x_ent(f, t):
        f(f'v_lshlrev_b32 v{xl}, {28 - 4 * t}, v{xm}')
        if t:
            f(f'v_add_u32 v{xe}, {20 * t}, v{xo}')
        f(f'v_bitop3_b32 v{xe}, v{xl}, v{KF0}, v{xe if t else xo} bitop3:{XAND:#x}')
        f(f'ds_write_b32 v{xa}, v{xe} offset:{4 * t}')

    def x_quad(f):
        f(f'v_and_b32 v{xl}, v{KF0}, v{xl}')
        f(f'v_cmp_ne_u32 vcc, 0, v{xl}')
        f(f'v_xor_b32 v{xe}, v{xo}, v{xl}')
        f(f's_add_u32 s3, s{sBase}, s{sM0}')
        f(f'v_mbcnt_lo_u32_b32 v{xa}, vcc_lo, 0')
        f(f'v_mbcnt_hi_u32_b32 v{xa}, vcc_hi, v{xa}')
        f(f's_bcnt1_i32_b64 s{sN}, vcc')
        f(f'v_lshl_add_u32 v{xa}, v{xa}, 2, s3')
        f('s_mov_b64 exec, vcc')
        f(f'ds_write_b32 v{xa}, v{xe}')
        f('s_mov_b64 exec, -1')
        f(f's_lshl2_add_u32 s{sBase}, s{sN}, s{sBase}')

    def x_list(j, E, pbit):
        uid[0] += 1
        u = uid[0]
        a(f'v_mov_b32 v{ES}, v{E[3]}')
        a(f's_cmp_gt_u32 s{sBase}, 1024')
        a(f's_cbranch_scc1 L2_xs{u}')
        a(f's_cmp_lg_u32 s{sOv}, 0')
        a(f's_cbranch_scc1 L2_xa{u}')
        a.label(f'L2_xb{u}')
        bl = [f'L2_xa{u}:', f's_cmp_eq_u32 s{sOv}, 1', f's_cbranch_scc1 L2_xc{u}']
        x_ent(bl.append, 7)
        x_ent(bl.append, 6)
        x_ent(bl.append, 5)
        bl.append(f'L2_xc{u}:')
        x_ent(bl.append, 4)
        bl.append(f's_branch L2_xb{u}')
        ool.append(bl)
        for t in (3, 2, 1, 0):
            x_ent(a, t)
        r = DB + 2 * (j & 1)
        ls, le = j >> 1, 2 + (j >> 1)
        a(f'v_mov_b32_dpp v{xt}, v{r} quad_perm:[{ls},{ls},{ls},{ls}] row_mask:0xf bank_mask:0xf')
        a(f'v_and_b32 v{xl}, 3, v{xt}')
        a(f'v_and_b32 v{xo}, 0xfffc, v{xt}')
        a(f'v_sub_u16_dpp v{xc}, v{r}, v{xt} quad_perm:[{le},{le},{le},{le}] row_mask:0xf bank_mask:0xf')
        a(f'v_mad_u32_u24 v{xo}, v{xo}, 5, v{CBB}')
        a(f'v_add_u32 v{xd}, v{xc}, v{xl}')
        a(f'v_bfm_b32 v{xm}, v{xc}, v{xl}')
        a(f'v_cmp_lt_u32 {OVF}, 16, v{xd}')
        a(f'v_lshlrev_b32 v{xl}, v{SHL}, v{xm}')
        x_quad(a)
        a(f's_cmp_lg_u64 {OVF}, 0')
        a(f's_cbranch_scc1 L2_xe{u}')
        a.label(f'L2_xr{u}')
        bl = [f'L2_xe{u}:',
              f'v_cmp_lt_u32 vcc, 32, v{xd}',
              f'v_cmp_lt_u32 {OVF}, 31, v{xc}',
              f'v_lshrrev_b32 v{xl}, 16, v{xm}',
              f'v_add_u32 v{xo}, 80, v{xo}',
              f's_or_b64 vcc, vcc, {OVF}',
              f's_cbranch_scc1 L2_xs{u}',
              f'v_lshlrev_b32 v{xl}, v{SHL}, v{xl}']
        x_quad(bl.append)
        bl.append(f's_branch L2_xr{u}')
        ool.append(bl)
        a(f'v_add_u32 v{xa}, s{sBase}, v{LA}')
        a(f'v_mov_b32 v{xe}, -1')
        a(f'ds_write_b32 v{xa}, v{xe}')
        go = [int(x) for x in CFG['gord'].split()]
        a(f'ds_read2st64_b32 {vr(E[0], 2)}, v{LA} offset0:{go[0]} offset1:{go[1]}', tag='L')
        a(f'ds_read2st64_b32 {vr(E[2], 2)}, v{LA} offset0:{go[2]} offset1:{go[3]}', tag='L')
        E = [E[go.index(g)] for g in range(4)]
        a(f's_sub_u32 s3, s{sBase}, 768')
        a('s_cmp_gt_u32 s3, 256')
        a(f's_cbranch_scc1 L2_xf{u}')
        a.label(f'L2_xg{u}')
        bl = [f'L2_xf{u}:',
              's_waitcnt lgkmcnt(0)',
              f's_cmp_gt_u32 s{sBase}, 1024',
              f's_cbranch_scc1 L2_xs{u}',
              f'v_mov_b32 v{E[3]}, -1',
              f's_cmp_ge_u32 s{sBase}, 512',
              f's_cbranch_scc1 L2_xg{u}',
              f'v_mov_b32 v{E[2]}, -1',
              f's_cmp_ge_u32 s{sBase}, 256',
              f's_cbranch_scc1 L2_xg{u}',
              f'v_mov_b32 v{E[1]}, -1',
              f's_branch L2_xg{u}',
              f'L2_xs{u}:',
              's_waitcnt lgkmcnt(0)']
        bl += [f'v_mov_b32 v{E[g]}, -1' for g in range(4)]
        bl += [f's_add_u32 s3, s{sPH}, {pbit}',
               f's_bitset1_b32 s{sSlow}, s3',
               f's_branch L2_xg{u}']
        ool.append(bl)
        if j == 3:
            for h in range(2):
                a(f'v_lshrrev_b64 {vr(DB + 2 * h, 2)}, 16, {vr(DB + 2 * h, 2)}')

    def load_rec(g):
        E = EN[:3] + [ES]
        a(f'v_and_b32 v{AI}, 0x0fffffff, v{E[g]}')
        if CFG['ab_norec'] and st['inloop']:
            a(f'v_mov_b32 v{AI}, v{E[g]}')
            return
        a(f'v_mov_b32 v{EC[g]}, v{E[g]}')
        issue_rec(g)

    def issue_rec(g):
        if CFG['x3'] == 2:
            a(f'buffer_load_dwordx2 {vr(W[g], 2)}, v{AI}, s[8:11], 0 offen', tag=('R', g))
        elif CFG['x3'] == 3:
            a(f'buffer_load_dwordx3 {vr(W[g], 3)}, v{AI}, s[8:11], 0 offen', tag=('R', g))
        else:
            a(f'buffer_load_dwordx4 {vr(W[g], 4)}, v{AI}, s[8:11], 0 offen', tag=('R', g))
        if CFG['x3']:
            a(f'buffer_load_dwordx3 {vr(W[g] + 2, 3)}, v{AI}, s[8:11], 0 offen offset:8', tag=('R', g))
        else:
            a(f'buffer_load_dword v{B[g]}, v{AI}, s[8:11], 0 offen offset:16', tag=('R', g))

    ao_done = set()

    def gather(x, b):
        g = x >> 1
        a.wait_vm([('R', g)])
        now = (x - b) % 8 < NA
        for h in (1, 0):
            k = (2 * x + h) & 3
            w = W[g] + k
            a(f'v_and_b32 v{NV}, {1 << (28 + k):#x}, v{EC[g]}')
            a(f'v_lshrrev_b32 v{AI}, 14, v{w}')
            a(f'v_bitop3_b32 v{AI}, v{AI}, v{KAD}, v{NV} bitop3:{ANDOR:#x}')
            a(f'ds_read_b64 {vr(MR[x % NR][h], 2)}, v{AI}', tag=('m', x))
            if now:
                a(f'v_bitop3_b32 v{AO(x)[h]}, v{w}, v{KAD}, v{NV} bitop3:{ANDOR:#x}')
        if now:
            ao_done.add(x)

    def dec_ao(b):
        if b in ao_done:
            ao_done.discard(b)
            return
        g = b >> 1
        for h in range(2):
            k = (2 * b + h) & 3
            a(f'v_and_b32 v{NV}, {1 << (28 + k):#x}, v{EC[g]}')
            a(f'v_bitop3_b32 v{AO(b)[h]}, v{W[g] + k}, v{KAD}, v{NV} bitop3:{ANDOR:#x}')

    def dec_c1(b):
        g = b >> 1
        for h in (1, 0):
            k = (2 * b + h) & 3
            w = W[g] + k
            a(f'v_perm_b32 v{C[h]}, v{w}, v{B[g]}, s{sP[k]}')
            a(f'v_bitop3_b32 v{(AI, NV)[h]}, v{w}, 0.5, -0.5 bitop3:{ORAND:#x}')

    def dec_c2(b):
        for h in (1, 0):
            a(f'v_bitop3_b32 v{C[h]}, v{KCM}, v{C[h]}, v{(AI, NV)[h]} bitop3:{SEL:#x}')

    def flush_pend(mask):
        return [f's_mov_b64 exec, {mask}',
                's_nop 1',
                f'{MF} {vr(RT, 4)}, {vr(NID, 2)}, {vr(P, 2)}, 0',
                's_nop 1',
                f'{MF} {vr(RT, 4)}, {vr(ID, 2)}, {vr(P + 2, 2)}, {vr(RT, 4)}',
                's_nop 4',
                f'v_cvt_pk_bf16_f32 v{RT}, v{RT}, v{RT + 1}',
                f'v_cvt_pk_bf16_f32 v{RT + 1}, v{RT + 2}, v{RT + 3}',
                f'ds_pk_add_bf16 v{PA}, v{RT} offset:{G.A_OFFS}',
                f'ds_pk_add_bf16 v{PA}, v{RT + 1} offset:{G.A_OFFS + 4}']

    def check(b, h):
        if CFG['ab_nofix'] == 1:
            return
        uid[0] += 1
        u = uid[0]
        a(f'v_cmpx_ne_u64 vcc, {vr(OLD2[h], 2)}, {vr(OLD[h], 2)}')
        if CFG['cnt']:
            a('s_bcnt1_i32_b64 s72, vcc')
            a('s_add_u32 s63, s63, s72')
        a(f's_and_b64 {TMP}, vcc, {PEND}')
        a(f's_cbranch_scc1 L2_c{u}')
        a.label(f'L2_d{u}')
        if CFG['mov64']:
            a(f'v_mov_b64 {vr(P, 2)}, {vr(OLD[h], 2)}')
            a(f'v_mov_b32 v{PA}, v{AO(b)[h]}')
            a(f'v_mov_b64 {vr(P + 2, 2)}, {vr(OLD2[h], 2)}')
        else:
            for n in range(2):
                a(f'v_mov_b32 v{P + n}, v{OLD[h] + n}')
                a(f'v_mov_b32 v{P + 2 + n}, v{OLD2[h] + n}')
            a(f'v_mov_b32 v{PA}, v{AO(b)[h]}')
        a('s_mov_b64 exec, -1')
        a(f's_or_b64 {PEND}, {PEND}, vcc')
        cnt = [f's_bcnt1_i32_b64 s72, {TMP}', 's_add_u32 s67, s67, s72', 's_add_u32 s67, s67, 0x10000'] if CFG['cnt'] else []
        if not CFG['nbr']:
            ool.append([f'L2_c{u}:'] + cnt + flush_pend(TMP) + ['s_mov_b64 exec, vcc', f's_branch L2_d{u}'])
            return
        CF, TG = 's[50:51]', 's[52:53]'
        bl = [f'L2_c{u}:',
              f's_mov_b64 {CF}, vcc',
              f's_lshl_b64 {TG}, {TMP}, 1',
              f's_andn2_b64 {TG}, {TG}, {PEND}',
              f's_andn2_b64 {TG}, {TG}, {CF}',
              f's_or_b64 {PEND}, {PEND}, {TG}',
              f's_not_b64 vcc, {TG}',
              's_mov_b64 exec, -1']
        for n, r in enumerate((P, P + 1, P + 2, P + 3, PA)):
            bl.append(f'v_cndmask_b32_dpp v{r}, v{r}, v{r}, vcc wave_shr:1 row_mask:0xf bank_mask:0xf')
            if n == 1:
                bl.append(f's_lshr_b64 {TG}, {TG}, 1')
            if n == 3:
                bl.append(f's_andn2_b64 {TMP}, {TMP}, {TG}')
        bl += [f's_mov_b64 vcc, {CF}',
               f's_mov_b64 exec, {CF}',
               f's_cbranch_scc0 L2_d{u}'] + cnt + flush_pend(TMP) + ['s_mov_b64 exec, vcc', f's_branch L2_d{u}']
        ool.append(bl)

    def inj_on(b, h):
        if CFG['ab_nofix'] == 1:
            return False
        return (2 * b + h) % CFG['injs'] == 0

    def inject(b, h):
        m = INJ1 if h else INJ
        a(f's_and_b64 exec, {m}, {PEND}')
        a(f'{MF} {vr(X[h], 4)}, {vr(NID, 2)}, {vr(P, 2)}, 0')
        a(f'v_mov_b32 v{AO(b)[h]}, v{PA}')
        a(f's_andn2_b64 {PEND}, {PEND}, {m}')
        a(f'{MF} {vr(X[h], 4)}, {vr(ID, 2)}, {vr(P + 2, 2)}, {vr(X[h], 4)}')
        a('s_mov_b64 exec, -1')

    def step_a(b):
        a.wait_lg(('m', b))
        for h in (1, 0):
            a(f'{MF} {vr(X[h], 4)}, {vr(WD, 2)}, {vr(MR[b % NR][h], 2)}, 0')
        dec_c2(b)
        for h in (1, 0):
            if inj_on(b, h):
                a(f'v_cmp_lt_u32 {INJ1 if h else INJ}, v{KAD}, v{AO(b)[h]}')
        for h in (1, 0):
            if CFG['pkmul']:
                for n in (0, 2):
                    a(f'v_pk_mul_f32 {vr(X[h] + n, 2)}, {vr(X[h] + n, 2)}, {vr(C[0], 2)} op_sel:[0,{h}] op_sel_hi:[1,{h}]')
            else:
                for n in range(4):
                    a(f'v_mul_f32 v{X[h] + n}, v{C[h]}, v{X[h] + n}')

    def step_b(b, final=False, mid=None):
        a.wait_lg('x')
        for h in (1, 0):
            check(b - 1, h)
            if CFG['injearly'] and inj_on(b, h):
                inject(b, h)
        for h in (1, 0):
            if not CFG['injearly'] and inj_on(b, h):
                inject(b, h)
            a(f'ds_read_b64 {vr(OLD[h], 2)}, v{AO(b)[h]} offset:{G.A_OFFS}', tag='o')
        if not final:
            for x in gs.get(b, []):
                gather(x, b)
            mid()
        a.wait_lg('o')
        for h in (1, 0):
            a(f'{MF} {vr(X[h], 4)}, {vr(ID, 2)}, {vr(OLD[h], 2)}, {vr(X[h], 4)}')
        if not final:
            dec_ao((b + 1) & 7)
            dec_c1((b + 1) & 7)
        for h in (1, 0):
            a(f'v_cvt_pk_bf16_f32 v{X[h]}, v{X[h]}, v{X[h] + 1}')
            a(f'v_cvt_pk_bf16_f32 v{X[h] + 1}, v{X[h] + 2}, v{X[h] + 3}')
            a(f'ds_wrxchg_rtn_b64 {vr(OLD2[h], 2)}, v{AO(b)[h]}, {vr(X[h], 2)} offset:{G.A_OFFS}', tag='x')

    def stamp(i):
        if not CFG['stamp']:
            return
        a('s_memtime s[70:71]')
        a('s_waitcnt lgkmcnt(0)')
        a('s_sub_u32 s72, s70, s73')
        a('s_mov_b32 s73, s70')
        a(f's_add_u32 s{60 + i}, s{60 + i}, s72')

    if CFG['stamp']:
        for i in range(8):
            a(f's_mov_b32 s{60 + i}, 0')
        a('s_mov_b32 s73, 0')
        stamp(7)
        a('s_mov_b32 s67, 0')

    for n in range(8):
        a(f'v_mov_b32 v{OLD[0] + n}, 0')
    a(f'v_add_u32 v24, {G.A_BASE}, v24')
    for n in range(4):
        a(f'ds_write_b128 v24, {vr(OLD[0], 4)} offset:{n * 16384}')
    a(f'v_add_u32 v{AI}, 0x10000, v24')
    a(f'ds_write_b128 v{AI}, {vr(OLD[0], 4)}')
    G.tl_mark(a, 76, 21, 1, RT)
    a.wait_vm('D')
    G.tl_mark(a, 76, 22, 1, RT)
    if CFG['dq']:
        Z = 26
        for src, dst, bit, qp, ev in ((DA, Z, 1, '[1,0,3,2]', 0x55555555), (Z, DA, 2, '[2,3,0,1]', 0x33333333)):
            for par in range(2):
                m = ev if par == 0 else ev ^ 0xffffffff
                a(f's_mov_b32 vcc_lo, {m:#x}')
                a(f's_mov_b32 vcc_hi, {m:#x}')
                n = 0
                for k in range(4):
                    if bool(k & bit) != bool(par):
                        continue
                    for r in range(4):
                        a(f'v_cndmask_b32_dpp v{dst + 4 * k + r}, v{src + 4 * (k ^ bit) + r}, v{src + 4 * k + r}, vcc quad_perm:{qp} row_mask:0xf bank_mask:0xf')
                        n += 1
                        if CFG['dq'] == 2 and n % 2 == 0:
                            a(f'v_mov_b32 v{RT}, 0')
                            a(f'v_mov_b32 v{RT + 1}, 0')
    x_pre(0)
    x_list(0, EN, 0)
    x_pre(1)
    a.wait_lg('L')
    G.tl_mark(a, 76, 23, 1, RT)
    ipos = [int(x) for x in CFG['ipos'].split()]
    fpos = [int(x) for x in CFG['fpos'].split()]
    fmpos = [int(x) for x in CFG['fmpos'].split()]

    ipos2 = [int(x) for x in CFG['ipos2'].split()]
    fpos2 = [int(x) for x in CFG['fpos2'].split()]

    def load_own(g):
        a(f'v_and_b32 v{AI}, 0x0fffffff, v{EC[g]}')
        issue_rec(g)
    for g in range(4):
        a(f'v_mov_b32 v{EC[g]}, v{EN[g]}')
    if CFG['pprio'] < 2:
        load_own(0)
    for g in range(1, 4):
        fill((4, 2, 3)[g - 1])
        if ipos[g - 1] < 0 or CFG['ab_norec']:
            load_own(g)
    x_list(1, EN, 1)
    fill(0)
    fill(1)
    if CFG['pprio'] == 2:
        load_own(0)
    a('s_waitcnt lgkmcnt(0)')
    G.tl_mark(a, 76, 24, 1, RT)
    if CFG['ab_norec']:
        a('s_waitcnt vmcnt(0)')
    stamp(0)
    st['inloop'] = True
    prio1 = [int(x) for x in CFG['pr'].split()]
    sites = []
    FW, FM, FD, FL, FG = 48, [108, 112], [116, 117], [118, 119], [120, 121]

    def fin_preload():
        a(f's_lshl_b32 s3, s{sW}, 12')
        a(f'v_subrev_u32 v122, s3, v{FA}')
        a(f's_mul_i32 s3, s{sQ}, 20000')
        a(f'v_add_u32 v{FL[0]}, s3, v122')
        a(f'v_add_u32 v{FL[1]}, 0x4000, v{FL[0]}')
        a(f's_lshl_b32 s3, s{sOB}, 7')
        for r in range(2):
            a(f'v_lshrrev_b32 v123, 7, v{FL[r]}')
            a(f'v_and_b32 v{FG[r]}, 0x70, v{FL[r]}')
            a(f'v_lshl_add_u32 v{FG[r]}, v123, 13, v{FG[r]}')
            a(f'v_add_u32 v{FG[r]}, s3, v{FG[r]}')
        a(f'v_cmp_le_u32 vcc, {20000 - 16384}, v122')
        a('s_mov_b64 exec, vcc')
        a(f'v_mov_b32 v{FL[1]}, 2.0')
        a(f'v_mov_b32 v{FG[1]}, 2.0')
        a('s_mov_b64 exec, -1')
        a('v_and_b32 v123, 0x30, v122')
        a('v_lshlrev_b32 v123, 2, v123')
        a(f'buffer_load_dwordx4 {vr(FW, 4)}, v123, s[24:27], 0 offen', tag='fin')
        a(f'buffer_load_dwordx4 {vr(FW + 4, 4)}, v123, s[24:27], 0 offen offset:16', tag='fin')
        a(f'buffer_load_dwordx2 {vr(FW + 8, 2)}, v123, s[24:27], 0 offen offset:32', tag='fin')
        G.srd(a, 12, 4, 0, G.E * 2)
        G.srd(a, 16, 28, 0, G.E * 8)
        for r in range(2):
            a(f'v_lshrrev_b32 v123, 2, v{FG[r]}')
            a(f'buffer_load_dword v{FD[r]}, v123, s[12:15], 0 offen', tag='fin')
            a(f'buffer_load_dwordx4 {vr(FM[r], 4)}, v{FG[r]}, s[16:19], 0 offen', tag='fin')

    def phase(jj, kind):
        first, more1, more2 = kind == 'first', kind != 'last', kind in ('first', 'second', 'mid')
        second = kind == 'second'
        a.c(f'==== phase jj={jj} {kind}')
        if first or not CFG['ab'] & 1:
            a('s_barrier')
        stamp(5)
        G.tl_mark(a, 76, f's{sPH}', 1, RT)
        site = len(sites)
        sites.append(site)
        a(f's_bitcmp1_b32 s{sSlow}, s{sPH}')
        a('s_cbranch_scc1 L2_slow')
        a.label(f'L2_ret{site}')
        hs = [None]
        st['m0'] = None

        def dhook():
            if hs[0] is None:
                return
            if CFG['sprio']:
                a(f's_setprio {3 - hs[0]}')
            for n in (4, 2, 3, 0, 1):
                if dpos[n] == hs[0]:
                    fill(n)
                    if mpos[n] < 0 and more2:
                        load_m(n)
            hs[0] += 1

        def rhook(pos):
            if first and not CFG['ab_norec']:
                if pos == 7 and CFG['pprio'] == 3:
                    load_own(0)
                for g in range(1, 4):
                    if ipos[g - 1] == pos:
                        load_own(g)
            elif second:
                for g in range(1, 3):
                    if fpos[g] == 9 and ipos2[g - 1] == pos:
                        load_own(g)
                if ipos2[2] == pos:
                    load_rec(3)
            elif rpos[3] in (pos, pos + 8):
                load_rec(3)
            if not more1:
                if pos == 1 and CFG['fuse']:
                    fin_preload()
                return
            for n in (4, 2, 3, 0, 1):
                if (fmpos if first else mpos)[n] == pos:
                    load_m(n)
            if pos == 5:
                next_m(jj + 1)
            for g in range(3):
                if (fpos if first else fpos2 if second else rpos)[g] == pos:
                    load_rec(g)
                if first and fpos[g] == 9 and pos == 6:
                    a(f'v_mov_b32 v{EC[g]}, v{EN[g]}')

        for i, b in enumerate(order):
            if b == b1_step and more1:
                a.wait_lg(('m', 7))
                stamp(1)
                if not CFG['ab'] & 2:
                    a('s_barrier')
                stamp(2)
                hs[0] = 0
                dhook()
            if (i == 0 or prio1[i] != prio1[i - 1]) and not (CFG['sprio'] and b == b1_step):
                a(f's_setprio {prio1[i]}')
            if b != 7:
                step_a(b)
            if b == CFG['xpre'] and more2 and not CFG['ab'] & 4:
                x_pre((jj + 2) & 3)
            rhook(b)
            if b == b1_step and more2 and not CFG['ab'] & 4:
                x_list((jj + 2) & 3, EN, 2)
            elif b == b1_step and more1:
                a(f'v_mov_b32 v{ES}, v{EN[3]}')
            dhook()
            if first and b == 7:
                gather(0, 7)
                dec_ao(0)
                dec_c1(0)
            else:
                step_b(b, mid=dhook)
            dhook()
        step_a(7)
        if more1:
            assert hs[0] > max(dpos)
            a(f's_add_u32 s{sPH}, s{sPH}, 1')
            a.wait_lg('F')
            stamp(4)

    phase(0, 'first')
    phase(1, 'second')
    a.vm = merge_vm(a.vm, G.MEMO.get('back', []))
    head_vm, head_lg = list(a.vm), list(a.lg)
    a.label('L2_loop')
    for jj in (2, 3, 0, 1):
        phase(jj, 'mid')
    assert 'back' not in G.MEMO or merge_vm(head_vm, a.vm) == head_vm, (a.vm, head_vm)
    G.MEMO['back'] = list(a.vm)
    assert a.lg == head_lg
    a(f's_cmp_lg_u32 s{sPH}, 14')
    a('s_cbranch_scc1 L2_loop')
    phase(2, 'penult')
    phase(3, 'last')
    step_b(7, final=True)
    a.wait_lg('x')
    check(7, 1)
    check(7, 0)
    for ln in flush_pend(PEND):
        a(ln)
    a('s_mov_b64 exec, -1')
    if True:
        a('s_load_dwordx2 s[4:5], s[0:1], 88')
        for n in range(1, 5):
            a(f'v_add_u32 v{122 + n}, {n * 16384}, v122')
        for n in range(4):
            a(f's_lshl_b32 s{50 + 2 * n}, s{96 + n}, 16')
            a(f's_and_b32 s{51 + 2 * n}, s{96 + n}, 0xffff0000')
        a('s_waitcnt vmcnt(0) lgkmcnt(0)')
        a('s_barrier')
        G.tl_mark(a, 76, 16, 1, 106)
        a('v_add_u32 v36, 0x8000, v126')
        for n in range(5):
            if n < 3:
                a(f'ds_read_b128 {vr(16 + 4 * n, 4)}, v126 offset:{G.A_BASE - 65536 + n * 16384}')
            else:
                a(f'ds_read_b128 {vr(16 + 4 * n, 4)}, v36 offset:{G.A_BASE - 98304 + n * 16384}')
        G.srd(a, 8, 30, G.FLAG_OFF, G.FLAG_SZ)
        G.srd(a, 12, 4, 0, G.E * 8)
        a(f's_mul_i32 s3, s{sQ}, 20000')
        for n in range(5):
            a(f'v_subrev_u32 v36, s3, v{122 + n}')
            a('v_cmp_le_u32 vcc, 20000, v36')
            a(f's_waitcnt lgkmcnt({4 - n})')
            a('s_mov_b64 exec, vcc')
            a(f'buffer_store_dwordx4 {vr(16 + 4 * n, 4)}, v{122 + n}, s[20:23], 0 offen sc1', tag='st')
            a('s_mov_b64 exec, -1')
        GH = [80, 16]
        G.fin_gates(a, FD[0], 50, FW, GH[0], 60)
        if not CFG['g1late']:
            a(f's_cmp_ge_u32 s{sW}, 4')
            a('s_cbranch_scc1 L2_f1')
            G.fin_gates(a, FD[1], 50, FW, GH[1], 60)
            a.label('L2_f1')
        PL = [32, 60]
        for r in range(2):
            a(f'v_add_u32 v104, {G.A_BASE}, v{FL[r]}')
            a(f'ds_read_b128 {vr(PL[r], 4)}, v104')
        G.srd(a, 20, 30, G.PART_OFF, G.PART_SZ)
        for k in range(1, 4):
            a(f's_add_u32 s3, s{sQ}, {k}')
            a('s_and_b32 s3, s3, 3')
            a('s_lshl_b32 s3, s3, 6')
            a(f's_add_u32 s3, s3, s{sOB}')
            a(f's_mul_i32 s{43 + k}, s3, 80000')
        a(f's_lshl_b32 s3, s{sOB}, 9')
        a(f's_lshl_b32 s4, s{sQ}, 7')
        a('s_add_u32 s4, s4, s3')
        a('v_mov_b32 v104, 1')
        a('v_lshlrev_b32 v105, 3, v122')
        G.tl_mark(a, 76, 17, 1, 106)
        a('s_waitcnt vmcnt(0)')
        a('s_barrier')
        G.tl_mark(a, 76, 18, 1, 106)
        a(f's_cmp_lg_u32 s{sW}, 0')
        a('s_cbranch_scc1 L2_f2')
        a('s_mov_b64 exec, 1')
        a('buffer_store_dword v104, off, s[8:11], s4 sc1')
        a('s_mov_b64 exec, 15')
        a(f's_bitset0_b64 exec, s{sQ}')
        a.label('L2_f3')
        a('buffer_load_dword v104, v105, s[8:11], s3 offen sc1')
        a('s_waitcnt vmcnt(0)')
        a('v_cmp_ne_u32 vcc, 1, v104')
        a('s_cbranch_vccnz L2_f3')
        a.label('L2_f4')
        a('s_mov_b64 exec, -1')
        a.label('L2_f2')
        a('s_barrier')
        G.tl_mark(a, 76, 19, 1, 106)
        for r in range(2):
            if r:
                a(f's_cmp_ge_u32 s{sW}, 4')
                a('s_cbranch_scc1 L2_f5')
            for k in range(1, 4):
                a(f'buffer_load_dwordx4 {vr(PL[r] + 4 * k, 4)}, v{FL[r]}, s[20:23], s{43 + k} offen sc1')
        if CFG['g1late']:
            G.fin_gates(a, FD[1], 50, FW, GH[1], (96, 0, [104, 76]))
        a.label('L2_f5')
        a('s_waitcnt vmcnt(0) lgkmcnt(0)')
        G.tl_mark(a, 76, 20, 1, 106)
        for r in range(2):
            if r:
                a(f's_cmp_ge_u32 s{sW}, 4')
                a('s_cbranch_scc1 L2_f6')
            G.fin_out(a, PL[r], GH[r], FW, ID, FM[r], 96)
            a(f'buffer_store_dwordx4 {vr(PL[r] + 4, 4)}, v{FG[r]}, s[12:15], 0 offen{CFG["out_pol"]}')
        a.label('L2_f6')
    G.tl_end(a)
    if CFG['stamp']:
        a('s_waitcnt vmcnt(0)')
        stamp(6)
        a('s_load_dwordx2 s[74:75], s[0:1], 96')
        a('s_waitcnt lgkmcnt(0)')
        G.srd(a, 76, 74, 0, 256)
        a(f's_cmp_lg_u32 s2, {CFG["stamp"]}')
        a('s_cbranch_scc1 L2_end')
        a(f's_and_b32 s3, s{sW}, 3')
        a('s_cmp_lg_u32 s3, 0')
        a('s_cbranch_scc1 L2_end')
        a(f's_lshl_b32 s3, s{sW}, 3')
        a('v_mov_b32 v20, 0')
        for i in range(8):
            a(f'v_mov_b32 v21, s{60 + i}')
            a(f'buffer_store_dword v21, v20, s[76:79], s3 offen offset:{4 * i}')
    a.label('L2_end')
    a('s_endpgm')

    a.label('L2_slow')
    a.reset()
    sC, sS, sE, sO = 50, 51, 52, 53
    pp, t_, wa, ba, w_, b_, ao, c_, ai_ = 102, 103, 104, 105, 106, 107, 96, 97, 98
    m_ = MR[0][0]
    a(f's_lshr_b32 s{sSP}, s{sPH}, 2')
    a(f's_mul_i32 s{sC}, s{sW}, 80')
    a(f's_add_u32 s57, s{sC}, 80')
    a(f's_and_b32 s3, s{sPH}, 3')
    a(f's_lshl_b32 s{sO}, s3, 3')
    a(f's_add_u32 s{sO}, s{sO}, s{sTab}')
    a(f's_and_b32 s3, s{sSP}, 2')
    a('s_lshl_b32 s3, s3, 1')
    a(f's_add_u32 s{sO}, s{sO}, s3')
    a(f's_and_b32 s54, s{sSP}, 1')
    a('s_lshl_b32 s54, s54, 4')
    a.label('L2_sl_seg')
    a(f's_mul_i32 s56, s{sC}, {G.BLK}')
    a(f's_and_b32 s3, s{sC}, 3')
    a('s_lshl_b32 s3, s3, 5')
    a('s_add_u32 s3, s3, s56')
    a(f's_add_u32 s3, s3, s{sO}')
    a('s_add_u32 s55, s3, 32')
    a(f's_buffer_load_dword s{sS}, s[12:15], s3')
    a(f's_buffer_load_dword s{sE}, s[12:15], s55')
    a('s_waitcnt lgkmcnt(0)')
    a(f's_lshr_b32 s{sS}, s{sS}, s54')
    a(f's_and_b32 s{sS}, s{sS}, 0xffff')
    a(f's_lshr_b32 s{sE}, s{sE}, s54')
    a(f's_and_b32 s{sE}, s{sE}, 0xffff')
    a.label('L2_sl_rec')
    a(f's_cmp_ge_u32 s{sS}, s{sE}')
    a('s_cbranch_scc1 L2_sl_next')
    a(f'v_mbcnt_lo_u32_b32 v{pp}, -1, 0')
    a(f'v_mbcnt_hi_u32_b32 v{pp}, -1, v{pp}')
    a(f'v_add_u32 v{pp}, s{sS}, v{pp}')
    a(f'v_and_b32 v{t_}, -4, v{pp}')
    a(f'v_lshl_add_u32 v{wa}, v{pp}, 2, v{t_}')
    a(f'v_lshl_add_u32 v{ba}, v{t_}, 2, v{pp}')
    a(f'v_cmp_gt_u32 vcc, s{sE}, v{pp}')
    a('s_mov_b64 exec, vcc')
    a(f'buffer_load_dword v{w_}, v{wa}, s[8:11], s56 offen')
    a(f'buffer_load_ubyte v{b_}, v{ba}, s[8:11], s56 offen offset:16')
    a('s_waitcnt vmcnt(0)')
    a(f'v_lshrrev_b32 v{ai_}, 14, v{w_}')
    a(f'v_and_b32 v{ai_}, v{KAD}, v{ai_}')
    a(f'ds_read_b64 {vr(m_, 2)}, v{ai_}')
    a(f'v_perm_b32 v{c_}, v{w_}, v{b_}, s{sP[0]}')
    a(f'v_and_b32 v{ao}, v{KAD}, v{w_}')
    a(f'v_bitop3_b32 v{t_}, v{w_}, 0.5, -0.5 bitop3:{ORAND:#x}')
    a(f'v_bitop3_b32 v{c_}, v{KCM}, v{c_}, v{t_} bitop3:{SEL:#x}')
    a('s_waitcnt lgkmcnt(0)')
    a(f'{MF} {vr(RT, 4)}, {vr(WD, 2)}, {vr(m_, 2)}, 0')
    for n in range(4):
        a(f'v_mul_f32 v{RT + n}, v{c_}, v{RT + n}')
    a(f'v_cvt_pk_bf16_f32 v{RT}, v{RT}, v{RT + 1}')
    a(f'v_cvt_pk_bf16_f32 v{RT + 1}, v{RT + 2}, v{RT + 3}')
    a(f'ds_pk_add_bf16 v{ao}, v{RT} offset:{G.A_OFFS}')
    a(f'ds_pk_add_bf16 v{ao}, v{RT + 1} offset:{G.A_OFFS + 4}')
    a('s_mov_b64 exec, -1')
    a(f's_add_u32 s{sS}, s{sS}, 64')
    a('s_branch L2_sl_rec')
    a.label('L2_sl_next')
    a(f's_add_u32 s{sC}, s{sC}, 1')
    a(f's_cmp_lt_u32 s{sC}, s57')
    a('s_cbranch_scc1 L2_sl_seg')
    a('s_waitcnt lgkmcnt(0)')
    for ph, k in ((0, 0), (1, 1), (14, 6), (15, 7)):
        a(f's_cmp_eq_u32 s{sPH}, {ph}')
        a(f's_cbranch_scc1 L2_ret{k}')
    a(f's_and_b32 s3, s{sPH}, 3')
    for ph, k in ((2, 2), (3, 3), (0, 4)):
        a(f's_cmp_eq_u32 s3, {ph}')
        a(f's_cbranch_scc1 L2_ret{k}')
    a('s_branch L2_ret5')
    for bl in ool:
        for ln in bl:
            if ln.endswith(':'):
                a.label(ln[:-1])
                a.reset()
            else:
                a(ln)
    return name
```

```python
import os
import sys
from asmlib import Asm, vr, sr

NAME = 'gather_scatter__molecular_angular_gemnet__graph'
CFG = dict(
    ld_pol=' nt',
    st_pol=' sc1',
    pad=9216, p1_first=8, mcn=128, tabx=1, ab_p1=0, il=1, sa='20010010', sb='1000100100', la='01101000', lb='1000100000', scd=8, p1prio=1, warm=2, dyn=1, cut='112 176 240', tkpos=7, tkwave=15, wgx=0,
    ab=0, ab_nofix=0, ab_norec=0, ab_nom=0, stamp=0, tl=0, tlw=0, dup2=0, dup1=0, wsoff=0, nulls=0, dup3=0, cnt=0,
    x3=2, rpos='1 3 5 7', dpos='2 3 0 0 1', mpos='0 2 -1 -1 -1', ipos='7 0 2', fpos='4 6 9', fmpos='3 3 1 2 1', ipos2='7 7 1', fpos2='2 4 6', pprio=0, dq=0, nbr=1, gord='0 1 2 3', sprio=1, xpre=2, pkmul=1, mov64=1, injs=4, injearly=0, pr='3 3 2 2 1 1 0 1', part_pol=' sc1', fuse=1, out_pol='', mimic=1, g1late=1,
)
for arg in sys.argv[2:]:
    k, v = arg.split('=', 1)
    CFG[k] = type(CFG[k])(v.replace('_', ' ')) if isinstance(CFG.get(k), str) else int(v)

E = 640000
T = 40960000
CH = 32768
NCH = 1280
REC_CH = CH * 5
TAB_CH = 16 * 65 * 8
BLK = REC_CH + CFG['pad']
REC_OFF = CFG['wsoff']
REC_SZ = NCH * BLK
TAB_OFF = REC_OFF + REC_CH
TAB_SZ = NCH * BLK - REC_CH
MD_OFF = REC_OFF + REC_SZ
MD_SZ = 64 * 81920
PART_OFF = MD_OFF + MD_SZ + 4096
PART_SZ = 4 * E * 8
WT_OFF = PART_OFF + PART_SZ
WT_SZ = 256
FLAG_OFF = WT_OFF + 4096
FLAG_SZ = 256 * 128
KBIAS = 2064
A_BASE = 81920
A_OFFS = A_BASE - KBIAS * 8

MEMO = {}
SEL = 0xCA
ANDOR = 0xEA
XANDN = 0x9A


def srd(a, d, base, off, size):
    if off:
        a(f's_add_u32 s{d}, s{base}, {off:#x}')
        a(f's_addc_u32 s{d+1}, s{base+1}, 0')
    else:
        a(f's_mov_b32 s{d}, s{base}')
        a(f's_mov_b32 s{d+1}, s{base+1}')
    a(f's_mov_b32 s{d+2}, {size:#x}')
    a(f's_mov_b32 s{d+3}, 0x20000')


def kernel_head(a, name):
    a.raw('.text')
    a.raw(f'.globl {name}')
    a.raw('.p2align 8')
    a.raw(f'.type {name},@function')
    a.label(name)
    a.reset()


def kernel_desc(a, name, vgpr, sgpr=96):
    a.raw('.p2align 6')
    a.raw(f'.amdhsa_kernel {name}')
    a.raw(f'  .amdhsa_next_free_vgpr {vgpr}')
    a.raw(f'  .amdhsa_next_free_sgpr {sgpr}')
    a.raw(f'  .amdhsa_accum_offset {(vgpr + 3) // 4 * 4}')
    a.raw('  .amdhsa_group_segment_fixed_size 0')
    a.raw('  .amdhsa_kernarg_size 112')
    a.raw('  .amdhsa_user_sgpr_count 2')
    a.raw('  .amdhsa_user_sgpr_kernarg_segment_ptr 1')
    a.raw('  .amdhsa_system_sgpr_workgroup_id_x 1')
    a.raw('  .amdhsa_float_denorm_mode_32 3')
    a.raw('.end_amdhsa_kernel')


TL_OFF = 600000000
tl_idx = [0]


def tl_start(a):
    if not CFG['tl']:
        return
    a('s_memrealtime s[90:91]')
    a('s_memtime s[92:93]')
    a('v_readfirstlane_b32 s94, v0')
    a('s_waitcnt lgkmcnt(0)')


def tl_end(a):
    if not CFG['tl']:
        return
    a('s_waitcnt vmcnt(0) lgkmcnt(0)')
    a('s_memrealtime s[86:87]')
    a('s_memtime s[88:89]')
    a('s_load_dwordx2 s[74:75], s[0:1], 104')
    a('s_waitcnt lgkmcnt(0)')
    srd(a, 76, 74, TL_OFF + tl_idx[0] * 0x100000, 0x100000)
    tl_idx[0] += 1
    a('s_mov_b64 exec, 1')
    a('s_lshr_b32 s94, s94, 2')
    a('s_lshl_b32 s95, s2, 8')
    a('s_add_u32 s94, s94, s95')
    a('s_sub_u32 s88, s88, s92')
    a('s_getreg_b32 s89, hwreg(HW_REG_XCC_ID)')
    a('s_and_b32 s89, s89, 15')
    a('s_lshl_b32 s87, s84, 8')
    a('s_or_b32 s89, s89, s87')
    a('v_mov_b32 v0, s94')
    for i, r in enumerate((90, 86, 88, 89)):
        a(f'v_mov_b32 v{4 + i}, s{r}')
    a('buffer_store_dwordx4 v[4:7], v0, s[76:79], 0 offen')
    a('s_mov_b64 exec, -1')


def tl_mark(a, srdreg, slot_sgpr_or_int, kidx, vtmp):
    if CFG['tl'] < 2:
        return
    a('s_memrealtime s[86:87]')
    a('s_memtime s[88:89]')
    a('s_load_dwordx2 s[74:75], s[0:1], 104')
    a('s_waitcnt lgkmcnt(0)')
    srd(a, 76, 74, TL_OFF + (4 + kidx) * 0x100000, 0x100000)
    a(f's_cmp_eq_u32 s94, {CFG["tlw"] * 64}')
    a('s_cselect_b64 exec, 1, 0')
    a('s_lshl_b32 s95, s2, 9')
    if isinstance(slot_sgpr_or_int, int):
        a(f's_add_u32 s95, s95, {slot_sgpr_or_int * 8}')
    else:
        a(f's_lshl_b32 s87, {slot_sgpr_or_int}, 3')
        a('s_add_u32 s95, s95, s87')
    a(f'v_mov_b32 v{vtmp}, s86')
    a(f'v_mov_b32 v{vtmp + 1}, s88')
    vm = list(a.vm)
    a(f'buffer_store_dwordx2 v[{vtmp}:{vtmp + 1}], off, s[76:79], s95')
    a.vm = vm
    a('s_mov_b64 exec, -1')


def wave_scan(a, regs):
    for sh in (1, 2, 4, 8):
        for x in regs:
            a(f'v_add_u32_dpp v{x}, v{x}, v{x} row_shr:{sh} row_mask:0xf bank_mask:0xf bound_ctrl:1')
    for x in regs:
        a(f'v_add_u32_dpp v{x}, v{x}, v{x} row_bcast:15 row_mask:0xa bank_mask:0xf')
    for x in regs:
        a(f'v_add_u32_dpp v{x}, v{x}, v{x} row_bcast:31 row_mask:0xc bank_mask:0xf')


def ident(a, d, tmp, lane, neg=False):
    one = 0xbf80 if neg else 0x3f80
    a(f'v_and_b32 v{tmp}, 3, v{lane}')
    a(f'v_lshlrev_b32 v{tmp}, 4, v{tmp}')
    a(f'v_mov_b32 v{d}, {one:#x}')
    a(f'v_mov_b32 v{d+1}, 0')
    a(f'v_lshlrev_b64 {vr(d, 2)}, v{tmp}, {vr(d, 2)}')


MF = 'v_mfma_f32_4x4x4_16b_bf16'


def fin_gates(a, dist, sc, wt, gh, tmp):
    X, Y, RB, d = (tmp, tmp + 8, [tmp + 12, tmp + 16], gh) if isinstance(tmp, int) else tmp + (gh,)
    for r in range(2):
        if r == 0:
            a(f'v_lshlrev_b32 v{d}, 16, v{dist}')
        else:
            a(f'v_and_b32 v{d}, 0xffff0000, v{dist}')

        def rnd():
            if not CFG['mimic']:
                return
            for n in range(4):
                a(f'v_cvt_pk_bf16_f32 v{Y + n}, v{X + 2 * n}, v{X + 2 * n + 1}')
            for n in range(4):
                a(f'v_lshlrev_b32 v{X + 2 * n}, 16, v{Y + n}')
                a(f'v_and_b32 v{X + 2 * n + 1}, 0xffff0000, v{Y + n}')
        for n in range(8):
            a(f'v_subrev_f32 v{X + n}, s{sc + n}, v{d}')
        rnd()
        for n in range(8):
            a(f'v_mul_f32 v{X + n}, v{X + n}, v{X + n}')
        rnd()
        if CFG['mimic']:
            for n in range(8):
                a(f'v_mul_f32 v{X + n}, 0xc1200000, v{X + n}')
            rnd()
        for n in range(8):
            a(f'v_mul_f32 v{X + n}, {"0x3fb8aa3b" if CFG["mimic"] else "0xc166d4ca"}, v{X + n}')
        for n in range(8):
            a(f'v_exp_f32 v{X + n}, v{X + n}')
        for n in range(4):
            a(f'v_cvt_pk_bf16_f32 v{RB[r] + n}, v{X + 2 * n}, v{X + 2 * n + 1}')
    for k in range(2):
        for r in range(2):
            for w in range(2):
                o = gh + 8 * w + 4 * r
                a(f'{MF} {vr(o, 4)}, {vr(wt + 4 * w + 2 * k, 2)}, {vr(RB[r] + 2 * k, 2)}, {vr(o, 4) if k else 0}')


def fin_out(a, pl, gh, wt, ident_, m, S):
    S = [S, S + 4]
    G_, H_ = [gh, gh + 4], [gh + 8, gh + 12]
    for q in range(4):
        for r in range(2):
            a(f'{MF} {vr(S[r], 4)}, {vr(ident_, 2)}, {vr(pl + 4 * q + 2 * r, 2)}, {vr(S[r], 4) if q else 0}')
    for r in range(2):
        for n in range(4):
            a(f'v_mul_f32 v{S[r] + n}, v{S[r] + n}, v{G_[r] + n}')
        a(f'v_cvt_pk_bf16_f32 v{pl + 2 * r}, v{S[r]}, v{S[r] + 1}')
        a(f'v_cvt_pk_bf16_f32 v{pl + 1 + 2 * r}, v{S[r] + 2}, v{S[r] + 3}')
    for r in range(2):
        a(f'{MF} {vr(G_[r], 4)}, {vr(wt + 8, 2)}, {vr(pl + 2 * r, 2)}, 0')
    for r in range(2):
        for n in range(4):
            a(f'v_mul_f32 v{G_[r] + n}, v{G_[r] + n}, v{H_[r] + n}')
    for r in range(2):
        a(f'{MF} {vr(S[r], 4)}, {vr(ident_, 2)}, {vr(m + 2 * r, 2)}, {vr(G_[r], 4)}')
    for r in range(2):
        a(f'v_cvt_pk_bf16_f32 v{pl + 4 + 2 * r}, v{S[r]}, v{S[r] + 1}')
        a(f'v_cvt_pk_bf16_f32 v{pl + 5 + 2 * r}, v{S[r] + 2}, v{S[r] + 3}')


def gen_p3(a):
    name = 'gs_final_kernel'
    kernel_head(a, name)
    a('s_cmp_ge_u32 s2, 1250')
    a('s_cbranch_scc1 L3_end')
    tl_start(a)
    a('s_load_dwordx2 s[4:5], s[0:1], 0')
    a('s_load_dwordx2 s[6:7], s[0:1], 24')
    a('s_load_dwordx2 s[28:29], s[0:1], 40')
    a('s_load_dwordx2 s[30:31], s[0:1], 88')
    a('s_load_dwordx2 s[32:33], s[0:1], 104')
    a('s_lshl_b32 s3, s2, 8')
    a('v_add_u32 v1, s3, v0')
    a('v_lshlrev_b32 v2, 4, v1')
    a('v_lshlrev_b32 v3, 2, v1')
    a('v_bfe_u32 v4, v1, 3, 6')
    a('s_mov_b32 s3, 80000')
    a('v_mul_lo_u32 v4, v4, s3')
    a('v_lshrrev_b32 v5, 9, v1')
    a('v_lshl_add_u32 v4, v5, 7, v4')
    a('v_and_b32 v5, 7, v1')
    a('v_lshl_add_u32 v4, v5, 4, v4')
    a('v_and_b32 v5, 3, v0')
    a('v_lshlrev_b32 v5, 6, v5')
    a('s_waitcnt lgkmcnt(0)')
    a('s_load_dwordx4 s[36:39], s[28:29], 0')
    srd(a, 8, 4, 0, E * 8)
    srd(a, 12, 6, 0, E * 2)
    srd(a, 16, 30, 0, E * 8)
    srd(a, 20, 32, PART_OFF, PART_SZ)
    srd(a, 24, 32, WT_OFF, WT_SZ)
    a('buffer_load_dword v6, v3, s[12:15], 0 offen', tag='d')
    a('buffer_load_dwordx4 v[8:11], v5, s[24:27], 0 offen', tag='w')
    a('buffer_load_dwordx4 v[12:15], v5, s[24:27], 0 offen offset:16', tag='w')
    a('buffer_load_dwordx2 v[16:17], v5, s[24:27], 0 offen offset:32', tag='w')
    for q in range(4):
        a(f's_mov_b32 s{40+q}, {q * E * 8}')
        a(f'buffer_load_dwordx4 {vr(20 + 4 * q, 4)}, v4, s[20:23], s{40+q} offen', tag='p')
    a('buffer_load_dwordx4 v[36:39], v2, s[8:11], 0 offen', tag='m')
    ident(a, 18, 7, 0)
    a('s_waitcnt lgkmcnt(0)')
    for n in range(4):
        a(f's_lshl_b32 s{44 + 2 * n}, s{36 + n}, 16')
        a(f's_and_b32 s{45 + 2 * n}, s{36 + n}, 0xffff0000')
    a.wait_vm('d')
    RB = [40, 44]
    for r in range(2):
        if r == 0:
            a('v_lshlrev_b32 v7, 16, v6')
        else:
            a('v_and_b32 v7, 0xffff0000, v6')
        X = 48

        def rnd():
            for n in range(4):
                a(f'v_cvt_pk_bf16_f32 v{56 + n}, v{X + 2 * n}, v{X + 2 * n + 1}')
            for n in range(4):
                a(f'v_lshlrev_b32 v{X + 2 * n}, 16, v{56 + n}')
                a(f'v_and_b32 v{X + 2 * n + 1}, 0xffff0000, v{56 + n}')
        for n in range(8):
            a(f'v_subrev_f32 v{X + n}, s{44 + n}, v7')
        rnd()
        for n in range(8):
            a(f'v_mul_f32 v{X + n}, v{X + n}, v{X + n}')
        rnd()
        for n in range(8):
            a(f'v_mul_f32 v{X + n}, 0xc1200000, v{X + n}')
        rnd()
        for n in range(8):
            a(f'v_mul_f32 v{X + n}, 0x3fb8aa3b, v{X + n}')
        for n in range(8):
            a(f'v_exp_f32 v{X + n}, v{X + n}')
        for n in range(4):
            a(f'v_cvt_pk_bf16_f32 v{RB[r] + n}, v{X + 2 * n}, v{X + 2 * n + 1}')
    a.wait_vm('w')
    G = [48, 52]
    H = [56, 60]
    S = [64, 68]
    mf = 'v_mfma_f32_4x4x4_16b_bf16'
    for r in range(2):
        a(f'{mf} {vr(G[r], 4)}, v[8:9], {vr(RB[r], 2)}, 0')
        a(f'{mf} {vr(H[r], 4)}, v[12:13], {vr(RB[r], 2)}, 0')
    for r in range(2):
        a(f'{mf} {vr(G[r], 4)}, v[10:11], {vr(RB[r] + 2, 2)}, {vr(G[r], 4)}')
        a(f'{mf} {vr(H[r], 4)}, v[14:15], {vr(RB[r] + 2, 2)}, {vr(H[r], 4)}')
    a.wait_vm('p')
    for q in range(4):
        for r in range(2):
            a(f'{mf} {vr(S[r], 4)}, v[18:19], {vr(20 + 4 * q + 2 * r, 2)}, {vr(S[r], 4) if q else 0}')
    for r in range(2):
        for n in range(4):
            a(f'v_mul_f32 v{S[r] + n}, v{S[r] + n}, v{G[r] + n}')
        a(f'v_cvt_pk_bf16_f32 v{20 + 2 * r}, v{S[r]}, v{S[r] + 1}')
        a(f'v_cvt_pk_bf16_f32 v{21 + 2 * r}, v{S[r] + 2}, v{S[r] + 3}')
    for r in range(2):
        a(f'{mf} {vr(G[r], 4)}, v[16:17], {vr(20 + 2 * r, 2)}, 0')
    for r in range(2):
        for n in range(4):
            a(f'v_mul_f32 v{G[r] + n}, v{G[r] + n}, v{H[r] + n}')
    a.wait_vm('m')
    for r in range(2):
        a(f'{mf} {vr(S[r], 4)}, v[18:19], {vr(36 + 2 * r, 2)}, {vr(G[r], 4)}')
    for r in range(2):
        a(f'v_cvt_pk_bf16_f32 v{24 + 2 * r}, v{S[r]}, v{S[r] + 1}')
        a(f'v_cvt_pk_bf16_f32 v{25 + 2 * r}, v{S[r] + 2}, v{S[r] + 3}')
    a('buffer_store_dwordx4 v[24:27], v2, s[16:19], 0 offen', tag='st')
    tl_end(a)
    a.label('L3_end')
    a('s_endpgm')
    return name


from p1 import gen_p1
from p2 import gen_p2


def main():
    a = Asm()
    root = os.path.dirname(os.path.dirname(os.path.abspath(__file__))) + '/'
    ref = open(root + NAME + '.s.ref').read().splitlines()
    for ln in ref:
        if ln.startswith('; Override') or not ln.startswith(';'):
            break
        a.raw(ln)
    a.raw('; Generated by gen/gen.py (hand-written generator).  Launches: sort, accumulate (+ final).')
    a.raw('; @launch kernel=gs_sort_kernel grid=(256,1,1) block=(1024,1,1) lds=163840')
    if CFG['dup1']:
        a.raw('; @launch kernel=gs_sort_kernel grid=(256,1,1) block=(1024,1,1) lds=163840')
    a.raw('; @launch kernel=gs_acc_kernel grid=(256,1,1) block=(1024,1,1) lds=163840')
    if CFG['dup2']:
        a.raw('; @launch kernel=gs_acc_kernel grid=(256,1,1) block=(1024,1,1) lds=163840')
    if not CFG['fuse']:
        a.raw('; @launch kernel=gs_final_kernel grid=(1250,1,1) block=(256,1,1) lds=0')
    for _ in range(CFG['dup3']):
        a.raw('; @launch kernel=gs_final_kernel grid=(1250,1,1) block=(256,1,1) lds=0')
    for _ in range(CFG['nulls']):
        a.raw('; @launch kernel=gs_null_kernel grid=(256,1,1) block=(64,1,1) lds=0')
    a.raw('.amdgcn_target "amdgcn-amd-amdhsa--gfx950"')
    k1 = gen_p1(a, sys.modules[__name__])
    t = tl_idx[0]
    gen_p2(Asm(), sys.modules[__name__])
    tl_idx[0] = t
    k2 = gen_p2(a, sys.modules[__name__])
    k3 = None if CFG['fuse'] else gen_p3(a)
    if CFG['nulls']:
        kernel_head(a, 'gs_null_kernel')
        a('s_endpgm')
    a.raw('.section .rodata,"a"')
    if CFG['nulls']:
        kernel_desc(a, 'gs_null_kernel', 8, 16)
    kernel_desc(a, k1, 128)
    kernel_desc(a, k2, 128, 100)
    if k3:
        kernel_desc(a, k3, 72, 96 if CFG['tl'] else 64)
    out = sys.argv[1] if len(sys.argv) > 1 else root + NAME + '.s'
    txt = a.text()
    if CFG['ab_p1']:
        o = []
        on = False
        for ln in txt.split('\n'):
            if 'chunk 0: pass A' in ln:
                on = True
            if ln.startswith('L1_fin'):
                on = False
            t = ln.strip()
            if on:
                if t.startswith('ds_') and (CFG['ab_p1'] & 1):
                    continue
                if t.startswith('v_') and (CFG['ab_p1'] & 2) and not t.startswith(('v_add_u32', 'v_and_b32 v11', 'v_mov', 'v_readlane')):
                    continue
                if t.startswith('s_barrier') and (CFG['ab_p1'] & 4):
                    continue
                if t.startswith('buffer_store_dwordx2') and (CFG['ab_p1'] & 8):
                    ln = ln.replace('offen', 'offen').replace('s[24:27]', 's[96:99]')
                if t.startswith('buffer_store_dwordx4') and (CFG['ab_p1'] & 16):
                    ln = ln.replace('s[20:23]', 's[96:99]')
            o.append(ln)
            if 'chunk 0: pass A' in ln:
                o.append('    s_mov_b32 s96, s20\n    s_mov_b32 s97, s21\n    s_mov_b32 s98, 0\n    s_mov_b32 s99, 0x20000')
        txt = '\n'.join(o).replace('next_free_sgpr 96', 'next_free_sgpr 100')
        txt = '\n'.join(l for l in txt.split('\n') if not ('@launch' in l and 'sort' not in l))
    open(out, 'w').write(txt)


if __name__ == '__main__':
    main()
```

```python
from asmlib import vr, sr

MF = 'v_mfma_f32_4x4x4_16b_bf16'


def gen_p1(a, G, gen_p2=None):
    name = G.NAME + '_kernel' if gen_p2 else 'gs_sort_kernel'
    CFG = G.CFG
    SEL, ANDOR = G.SEL, G.ANDOR
    srd, tl_mark = G.srd, G.tl_mark
    T, E, CH, BLK = G.T, G.E, G.CH, G.BLK
    NW, NK = 256, 5
    G.kernel_head(a, name)
    a('s_cmp_ge_u32 s2, 256')
    a('s_cbranch_scc0 L1_go')
    a('s_endpgm')
    a.label('L1_go')
    G.tl_start(a)
    if CFG['wgx']:
        a(f's_xor_b32 s2, s2, {CFG["wgx"]}')
    a('s_load_dwordx4 s[4:7], s[0:1], 8')
    a('s_load_dwordx2 s[28:29], s[0:1], 32')
    a('s_load_dwordx2 s[30:31], s[0:1], 104')
    a('s_load_dwordx2 s[56:57], s[0:1], 96')
    a('s_load_dwordx2 s[86:87], s[0:1], 0')
    a('s_load_dwordx4 s[60:63], s[0:1], 56')
    a('s_load_dwordx4 s[64:67], s[0:1], 72')
    T16, T8, ONE, K1F, K87, KFC, K78 = 0, 1, 2, 3, 4, 5, 6
    t = list(range(7, 16))
    sW, sI, sA, sR, sT, sTmp, sI4, sA4 = 32, 33, 34, 35, 36, 37, 38, 39
    sKB, sP1, sP3, sNQ, sM10, sI5, sA5, sTK = 40, 41, 42, 43, 55, 58, 59, 84
    a('v_lshrrev_b32 v7, 6, v0')
    a(f'v_lshlrev_b32 v{T8}, 3, v0')
    a(f'v_readfirstlane_b32 s{sW}, v7')
    a(f'v_lshlrev_b32 v{T16}, 4, v0')
    IL = CFG['il']
    CUT = [int(x) for x in CFG['cut'].split()]
    assert sum(CUT) == 528 and sorted(CUT) == CUT and CUT[2] <= 256

    def qoff(k, j):
        if not IL:
            return ((2, j) if j >= 5 else (1, j)) if k == NK - 1 else (0, k * NW * 8 + j)
        if k == NK - 1 and j >= 5:
            return 2, 9472 + sum(CUT[::-1][:j - 5])
        return 0, (k * 8 + j) * NW
    a(f's_mul_i32 s{sI}, s2, {16384 if IL else CH * 4}')
    a(f's_mul_i32 s{sA}, s2, {8192 if IL else CH * 2}')
    a('s_waitcnt lgkmcnt(0)')
    srd(a, 8, 4, 0, T * 4)
    srd(a, 12, 6, 0, T * 4)
    srd(a, 16, 28, 0, T * 2)

    ren = G.MEMO.get('ren', {})
    pool = [ren.get(16 + 4 * i, 16 + 4 * i) for i in range(28)]
    items = []
    for k in range(NK):
        for o in range(4):
            items += [(k, 'I', 2 * o), (k, 'O', 2 * o), (k, 'A', o), (k, 'I', 2 * o + 1), (k, 'O', 2 * o + 1)]
    where = {}
    st = dict(next=0, tmp=0)

    def soff(base, off):
        r = 44 + st['tmp'] % 4
        st['tmp'] += 1
        a(f's_add_u32 s{r}, s{base}, {off:#x}')
        return r

    def gate(j, word):
        a(f's_cmp_le_u32 s{sNQ}, {j}')
        a(f's_cselect_b32 s{word}, 0, s{word}')

    def issue(n, limit):
        while n > 0 and st['next'] < min(limit, len(items)) and pool:
            it = items[st['next']]
            st['next'] += 1
            n -= 1
            b = pool.pop(0)
            where[it] = b
            k, kind, j = it
            lastk = k == NK - 1
            if kind == 'A':
                for h in range(2):
                    if lastk and 2 * j + h >= 5:
                        assert st.get('assigned') or not CFG['dyn']
                        gate(2 * j + h, 18)
                    bs, qo = qoff(k, 2 * j + h)
                    r = soff((sA, sA4, sA5)[bs], qo * 8192)
                    a(f'buffer_load_dwordx2 {vr(b + 2 * h, 2)}, v{T8}, s[16:19], s{r} offen{CFG["ld_pol"]}', tag=it)
            else:
                s = 8 if kind == 'I' else 12
                if lastk and j >= 5:
                    gate(j, s + 2)
                bs, qo = qoff(k, j)
                r = soff((sI, sI4, sI5)[bs], qo * 16384)
                a(f'buffer_load_dwordx4 {vr(b, 4)}, v{T16}, s[{s}:{s+3}], s{r} offen{CFG["ld_pol"]}', tag=it)

    if not gen_p2:
        issue(CFG['p1_first'], 20)
    srd(a, 68, 62, 0, 64)
    srd(a, 72, 60, 0, 64)
    srd(a, 20, 66, 0, 32)
    srd(a, 80, 64, 0, 32)
    srd(a, 24, 30, G.WT_OFF, G.WT_SZ)
    a(f'v_lshrrev_b32 v2, 3, v{T16}')
    a('v_and_b32 v2, 6, v2')
    a(f'v_lshlrev_b32 v3, 2, v{T16}')
    a(f's_lshl_b32 s3, s{sW}, 8')
    a('s_add_u32 s3, s3, s2')
    a('s_cmp_lg_u32 s3, 254')
    a('s_cbranch_scc1 L1_wt')
    vm = list(a.vm)
    assert min(pool) <= 96 and all(b in pool for b in range(96, 128, 4))

    def load_wt(dst, s, k0):
        for k in range(4):
            a(f'buffer_load_ushort v{(dst + (k >> 1)) + 12 * (k & 1)}, v2, s[{s}:{s+3}], 0 offen offset:{(k0 + k) * 8}', tag='w')
    load_wt(96, 68, 0)
    load_wt(98, 68, 4)
    load_wt(100, 72, 0)
    load_wt(102, 72, 4)
    load_wt(104, 20, 0)
    load_wt(106, 80, 0)
    a.wait_vm('w')
    for i in range(96, 108):
        a(f'v_lshl_or_b32 v{i}, v{i + 12}, 16, v{i}')
    for n in range(3):
        a(f'buffer_store_dwordx4 {vr(96 + 4 * n, 4)}, v3, s[24:27], 0 offen offset:{16 * n} sc1', tag='st')
    a.vm = vm
    a.label('L1_wt')
    if gen_p2:
        a('s_nop 1')
        issue(CFG['p1_first'], 20)
    srd(a, 20, 30, G.REC_OFF, G.REC_SZ)
    srd(a, 24, 30, G.TAB_OFF, G.TAB_SZ)
    srd(a, 80, 86, 0, E * 8)
    mc = {}

    MCN = CFG['mcn']
    MCP = 5120 // MCN
    MCH = (MCP + 15) // 16
    sMC = sTK if MCN < 256 else 2

    def mcopy_load():
        mc['b'] = [pool.pop(0) for _ in range(MCH)]
        a(f'v_lshrrev_b32 v15, 2, v{T16}')
        a(f'v_and_b32 v15, v{KFC}, v15')
        a(f's_cmp_ge_u32 s{sMC}, {MCN}')
        a('s_cselect_b32 s82, 0, s82')
        for h in range(MCH):
            a(f's_and_b32 s3, s{sMC}, {MCN // 64 - 1}')
            a(f's_mul_i32 s3, s3, {MCP}')
            a(f's_add_u32 s3, s3, s{sW}')
            if h:
                a(f's_add_u32 s3, s3, {16 * h}')
            if 16 * h + 16 > MCP:
                a(f's_cmp_ge_u32 s{sW}, {MCP - 16 * h}')
                a('s_cselect_b32 s82, 0, s82')
            a('s_mul_i32 s4, s3, 205')
            a('s_lshr_b32 s4, s4, 10')
            a('s_mul_i32 s5, s4, 5')
            a('s_sub_u32 s5, s3, s5')
            a('s_lshl_b32 s6, s4, 1')
            a('s_add_u32 s6, s6, s5')
            a('s_add_u32 s7, s6, s4')
            a('s_add_u32 s7, s7, 30')
            a('s_cmp_lt_u32 s5, 2')
            a('s_cselect_b32 s6, s6, s7')
            a('s_lshl_b32 s6, s6, 10')
            a(f's_lshr_b32 s7, s{sMC}, {(MCN // 64).bit_length() - 1}')
            a('s_mul_i32 s7, s7, 80000')
            a('s_add_u32 s6, s6, s7')
            for jd in range(4):
                a(f'buffer_load_dword v{mc["b"][h] + jd}, v15, s[80:83], s6 offen offset:{256 * jd}', tag='mc')

    def mcopy_store():
        srd(a, 80, 30, G.MD_OFF, MCP * 1024)
        a(f's_min_u32 s3, s{sMC}, {MCN - 1}')
        a(f's_mul_i32 s3, s3, {MCP * 1024}')
        a('s_add_u32 s80, s80, s3')
        a('s_addc_u32 s81, s81, 0')
        a(f's_cmp_ge_u32 s{sMC}, {MCN}')
        a('s_cselect_b32 s82, 0, s82')
        a.wait_vm('mc')
        for h in range(MCH):
            a(f'v_add_u32 v9, {h * 16384}, v{T16}')
            a(f'buffer_store_dwordx4 {vr(mc["b"][h], 4)}, v9, s[80:83], 0 offen sc1', tag='st')
        pool.extend(mc['b'])
    a(f's_mul_i32 s{sR}, s2, {BLK}')
    a(f's_and_b32 s{sTmp}, s{sW}, 3')
    a(f's_lshl_b32 s{sTmp}, s{sTmp}, 3')
    a(f's_mov_b32 s{sT}, s{sTmp}' if CFG['tabx'] else f's_add_u32 s{sT}, s{sR}, s{sTmp}')
    a(f's_lshr_b32 s{sTmp}, s{sW}, 2')
    a(f's_mul_i32 s{sTmp}, s{sTmp}, 2080')
    a(f's_add_u32 s{sT}, s{sT}, s{sTmp}')
    a(f's_and_b32 s{sTmp}, s2, 3')
    a(f's_lshl_b32 s{sTmp}, s{sTmp}, 5')
    a(f's_add_u32 s{sT}, s{sT}, s{sTmp}')
    a('s_mul_i32 s4, s2, 5')
    a('s_add_u32 s4, s4, 8192')
    a(f's_lshl_b32 s{sI4}, s4, 14')
    a(f's_lshl_b32 s{sA4}, s4, 13')

    def assign():
        n3, n2, n1 = CUT
        a(f's_min_u32 s4, s{sTK}, {n3}')
        a(f's_min_u32 s5, s{sTK}, {n2}')
        a(f's_min_u32 s6, s{sTK}, {n1}')
        a('s_add_u32 s4, s4, s5')
        a('s_add_u32 s4, s4, s6')
        a(f's_add_u32 s4, s4, {8192 + 1280 - 5}')
        if IL:
            a(f's_mov_b32 s4, s{sTK}')
        a(f's_lshl_b32 s{sI5}, s4, 14')
        a(f's_lshl_b32 s{sA5}, s4, 13')
        a(f's_mov_b32 s{sNQ}, 5')
        for n in CUT:
            a(f's_cmp_lt_u32 s{sTK}, {n}')
            a(f's_addc_u32 s{sNQ}, s{sNQ}, 0')
    if not CFG['dyn']:
        a('s_lshr_b32 s3, s2, 1')
        a('s_and_b32 s4, s2, 1')
        a('s_lshl_b32 s4, s4, 7')
        a(f's_add_u32 s{sTK}, s3, s4')
        assign()
    a(f'v_mov_b32 v{ONE}, 1')
    a(f'v_mov_b32 v{K87}, 0x80000007')
    a(f'v_mov_b32 v{KFC}, 0xfc')
    a(f'v_mov_b32 v{K78}, 0x78')
    a(f's_mov_b32 s{sKB}, {G.KBIAS << 3}')
    a(f's_mov_b32 s{sM10}, -10000')
    a(f's_mov_b32 s{sP1}, 0x010c0c01')
    a(f's_mov_b32 s{sP3}, 0x030c0c03')
    for i in range(4):
        a(f'v_mov_b32 v{8 + i}, 0')
    a(f'ds_write_b128 v{T16}, v[8:11]')
    if gen_p2:
        srd(a, 60, 30, G.PROG_OFF, 32768)
        a('s_mov_b64 s[66:67], s[56:57]')
        a('s_lshr_b32 s3, s2, 4')
        a('s_lshl_b32 s3, s3, 11')
        a('s_and_b32 s57, s2, 15')
        a('s_lshl2_add_u32 s57, s57, s3')
    srd(a, 68, 30, G.FLAG_OFF, 128)
    a('s_lshl_b32 s3, s2, 7')
    a('s_add_u32 s68, s68, s3')
    a('s_addc_u32 s69, s69, 0')
    a(f's_cmp_lg_u32 s{sW}, 0')
    a('s_cbranch_scc1 L1_fl')
    vm = list(a.vm)
    a(f'buffer_store_dwordx4 v[8:11], v{T16}, s[68:71], 0 offen sc1')
    if gen_p2:
        a('s_mov_b64 exec, 1')
        a('buffer_store_dword v8, off, s[60:63], s57 sc1')
        a('s_mov_b64 exec, -1')
    a.vm = vm
    a.label('L1_fl')
    a('s_waitcnt lgkmcnt(0)')
    a('s_barrier')

    pend_st = []
    uid = [0]

    def store(n):
        while n > 0 and pend_st:
            b, off = pend_st.pop(0)
            n -= 1
            r = soff(sR, off)
            a(f'buffer_store_dwordx4 {vr(b, 4)}, v{st.get("t16", T16)}, s[20:23], s{r} offen{CFG["st_pol"]}', tag='st')
            pool.append(b)

    taken = []

    def take(want):
        b = pool.pop(0)
        taken.append((b, want))
        assert not ren or b == want
        return want

    def last_store():
        j = 10 - len(pend_st)
        if j < 7:
            store(1)
            return
        uid[0] += 1
        a(f's_cmp_le_u32 s{sNQ}, {j - 2}')
        a(f's_cbranch_scc1 L1_q{uid[0]}')
        vm, nvm = list(a.vm), a.nvm
        store(1)
        a.vm, a.nvm = vm, nvm
        a.label(f'L1_q{uid[0]}')
    p2 = gen_p2(a, G, dict(take=take, store=last_store, t16=lambda r: st.update(t16=r))) if gen_p2 else None

    class skip_quad:
        def __init__(self, on, j):
            self.on, self.j = on and j >= 5, j

        def __enter__(self):
            if self.on:
                uid[0] += 1
                self.l = f'L1_s{uid[0]}'
                a(f's_cmp_le_u32 s{sNQ}, {self.j}')
                a(f's_cbranch_scc1 {self.l}')

        def __exit__(self, *x):
            if self.on:
                a.label(self.l)

    for k in range(NK):
        tl_mark(a, 76, k * 6 + 4, 0, 8)
        a.c(f'==== chunk {k}: pass A')
        lim = (k + 1) * 20 + 18
        last = k == NK - 1

        def mix(n):
            for _ in range(n):
                store(1)
                issue(1, lim)
        sa = [int(x) for x in CFG['sa']]
        sb = [int(x) for x in CFG['sb']]
        la = [int(x) for x in CFG['la']]
        lb = [int(x) for x in CFG['lb']]
        if last:
            mix(2)
        for j in range(8):
            if CFG['p1prio']:
                if j & 1 == 0:
                    a(f's_setprio {3 - j // 2}')
            if k == 0:
                issue(3 if j & 1 else 2, 24)
            elif not last:
                mix(sa[j])
            else:
                store(la[j])
                if j == 4:
                    mcopy_load()
            if CFG['dyn'] and k == NK - 2 and j == CFG['tkpos']:
                srd(a, 68, 66 if gen_p2 else 56, 0, 256)
                a('v_mov_b32 v3, 1')
                a(f's_cmp_lg_u32 s{sW}, {CFG["tkwave"]}')
                a('s_cbranch_scc1 L1_tk')
                vm = list(a.vm)
                a('s_mov_b64 exec, 1')
                if CFG['dyn'] == 2:
                    a('s_and_b32 s3, s2, 1')
                    a('s_lshl_b32 s3, s3, 7')
                    a('buffer_atomic_add v3, off, s[68:71], s3 sc0')
                else:
                    a('buffer_atomic_add v3, off, s[68:71], 0 sc0')
                a('s_mov_b64 exec, -1')
                a.vm = vm
                st['tkn'] = a.nvm
                a.label('L1_tk')
            I, O, A = where[(k, 'I', j)], where[(k, 'O', j)], where[(k, 'A', j // 2)] + 2 * (j & 1)
            a.wait_vm([(k, 'I', j), (k, 'O', j), (k, 'A', j // 2)])
            with skip_quad(last, j):
                for p in range(2):
                    a(f'v_lshlrev_b32 v{t[2*p]}, 16, v{A+p}')
                    a(f'v_and_b32 v{t[2*p+1]}, 0xffff0000, v{A+p}')
                for p in range(4):
                    a(f'v_mul_f32 v{t[p]}, 0.15915494, v{t[p]}')
                for r in range(4):
                    u, x, y, ib = t[4], t[5], t[6], t[7]
                    a(f'v_mul_hi_u32_u24 v{ib}, 429497, v{I+r}')
                    a(f'v_lshrrev_b32 v{x}, 3, v{O+r}')
                    a(f'v_cos_f32 v{t[r]}, v{t[r]}')
                    a(f'v_lshlrev_b16 v{y}, 3, v{O+r}')
                    a(f'v_mad_i32_i24 v{u}, v{ib}, s{sM10}, v{I+r}')
                    a(f'v_bitop3_b32 v{x}, v{K78}, v{y}, v{x} bitop3:{SEL:#x}')
                    a(f'v_lshl_add_u32 v{u}, v{u}, 17, s{sKB}')
                    a(f'v_lshlrev_b16 v{ib}, 8, v{ib}')
                    a(f'v_lshrrev_b32 v{y}, 2, v{O+r}')
                    a(f'v_add_u32 v{I+r}, v{x}, v{u}')
                    a(f'v_bitop3_b32 v{O+r}, v{KFC}, v{y}, v{ib} bitop3:{ANDOR:#x}')
                    a(f'ds_add_u32 v{O+r}, v{ONE}')
                    if r & 1:
                        p = r >> 1
                        a(f'v_cvt_pk_bf16_f32 v{A+p}, v{t[2*p]}, v{t[2*p+1]}')
                        a(f'v_perm_b32 v{x}, v{A+p}, v{A+p}, s{sP1}')
                        a(f'v_bitop3_b32 v{I+r-1}, v{K87}, v{x}, v{I+r-1} bitop3:{SEL:#x}')
                        a(f'v_perm_b32 v{y}, v{A+p}, v{A+p}, s{sP3}')
                        a(f'v_bitop3_b32 v{I+r}, v{K87}, v{y}, v{I+r} bitop3:{SEL:#x}')
        tl_mark(a, 76, k * 6 + 0, 0, 8)
        a.c('scan')
        a(f'v_lshrrev_b32 v8, 2, v{T16}')
        a(f'v_and_b32 v7, 0x3c00, v{T16}')
        a(f'v_bitop3_b32 v7, v{KFC}, v8, v7 bitop3:{ANDOR:#x}')
        a('s_waitcnt lgkmcnt(0)')
        a('s_barrier')
        a('ds_read2st64_b32 v[8:9], v7 offset0:0 offset1:1')
        a('ds_read2st64_b32 v[10:11], v7 offset0:2 offset1:3')
        mix((lb if last else sb)[0])
        a('s_waitcnt lgkmcnt(0)')
        a('v_lshl_or_b32 v12, v9, 16, v8')
        a('v_lshl_or_b32 v13, v11, 16, v10')
        a('v_mov_b32 v14, v12')
        a('v_mov_b32 v15, v13')
        G.wave_scan(a, [14, 15])
        a('v_readlane_b32 s48, v14, 63')
        a('v_readlane_b32 s49, v15, 63')
        a(f's_lshl_b32 s54, s{sW}, 2')
        a('v_mov_b32 v8, s54')
        a('s_and_b32 s50, s48, 0xffff')
        a('s_lshr_b32 s51, s48, 16')
        a('s_and_b32 s52, s49, 0xffff')
        a('s_lshr_b32 s53, s49, 16')
        a('s_add_u32 s51, s51, s50')
        a('s_add_u32 s52, s52, s51')
        a('s_add_u32 s53, s53, s52')
        a('v_mov_b32 v9, s53')
        a('s_mov_b64 exec, 1')
        a('ds_write_b32 v8, v9 offset:16384')
        if CFG['dyn'] and k == NK - 2:
            a(f's_waitcnt vmcnt({a.nvm - st["tkn"]})')
            a('ds_write_b32 v8, v3 offset:16448')
        a('s_mov_b64 exec, -1')
        a('v_and_b32 v8, 60, v7')
        a('s_waitcnt lgkmcnt(0)')
        a('s_barrier')
        a('ds_read_b32 v9, v8 offset:16384')
        if CFG['dyn'] and k == NK - 2:
            a('ds_read_b32 v10, v8 offset:16448')
        mix((lb if last else sb)[1])
        a('s_waitcnt lgkmcnt(0)')
        if CFG['dyn'] and k == NK - 2:
            a(f'v_readlane_b32 s{sTK}, v10, {CFG["tkwave"]}')
            if CFG['dyn'] == 2:
                a('s_and_b32 s3, s2, 1')
                a('s_lshl_b32 s3, s3, 7')
                a(f's_add_u32 s{sTK}, s{sTK}, s3')
            assign()
            st['assigned'] = True
        for sh in (1, 2, 4, 8):
            a(f'v_add_u32_dpp v9, v9, v9 row_shr:{sh} row_mask:0xf bank_mask:0xf bound_ctrl:1')
        a(f'v_readlane_b32 s54, v9, s{sW}')
        a('s_sub_u32 s54, s54, s53')
        a('s_add_u32 s50, s50, s54')
        a('s_add_u32 s51, s51, s54')
        a('s_add_u32 s52, s52, s54')
        a('s_pack_ll_b32_b16 s48, s54, s50')
        a('s_pack_ll_b32_b16 s49, s51, s52')
        a('v_add_u32 v14, s48, v14')
        a('v_add_u32 v15, s49, v15')
        a('v_sub_u32 v12, v14, v12')
        a('v_sub_u32 v13, v15, v13')
        a('v_and_b32 v8, 0xffff, v12')
        a('v_lshrrev_b32 v9, 16, v12')
        a('v_and_b32 v10, 0xffff, v13')
        a('v_lshrrev_b32 v11, 16, v13')
        a('ds_write2st64_b32 v7, v8, v9 offset0:0 offset1:1')
        a('ds_write2st64_b32 v7, v10, v11 offset0:2 offset1:3')
        if CFG['tabx']:
            a(f'v_and_b32 v8, 0x3f0, v{T16}')
            a(f'v_lshl_add_u32 v8, v8, 1, s{sT}')
            a('ds_write_b64 v8, v[12:13] offset:20480')
            a('s_bitset0_b64 exec, 63')
            a('s_not_b64 exec, exec')
            a('ds_write_b64 v8, v[14:15] offset:20512')
            a('s_mov_b64 exec, -1')
        a('s_waitcnt lgkmcnt(0)')
        a('s_barrier')
        tl_mark(a, 76, k * 6 + 1, 0, 8)
        a.c('pass B')
        for j in range(8):
            if CFG['p1prio'] and j & 1 == 0:
                a(f's_setprio {3 - j // 2}')
            O = where[(k, 'O', j)]
            with skip_quad(last, j):
                for r in range(4):
                    a(f'ds_add_rtn_u32 v{O+r}, v{O+r}, v{ONE}')
            if CFG['tabx']:
                if j == 0:
                    a(f'ds_read_b128 v[12:15], v{T16} offset:20480', tag='tab')
                    a(f'v_cmp_gt_u32 vcc, {G.TAB_CH + 128}, v{T16}')
                if j == 2:
                    uid[0] += 1
                    a.wait_lg('tab')
                    a(f's_cbranch_vccz L1_p{uid[0]}')
                    vm, nvm = list(a.vm), a.nvm
                    r = soff(sR, k * NW * BLK)
                    a('s_mov_b64 exec, vcc')
                    a(f'buffer_store_dwordx4 v[12:15], v{T16}, s[24:27], s{r} offen{CFG["st_pol"]}')
                    a('s_mov_b64 exec, -1')
                    a.vm, a.nvm = vm, nvm
                    st['tabn'] = a.nvm
                    a.label(f'L1_p{uid[0]}')
                if j == 3 and last and p2:
                    next(p2)
            elif j == 0:
                r = soff(sT, k * NW * BLK)
                a(f'v_and_b32 v11, 0x3f0, v{T16}')
                a('v_add_u32 v11, v11, v11')
                a(f'buffer_store_dwordx2 v[12:13], v11, s[24:27], s{r} offen', tag='tab')
                a('s_bitset0_b64 exec, 63')
                a('s_not_b64 exec, exec')
                a(f'buffer_store_dwordx2 v[14:15], v11, s[24:27], s{r} offen offset:32', tag='tab')
                a('s_mov_b64 exec, -1')
                uid[0] += 1
                a(f'v_cmp_le_u32 vcc, s{sTmp}, v{T16}')
                a(f'v_add_u32 v10, {G.TAB_CH}, v{T16}')
                a(f's_cmp_lg_u32 s{sW}, 0')
                a(f'v_cndmask_b32 v10, v{T16}, v10, vcc')
                a(f's_cbranch_scc1 L1_p{uid[0]}')
                vm, nvm = list(a.vm), a.nvm
                r = soff(sR, k * NW * BLK)
                a('s_mov_b64 exec, 0xff')
                a(f'buffer_store_dwordx4 v[12:15], v10, s[24:27], s{r} offen')
                a('s_mov_b64 exec, -1')
                a.vm, a.nvm = vm, nvm
                a.label(f'L1_p{uid[0]}')
            mix((lb if last else sb)[2 + j])
            if last and j == 4:
                mcopy_store()
        if last and p2:
            a(f's_waitcnt vmcnt({a.nvm - st["tabn"]})')
        a('s_waitcnt lgkmcnt(0)')
        a('s_barrier')
        if last and p2:
            next(p2)
        tl_mark(a, 76, k * 6 + 2, 0, 8)
        a.c('scatter')
        n0 = st['next']
        ns0 = len(pend_st)
        for j in range(8):
            if CFG['p1prio'] and j & 1 == 0:
                a(f's_setprio {3 - j // 2}')
            I, O, A = where[(k, 'I', j)], where[(k, 'O', j)], where[(k, 'A', j // 2)] + 2 * (j & 1)
            with skip_quad(last, j):
                for r in range(4):
                    x, y = t[(2 * r) % 4], t[(2 * r + 1) % 4]
                    a(f'v_and_b32 v{x}, -4, v{O+r}')
                    a(f'v_lshl_add_u32 v{y}, v{O+r}, 2, v{x}')
                    a(f'ds_write_b32 v{y}, v{I+r}')
                    a(f'v_lshl_add_u32 v{x}, v{x}, 2, v{O+r}')
                    a(f'ds_write_b8{"_d16_hi" if r & 1 else ""} v{x}, v{A + (r >> 1)} offset:16')
            pool.append(I)
            pool.append(O)
            if j & 1:
                pool.append(where[(k, 'A', j // 2)])
            nd = CFG['scd']
            store(len(pend_st) - (ns0 - (ns0 * min(j + 1, nd) + nd - 1) // nd))
            want = n0 + ((lim - n0) * min(j + 1, nd) + nd - 1) // nd
            issue(want - st['next'], lim)
            if last and p2 and j in (0, 1, 2, 3, 4, 7):
                next(p2)
        if k == NK - 2 and p2:
            a(f's_waitcnt vmcnt({a.nvm - st["tabn"]})')
        a(f'v_add_u32 v7, 0x10000, v{T16}')
        a(f'v_add_u32 v12, 0x20000, v{T16}')
        if not last:
            for i in range(4):
                a(f'v_mov_b32 v{8 + i}, 0')
        a('s_waitcnt lgkmcnt(0)')
        a('s_barrier')
        tl_mark(a, 76, k * 6 + 3, 0, 8 if last else 14)
        if k == NK - 2 and p2:
            a(f's_cmp_lg_u32 s{sW}, 0')
            a('s_cbranch_scc1 L1_c1')
            vm, nvm = list(a.vm), a.nvm
            a('s_lshr_b32 s3, s2, 4')
            a('s_lshl_b32 s3, s3, 2')
            a('s_mov_b64 exec, 1')
            a(f'buffer_atomic_add v{ONE}, off, s[68:71], s3 offset:64')
            a('s_mov_b64 exec, -1')
            a.vm, a.nvm = vm, nvm
            a.label('L1_c1')
        assert not pend_st
        a.c('flush')
        if last and p2 and ren:
            pool[:] = [24, 28, 32, 36, 76, 80, 84, 104, 68, 72]
        for j in range(10):
            b = pool.pop(0)
            base = (T16, 7, 12)[j // 4]
            a(f'ds_read_b128 {vr(b, 4)}, v{base} offset:{(j % 4) * 16384}')
            if j == 0 and not last:
                a(f'ds_write_b128 v{T16}, v[8:11]')
            pend_st.append((b, k * NW * BLK + j * 16384))
        if not last:
            a('s_waitcnt lgkmcnt(0)')
            a('s_barrier')
        elif p2:
            a('s_waitcnt lgkmcnt(0)')
            a('s_barrier')
            if not ren:
                m = dict(taken)
                rest_s = [b for b in range(16, 128, 4) if b not in m]
                rest_d = [b for b in range(16, 128, 4) if b not in m.values()]
                m.update(zip(rest_s, rest_d))
                G.MEMO['ren'] = m
            for _ in p2:
                pass
            return name
        else:
            for j in range(10):
                if j >= 7:
                    a(f's_cmp_le_u32 s{sNQ}, {j - 2}')
                    a('s_cbranch_scc1 L1_fin')
                a(f's_waitcnt lgkmcnt({9 - j})')
                store(1)
    a.label('L1_fin')
    a.reset()
    G.tl_end(a)
    a.label('L1_end')
    a('s_endpgm')
    return name
```

```python
from asmlib import vr, sr, merge_vm

MF = 'v_mfma_f32_4x4x4_16b_bf16'


def gen_p2(a, G, P1=None):
    name = 'gs_acc_kernel'
    CFG = G.CFG
    SEL, ANDOR = G.SEL, G.ANDOR
    ORAND = 0xA8
    if not P1:
        G.kernel_head(a, name)
    DS = 1
    NR = DS + 1
    NA = 2
    LA, SHL, CBA, FA, CBB, KAD, KCM, PA = 0, 1, 2, 3, 4, 5, 6, 7
    WD, ID, NID = 8, 10, 12
    C = [14, 15]
    W = [16, 22, 28, 34]
    B = [w + 4 for w in W]
    EC = [w + 5 for w in W]
    EN = [40, 41, 42, 43]
    ES, KF0, NV, AI = 44, 45, 46, 47
    DA, DB = 48, 64
    OLD = [68, 70]
    OLD2 = [72, 74]
    X = [76, 80]
    P = 84
    RT = 88
    AOR = [[92, 93], [94, 95]]
    xm, xo, xa, xd = 96, 97, 98, 99
    xc, xl, xe, xt = RT, RT + 1, RT + 2, RT + 3
    MR = [[100, 102], [104, 106]]
    MP = [108 + 4 * n for n in range(5)]

    def AO(b):
        return AOR[b % NA]
    sW, sQ, sOB, sSP, sSlow, sBase, sTab, sMD, sN, sPH, sM0 = 32, 33, 34, 35, 36, 37, 39, 40, 41, 42, 38
    sP = [44, 45, 46, 47]
    PEND, TMP, INJ, OVF, INJ1 = 's[80:81]', 's[82:83]', 's[84:85]', 's[58:59]', 's[48:49]'
    rpos = [int(x) for x in CFG['rpos'].split()]
    dpos = [int(x) for x in CFG['dpos'].split()]
    mpos = [int(x) for x in CFG['mpos'].split()]
    assert dpos[0] >= 1 and dpos[1] >= 1 and max(rpos[:3]) <= 6 and rpos[3] >= 7
    order = [7, 0, 1, 2, 3, 4, 5, 6]
    ng = 8 - DS
    gs = {}
    nb = 0
    for i in range(ng):
        n = 2 if i >= ng - DS else 1
        gs[order[i]] = list(range(nb, nb + n))
        nb += n
    assert nb == 8
    b1_step = order[ng]

    def blk(p):
        return 4 * (p & 3) + (p >> 2)

    def dblk(p):
        return ((blk(p + 1) - blk(p)) * 81920) & 0xffffffff

    def head1():
        a('s_cmp_ge_u32 s2, 256')
        a('s_cbranch_scc1 L2_end')
        G.tl_start(a)
        if CFG['pprio']:
            a('s_setprio 3')
        a('s_load_dwordx2 s[30:31], s[0:1], 104')
        a('s_load_dwordx2 s[28:29], s[0:1], 0')
        a('s_load_dwordx2 s[6:7], s[0:1], 40')
        a('v_lshrrev_b32 v16, 6, v0')
        a('v_and_b32 v17, 63, v0')
        a(f'v_readfirstlane_b32 s{sW}, v16')
        a(f's_bfe_u32 s{sQ}, s2, 0x20001')
        a(f's_and_b32 s{sOB}, s2, 1')
        a(f's_lshl_b32 s{sOB}, s{sOB}, 5')
        a('s_lshr_b32 s4, s2, 3')
        a(f's_add_u32 s{sOB}, s{sOB}, s4')
        a('v_and_b32 v22, 3, v0')
        a('v_mul_u32_u24 v19, 80, v16' if not CFG['cmap'] else 'v_lshlrev_b32 v19, 6, v16')
        if CFG['dq']:
            a('v_lshrrev_b32 v18, 2, v17')
            a('v_lshl_add_u32 v18, v22, 4, v18')
            a('v_add_u32 v18, v18, v19')
        else:
            a('v_lshrrev_b32 v18, 4, v17')
            a('v_and_b32 v19, 15, v17')
            a('v_lshl_add_u32 v18, v18, 8, v19')
            a('v_lshl_add_u32 v18, v16, 4, v18')
        a(f'v_mul_u32_u24 v{CBA}, {G.BLK}, v18')
        a('v_lshrrev_b32 v18, 2, v17')
        if CFG['cmap']:
            a('v_lshl_add_u32 v18, v16, 4, v18')
            a('v_add_u32 v18, 0x400, v18')
        else:
            a('v_add3_u32 v18, v18, v19, 64')
        a(f'v_mul_u32_u24 v{CBB}, {G.BLK}, v18')
        a(f'v_lshl_add_u32 v20, v22, 4, v{CBB}')
        a('v_and_b32 v18, 3, v18')
        a('v_lshl_add_u32 v20, v18, 5, v20')
        a(f'v_lshl_add_u32 v25, v22, 5, v{CBA}')
        a(f's_mul_i32 s{sTab}, s{sQ}, 2080')
        a(f's_lshl_b32 s3, s{sOB}, 5')
        a(f's_add_u32 s{sTab}, s{sTab}, s3')
        a(f's_mul_i32 s{sMD}, s{sQ}, {16 * 81920}')
        a(f's_mul_i32 s3, s{sW}, 5120')
        a(f'v_lshl_add_u32 v{FA}, v17, 4, s3')
        a(f's_lshl_b32 s{sM0}, s{sW}, 11')
        a(f's_mul_i32 s100, s{sW}, 3072')
        a('s_waitcnt lgkmcnt(0)')
        G.srd(a, 12, 30, G.TAB_OFF, G.TAB_SZ)
        for k in (0, 2, 1, 3) if not CFG['dq'] else range(4):
            if CFG['dq']:
                a(f'v_subrev_u32 v25, {(64 - 16 * k) * G.BLK:#x}, v20')
                a(f'buffer_load_dwordx4 {vr(DA + 4 * k, 4)}, v25, s[12:15], s{sTab} offen', tag='D')
            else:
                a(f'buffer_load_dwordx4 {vr(DA + 4 * k, 4)}, v25, s[12:15], s{sTab} offen offset:{16 * k}', tag='D')
        a(f'buffer_load_dwordx4 {vr(DB, 4)}, v20, s[12:15], s{sTab} offen', tag='D')
        G.srd(a, 16, 30, G.MD_OFF, G.MD_SZ)
        G.srd(a, 24, 30, G.WT_OFF, G.WT_SZ)
        a('v_lshlrev_b32 v21, 6, v22')
        a(f'buffer_load_dwordx2 {vr(WD, 2)}, v21, s[24:27], 0 offen offset:40', tag='D')

    st = dict(inloop=False)

    def load_m(n):
        if CFG['ab_nom'] and st['inloop']:
            return
        if n == 4:
            a(f's_add_u32 s3, s{sMD}, 4096')
            a(f'buffer_load_dwordx4 {vr(MP[n], 4)}, v{FA}, s[16:19], s3 offen', tag=('M', n))
        else:
            a(f'buffer_load_dwordx4 {vr(MP[n], 4)}, v{FA}, s[16:19], s{sMD} offen offset:{n * 1024}', tag=('M', n))

    def load_m_raw(n, p, l16):
        a(f's_mul_i32 s3, s{sQ}, {16 * 80000}')
        a(f's_add_u32 s3, s3, s{sM0 if n < 2 else 100}')
        a(f's_add_u32 s3, s3, {blk(p) * 80000 + (0 if n < 2 else 32768)}')
        a(f'buffer_load_dwordx4 {vr(MP[n], 4)}, v{l16}, s[24:27], s3 offen offset:{1024 * (n if n < 2 else n - 2)}', tag=('M', n))

    def fill(n):
        a.wait_vm([('M', n)])
        if ('rawn', n) in st:
            a(f's_waitcnt vmcnt({a.nvm - st.pop(("rawn", n))})')
        if st.get('raw'):
            a(f'v_subrev_u32 v{RT}, s{100 if n < 2 else sM0}, v{FA}')
            a(f'ds_write_b128 v{RT}, {vr(MP[n], 4)} offset:{n * 1024 if n < 2 else 32768 + (n - 2) * 1024}', tag='F')
            return
        m0 = sM0 if n < 2 else 100
        if st.get('m0') != m0:
            a(f's_mov_b32 m0, s{m0}')
            st['m0'] = m0
        for jd in range(4):
            if CFG['ab'] & 8 and st['inloop']:
                continue
            a(f'ds_write_addtid_b32 v{MP[n] + jd} offset:{(n * 1024 if n < 2 else 32768 + (n - 2) * 1024) + 256 * jd}', tag='F')

    def next_m(p):
        a(f's_add_u32 s{sMD}, s{sMD}, {dblk(p):#x}')

    def head2():
        if CFG['pprio']:
            a('s_setprio 2')
        for n in (4, 2, 3, 0, 1):
            load_m(n)
        next_m(0)
        if CFG['pprio']:
            a('s_setprio 1')
        a(f'v_mad_u32_u24 v{CBB}, v22, 20, v{CBB}')
        a(f'v_or_b32 v{CBB}, 0xf0000000, v{CBB}')
        a(f'v_or_b32 v{CBA}, 0xf0000000, v{CBA}')
        a('v_lshlrev_b32 v23, 2, v22')
        a(f'v_sub_u32 v{SHL}, 28, v23')
        G.ident(a, ID, 18, 0)
        G.ident(a, NID, 18, 0, neg=True)
        a('v_lshlrev_b32 v24, 4, v0')
        a(f'v_lshl_add_u32 v{LA}, v17, 2, s{sM0}')
        a(f'v_mov_b32 v{KF0}, 0xf0000000')
        a(f'v_mov_b32 v{KAD}, 0x1fff8')
        a(f'v_mov_b32 v{KCM}, 0x07ff0000')
        for k in range(4):
            a(f's_mov_b32 s{sP[k]}, {0x04000c0c | (k << 16):#x}')
        a(f's_mov_b32 s{sSlow}, 0')
        a(f's_mov_b32 s{sPH}, 0')
        a(f's_mov_b64 {PEND}, 0')
        a(f's_mov_b64 {INJ}, 0')
        a(f's_mov_b64 {INJ1}, 0')
        if CFG['fuse']:
            a('s_load_dwordx4 s[96:99], s[6:7], 0')
            a('s_load_dwordx2 s[4:5], s[0:1], 24')
            a('s_waitcnt lgkmcnt(0)')
        G.srd(a, 8, 30, G.REC_OFF, G.REC_SZ)
        G.srd(a, 20, 30, G.PART_OFF, 80000)
        a(f's_lshl_b32 s3, s{sQ}, 6')
        a(f's_add_u32 s3, s3, s{sOB}')
        a('s_mul_i32 s3, s3, 80000')
        a('s_add_u32 s20, s20, s3')
        a('s_addc_u32 s21, s21, 0')

    if not P1:
        head1()
        head2()
    ool = []
    uid = [0]

    XAND = 0x6A
    sOv = 101

    def x_pre(j):
        uid[0] += 1
        u = uid[0]
        rs, re_ = DA + 2 * j, DA + 8 + 2 * j
        a.wait_vm('D')
        a(f'v_sub_u16 v{xc}, v{re_}, v{rs}')
        a(f'v_and_b32 v{xl}, 3, v{rs}')
        a(f'v_add3_u32 v{xd}, v{xc}, v{xl}, 3')
        a(f'v_and_b32 v{xd}, -4, v{xd}')
        a(f'v_max_u32 v{xd}, 4, v{xd}')
        fill = [f'v_and_b32 v{xo}, 0xfffc, v{rs}',
                f'v_bfm_b32 v{xm}, v{xc}, v{xl}',
                f'v_mad_u32_u24 v{xo}, v{xo}, 5, v{CBA}',
                f'v_cmp_lt_u32 vcc, 16, v{xd}',
                f'v_sub_u32 v{xa}, s{sM0}, v{xd}',
                f'v_lshrrev_b64 {vr(rs, 2)}, 16, {vr(rs, 2)}',
                f'v_lshrrev_b64 {vr(re_, 2)}, 16, {vr(re_, 2)}',
                f's_mov_b32 s{sOv}, 0']
        a(fill.pop(0))
        a(fill.pop(0))
        a(f'v_add_u32_dpp v{xt}, v{xd}, v{xd} row_shr:1 row_mask:0xf bank_mask:0xf bound_ctrl:1')
        for m in ('row_shr:2 row_mask:0xf bank_mask:0xf bound_ctrl:1', 'row_shr:4 row_mask:0xf bank_mask:0xf bound_ctrl:1',
                  'row_shr:8 row_mask:0xf bank_mask:0xf bound_ctrl:1', 'row_bcast:15 row_mask:0xa bank_mask:0xf',
                  'row_bcast:31 row_mask:0xc bank_mask:0xf'):
            for _ in range(2):
                if fill:
                    a(fill.pop(0))
            a(f'v_add_u32_dpp v{xt}, v{xt}, v{xt} {m}')
        a(f'v_add_u32 v{xa}, v{xa}, v{xt}')
        a(f'v_readlane_b32 s{sBase}, v{xt}, 63')
        a(f's_cbranch_vccnz L2_xo{u}')
        a.label(f'L2_xp{u}')
        ool.append([f'L2_xo{u}:',
                    f'v_cmp_lt_u32 vcc, 20, v{xd}',
                    f's_mov_b32 s{sOv}, 1',
                    f's_cbranch_vccz L2_xp{u}',
                    f'v_cmp_lt_u32 vcc, 32, v{xd}',
                    f'v_cmp_lt_u32 {OVF}, 31, v{xc}',
                    f's_mov_b32 s{sOv}, 2',
                    f's_or_b64 vcc, vcc, {OVF}',
                    f's_cbranch_scc0 L2_xp{u}',
                    f's_mov_b32 s{sBase}, 0x10000',
                    f's_branch L2_xp{u}'])

    def x_ent(f, t):
        f(f'v_lshlrev_b32 v{xl}, {28 - 4 * t}, v{xm}')
        if t:
            f(f'v_add_u32 v{xe}, {20 * t}, v{xo}')
        f(f'v_bitop3_b32 v{xe}, v{xl}, v{KF0}, v{xe if t else xo} bitop3:{XAND:#x}')
        f(f'ds_write_b32 v{xa}, v{xe} offset:{4 * t}')

    def x_quad(f):
        f(f'v_and_b32 v{xl}, v{KF0}, v{xl}')
        f(f'v_cmp_ne_u32 vcc, 0, v{xl}')
        f(f'v_xor_b32 v{xe}, v{xo}, v{xl}')
        f(f's_add_u32 s3, s{sBase}, s{sM0}')
        f(f'v_mbcnt_lo_u32_b32 v{xa}, vcc_lo, 0')
        f(f'v_mbcnt_hi_u32_b32 v{xa}, vcc_hi, v{xa}')
        f(f's_bcnt1_i32_b64 s{sN}, vcc')
        f(f'v_lshl_add_u32 v{xa}, v{xa}, 2, s3')
        f('s_mov_b64 exec, vcc')
        f(f'ds_write_b32 v{xa}, v{xe}')
        f('s_mov_b64 exec, -1')
        f(f's_lshl2_add_u32 s{sBase}, s{sN}, s{sBase}')

    def x_list(j, E, pbit):
        uid[0] += 1
        u = uid[0]
        a(f'v_mov_b32 v{ES}, v{E[3]}')
        a(f's_cmp_gt_u32 s{sBase}, 1024')
        a(f's_cbranch_scc1 L2_xs{u}')
        a(f's_cmp_lg_u32 s{sOv}, 0')
        a(f's_cbranch_scc1 L2_xa{u}')
        a.label(f'L2_xb{u}')
        bl = [f'L2_xa{u}:', f's_cmp_eq_u32 s{sOv}, 1', f's_cbranch_scc1 L2_xc{u}']
        x_ent(bl.append, 7)
        x_ent(bl.append, 6)
        x_ent(bl.append, 5)
        bl.append(f'L2_xc{u}:')
        x_ent(bl.append, 4)
        bl.append(f's_branch L2_xb{u}')
        ool.append(bl)
        for t in (3, 2, 1, 0):
            x_ent(a, t)
        r = DB + 2 * (j & 1)
        ls, le = j >> 1, 2 + (j >> 1)
        a(f'v_mov_b32_dpp v{xt}, v{r} quad_perm:[{ls},{ls},{ls},{ls}] row_mask:0xf bank_mask:0xf')
        a(f'v_and_b32 v{xl}, 3, v{xt}')
        a(f'v_and_b32 v{xo}, 0xfffc, v{xt}')
        a(f'v_sub_u16_dpp v{xc}, v{r}, v{xt} quad_perm:[{le},{le},{le},{le}] row_mask:0xf bank_mask:0xf')
        a(f'v_mad_u32_u24 v{xo}, v{xo}, 5, v{CBB}')
        a(f'v_add_u32 v{xd}, v{xc}, v{xl}')
        a(f'v_bfm_b32 v{xm}, v{xc}, v{xl}')
        a(f'v_cmp_lt_u32 {OVF}, 16, v{xd}')
        a(f'v_lshlrev_b32 v{xl}, v{SHL}, v{xm}')
        x_quad(a)
        a(f's_cmp_lg_u64 {OVF}, 0')
        a(f's_cbranch_scc1 L2_xe{u}')
        a.label(f'L2_xr{u}')
        bl = [f'L2_xe{u}:',
              f'v_cmp_lt_u32 vcc, 32, v{xd}',
              f'v_cmp_lt_u32 {OVF}, 31, v{xc}',
              f'v_lshrrev_b32 v{xl}, 16, v{xm}',
              f'v_add_u32 v{xo}, 80, v{xo}',
              f's_or_b64 vcc, vcc, {OVF}',
              f's_cbranch_scc1 L2_xs{u}',
              f'v_lshlrev_b32 v{xl}, v{SHL}, v{xl}']
        x_quad(bl.append)
        bl.append(f's_branch L2_xr{u}')
        ool.append(bl)
        a(f'v_add_u32 v{xa}, s{sBase}, v{LA}')
        a(f'v_mov_b32 v{xe}, -1')
        a(f'ds_write_b32 v{xa}, v{xe}')
        go = [int(x) for x in CFG['gord'].split()]
        a(f'ds_read2st64_b32 {vr(E[0], 2)}, v{LA} offset0:{go[0]} offset1:{go[1]}', tag='L')
        a(f'ds_read2st64_b32 {vr(E[2], 2)}, v{LA} offset0:{go[2]} offset1:{go[3]}', tag='L')
        E = [E[go.index(g)] for g in range(4)]
        a(f's_sub_u32 s3, s{sBase}, 768')
        a('s_cmp_gt_u32 s3, 256')
        a(f's_cbranch_scc1 L2_xf{u}')
        a.label(f'L2_xg{u}')
        bl = [f'L2_xf{u}:',
              's_waitcnt lgkmcnt(0)',
              f's_cmp_gt_u32 s{sBase}, 1024',
              f's_cbranch_scc1 L2_xs{u}',
              f'v_mov_b32 v{E[3]}, -1',
              f's_cmp_ge_u32 s{sBase}, 512',
              f's_cbranch_scc1 L2_xg{u}',
              f'v_mov_b32 v{E[2]}, -1',
              f's_cmp_ge_u32 s{sBase}, 256',
              f's_cbranch_scc1 L2_xg{u}',
              f'v_mov_b32 v{E[1]}, -1',
              f's_branch L2_xg{u}',
              f'L2_xs{u}:',
              's_waitcnt lgkmcnt(0)']
        bl += [f'v_mov_b32 v{E[g]}, -1' for g in range(4)]
        bl += [f's_add_u32 s3, s{sPH}, {pbit}',
               f's_bitset1_b32 s{sSlow}, s3',
               f's_branch L2_xg{u}']
        ool.append(bl)
        if j == 3:
            for h in range(2):
                a(f'v_lshrrev_b64 {vr(DB + 2 * h, 2)}, 16, {vr(DB + 2 * h, 2)}')

    def load_rec(g):
        E = EN[:3] + [ES]
        a(f'v_and_b32 v{AI}, 0x0fffffff, v{E[g]}')
        if CFG['ab_norec'] and st['inloop']:
            a(f'v_mov_b32 v{AI}, v{E[g]}')
            return
        a(f'v_mov_b32 v{EC[g]}, v{E[g]}')
        issue_rec(g)

    def issue_rec(g):
        if CFG['x3'] == 2:
            a(f'buffer_load_dwordx2 {vr(W[g], 2)}, v{AI}, s[8:11], 0 offen', tag=('R', g))
        elif CFG['x3'] == 3:
            a(f'buffer_load_dwordx3 {vr(W[g], 3)}, v{AI}, s[8:11], 0 offen', tag=('R', g))
        else:
            a(f'buffer_load_dwordx4 {vr(W[g], 4)}, v{AI}, s[8:11], 0 offen', tag=('R', g))
        if CFG['x3']:
            a(f'buffer_load_dwordx3 {vr(W[g] + 2, 3)}, v{AI}, s[8:11], 0 offen offset:8', tag=('R', g))
        else:
            a(f'buffer_load_dword v{B[g]}, v{AI}, s[8:11], 0 offen offset:16', tag=('R', g))

    ao_done = set()

    def gather(x, b):
        g = x >> 1
        a.wait_vm([('R', g)])
        now = (x - b) % 8 < NA
        for h in (1, 0):
            k = (2 * x + h) & 3
            w = W[g] + k
            a(f'v_and_b32 v{NV}, {1 << (28 + k):#x}, v{EC[g]}')
            a(f'v_lshrrev_b32 v{AI}, 14, v{w}')
            a(f'v_bitop3_b32 v{AI}, v{AI}, v{KAD}, v{NV} bitop3:{ANDOR:#x}')
            a(f'ds_read_b64 {vr(MR[x % NR][h], 2)}, v{AI}', tag=('m', x))
            if now:
                a(f'v_bitop3_b32 v{AO(x)[h]}, v{w}, v{KAD}, v{NV} bitop3:{ANDOR:#x}')
        if now:
            ao_done.add(x)

    def dec_ao(b):
        if b in ao_done:
            ao_done.discard(b)
            return
        g = b >> 1
        for h in range(2):
            k = (2 * b + h) & 3
            a(f'v_and_b32 v{NV}, {1 << (28 + k):#x}, v{EC[g]}')
            a(f'v_bitop3_b32 v{AO(b)[h]}, v{W[g] + k}, v{KAD}, v{NV} bitop3:{ANDOR:#x}')

    def dec_c1(b):
        g = b >> 1
        for h in (1, 0):
            k = (2 * b + h) & 3
            w = W[g] + k
            a(f'v_perm_b32 v{C[h]}, v{w}, v{B[g]}, s{sP[k]}')
            a(f'v_bitop3_b32 v{(AI, NV)[h]}, v{w}, 0.5, -0.5 bitop3:{ORAND:#x}')

    def dec_c2(b):
        for h in (1, 0):
            a(f'v_bitop3_b32 v{C[h]}, v{KCM}, v{C[h]}, v{(AI, NV)[h]} bitop3:{SEL:#x}')

    def flush_pend(mask):
        return [f's_mov_b64 exec, {mask}',
                's_nop 1',
                f'{MF} {vr(RT, 4)}, {vr(NID, 2)}, {vr(P, 2)}, 0',
                's_nop 1',
                f'{MF} {vr(RT, 4)}, {vr(ID, 2)}, {vr(P + 2, 2)}, {vr(RT, 4)}',
                's_nop 4',
                f'v_cvt_pk_bf16_f32 v{RT}, v{RT}, v{RT + 1}',
                f'v_cvt_pk_bf16_f32 v{RT + 1}, v{RT + 2}, v{RT + 3}',
                f'ds_pk_add_bf16 v{PA}, v{RT} offset:{G.A_OFFS}',
                f'ds_pk_add_bf16 v{PA}, v{RT + 1} offset:{G.A_OFFS + 4}']

    def check(b, h):
        if CFG['ab_nofix'] == 1:
            return
        uid[0] += 1
        u = uid[0]
        a(f'v_cmpx_ne_u64 vcc, {vr(OLD2[h], 2)}, {vr(OLD[h], 2)}')
        if CFG['cnt']:
            a('s_bcnt1_i32_b64 s72, vcc')
            a('s_add_u32 s63, s63, s72')
        skip = CFG['zskip'] == 1 or (CFG['zskip'] == 2 and (b & 7) >= 6)
        if skip:
            a(f's_cbranch_execz L2_z{u}')
        a(f's_and_b64 {TMP}, vcc, {PEND}')
        a(f's_cbranch_scc1 L2_c{u}')
        a.label(f'L2_d{u}')
        if CFG['mov64']:
            a(f'v_mov_b64 {vr(P, 2)}, {vr(OLD[h], 2)}')
            a(f'v_mov_b32 v{PA}, v{AO(b)[h]}')
            a(f'v_mov_b64 {vr(P + 2, 2)}, {vr(OLD2[h], 2)}')
        else:
            for n in range(2):
                a(f'v_mov_b32 v{P + n}, v{OLD[h] + n}')
                a(f'v_mov_b32 v{P + 2 + n}, v{OLD2[h] + n}')
            a(f'v_mov_b32 v{PA}, v{AO(b)[h]}')
        if skip:
            a(f's_or_b64 {PEND}, {PEND}, vcc')
            a.label(f'L2_z{u}')
            a('s_mov_b64 exec, -1')
            if h == 0 and inj_on((b + 1) & 7, 0):
                a('s_nop 0')
        else:
            a('s_mov_b64 exec, -1')
            a(f's_or_b64 {PEND}, {PEND}, vcc')
        cnt = [f's_bcnt1_i32_b64 s72, {TMP}', 's_add_u32 s67, s67, s72', 's_add_u32 s67, s67, 0x10000'] if CFG['cnt'] else []
        if not CFG['nbr']:
            ool.append([f'L2_c{u}:'] + cnt + flush_pend(TMP) + ['s_mov_b64 exec, vcc', f's_branch L2_d{u}'])
            return
        CF, TG = 's[50:51]', 's[52:53]'
        bl = [f'L2_c{u}:',
              f's_mov_b64 {CF}, vcc',
              f's_lshl_b64 {TG}, {TMP}, 1',
              f's_andn2_b64 {TG}, {TG}, {PEND}',
              f's_andn2_b64 {TG}, {TG}, {CF}',
              f's_or_b64 {PEND}, {PEND}, {TG}',
              f's_not_b64 vcc, {TG}',
              's_mov_b64 exec, -1']
        for n, r in enumerate((P, P + 1, P + 2, P + 3, PA)):
            bl.append(f'v_cndmask_b32_dpp v{r}, v{r}, v{r}, vcc wave_shr:1 row_mask:0xf bank_mask:0xf')
            if n == 1:
                bl.append(f's_lshr_b64 {TG}, {TG}, 1')
            if n == 3:
                bl.append(f's_andn2_b64 {TMP}, {TMP}, {TG}')
        bl += [f's_mov_b64 vcc, {CF}',
               f's_mov_b64 exec, {CF}',
               f's_cbranch_scc0 L2_d{u}'] + cnt + flush_pend(TMP) + ['s_mov_b64 exec, vcc', f's_branch L2_d{u}']
        ool.append(bl)

    def inj_on(b, h):
        if CFG['ab_nofix'] == 1:
            return False
        return (2 * b + h) % CFG['injs'] == 0

    def inject(b, h):
        m = INJ1 if h else INJ
        a(f's_and_b64 exec, {m}, {PEND}')
        a(f'{MF} {vr(X[h], 4)}, {vr(NID, 2)}, {vr(P, 2)}, 0')
        a(f'v_mov_b32 v{AO(b)[h]}, v{PA}')
        a(f's_andn2_b64 {PEND}, {PEND}, {m}')
        a(f'{MF} {vr(X[h], 4)}, {vr(ID, 2)}, {vr(P + 2, 2)}, {vr(X[h], 4)}')
        a('s_mov_b64 exec, -1')

    def step_a(b):
        a.wait_lg(('m', b))
        for h in (1, 0):
            a(f'{MF} {vr(X[h], 4)}, {vr(WD, 2)}, {vr(MR[b % NR][h], 2)}, 0')
        dec_c2(b)
        for h in (1, 0):
            if inj_on(b, h):
                a(f'v_cmp_lt_u32 {INJ1 if h else INJ}, v{KAD}, v{AO(b)[h]}')
        for h in (1, 0):
            if CFG['pkmul']:
                for n in (0, 2):
                    a(f'v_pk_mul_f32 {vr(X[h] + n, 2)}, {vr(X[h] + n, 2)}, {vr(C[0], 2)} op_sel:[0,{h}] op_sel_hi:[1,{h}]')
            else:
                for n in range(4):
                    a(f'v_mul_f32 v{X[h] + n}, v{C[h]}, v{X[h] + n}')

    def step_b(b, final=False, mid=None):
        a.wait_lg('x')
        for h in (1, 0):
            check(b - 1, h)
            if CFG['injearly'] and inj_on(b, h):
                inject(b, h)
        for h in (1, 0):
            if not CFG['injearly'] and inj_on(b, h):
                inject(b, h)
            a(f'ds_read_b64 {vr(OLD[h], 2)}, v{AO(b)[h]} offset:{G.A_OFFS}', tag='o')
        if not final:
            for x in gs.get(b, []):
                gather(x, b)
            mid()
        a.wait_lg('o')
        for h in (1, 0):
            a(f'{MF} {vr(X[h], 4)}, {vr(ID, 2)}, {vr(OLD[h], 2)}, {vr(X[h], 4)}')
        if not final:
            dec_ao((b + 1) & 7)
            dec_c1((b + 1) & 7)
        for h in (1, 0):
            a(f'v_cvt_pk_bf16_f32 v{X[h]}, v{X[h]}, v{X[h] + 1}')
            a(f'v_cvt_pk_bf16_f32 v{X[h] + 1}, v{X[h] + 2}, v{X[h] + 3}')
            a(f'ds_wrxchg_rtn_b64 {vr(OLD2[h], 2)}, v{AO(b)[h]}, {vr(X[h], 2)} offset:{G.A_OFFS}', tag='x')

    def stamp(i):
        if not CFG['stamp']:
            return
        a('s_memtime s[70:71]')
        a('s_waitcnt lgkmcnt(0)')
        a('s_sub_u32 s72, s70, s73')
        a('s_mov_b32 s73, s70')
        a(f's_add_u32 s{60 + i}, s{60 + i}, s72')

    ipos = [int(x) for x in CFG['ipos'].split()]
    fpos = [int(x) for x in CFG['fpos'].split()]
    fmpos = [int(x) for x in CFG['fmpos'].split()]

    ipos2 = [int(x) for x in CFG['ipos2'].split()]
    fpos2 = [int(x) for x in CFG['fpos2'].split()]

    def load_own(g):
        a(f'v_and_b32 v{AI}, 0x0fffffff, v{EC[g]}')
        issue_rec(g)
    def poll(level, lab):
        a('s_mov_b64 exec, 0xffff')
        a.label(lab)
        a(f'buffer_load_dword v{RT}, v{LA}, s[60:63], 0 offen sc1')
        a('s_waitcnt vmcnt(0)')
        a(f'v_cmp_gt_u32 vcc, {level}, v{RT}')
        a(f's_cbranch_vccnz {lab}')
        a('s_mov_b64 exec, -1')

    def signal(level, tmp):
        uid[0] += 1
        a(f's_cmp_lg_u32 s{sW}, 0')
        a(f's_cbranch_scc1 L2_sg{uid[0]}')
        vm, nvm = list(a.vm), a.nvm
        a('s_mov_b64 exec, 1')
        a(f'v_mov_b32 v{tmp}, {level}')
        a(f'buffer_store_dword v{tmp}, off, s[60:63], s57 sc1')
        a('s_mov_b64 exec, -1')
        a.vm, a.nvm = vm, nvm
        a.label(f'L2_sg{uid[0]}')

    if P1:
        T16, sE = 0, 56
        a('s_load_dwordx2 s[28:29], s[0:1], 0')
        a('s_load_dwordx2 s[50:51], s[0:1], 40')
        a('s_load_dwordx2 s[52:53], s[0:1], 24')
        a(f's_lshl_b32 s54, s{sW}, 2')
        a('buffer_load_dword v3, off, s[68:71], s54 offset:64 sc1', tag='c1')
        yield
        signal(1, 11)
        a('s_load_dwordx4 s[96:99], s[50:51], 0')
        a('s_mov_b64 s[4:5], s[52:53]')
        a(f's_bfe_u32 s{sQ}, s2, 0x20001')
        a(f's_and_b32 s{sOB}, s2, 1')
        a(f's_lshl_b32 s{sOB}, s{sOB}, 5')
        a('s_lshr_b32 s3, s2, 3')
        a(f's_add_u32 s{sOB}, s{sOB}, s3')
        a(f's_mul_i32 s{sTab}, s{sQ}, 2080')
        a(f's_lshl_b32 s3, s{sOB}, 5')
        a(f's_add_u32 s{sTab}, s{sTab}, s3')
        a(f's_mul_i32 s{sMD}, s{sQ}, {16 * 81920}')
        next_m(0)
        a(f's_lshl_b32 s{sM0}, s{sW}, 11')
        a(f's_mul_i32 s100, s{sW}, 3072')
        G.srd(a, 8, 30, G.REC_OFF, G.REC_SZ)
        G.srd(a, 12, 30, G.TAB_OFF, G.TAB_SZ)
        G.srd(a, 16, 64, 0, 32)
        G.srd(a, 24, 28, 0, G.E * 8)
        a(f'v_and_b32 v13, 0x3f0, v{T16}')
        a('v_and_b32 v14, 0x300, v13')
        a('v_bfe_u32 v15, v13, 4, 4')
        a(f's_lshl_b32 s3, s{sW}, 4')
        a('v_add3_u32 v14, v14, v15, s3')
        a(f'v_mul_u32_u24 v{CBA}, {G.BLK}, v14')
        a('v_lshrrev_b32 v14, 6, v13')
        a('s_add_u32 s3, s3, 0x400')
        a('v_add_u32 v14, s3, v14')
        a(f'v_mul_u32_u24 v{CBB}, {G.BLK}, v14')
        a('v_and_b32 v14, 3, v14')
        a('v_and_b32 v15, 0x30, v13')
        a('v_lshl_add_u32 v14, v14, 5, v15')
        a(f'v_add_u32 v6, v14, v{CBB}')
        a(f'v_lshl_add_u32 v5, v15, 1, v{CBA}')
        a('v_lshrrev_b32 v14, 3, v15')
        yield
        wb = P1['take'](100)
        for k in range(4):
            a(f'buffer_load_ushort v{wb + k}, v14, s[16:19], 0 offen offset:{k * 8}', tag='wd')
        PRE = CFG['pre']

        def wait_c1(r):
            a.label('L2_c1')
            a(f'v_cmp_gt_u32 vcc, 16, v{r}')
            a('s_cbranch_vccnz L2_c1w')
            ool.append(['L2_c1w:', f'buffer_load_dword v{r}, off, s[68:71], s54 offset:64 sc1', 's_waitcnt vmcnt(0)', 's_branch L2_c1'])

        def load_da(r):
            for k in (0, 2, 1, 3):
                a(f'buffer_load_dwordx4 {vr(DA + 4 * k, 4)}, v{r}, s[12:15], s{sTab} offen offset:{16 * k}', tag='D')
        a.wait_vm('c1')
        if PRE:
            wait_c1(3)
        else:
            a('v_mov_b32 v1, v3')
        yield
        for k in (0, 2, 1, 3):
            P1['take'](DA + 4 * k)
        if PRE:
            load_da(5)
        a(f's_mul_i32 s3, s{sW}, 5120')
        a(f'v_add_u32 v{FA}, s3, v13')
        for ns in ((4, 2), (3, 0), (1,)):
            yield
            for n in ns:
                P1['take'](MP[n])
                if PRE:
                    load_m_raw(n, 0, 13)
        a('v_lshrrev_b32 v14, 2, v13')
        a(f'v_add_u32 v14, s{sM0}, v14')
        a('s_mov_b64 exec, 0xffff')
        a('buffer_load_dword v11, v14, s[60:63], 0 offen sc1', tag='f1')
        a('s_mov_b64 exec, -1')
        P1['take'](DB)
        yield
        a.wait_vm('f1')
        a('v_cmp_gt_u32 vcc, 1, v11')
        a(f's_and_b32 s{sE}, vcc_lo, 0xffff')
        if PRE:
            a('s_cbranch_scc1 L2_e0')
            vm, nvm = list(a.vm), a.nvm
            a(f'buffer_load_dwordx4 {vr(DB, 4)}, v6, s[12:15], s{sTab} offen sc1')
            a.vm, a.nvm = vm, nvm
            dbn = a.nvm
            a.label('L2_e0')
        else:
            a('v_cmp_gt_u32 vcc, 16, v1')
            a(f's_or_b32 s{sE}, s{sE}, vcc_lo')
        yield
        store = P1['store']
        st['raw'] = True
        a(f'v_mov_b32 v92, v{T16}')
        a('v_mov_b32 v93, v6')
        a('v_mov_b32 v94, v13')
        a('v_mov_b32 v95, v5')
        P1['t16'](92)
        store()
        a(f'v_mov_b32 v{LA}, v14')
        a(f'v_lshl_or_b32 v{WD}, v{wb + 1}, 16, v{wb}')
        a(f'v_lshl_or_b32 v{WD + 1}, v{wb + 3}, 16, v{wb + 2}')
        a('v_lshrrev_b32 v16, 2, v15')
        a(f'v_mad_u32_u24 v{CBB}, v16, 5, v{CBB}')
        a(f'v_or_b32 v{CBB}, 0xf0000000, v{CBB}')
        a(f'v_or_b32 v{CBA}, 0xf0000000, v{CBA}')
        a(f'v_sub_u32 v{SHL}, 28, v16')
        a('v_lshrrev_b32 v17, 2, v16')
        G.ident(a, ID, 18, 17)
        G.ident(a, NID, 18, 17, neg=True)
        a(f'v_mov_b32 v{KF0}, 0xf0000000')
        a(f'v_mov_b32 v{KAD}, 0x1fff8')
        a(f'v_mov_b32 v{KCM}, 0x07ff0000')
        store()
        for n in range(4):
            a(f'v_mov_b32 v{16 + n}, 0')
        a(f'v_add_u32 v20, {G.A_BASE}, v92')
        a(f'v_add_u32 v21, 0x10000, v20')
        for n in range(5):
            a(f'ds_write_b128 v20, v[16:19] offset:{n * 16384}' if n < 4 else 'ds_write_b128 v21, v[16:19]')
            store()
        for n in (4, 2, 3):
            if PRE:
                fill(n)
            store()
        stn = a.nvm
        G.tl_mark(a, 76, 21, 1, RT)
        for k in range(4):
            a(f's_mov_b32 s{sP[k]}, {0x04000c0c | (k << 16):#x}')
        a(f's_mov_b32 s{sSlow}, 0')
        a(f's_mov_b32 s{sPH}, 0')
        a(f's_mov_b64 {PEND}, 0')
        a(f's_mov_b64 {INJ}, 0')
        a(f's_mov_b64 {INJ1}, 0')
        G.srd(a, 16, 30, G.MD_OFF, G.MD_SZ)
        G.srd(a, 20, 30, G.PART_OFF, 80000)
        a(f's_lshl_b32 s3, s{sQ}, 6')
        a(f's_add_u32 s3, s3, s{sOB}')
        a('s_mul_i32 s3, s3, 80000')
        a('s_add_u32 s20, s20, s3')
        a('s_addc_u32 s21, s21, 0')
        for n in range(8):
            a(f'v_mov_b32 v{OLD[0] + n}, 0')
        if PRE:
            x_pre(0)
            a(f's_waitcnt vmcnt({a.nvm - dbn})')
            a(f's_cmp_eq_u32 s{sE}, 0')
            a('s_cbranch_scc1 L2_e1')
            vm, nvm = list(a.vm), a.nvm
            poll(1, 'L2_p1')
            a(f'buffer_load_dwordx4 {vr(DB, 4)}, v93, s[12:15], s{sTab} offen sc1')
            a('s_waitcnt vmcnt(0)')
            a.vm, a.nvm = vm, nvm
            a.label('L2_e1')
            G.tl_mark(a, 76, 22, 1, RT)
            for n in (4, 2, 3):
                load_m_raw(n, 1, 94)
        else:
            a('s_waitcnt vmcnt(0)')
            G.tl_end(a, mid=True)
            a('s_barrier')
            signal(2, RT)
            a(f's_cmp_eq_u32 s{sE}, 0')
            a('s_cbranch_scc1 L2_e1')
            a(f'v_mov_b32 v{RT + 1}, 0')
            wait_c1(RT + 1)
            poll(1, 'L2_p1')
            a.label('L2_e1')
            load_da(95)
            a(f'buffer_load_dwordx4 {vr(DB, 4)}, v93, s[12:15], s{sTab} offen', tag='D')
            for n in (4, 2, 3, 0, 1):
                load_m_raw(n, 0, 94)
            G.tl_mark(a, 76, 22, 1, RT)
            x_pre(0)
        x_list(0, EN, 0)
        x_pre(1)
        a.wait_lg('L')
        for g in range(4):
            a(f'v_mov_b32 v{EC[g]}, v{EN[g]}')
        x_list(1, EN, 1)
        for n in (0, 1) if PRE else (4, 2, 3, 0, 1):
            fill(n)
            if PRE:
                load_m_raw(n, 1, 94)
        G.tl_mark(a, 76, 23, 1, RT)
        if PRE:
            a(f's_waitcnt vmcnt({a.nvm - stn}) lgkmcnt(0)')
            G.tl_end(a, mid=True)
            a('s_barrier')
            G.tl_mark(a, 76, 24, 1, RT)
            signal(2, RT)
        else:
            a('s_mov_b64 exec, 0xffff')
            a(f'buffer_load_dword v{RT}, v{LA}, s[60:63], 0 offen sc1')
            a('s_mov_b64 exec, -1')
            a('s_waitcnt lgkmcnt(0)')
            a('s_barrier')
            G.tl_mark(a, 76, 24, 1, RT + 2)
            a('s_waitcnt vmcnt(0)')
            a(f'v_cmp_gt_u32 vcc, 2, v{RT}')
            a(f's_and_b32 s{sE}, vcc_lo, 0xffff')
            a('s_cbranch_scc0 L2_e2')
            for n in (4, 2, 3, 0, 1):
                load_m_raw(n, 1, 94)
        poll(2, 'L2_p2')
        a.label('L2_e2')
        G.tl_start(a, mid=True)
        load_own(0)
    else:
        if CFG['stamp']:
            for i in range(8):
                a(f's_mov_b32 s{60 + i}, 0')
            a('s_mov_b32 s73, 0')
            stamp(7)
            a('s_mov_b32 s67, 0')

        for n in range(8):
            a(f'v_mov_b32 v{OLD[0] + n}, 0')
        a(f'v_add_u32 v24, {G.A_BASE}, v24')
        for n in range(4):
            a(f'ds_write_b128 v24, {vr(OLD[0], 4)} offset:{n * 16384}')
        a(f'v_add_u32 v{AI}, 0x10000, v24')
        a(f'ds_write_b128 v{AI}, {vr(OLD[0], 4)}')
        G.tl_mark(a, 76, 21, 1, RT)
        a.wait_vm('D')
        G.tl_mark(a, 76, 22, 1, RT)
        if CFG['dq']:
            Z = 26
            for src, dst, bit, qp, ev in ((DA, Z, 1, '[1,0,3,2]', 0x55555555), (Z, DA, 2, '[2,3,0,1]', 0x33333333)):
                for par in range(2):
                    m = ev if par == 0 else ev ^ 0xffffffff
                    a(f's_mov_b32 vcc_lo, {m:#x}')
                    a(f's_mov_b32 vcc_hi, {m:#x}')
                    n = 0
                    for k in range(4):
                        if bool(k & bit) != bool(par):
                            continue
                        for r in range(4):
                            a(f'v_cndmask_b32_dpp v{dst + 4 * k + r}, v{src + 4 * (k ^ bit) + r}, v{src + 4 * k + r}, vcc quad_perm:{qp} row_mask:0xf bank_mask:0xf')
                            n += 1
                            if CFG['dq'] == 2 and n % 2 == 0:
                                a(f'v_mov_b32 v{RT}, 0')
                                a(f'v_mov_b32 v{RT + 1}, 0')
        x_pre(0)
        x_list(0, EN, 0)
        x_pre(1)
        a.wait_lg('L')
        G.tl_mark(a, 76, 23, 1, RT)
        for g in range(4):
            a(f'v_mov_b32 v{EC[g]}, v{EN[g]}')
        if CFG['pprio'] < 2:
            load_own(0)
        for g in range(1, 4):
            fill((4, 2, 3)[g - 1])
            if ipos[g - 1] < 0 or CFG['ab_norec']:
                load_own(g)
        x_list(1, EN, 1)
        fill(0)
        fill(1)
        if CFG['pprio'] == 2:
            load_own(0)
        a('s_waitcnt lgkmcnt(0)')
        G.tl_mark(a, 76, 24, 1, RT)
        if CFG['ab_norec']:
            a('s_waitcnt vmcnt(0)')
        stamp(0)
    st['inloop'] = True
    prio1 = [int(x) for x in CFG['pr'].split()]
    sites = []
    FW, FM, FD, FL, FG = 48, [108, 112], [116, 117], [118, 119], [120, 121]

    def fin_preload():
        a(f's_lshl_b32 s3, s{sW}, 12')
        a(f'v_subrev_u32 v122, s3, v{FA}')
        a(f's_mul_i32 s3, s{sQ}, 20000')
        a(f'v_add_u32 v{FL[0]}, s3, v122')
        a(f'v_add_u32 v{FL[1]}, 0x4000, v{FL[0]}')
        a(f's_lshl_b32 s3, s{sOB}, 7')
        for r in range(2):
            a(f'v_lshrrev_b32 v123, 7, v{FL[r]}')
            a(f'v_and_b32 v{FG[r]}, 0x70, v{FL[r]}')
            a(f'v_lshl_add_u32 v{FG[r]}, v123, 13, v{FG[r]}')
            a(f'v_add_u32 v{FG[r]}, s3, v{FG[r]}')
        a(f'v_cmp_le_u32 vcc, {20000 - 16384}, v122')
        a('s_mov_b64 exec, vcc')
        a(f'v_mov_b32 v{FL[1]}, 2.0')
        a(f'v_mov_b32 v{FG[1]}, 2.0')
        a('s_mov_b64 exec, -1')
        a('v_and_b32 v123, 0x30, v122')
        a('v_lshlrev_b32 v123, 2, v123')
        a(f'buffer_load_dwordx4 {vr(FW, 4)}, v123, s[24:27], 0 offen', tag='fin')
        a(f'buffer_load_dwordx4 {vr(FW + 4, 4)}, v123, s[24:27], 0 offen offset:16', tag='fin')
        a(f'buffer_load_dwordx2 {vr(FW + 8, 2)}, v123, s[24:27], 0 offen offset:32', tag='fin')
        G.srd(a, 12, 4, 0, G.E * 2)
        G.srd(a, 16, 28, 0, G.E * 8)
        for r in range(2):
            a(f'v_lshrrev_b32 v123, 2, v{FG[r]}')
            a(f'buffer_load_dword v{FD[r]}, v123, s[12:15], 0 offen', tag='fin')
            a(f'buffer_load_dwordx4 {vr(FM[r], 4)}, v{FG[r]}, s[16:19], 0 offen', tag='fin')

    def phase(jj, kind):
        first, more1, more2 = kind == 'first', kind != 'last', kind in ('first', 'second', 'mid')
        second = kind == 'second'
        a.c(f'==== phase jj={jj} {kind}')
        if not (first and P1) and (first or not CFG['ab'] & 1):
            a('s_barrier')
        stamp(5)
        G.tl_mark(a, 76, f's{sPH}', 1, RT)
        site = len(sites)
        sites.append(site)
        a(f's_bitcmp1_b32 s{sSlow}, s{sPH}')
        a('s_cbranch_scc1 L2_slow')
        a.label(f'L2_ret{site}')
        hs = [None]
        st['m0'] = None

        def dhook():
            if hs[0] is None:
                return
            if CFG['sprio']:
                a(f's_setprio {3 - hs[0]}')
            for n in (4, 2, 3, 0, 1):
                if dpos[n] == hs[0]:
                    fill(n)
                    if mpos[n] < 0 and more2:
                        load_m(n)
            hs[0] += 1

        def rhook(pos):
            if first and not CFG['ab_norec']:
                if pos == 7 and CFG['pprio'] == 3:
                    load_own(0)
                for g in range(1, 4):
                    if ipos[g - 1] == pos:
                        load_own(g)
            elif second:
                for g in range(1, 3):
                    if fpos[g] == 9 and ipos2[g - 1] == pos:
                        load_own(g)
                if ipos2[2] == pos:
                    load_rec(3)
            elif rpos[3] in (pos, pos + 8):
                load_rec(3)
            if not more1:
                if pos == 1 and CFG['fuse']:
                    fin_preload()
                return
            for n in (4, 2, 3, 0, 1):
                if (fmpos if first else mpos)[n] == pos and not (first and P1):
                    load_m(n)
                elif first and P1 and fmpos[n] == pos and not CFG['pre']:
                    uid[0] += 1
                    a(f'v_and_b32 v{AI}, 0x3f0, v{FA}')
                    a('s_cmp_lg_u32 s56, 0')
                    a(f's_cbranch_scc1 L2_m{uid[0]}')
                    vm, nvm = list(a.vm), a.nvm
                    load_m_raw(n, 1, AI)
                    a.vm, a.nvm = vm, nvm
                    st[('rawn', n)] = a.nvm
                    a.label(f'L2_m{uid[0]}')
            if pos == 5:
                next_m(jj + 1)
            for g in range(3):
                if (fpos if first else fpos2 if second else rpos)[g] == pos:
                    load_rec(g)
                if first and fpos[g] == 9 and pos == 6:
                    a(f'v_mov_b32 v{EC[g]}, v{EN[g]}')

        for i, b in enumerate(order):
            if b == b1_step and more1:
                a.wait_lg(('m', 7))
                stamp(1)
                if not CFG['ab'] & 2:
                    a('s_barrier')
                stamp(2)
                hs[0] = 0
                dhook()
            if (i == 0 or prio1[i] != prio1[i - 1]) and not (CFG['sprio'] and b == b1_step):
                a(f's_setprio {prio1[i]}')
            if b != 7:
                step_a(b)
            if b == CFG['xpre'] and more2 and not CFG['ab'] & 4:
                x_pre((jj + 2) & 3)
            rhook(b)
            if b == b1_step and more2 and not CFG['ab'] & 4:
                x_list((jj + 2) & 3, EN, 2)
            elif b == b1_step and more1:
                a(f'v_mov_b32 v{ES}, v{EN[3]}')
            dhook()
            if first and b == 7:
                gather(0, 7)
                dec_ao(0)
                dec_c1(0)
            else:
                step_b(b, mid=dhook)
            dhook()
        step_a(7)
        if more1:
            assert hs[0] > max(dpos)
            a(f's_add_u32 s{sPH}, s{sPH}, 1')
            a.wait_lg('F')
            stamp(4)

    phase(0, 'first')
    st['raw'] = False
    if P1:
        G.srd(a, 24, 30, G.WT_OFF, G.WT_SZ)
    phase(1, 'second')
    a.vm = merge_vm(a.vm, G.MEMO.get('back', []))
    head_vm, head_lg = list(a.vm), list(a.lg)
    a.label('L2_loop')
    for jj in (2, 3, 0, 1):
        phase(jj, 'mid')
    assert 'back' not in G.MEMO or merge_vm(head_vm, a.vm) == head_vm, (a.vm, head_vm)
    G.MEMO['back'] = list(a.vm)
    assert a.lg == head_lg
    a(f's_cmp_lg_u32 s{sPH}, 14')
    a('s_cbranch_scc1 L2_loop')
    phase(2, 'penult')
    phase(3, 'last')
    step_b(7, final=True)
    a.wait_lg('x')
    check(7, 1)
    check(7, 0)
    for ln in flush_pend(PEND):
        a(ln)
    a('s_mov_b64 exec, -1')
    if True:
        a('s_load_dwordx2 s[4:5], s[0:1], 88')
        for n in range(1, 5):
            a(f'v_add_u32 v{122 + n}, {n * 16384}, v122')
        for n in range(4):
            a(f's_lshl_b32 s{50 + 2 * n}, s{96 + n}, 16')
            a(f's_and_b32 s{51 + 2 * n}, s{96 + n}, 0xffff0000')
        a('s_waitcnt vmcnt(0) lgkmcnt(0)')
        a('s_barrier')
        G.tl_mark(a, 76, 16, 1, 106)
        a('v_add_u32 v36, 0x8000, v126')
        for n in range(5):
            if n < 3:
                a(f'ds_read_b128 {vr(16 + 4 * n, 4)}, v126 offset:{G.A_BASE - 65536 + n * 16384}')
            else:
                a(f'ds_read_b128 {vr(16 + 4 * n, 4)}, v36 offset:{G.A_BASE - 98304 + n * 16384}')
        G.srd(a, 8, 30, G.FLAG_OFF, G.FLAG_SZ)
        G.srd(a, 12, 4, 0, G.E * 8)
        a(f's_mul_i32 s3, s{sQ}, 20000')
        for n in range(5):
            a(f'v_subrev_u32 v36, s3, v{122 + n}')
            a('v_cmp_le_u32 vcc, 20000, v36')
            a(f's_waitcnt lgkmcnt({4 - n})')
            a('s_mov_b64 exec, vcc')
            a(f'buffer_store_dwordx4 {vr(16 + 4 * n, 4)}, v{122 + n}, s[20:23], 0 offen sc1', tag='st')
            a('s_mov_b64 exec, -1')
        GH = [80, 16]
        G.fin_gates(a, FD[0], 50, FW, GH[0], 60)
        if not CFG['g1late']:
            a(f's_cmp_ge_u32 s{sW}, 4')
            a('s_cbranch_scc1 L2_f1')
            G.fin_gates(a, FD[1], 50, FW, GH[1], 60)
            a.label('L2_f1')
        PL = [32, 60]
        for r in range(2):
            a(f'v_add_u32 v104, {G.A_BASE}, v{FL[r]}')
            a(f'ds_read_b128 {vr(PL[r], 4)}, v104')
        G.srd(a, 20, 30, G.PART_OFF, G.PART_SZ)
        for k in range(1, 4):
            a(f's_add_u32 s3, s{sQ}, {k}')
            a('s_and_b32 s3, s3, 3')
            a('s_lshl_b32 s3, s3, 6')
            a(f's_add_u32 s3, s3, s{sOB}')
            a(f's_mul_i32 s{43 + k}, s3, 80000')
        a(f's_lshl_b32 s3, s{sOB}, 9')
        a(f's_lshl_b32 s4, s{sQ}, 7')
        a('s_add_u32 s4, s4, s3')
        a('v_mov_b32 v104, 1')
        a('v_lshlrev_b32 v105, 3, v122')
        G.tl_mark(a, 76, 17, 1, 106)
        a('s_waitcnt vmcnt(0)')
        a('s_barrier')
        G.tl_mark(a, 76, 18, 1, 106)
        a(f's_cmp_lg_u32 s{sW}, 0')
        a('s_cbranch_scc1 L2_f2')
        a('s_mov_b64 exec, 1')
        a('buffer_store_dword v104, off, s[8:11], s4 sc1')
        a('s_mov_b64 exec, 15')
        a(f's_bitset0_b64 exec, s{sQ}')
        a.label('L2_f3')
        a('buffer_load_dword v104, v105, s[8:11], s3 offen sc1')
        a('s_waitcnt vmcnt(0)')
        a('v_cmp_ne_u32 vcc, 1, v104')
        a('s_cbranch_vccnz L2_f3')
        a.label('L2_f4')
        a('s_mov_b64 exec, -1')
        a.label('L2_f2')
        a('s_barrier')
        G.tl_mark(a, 76, 19, 1, 106)
        for r in range(2):
            if r:
                a(f's_cmp_ge_u32 s{sW}, 4')
                a('s_cbranch_scc1 L2_f5')
            for k in range(1, 4):
                a(f'buffer_load_dwordx4 {vr(PL[r] + 4 * k, 4)}, v{FL[r]}, s[20:23], s{43 + k} offen sc1')
        if CFG['g1late']:
            G.fin_gates(a, FD[1], 50, FW, GH[1], (96, 0, [104, 76]))
        a.label('L2_f5')
        a('s_waitcnt vmcnt(0) lgkmcnt(0)')
        G.tl_mark(a, 76, 20, 1, 106)
        for r in range(2):
            if r:
                a(f's_cmp_ge_u32 s{sW}, 4')
                a('s_cbranch_scc1 L2_f6')
            G.fin_out(a, PL[r], GH[r], FW, ID, FM[r], 96)
            a(f'buffer_store_dwordx4 {vr(PL[r] + 4, 4)}, v{FG[r]}, s[12:15], 0 offen{CFG["out_pol"]}')
        a.label('L2_f6')
    G.tl_end(a)
    if CFG['stamp']:
        a('s_waitcnt vmcnt(0)')
        stamp(6)
        a('s_load_dwordx2 s[74:75], s[0:1], 96')
        a('s_waitcnt lgkmcnt(0)')
        G.srd(a, 76, 74, 0, 256)
        a(f's_cmp_lg_u32 s2, {CFG["stamp"]}')
        a('s_cbranch_scc1 L2_end')
        a(f's_and_b32 s3, s{sW}, 3')
        a('s_cmp_lg_u32 s3, 0')
        a('s_cbranch_scc1 L2_end')
        a(f's_lshl_b32 s3, s{sW}, 3')
        a('v_mov_b32 v20, 0')
        for i in range(8):
            a(f'v_mov_b32 v21, s{60 + i}')
            a(f'buffer_store_dword v21, v20, s[76:79], s3 offen offset:{4 * i}')
    a.label('L2_end')
    a('s_endpgm')

    a.label('L2_slow')
    a.reset()
    sC, sS, sE, sO = 50, 51, 52, 53
    pp, t_, wa, ba, w_, b_, ao, c_, ai_ = 102, 103, 104, 105, 106, 107, 96, 97, 98
    m_ = MR[0][0]
    a(f's_lshr_b32 s{sSP}, s{sPH}, 2')
    a(f's_lshl_b32 s{sC}, s{sW}, 4')
    a(f's_and_b32 s3, s{sPH}, 3')
    a(f's_lshl_b32 s{sO}, s3, 3')
    a(f's_add_u32 s{sO}, s{sO}, s{sTab}')
    a(f's_and_b32 s3, s{sSP}, 2')
    a('s_lshl_b32 s3, s3, 1')
    a(f's_add_u32 s{sO}, s{sO}, s3')
    a(f's_and_b32 s54, s{sSP}, 1')
    a('s_lshl_b32 s54, s54, 4')
    a.label('L2_sl_seg')
    a(f's_mul_i32 s55, s{sC}, {G.BLK}')
    a(f's_and_b32 s3, s{sC}, 3')
    a('s_lshl_b32 s3, s3, 5')
    a('s_add_u32 s3, s3, s55')
    a(f's_add_u32 s3, s3, s{sO}')
    a(f'buffer_load_dword v{wa}, off, s[12:15], s3 sc1')
    a(f'buffer_load_dword v{ba}, off, s[12:15], s3 offset:32 sc1')
    a('s_waitcnt vmcnt(0)')
    a(f'v_readfirstlane_b32 s{sS}, v{wa}')
    a(f'v_readfirstlane_b32 s{sE}, v{ba}')
    a(f's_lshr_b32 s{sS}, s{sS}, s54')
    a(f's_and_b32 s{sS}, s{sS}, 0xffff')
    a(f's_lshr_b32 s{sE}, s{sE}, s54')
    a(f's_and_b32 s{sE}, s{sE}, 0xffff')
    a.label('L2_sl_rec')
    a(f's_cmp_ge_u32 s{sS}, s{sE}')
    a('s_cbranch_scc1 L2_sl_next')
    a(f'v_mbcnt_lo_u32_b32 v{pp}, -1, 0')
    a(f'v_mbcnt_hi_u32_b32 v{pp}, -1, v{pp}')
    a(f'v_add_u32 v{pp}, s{sS}, v{pp}')
    a(f'v_and_b32 v{t_}, -4, v{pp}')
    a(f'v_lshl_add_u32 v{wa}, v{pp}, 2, v{t_}')
    a(f'v_lshl_add_u32 v{ba}, v{t_}, 2, v{pp}')
    a(f'v_cmp_gt_u32 vcc, s{sE}, v{pp}')
    a('s_mov_b64 exec, vcc')
    a(f'buffer_load_dword v{w_}, v{wa}, s[8:11], s55 offen')
    a(f'buffer_load_ubyte v{b_}, v{ba}, s[8:11], s55 offen offset:16')
    a('s_waitcnt vmcnt(0)')
    a(f'v_lshrrev_b32 v{ai_}, 14, v{w_}')
    a(f'v_and_b32 v{ai_}, v{KAD}, v{ai_}')
    a(f'ds_read_b64 {vr(m_, 2)}, v{ai_}')
    a(f'v_perm_b32 v{c_}, v{w_}, v{b_}, s{sP[0]}')
    a(f'v_and_b32 v{ao}, v{KAD}, v{w_}')
    a(f'v_bitop3_b32 v{t_}, v{w_}, 0.5, -0.5 bitop3:{ORAND:#x}')
    a(f'v_bitop3_b32 v{c_}, v{KCM}, v{c_}, v{t_} bitop3:{SEL:#x}')
    a('s_waitcnt lgkmcnt(0)')
    a(f'{MF} {vr(RT, 4)}, {vr(WD, 2)}, {vr(m_, 2)}, 0')
    for n in range(4):
        a(f'v_mul_f32 v{RT + n}, v{c_}, v{RT + n}')
    a(f'v_cvt_pk_bf16_f32 v{RT}, v{RT}, v{RT + 1}')
    a(f'v_cvt_pk_bf16_f32 v{RT + 1}, v{RT + 2}, v{RT + 3}')
    a(f'ds_pk_add_bf16 v{ao}, v{RT} offset:{G.A_OFFS}')
    a(f'ds_pk_add_bf16 v{ao}, v{RT + 1} offset:{G.A_OFFS + 4}')
    a('s_mov_b64 exec, -1')
    a(f's_add_u32 s{sS}, s{sS}, 64')
    a('s_branch L2_sl_rec')
    a.label('L2_sl_next')
    a(f's_add_u32 s{sC}, s{sC}, 1')
    a(f's_and_b32 s3, s{sC}, 15')
    a('s_cbranch_scc1 L2_sl_seg')
    a(f's_add_u32 s{sC}, s{sC}, 240')
    a(f's_cmp_lt_u32 s{sC}, {G.NCH}')
    a('s_cbranch_scc1 L2_sl_seg')
    a('s_waitcnt lgkmcnt(0)')
    for ph, k in ((0, 0), (1, 1), (14, 6), (15, 7)):
        a(f's_cmp_eq_u32 s{sPH}, {ph}')
        a(f's_cbranch_scc1 L2_ret{k}')
    a(f's_and_b32 s3, s{sPH}, 3')
    for ph, k in ((2, 2), (3, 3), (0, 4)):
        a(f's_cmp_eq_u32 s3, {ph}')
        a(f's_cbranch_scc1 L2_ret{k}')
    a('s_branch L2_ret5')
    for bl in ool:
        for ln in bl:
            if ln.endswith(':'):
                a.label(ln[:-1])
                a.reset()
            else:
                a(ln)
    yield name
```

```python
import os
import sys
from asmlib import Asm, vr, sr

NAME = 'gather_scatter__molecular_angular_gemnet__graph'
CFG = dict(
    ld_pol=' nt',
    st_pol=' sc1',
    pad=9216, one=1, p1_first=8, mcn=128, tabx=1, ab_p1=0, il=1, sa='20010010', sb='1000100100', la='01101000', lb='1000100000', scd=8, p1prio=1, warm=2, dyn=2, cut='96 192 240', slp1=32, slp2=8, inv=1, m0s=0, m0e=5, fs=1, r0pre=1, tkpos=7, tkwave=15, wgx=0,
    ab=0, ab_nofix=0, ab_norec=0, ab_nom=0, stamp=0, tl=0, tlw=0, dup2=0, dup1=0, wsoff=0, nulls=0, dup3=0, cnt=0,
    x3=2, rpos='1 3 5 7', dpos='2 3 0 0 1', mpos='0 2 -1 -1 -1', ipos='7 0 2', fpos='3 5 6', fmpos='3 3 1 2 1', ipos2='7 0 7', fpos2='1 3 5', pprio=0, dq=0, nbr=1, zskip=0, cmap=1, gord='0 1 2 3', sprio=1, xpre=2, pkmul=1, mov64=1, injs=4, injearly=0, pr='3 3 2 2 1 1 0 1', part_pol=' sc1', fuse=1, out_pol='', mimic=1, g1late=1,
)
for arg in sys.argv[2:]:
    k, v = arg.split('=', 1)
    CFG[k] = type(CFG[k])(v.replace('_', ' ')) if isinstance(CFG.get(k), str) else int(v)

E = 640000
T = 40960000
CH = 32768
NCH = 1280
REC_CH = CH * 5
TAB_CH = 16 * 65 * 8
BLK = REC_CH + CFG['pad']
REC_OFF = CFG['wsoff']
REC_SZ = NCH * BLK
TAB_OFF = REC_OFF + REC_CH
TAB_SZ = NCH * BLK - REC_CH
MD_OFF = REC_OFF + REC_SZ
MD_SZ = 64 * 81920
PART_OFF = MD_OFF + MD_SZ + 4096
PART_SZ = 4 * E * 8
WT_OFF = PART_OFF + PART_SZ
WT_SZ = 256
FLAG_OFF = WT_OFF + 4096
FLAG_SZ = 256 * 128
PROG_OFF = FLAG_OFF + FLAG_SZ
KBIAS = 2064
A_BASE = 81920
A_OFFS = A_BASE - KBIAS * 8

MEMO = {}
SEL = 0xCA
ANDOR = 0xEA
XANDN = 0x9A


def srd(a, d, base, off, size):
    if off:
        a(f's_add_u32 s{d}, s{base}, {off:#x}')
        a(f's_addc_u32 s{d+1}, s{base+1}, 0')
    else:
        a(f's_mov_b32 s{d}, s{base}')
        a(f's_mov_b32 s{d+1}, s{base+1}')
    a(f's_mov_b32 s{d+2}, {size:#x}')
    a(f's_mov_b32 s{d+3}, 0x20000')


def kernel_head(a, name):
    a.raw('.text')
    a.raw(f'.globl {name}')
    a.raw('.p2align 8')
    a.raw(f'.type {name},@function')
    a.label(name)
    a.reset()


def kernel_desc(a, name, vgpr, sgpr=96):
    a.raw('.p2align 6')
    a.raw(f'.amdhsa_kernel {name}')
    a.raw(f'  .amdhsa_next_free_vgpr {vgpr}')
    a.raw(f'  .amdhsa_next_free_sgpr {sgpr}')
    a.raw(f'  .amdhsa_accum_offset {(vgpr + 3) // 4 * 4}')
    a.raw('  .amdhsa_group_segment_fixed_size 0')
    a.raw('  .amdhsa_kernarg_size 112')
    a.raw('  .amdhsa_user_sgpr_count 2')
    a.raw('  .amdhsa_user_sgpr_kernarg_segment_ptr 1')
    a.raw('  .amdhsa_system_sgpr_workgroup_id_x 1')
    a.raw('  .amdhsa_float_denorm_mode_32 3')
    a.raw('.end_amdhsa_kernel')


TL_OFF = 600000000
tl_idx = [0]


def tl_start(a, mid=False):
    if not CFG['tl']:
        return
    a('s_memrealtime s[90:91]')
    a('s_memtime s[92:93]')
    if not mid:
        a('v_readfirstlane_b32 s94, v0')
    a('s_waitcnt lgkmcnt(0)')


def tl_end(a, mid=False):
    if not CFG['tl']:
        return
    vb, va = (88, 47) if mid else (4, 0)
    vm, nvm = list(a.vm), a.nvm
    if not mid:
        a('s_waitcnt vmcnt(0) lgkmcnt(0)')
    a('s_memrealtime s[86:87]')
    a('s_memtime s[88:89]')
    a('s_load_dwordx2 s[74:75], s[0:1], 104')
    a('s_waitcnt lgkmcnt(0)')
    srd(a, 76, 74, TL_OFF + tl_idx[0] * 0x100000, 0x100000)
    tl_idx[0] += 1
    a('s_mov_b64 exec, 1')
    a('s_lshr_b32 s91, s94, 2')
    a('s_lshl_b32 s95, s2, 8')
    a('s_add_u32 s95, s91, s95')
    a('s_sub_u32 s88, s88, s92')
    a('s_getreg_b32 s89, hwreg(HW_REG_XCC_ID)')
    a('s_and_b32 s89, s89, 15')
    a('s_lshl_b32 s87, s84, 8')
    a('s_or_b32 s89, s89, s87')
    a(f'v_mov_b32 v{va}, s95')
    for i, r in enumerate((90, 86, 88, 89)):
        a(f'v_mov_b32 v{vb + i}, s{r}')
    a(f'buffer_store_dwordx4 v[{vb}:{vb + 3}], v{va}, s[76:79], 0 offen')
    a('s_mov_b64 exec, -1')
    a('s_nop 1')
    a.vm, a.nvm = vm, nvm


def tl_mark(a, srdreg, slot_sgpr_or_int, kidx, vtmp):
    if CFG['tl'] < 2:
        return
    a('s_memrealtime s[86:87]')
    a('s_memtime s[88:89]')
    a('s_load_dwordx2 s[74:75], s[0:1], 104')
    a('s_waitcnt lgkmcnt(0)')
    srd(a, 76, 74, TL_OFF + (4 + kidx) * 0x100000, 0x100000)
    a(f's_cmp_eq_u32 s94, {CFG["tlw"] * 64}')
    a('s_cselect_b64 exec, 1, 0')
    a('s_lshl_b32 s95, s2, 9')
    if isinstance(slot_sgpr_or_int, int):
        a(f's_add_u32 s95, s95, {slot_sgpr_or_int * 8}')
    else:
        a(f's_lshl_b32 s87, {slot_sgpr_or_int}, 3')
        a('s_add_u32 s95, s95, s87')
    a(f'v_mov_b32 v{vtmp}, s86')
    a(f'v_mov_b32 v{vtmp + 1}, s88')
    vm, nvm = list(a.vm), a.nvm
    a(f'buffer_store_dwordx2 v[{vtmp}:{vtmp + 1}], off, s[76:79], s95')
    a.vm, a.nvm = vm, nvm
    a('s_mov_b64 exec, -1')


def wave_scan(a, regs):
    for sh in (1, 2, 4, 8):
        for x in regs:
            a(f'v_add_u32_dpp v{x}, v{x}, v{x} row_shr:{sh} row_mask:0xf bank_mask:0xf bound_ctrl:1')
    for x in regs:
        a(f'v_add_u32_dpp v{x}, v{x}, v{x} row_bcast:15 row_mask:0xa bank_mask:0xf')
    for x in regs:
        a(f'v_add_u32_dpp v{x}, v{x}, v{x} row_bcast:31 row_mask:0xc bank_mask:0xf')


def ident(a, d, tmp, lane, neg=False):
    one = 0xbf80 if neg else 0x3f80
    a(f'v_and_b32 v{tmp}, 3, v{lane}')
    a(f'v_lshlrev_b32 v{tmp}, 4, v{tmp}')
    a(f'v_mov_b32 v{d}, {one:#x}')
    a(f'v_mov_b32 v{d+1}, 0')
    a(f'v_lshlrev_b64 {vr(d, 2)}, v{tmp}, {vr(d, 2)}')


MF = 'v_mfma_f32_4x4x4_16b_bf16'


def fin_gates(a, dist, sc, wt, gh, tmp):
    X, Y, RB, d = (tmp, tmp + 8, [tmp + 12, tmp + 16], gh) if isinstance(tmp, int) else tmp + (gh,)
    for r in range(2):
        if r == 0:
            a(f'v_lshlrev_b32 v{d}, 16, v{dist}')
        else:
            a(f'v_and_b32 v{d}, 0xffff0000, v{dist}')

        def rnd():
            if not CFG['mimic']:
                return
            for n in range(4):
                a(f'v_cvt_pk_bf16_f32 v{Y + n}, v{X + 2 * n}, v{X + 2 * n + 1}')
            for n in range(4):
                a(f'v_lshlrev_b32 v{X + 2 * n}, 16, v{Y + n}')
                a(f'v_and_b32 v{X + 2 * n + 1}, 0xffff0000, v{Y + n}')
        for n in range(8):
            a(f'v_subrev_f32 v{X + n}, s{sc + n}, v{d}')
        rnd()
        for n in range(8):
            a(f'v_mul_f32 v{X + n}, v{X + n}, v{X + n}')
        rnd()
        if CFG['mimic']:
            for n in range(8):
                a(f'v_mul_f32 v{X + n}, 0xc1200000, v{X + n}')
            rnd()
        for n in range(8):
            a(f'v_mul_f32 v{X + n}, {"0x3fb8aa3b" if CFG["mimic"] else "0xc166d4ca"}, v{X + n}')
        for n in range(8):
            a(f'v_exp_f32 v{X + n}, v{X + n}')
        for n in range(4):
            a(f'v_cvt_pk_bf16_f32 v{RB[r] + n}, v{X + 2 * n}, v{X + 2 * n + 1}')
    for k in range(2):
        for r in range(2):
            for w in range(2):
                o = gh + 8 * w + 4 * r
                a(f'{MF} {vr(o, 4)}, {vr(wt + 4 * w + 2 * k, 2)}, {vr(RB[r] + 2 * k, 2)}, {vr(o, 4) if k else 0}')


def fin_out(a, pl, gh, wt, ident_, m, S):
    S = [S, S + 4]
    G_, H_ = [gh, gh + 4], [gh + 8, gh + 12]
    for q in range(4):
        for r in range(2):
            a(f'{MF} {vr(S[r], 4)}, {vr(ident_, 2)}, {vr(pl + 4 * q + 2 * r, 2)}, {vr(S[r], 4) if q else 0}')
    for r in range(2):
        for n in range(4):
            a(f'v_mul_f32 v{S[r] + n}, v{S[r] + n}, v{G_[r] + n}')
        a(f'v_cvt_pk_bf16_f32 v{pl + 2 * r}, v{S[r]}, v{S[r] + 1}')
        a(f'v_cvt_pk_bf16_f32 v{pl + 1 + 2 * r}, v{S[r] + 2}, v{S[r] + 3}')
    for r in range(2):
        a(f'{MF} {vr(G_[r], 4)}, {vr(wt + 8, 2)}, {vr(pl + 2 * r, 2)}, 0')
    for r in range(2):
        for n in range(4):
            a(f'v_mul_f32 v{G_[r] + n}, v{G_[r] + n}, v{H_[r] + n}')
    for r in range(2):
        a(f'{MF} {vr(S[r], 4)}, {vr(ident_, 2)}, {vr(m + 2 * r, 2)}, {vr(G_[r], 4)}')
    for r in range(2):
        a(f'v_cvt_pk_bf16_f32 v{pl + 4 + 2 * r}, v{S[r]}, v{S[r] + 1}')
        a(f'v_cvt_pk_bf16_f32 v{pl + 5 + 2 * r}, v{S[r] + 2}, v{S[r] + 3}')


def gen_p3(a):
    name = 'gs_final_kernel'
    kernel_head(a, name)
    a('s_cmp_ge_u32 s2, 1250')
    a('s_cbranch_scc1 L3_end')
    tl_start(a)
    a('s_load_dwordx2 s[4:5], s[0:1], 0')
    a('s_load_dwordx2 s[6:7], s[0:1], 24')
    a('s_load_dwordx2 s[28:29], s[0:1], 40')
    a('s_load_dwordx2 s[30:31], s[0:1], 88')
    a('s_load_dwordx2 s[32:33], s[0:1], 104')
    a('s_lshl_b32 s3, s2, 8')
    a('v_add_u32 v1, s3, v0')
    a('v_lshlrev_b32 v2, 4, v1')
    a('v_lshlrev_b32 v3, 2, v1')
    a('v_bfe_u32 v4, v1, 3, 6')
    a('s_mov_b32 s3, 80000')
    a('v_mul_lo_u32 v4, v4, s3')
    a('v_lshrrev_b32 v5, 9, v1')
    a('v_lshl_add_u32 v4, v5, 7, v4')
    a('v_and_b32 v5, 7, v1')
    a('v_lshl_add_u32 v4, v5, 4, v4')
    a('v_and_b32 v5, 3, v0')
    a('v_lshlrev_b32 v5, 6, v5')
    a('s_waitcnt lgkmcnt(0)')
    a('s_load_dwordx4 s[36:39], s[28:29], 0')
    srd(a, 8, 4, 0, E * 8)
    srd(a, 12, 6, 0, E * 2)
    srd(a, 16, 30, 0, E * 8)
    srd(a, 20, 32, PART_OFF, PART_SZ)
    srd(a, 24, 32, WT_OFF, WT_SZ)
    a('buffer_load_dword v6, v3, s[12:15], 0 offen', tag='d')
    a('buffer_load_dwordx4 v[8:11], v5, s[24:27], 0 offen', tag='w')
    a('buffer_load_dwordx4 v[12:15], v5, s[24:27], 0 offen offset:16', tag='w')
    a('buffer_load_dwordx2 v[16:17], v5, s[24:27], 0 offen offset:32', tag='w')
    for q in range(4):
        a(f's_mov_b32 s{40+q}, {q * E * 8}')
        a(f'buffer_load_dwordx4 {vr(20 + 4 * q, 4)}, v4, s[20:23], s{40+q} offen', tag='p')
    a('buffer_load_dwordx4 v[36:39], v2, s[8:11], 0 offen', tag='m')
    ident(a, 18, 7, 0)
    a('s_waitcnt lgkmcnt(0)')
    for n in range(4):
        a(f's_lshl_b32 s{44 + 2 * n}, s{36 + n}, 16')
        a(f's_and_b32 s{45 + 2 * n}, s{36 + n}, 0xffff0000')
    a.wait_vm('d')
    RB = [40, 44]
    for r in range(2):
        if r == 0:
            a('v_lshlrev_b32 v7, 16, v6')
        else:
            a('v_and_b32 v7, 0xffff0000, v6')
        X = 48

        def rnd():
            for n in range(4):
                a(f'v_cvt_pk_bf16_f32 v{56 + n}, v{X + 2 * n}, v{X + 2 * n + 1}')
            for n in range(4):
                a(f'v_lshlrev_b32 v{X + 2 * n}, 16, v{56 + n}')
                a(f'v_and_b32 v{X + 2 * n + 1}, 0xffff0000, v{56 + n}')
        for n in range(8):
            a(f'v_subrev_f32 v{X + n}, s{44 + n}, v7')
        rnd()
        for n in range(8):
            a(f'v_mul_f32 v{X + n}, v{X + n}, v{X + n}')
        rnd()
        for n in range(8):
            a(f'v_mul_f32 v{X + n}, 0xc1200000, v{X + n}')
        rnd()
        for n in range(8):
            a(f'v_mul_f32 v{X + n}, 0x3fb8aa3b, v{X + n}')
        for n in range(8):
            a(f'v_exp_f32 v{X + n}, v{X + n}')
        for n in range(4):
            a(f'v_cvt_pk_bf16_f32 v{RB[r] + n}, v{X + 2 * n}, v{X + 2 * n + 1}')
    a.wait_vm('w')
    G = [48, 52]
    H = [56, 60]
    S = [64, 68]
    mf = 'v_mfma_f32_4x4x4_16b_bf16'
    for r in range(2):
        a(f'{mf} {vr(G[r], 4)}, v[8:9], {vr(RB[r], 2)}, 0')
        a(f'{mf} {vr(H[r], 4)}, v[12:13], {vr(RB[r], 2)}, 0')
    for r in range(2):
        a(f'{mf} {vr(G[r], 4)}, v[10:11], {vr(RB[r] + 2, 2)}, {vr(G[r], 4)}')
        a(f'{mf} {vr(H[r], 4)}, v[14:15], {vr(RB[r] + 2, 2)}, {vr(H[r], 4)}')
    a.wait_vm('p')
    for q in range(4):
        for r in range(2):
            a(f'{mf} {vr(S[r], 4)}, v[18:19], {vr(20 + 4 * q + 2 * r, 2)}, {vr(S[r], 4) if q else 0}')
    for r in range(2):
        for n in range(4):
            a(f'v_mul_f32 v{S[r] + n}, v{S[r] + n}, v{G[r] + n}')
        a(f'v_cvt_pk_bf16_f32 v{20 + 2 * r}, v{S[r]}, v{S[r] + 1}')
        a(f'v_cvt_pk_bf16_f32 v{21 + 2 * r}, v{S[r] + 2}, v{S[r] + 3}')
    for r in range(2):
        a(f'{mf} {vr(G[r], 4)}, v[16:17], {vr(20 + 2 * r, 2)}, 0')
    for r in range(2):
        for n in range(4):
            a(f'v_mul_f32 v{G[r] + n}, v{G[r] + n}, v{H[r] + n}')
    a.wait_vm('m')
    for r in range(2):
        a(f'{mf} {vr(S[r], 4)}, v[18:19], {vr(36 + 2 * r, 2)}, {vr(G[r], 4)}')
    for r in range(2):
        a(f'v_cvt_pk_bf16_f32 v{24 + 2 * r}, v{S[r]}, v{S[r] + 1}')
        a(f'v_cvt_pk_bf16_f32 v{25 + 2 * r}, v{S[r] + 2}, v{S[r] + 3}')
    a('buffer_store_dwordx4 v[24:27], v2, s[16:19], 0 offen', tag='st')
    tl_end(a)
    a.label('L3_end')
    a('s_endpgm')
    return name


from p1 import gen_p1
from p2 import gen_p2


def main():
    a = Asm()
    root = os.path.dirname(os.path.dirname(os.path.abspath(__file__))) + '/'
    ref = open(root + NAME + '.s.ref').read().splitlines()
    for ln in ref:
        if ln.startswith('; Override') or not ln.startswith(';'):
            break
        a.raw(ln)
    if CFG['one']:
        a.raw('; Generated by gen/gen.py (hand-written generator).  One persistent launch: sort, accumulate, final.')
        if CFG['one'] == 2:
            a.raw(f'; @launch kernel={NAME}_kernel grid=(256,1,1) block=(1024,1,1) lds=163840')
        else:
            a.raw('; @launch grid=(256,1,1) block=(1024,1,1) lds=163840')
        a.raw('.amdgcn_target "amdgcn-amd-amdhsa--gfx950"')
        gen_p1(Asm(), sys.modules[__name__], gen_p2)
        tl_idx[0] = 0
        k1 = gen_p1(a, sys.modules[__name__], gen_p2)
        a.raw('.section .rodata,"a"')
        kernel_desc(a, k1, 128, 102)
    else:
        a.raw('; Generated by gen/gen.py (hand-written generator).  Launches: sort, accumulate (+ final).')
        a.raw('; @launch kernel=gs_sort_kernel grid=(256,1,1) block=(1024,1,1) lds=163840')
        if CFG['dup1']:
            a.raw('; @launch kernel=gs_sort_kernel grid=(256,1,1) block=(1024,1,1) lds=163840')
        a.raw('; @launch kernel=gs_acc_kernel grid=(256,1,1) block=(1024,1,1) lds=163840')
        if CFG['dup2']:
            a.raw('; @launch kernel=gs_acc_kernel grid=(256,1,1) block=(1024,1,1) lds=163840')
        if not CFG['fuse']:
            a.raw('; @launch kernel=gs_final_kernel grid=(1250,1,1) block=(256,1,1) lds=0')
        for _ in range(CFG['dup3']):
            a.raw('; @launch kernel=gs_final_kernel grid=(1250,1,1) block=(256,1,1) lds=0')
        for _ in range(CFG['nulls']):
            a.raw('; @launch kernel=gs_null_kernel grid=(256,1,1) block=(64,1,1) lds=0')
        a.raw('.amdgcn_target "amdgcn-amd-amdhsa--gfx950"')
        k1 = gen_p1(a, sys.modules[__name__])
        t = tl_idx[0]
        list(gen_p2(Asm(), sys.modules[__name__]))
        tl_idx[0] = t
        k2 = list(gen_p2(a, sys.modules[__name__]))[-1]
        k3 = None if CFG['fuse'] else gen_p3(a)
        if CFG['nulls']:
            kernel_head(a, 'gs_null_kernel')
            a('s_endpgm')
        a.raw('.section .rodata,"a"')
        if CFG['nulls']:
            kernel_desc(a, 'gs_null_kernel', 8, 16)
        kernel_desc(a, k1, 128)
        kernel_desc(a, k2, 128, 102)
        if k3:
            kernel_desc(a, k3, 72, 96 if CFG['tl'] else 64)
    out = sys.argv[1] if len(sys.argv) > 1 else root + NAME + '.s'
    txt = a.text()
    if CFG['ab_p1']:
        o = []
        on = False
        for ln in txt.split('\n'):
            if 'chunk 0: pass A' in ln:
                on = True
            if ln.startswith('L1_fin'):
                on = False
            t = ln.strip()
            if on:
                if t.startswith('ds_') and (CFG['ab_p1'] & 1):
                    continue
                if t.startswith('v_') and (CFG['ab_p1'] & 2) and not t.startswith(('v_add_u32', 'v_and_b32 v11', 'v_mov', 'v_readlane')):
                    continue
                if t.startswith('s_barrier') and (CFG['ab_p1'] & 4):
                    continue
                if t.startswith('buffer_store_dwordx2') and (CFG['ab_p1'] & 8):
                    ln = ln.replace('offen', 'offen').replace('s[24:27]', 's[96:99]')
                if t.startswith('buffer_store_dwordx4') and (CFG['ab_p1'] & 16):
                    ln = ln.replace('s[20:23]', 's[96:99]')
            o.append(ln)
            if 'chunk 0: pass A' in ln:
                o.append('    s_mov_b32 s96, s20\n    s_mov_b32 s97, s21\n    s_mov_b32 s98, 0\n    s_mov_b32 s99, 0x20000')
        txt = '\n'.join(o).replace('next_free_sgpr 96', 'next_free_sgpr 100')
        txt = '\n'.join(l for l in txt.split('\n') if not ('@launch' in l and 'sort' not in l))
    open(out, 'w').write(txt)


if __name__ == '__main__':
    main()
```

```python
from asmlib import vr, sr

MF = 'v_mfma_f32_4x4x4_16b_bf16'


def gen_p1(a, G, gen_p2=None):
    name = G.NAME + '_kernel' if gen_p2 else 'gs_sort_kernel'
    CFG = G.CFG
    SEL, ANDOR = G.SEL, G.ANDOR
    srd, tl_mark = G.srd, G.tl_mark
    T, E, CH, BLK = G.T, G.E, G.CH, G.BLK
    NW, NK = 256, 5
    G.kernel_head(a, name)
    a('s_cmp_ge_u32 s2, 256')
    a('s_cbranch_scc0 L1_go')
    a('s_endpgm')
    a.label('L1_go')
    G.tl_start(a)
    if CFG['wgx']:
        a(f's_xor_b32 s2, s2, {CFG["wgx"]}')
    a('s_load_dwordx4 s[4:7], s[0:1], 8')
    a('s_load_dwordx2 s[28:29], s[0:1], 32')
    a('s_load_dwordx2 s[30:31], s[0:1], 104')
    a('s_load_dwordx2 s[56:57], s[0:1], 96')
    a('s_load_dwordx2 s[86:87], s[0:1], 0')
    a('s_load_dwordx4 s[60:63], s[0:1], 56')
    a('s_load_dwordx4 s[64:67], s[0:1], 72')
    T16, T8, ONE, K1F, K87, KFC, K78 = 0, 1, 2, 3, 4, 5, 6
    t = list(range(7, 16))
    sW, sI, sA, sR, sT, sTmp, sI4, sA4 = 32, 33, 34, 35, 36, 37, 38, 39
    sKB, sP1, sP3, sNQ, sM10, sI5, sA5, sTK = 40, 41, 42, 43, 55, 58, 59, 84
    a('v_lshrrev_b32 v7, 6, v0')
    a(f'v_lshlrev_b32 v{T8}, 3, v0')
    a(f'v_readfirstlane_b32 s{sW}, v7')
    a(f'v_lshlrev_b32 v{T16}, 4, v0')
    IL = CFG['il']
    CUT = [int(x) for x in CFG['cut'].split()]
    assert sum(CUT) == 528 and sorted(CUT) == CUT and CUT[2] <= 256

    def qoff(k, j):
        if not IL:
            return ((2, j) if j >= 5 else (1, j)) if k == NK - 1 else (0, k * NW * 8 + j)
        if k == NK - 1 and j >= 5:
            return 2, 9472 + sum(CUT[::-1][:j - 5])
        return 0, (k * 8 + j) * NW
    a(f's_mul_i32 s{sI}, s2, {16384 if IL else CH * 4}')
    a(f's_mul_i32 s{sA}, s2, {8192 if IL else CH * 2}')
    a('s_waitcnt lgkmcnt(0)')
    srd(a, 8, 4, 0, T * 4)
    srd(a, 12, 6, 0, T * 4)
    srd(a, 16, 28, 0, T * 2)

    ren = G.MEMO.get('ren', {})
    pool = [ren.get(16 + 4 * i, 16 + 4 * i) for i in range(28)]
    items = []
    for k in range(NK):
        for o in range(4):
            items += [(k, 'I', 2 * o), (k, 'O', 2 * o), (k, 'A', o), (k, 'I', 2 * o + 1), (k, 'O', 2 * o + 1)]
    where = {}
    st = dict(next=0, tmp=0)

    def soff(base, off):
        r = 44 + st['tmp'] % 4
        st['tmp'] += 1
        a(f's_add_u32 s{r}, s{base}, {off:#x}')
        return r

    def gate(j, word):
        a(f's_cmp_le_u32 s{sNQ}, {j}')
        a(f's_cselect_b32 s{word}, 0, s{word}')

    def issue(n, limit):
        while n > 0 and st['next'] < min(limit, len(items)) and pool:
            it = items[st['next']]
            st['next'] += 1
            n -= 1
            b = pool.pop(0)
            where[it] = b
            k, kind, j = it
            lastk = k == NK - 1
            if kind == 'A':
                for h in range(2):
                    if lastk and 2 * j + h >= 5:
                        assert st.get('assigned') or not CFG['dyn']
                        gate(2 * j + h, 18)
                    bs, qo = qoff(k, 2 * j + h)
                    r = soff((sA, sA4, sA5)[bs], qo * 8192)
                    a(f'buffer_load_dwordx2 {vr(b + 2 * h, 2)}, v{T8}, s[16:19], s{r} offen{CFG["ld_pol"]}', tag=it)
            else:
                s = 8 if kind == 'I' else 12
                if lastk and j >= 5:
                    gate(j, s + 2)
                bs, qo = qoff(k, j)
                r = soff((sI, sI4, sI5)[bs], qo * 16384)
                a(f'buffer_load_dwordx4 {vr(b, 4)}, v{T16}, s[{s}:{s+3}], s{r} offen{CFG["ld_pol"]}', tag=it)

    if not gen_p2:
        issue(CFG['p1_first'], 20)
    srd(a, 68, 62, 0, 64)
    srd(a, 72, 60, 0, 64)
    srd(a, 20, 66, 0, 32)
    srd(a, 80, 64, 0, 32)
    srd(a, 24, 30, G.WT_OFF, G.WT_SZ)
    a(f'v_lshrrev_b32 v2, 3, v{T16}')
    a('v_and_b32 v2, 6, v2')
    a(f'v_lshlrev_b32 v3, 2, v{T16}')
    a(f's_lshl_b32 s3, s{sW}, 8')
    a('s_add_u32 s3, s3, s2')
    a('s_cmp_lg_u32 s3, 254')
    a('s_cbranch_scc1 L1_wt')
    vm = list(a.vm)
    assert min(pool) <= 96 and all(b in pool for b in range(96, 128, 4))

    def load_wt(dst, s, k0):
        for k in range(4):
            a(f'buffer_load_ushort v{(dst + (k >> 1)) + 12 * (k & 1)}, v2, s[{s}:{s+3}], 0 offen offset:{(k0 + k) * 8}', tag='w')
    load_wt(96, 68, 0)
    load_wt(98, 68, 4)
    load_wt(100, 72, 0)
    load_wt(102, 72, 4)
    load_wt(104, 20, 0)
    load_wt(106, 80, 0)
    a.wait_vm('w')
    for i in range(96, 108):
        a(f'v_lshl_or_b32 v{i}, v{i + 12}, 16, v{i}')
    for n in range(3):
        a(f'buffer_store_dwordx4 {vr(96 + 4 * n, 4)}, v3, s[24:27], 0 offen offset:{16 * n} sc1', tag='st')
    a.vm = vm
    a.label('L1_wt')
    if gen_p2:
        a('s_nop 1')
        issue(CFG['p1_first'], 20)
    srd(a, 20, 30, G.REC_OFF, G.REC_SZ)
    srd(a, 24, 30, G.TAB_OFF, G.TAB_SZ)
    srd(a, 80, 86, 0, E * 8)
    mc = {}

    MCN = CFG['mcn']
    MCP = 5120 // MCN
    MCH = (MCP + 15) // 16
    sMC = sTK if MCN < 256 else 2

    def mcopy_load():
        mc['b'] = [pool.pop(0) for _ in range(MCH)]
        a(f'v_lshrrev_b32 v15, 2, v{T16}')
        a(f'v_and_b32 v15, v{KFC}, v15')
        a(f's_cmp_ge_u32 s{sMC}, {MCN}')
        a('s_cselect_b32 s82, 0, s82')
        for h in range(MCH):
            a(f's_and_b32 s3, s{sMC}, {MCN // 64 - 1}')
            a(f's_mul_i32 s3, s3, {MCP}')
            a(f's_add_u32 s3, s3, s{sW}')
            if h:
                a(f's_add_u32 s3, s3, {16 * h}')
            if 16 * h + 16 > MCP:
                a(f's_cmp_ge_u32 s{sW}, {MCP - 16 * h}')
                a('s_cselect_b32 s82, 0, s82')
            a('s_mul_i32 s4, s3, 205')
            a('s_lshr_b32 s4, s4, 10')
            a('s_mul_i32 s5, s4, 5')
            a('s_sub_u32 s5, s3, s5')
            a('s_lshl_b32 s6, s4, 1')
            a('s_add_u32 s6, s6, s5')
            a('s_add_u32 s7, s6, s4')
            a('s_add_u32 s7, s7, 30')
            a('s_cmp_lt_u32 s5, 2')
            a('s_cselect_b32 s6, s6, s7')
            a('s_lshl_b32 s6, s6, 10')
            a(f's_lshr_b32 s7, s{sMC}, {(MCN // 64).bit_length() - 1}')
            a('s_mul_i32 s7, s7, 80000')
            a('s_add_u32 s6, s6, s7')
            for jd in range(4):
                a(f'buffer_load_dword v{mc["b"][h] + jd}, v15, s[80:83], s6 offen offset:{256 * jd}', tag='mc')

    def mcopy_store():
        srd(a, 80, 30, G.MD_OFF, MCP * 1024)
        a(f's_min_u32 s3, s{sMC}, {MCN - 1}')
        a(f's_mul_i32 s3, s3, {MCP * 1024}')
        a('s_add_u32 s80, s80, s3')
        a('s_addc_u32 s81, s81, 0')
        a(f's_cmp_ge_u32 s{sMC}, {MCN}')
        a('s_cselect_b32 s82, 0, s82')
        a.wait_vm('mc')
        for h in range(MCH):
            a(f'v_add_u32 v9, {h * 16384}, v{T16}')
            a(f'buffer_store_dwordx4 {vr(mc["b"][h], 4)}, v9, s[80:83], 0 offen sc1', tag='st')
        pool.extend(mc['b'])
    a(f's_mul_i32 s{sR}, s2, {BLK}')
    a(f's_and_b32 s{sTmp}, s{sW}, 3')
    a(f's_lshl_b32 s{sTmp}, s{sTmp}, 3')
    a(f's_mov_b32 s{sT}, s{sTmp}' if CFG['tabx'] else f's_add_u32 s{sT}, s{sR}, s{sTmp}')
    a(f's_lshr_b32 s{sTmp}, s{sW}, 2')
    a(f's_mul_i32 s{sTmp}, s{sTmp}, 2080')
    a(f's_add_u32 s{sT}, s{sT}, s{sTmp}')
    a(f's_and_b32 s{sTmp}, s2, 3')
    a(f's_lshl_b32 s{sTmp}, s{sTmp}, 5')
    a(f's_add_u32 s{sT}, s{sT}, s{sTmp}')
    a('s_mul_i32 s4, s2, 5')
    a('s_add_u32 s4, s4, 8192')
    a(f's_lshl_b32 s{sI4}, s4, 14')
    a(f's_lshl_b32 s{sA4}, s4, 13')

    def assign():
        n3, n2, n1 = CUT
        a(f's_min_u32 s4, s{sTK}, {n3}')
        a(f's_min_u32 s5, s{sTK}, {n2}')
        a(f's_min_u32 s6, s{sTK}, {n1}')
        a('s_add_u32 s4, s4, s5')
        a('s_add_u32 s4, s4, s6')
        a(f's_add_u32 s4, s4, {8192 + 1280 - 5}')
        if IL:
            a(f's_mov_b32 s4, s{sTK}')
        a(f's_lshl_b32 s{sI5}, s4, 14')
        a(f's_lshl_b32 s{sA5}, s4, 13')
        a(f's_mov_b32 s{sNQ}, 5')
        for n in CUT:
            a(f's_cmp_lt_u32 s{sTK}, {n}')
            a(f's_addc_u32 s{sNQ}, s{sNQ}, 0')
    if not CFG['dyn']:
        a('s_lshr_b32 s3, s2, 1')
        a('s_and_b32 s4, s2, 1')
        a('s_lshl_b32 s4, s4, 7')
        a(f's_add_u32 s{sTK}, s3, s4')
        assign()
    a(f'v_mov_b32 v{ONE}, 1')
    a(f'v_mov_b32 v{K87}, 0x80000007')
    a(f'v_mov_b32 v{KFC}, 0xfc')
    a(f'v_mov_b32 v{K78}, 0x78')
    a(f's_mov_b32 s{sKB}, {G.KBIAS << 3}')
    a(f's_mov_b32 s{sM10}, -10000')
    a(f's_mov_b32 s{sP1}, 0x010c0c01')
    a(f's_mov_b32 s{sP3}, 0x030c0c03')
    for i in range(4):
        a(f'v_mov_b32 v{8 + i}, 0')
    a(f'ds_write_b128 v{T16}, v[8:11]')
    if gen_p2:
        srd(a, 60, 30, G.PROG_OFF, 32768)
        a('s_mov_b64 s[66:67], s[56:57]')
        a('s_lshl_b32 s57, s2, 7')
    srd(a, 68, 30, G.FLAG_OFF, 128)
    a('s_lshl_b32 s3, s2, 7')
    a('s_add_u32 s68, s68, s3')
    a('s_addc_u32 s69, s69, 0')
    a(f's_cmp_lg_u32 s{sW}, 0')
    a('s_cbranch_scc1 L1_fl')
    vm = list(a.vm)
    a(f'buffer_store_dwordx4 v[8:11], v{T16}, s[68:71], 0 offen sc1')
    if gen_p2:
        a('s_mov_b64 exec, 0xff')
        a(f'buffer_store_dwordx4 v[8:11], v{T16}, s[60:63], s57 offen sc1')
        a('s_mov_b64 exec, -1')
        if CFG['inv']:
            a('buffer_inv sc1')
    a.vm = vm
    a.label('L1_fl')
    a('s_waitcnt lgkmcnt(0)')
    a('s_barrier')

    pend_st = []
    uid = [0]

    def store(n):
        while n > 0 and pend_st:
            b, off = pend_st.pop(0)
            n -= 1
            r = soff(sR, off)
            a(f'buffer_store_dwordx4 {vr(b, 4)}, v{st.get("t16", T16)}, s[20:23], s{r} offen{CFG["st_pol"]}', tag='st')
            pool.append(b)

    taken = []

    def take(want):
        b = pool.pop(0)
        taken.append((b, want))
        assert not ren or b == want
        return want

    def last_store():
        j = 10 - len(pend_st)
        if j < 7:
            store(1)
            return
        uid[0] += 1
        a(f's_cmp_le_u32 s{sNQ}, {j - 2}')
        a(f's_cbranch_scc1 L1_q{uid[0]}')
        vm, nvm = list(a.vm), a.nvm
        store(1)
        a.vm, a.nvm = vm, nvm
        a.label(f'L1_q{uid[0]}')
    p2 = gen_p2(a, G, dict(take=take, store=last_store, t16=lambda r: st.update(t16=r))) if gen_p2 else None

    class skip_quad:
        def __init__(self, on, j):
            self.on, self.j = on and j >= 5, j

        def __enter__(self):
            if self.on:
                uid[0] += 1
                self.l = f'L1_s{uid[0]}'
                a(f's_cmp_le_u32 s{sNQ}, {self.j}')
                a(f's_cbranch_scc1 {self.l}')

        def __exit__(self, *x):
            if self.on:
                a.label(self.l)

    for k in range(NK):
        tl_mark(a, 76, k * 6 + 4, 0, 8)
        a.c(f'==== chunk {k}: pass A')
        lim = (k + 1) * 20 + 18
        last = k == NK - 1

        def mix(n):
            for _ in range(n):
                store(1)
                issue(1, lim)
        sa = [int(x) for x in CFG['sa']]
        sb = [int(x) for x in CFG['sb']]
        la = [int(x) for x in CFG['la']]
        lb = [int(x) for x in CFG['lb']]
        if last:
            if p2:
                assert CFG['dyn'] == 2
                next(p2)
            mix(2)
        for j in range(8):
            if CFG['p1prio']:
                if j & 1 == 0:
                    a(f's_setprio {3 - j // 2}')
            if k == 0:
                issue(3 if j & 1 else 2, 24)
            elif not last:
                mix(sa[j])
            else:
                store(la[j])
                if j == 4:
                    mcopy_load()
            if CFG['dyn'] and k == NK - 2 and j == CFG['tkpos']:
                srd(a, 68, 66 if gen_p2 else 56, 0, 256)
                a('v_mov_b32 v3, 1')
                a(f's_cmp_lg_u32 s{sW}, {CFG["tkwave"]}')
                a('s_cbranch_scc1 L1_tk')
                vm = list(a.vm)
                a('s_mov_b64 exec, 1')
                if CFG['dyn'] == 2:
                    a('s_and_b32 s3, s2, 1')
                    a('s_lshl_b32 s3, s3, 7')
                    a('buffer_atomic_add v3, off, s[68:71], s3 sc0')
                else:
                    a('buffer_atomic_add v3, off, s[68:71], 0 sc0')
                a('s_mov_b64 exec, -1')
                a.vm = vm
                st['tkn'] = a.nvm
                a.label('L1_tk')
            I, O, A = where[(k, 'I', j)], where[(k, 'O', j)], where[(k, 'A', j // 2)] + 2 * (j & 1)
            a.wait_vm([(k, 'I', j), (k, 'O', j), (k, 'A', j // 2)])
            with skip_quad(last, j):
                for p in range(2):
                    a(f'v_lshlrev_b32 v{t[2*p]}, 16, v{A+p}')
                    a(f'v_and_b32 v{t[2*p+1]}, 0xffff0000, v{A+p}')
                for p in range(4):
                    a(f'v_mul_f32 v{t[p]}, 0.15915494, v{t[p]}')
                for r in range(4):
                    u, x, y, ib = t[4], t[5], t[6], t[7]
                    a(f'v_mul_hi_u32_u24 v{ib}, 429497, v{I+r}')
                    a(f'v_lshrrev_b32 v{x}, 3, v{O+r}')
                    a(f'v_cos_f32 v{t[r]}, v{t[r]}')
                    a(f'v_lshlrev_b16 v{y}, 3, v{O+r}')
                    a(f'v_mad_i32_i24 v{u}, v{ib}, s{sM10}, v{I+r}')
                    a(f'v_bitop3_b32 v{x}, v{K78}, v{y}, v{x} bitop3:{SEL:#x}')
                    a(f'v_lshl_add_u32 v{u}, v{u}, 17, s{sKB}')
                    a(f'v_lshlrev_b16 v{ib}, 8, v{ib}')
                    a(f'v_lshrrev_b32 v{y}, 2, v{O+r}')
                    a(f'v_add_u32 v{I+r}, v{x}, v{u}')
                    a(f'v_bitop3_b32 v{O+r}, v{KFC}, v{y}, v{ib} bitop3:{ANDOR:#x}')
                    a(f'ds_add_u32 v{O+r}, v{ONE}')
                    if r & 1:
                        p = r >> 1
                        a(f'v_cvt_pk_bf16_f32 v{A+p}, v{t[2*p]}, v{t[2*p+1]}')
                        a(f'v_perm_b32 v{x}, v{A+p}, v{A+p}, s{sP1}')
                        a(f'v_bitop3_b32 v{I+r-1}, v{K87}, v{x}, v{I+r-1} bitop3:{SEL:#x}')
                        a(f'v_perm_b32 v{y}, v{A+p}, v{A+p}, s{sP3}')
                        a(f'v_bitop3_b32 v{I+r}, v{K87}, v{y}, v{I+r} bitop3:{SEL:#x}')
        tl_mark(a, 76, k * 6 + 0, 0, 8)
        a.c('scan')
        a(f'v_lshrrev_b32 v8, 2, v{T16}')
        a(f'v_and_b32 v7, 0x3c00, v{T16}')
        a(f'v_bitop3_b32 v7, v{KFC}, v8, v7 bitop3:{ANDOR:#x}')
        a('s_waitcnt lgkmcnt(0)')
        a('s_barrier')
        a('ds_read2st64_b32 v[8:9], v7 offset0:0 offset1:1')
        a('ds_read2st64_b32 v[10:11], v7 offset0:2 offset1:3')
        mix((lb if last else sb)[0])
        a('s_waitcnt lgkmcnt(0)')
        a('v_lshl_or_b32 v12, v9, 16, v8')
        a('v_lshl_or_b32 v13, v11, 16, v10')
        a('v_mov_b32 v14, v12')
        a('v_mov_b32 v15, v13')
        G.wave_scan(a, [14, 15])
        a('v_readlane_b32 s48, v14, 63')
        a('v_readlane_b32 s49, v15, 63')
        a(f's_lshl_b32 s54, s{sW}, 2')
        a('v_mov_b32 v8, s54')
        a('s_and_b32 s50, s48, 0xffff')
        a('s_lshr_b32 s51, s48, 16')
        a('s_and_b32 s52, s49, 0xffff')
        a('s_lshr_b32 s53, s49, 16')
        a('s_add_u32 s51, s51, s50')
        a('s_add_u32 s52, s52, s51')
        a('s_add_u32 s53, s53, s52')
        a('v_mov_b32 v9, s53')
        if last and p2:
            next(p2)
        a('s_mov_b64 exec, 1')
        a('ds_write_b32 v8, v9 offset:16384')
        if CFG['dyn'] and k == NK - 2:
            a(f's_waitcnt vmcnt({a.nvm - st["tkn"]})')
            a('ds_write_b32 v8, v3 offset:16448')
        if last and p2:
            a('ds_write_b32 v8, v3 offset:16448')
        a('s_mov_b64 exec, -1')
        a('v_and_b32 v8, 60, v7')
        a('s_waitcnt lgkmcnt(0)')
        a('s_barrier')
        a('ds_read_b32 v9, v8 offset:16384')
        if (CFG['dyn'] and k == NK - 2) or (last and p2):
            a('ds_read_b32 v10, v8 offset:16448')
        mix((lb if last else sb)[1])
        a('s_waitcnt lgkmcnt(0)')
        if last and p2:
            next(p2)
        if CFG['dyn'] and k == NK - 2:
            a(f'v_readlane_b32 s{sTK}, v10, {CFG["tkwave"]}')
            if CFG['dyn'] == 2:
                a('s_and_b32 s3, s2, 1')
                a('s_lshl_b32 s3, s3, 7')
                a(f's_add_u32 s{sTK}, s{sTK}, s3')
            assign()
            st['assigned'] = True
        for sh in (1, 2, 4, 8):
            a(f'v_add_u32_dpp v9, v9, v9 row_shr:{sh} row_mask:0xf bank_mask:0xf bound_ctrl:1')
        a(f'v_readlane_b32 s54, v9, s{sW}')
        a('s_sub_u32 s54, s54, s53')
        a('s_add_u32 s50, s50, s54')
        a('s_add_u32 s51, s51, s54')
        a('s_add_u32 s52, s52, s54')
        a('s_pack_ll_b32_b16 s48, s54, s50')
        a('s_pack_ll_b32_b16 s49, s51, s52')
        a('v_add_u32 v14, s48, v14')
        a('v_add_u32 v15, s49, v15')
        a('v_sub_u32 v12, v14, v12')
        a('v_sub_u32 v13, v15, v13')
        a('v_and_b32 v8, 0xffff, v12')
        a('v_lshrrev_b32 v9, 16, v12')
        a('v_and_b32 v10, 0xffff, v13')
        a('v_lshrrev_b32 v11, 16, v13')
        a('ds_write2st64_b32 v7, v8, v9 offset0:0 offset1:1')
        a('ds_write2st64_b32 v7, v10, v11 offset0:2 offset1:3')
        if CFG['tabx']:
            a(f'v_and_b32 v8, 0x3f0, v{T16}')
            a(f'v_lshl_add_u32 v8, v8, 1, s{sT}')
            a('ds_write_b64 v8, v[12:13] offset:20480')
            a('s_bitset0_b64 exec, 63')
            a('s_not_b64 exec, exec')
            a('ds_write_b64 v8, v[14:15] offset:20512')
            a('s_mov_b64 exec, -1')
        a('s_waitcnt lgkmcnt(0)')
        a('s_barrier')
        tl_mark(a, 76, k * 6 + 1, 0, 8)
        a.c('pass B')
        for j in range(8):
            if CFG['p1prio'] and j & 1 == 0:
                a(f's_setprio {3 - j // 2}')
            O = where[(k, 'O', j)]
            with skip_quad(last, j):
                for r in range(4):
                    a(f'ds_add_rtn_u32 v{O+r}, v{O+r}, v{ONE}')
            if CFG['tabx']:
                if j == 0:
                    a(f'ds_read_b128 v[12:15], v{T16} offset:20480', tag='tab')
                    a(f'v_cmp_gt_u32 vcc, {G.TAB_CH + 128}, v{T16}')
                if j == 2:
                    uid[0] += 1
                    a.wait_lg('tab')
                    a(f's_cbranch_vccz L1_p{uid[0]}')
                    vm, nvm = list(a.vm), a.nvm
                    r = soff(sR, k * NW * BLK)
                    a('s_mov_b64 exec, vcc')
                    a(f'buffer_store_dwordx4 v[12:15], v{T16}, s[24:27], s{r} offen{CFG["st_pol"]}')
                    a('s_mov_b64 exec, -1')
                    a.vm, a.nvm = vm, nvm
                    st['tabn'] = a.nvm
                    a.label(f'L1_p{uid[0]}')
                if j == 3 and last and p2:
                    next(p2)
            elif j == 0:
                r = soff(sT, k * NW * BLK)
                a(f'v_and_b32 v11, 0x3f0, v{T16}')
                a('v_add_u32 v11, v11, v11')
                a(f'buffer_store_dwordx2 v[12:13], v11, s[24:27], s{r} offen', tag='tab')
                a('s_bitset0_b64 exec, 63')
                a('s_not_b64 exec, exec')
                a(f'buffer_store_dwordx2 v[14:15], v11, s[24:27], s{r} offen offset:32', tag='tab')
                a('s_mov_b64 exec, -1')
                uid[0] += 1
                a(f'v_cmp_le_u32 vcc, s{sTmp}, v{T16}')
                a(f'v_add_u32 v10, {G.TAB_CH}, v{T16}')
                a(f's_cmp_lg_u32 s{sW}, 0')
                a(f'v_cndmask_b32 v10, v{T16}, v10, vcc')
                a(f's_cbranch_scc1 L1_p{uid[0]}')
                vm, nvm = list(a.vm), a.nvm
                r = soff(sR, k * NW * BLK)
                a('s_mov_b64 exec, 0xff')
                a(f'buffer_store_dwordx4 v[12:15], v10, s[24:27], s{r} offen')
                a('s_mov_b64 exec, -1')
                a.vm, a.nvm = vm, nvm
                a.label(f'L1_p{uid[0]}')
            mix((lb if last else sb)[2 + j])
            if last and j == 4:
                mcopy_store()
        a('s_waitcnt lgkmcnt(0)')
        a('s_barrier')
        if last and p2:
            next(p2)
        tl_mark(a, 76, k * 6 + 2, 0, 8)
        a.c('scatter')
        n0 = st['next']
        ns0 = len(pend_st)
        for j in range(8):
            if CFG['p1prio'] and j & 1 == 0:
                a(f's_setprio {3 - j // 2}')
            I, O, A = where[(k, 'I', j)], where[(k, 'O', j)], where[(k, 'A', j // 2)] + 2 * (j & 1)
            with skip_quad(last, j):
                for r in range(4):
                    x, y = t[(2 * r) % 4], t[(2 * r + 1) % 4]
                    a(f'v_and_b32 v{x}, -4, v{O+r}')
                    a(f'v_lshl_add_u32 v{y}, v{O+r}, 2, v{x}')
                    a(f'ds_write_b32 v{y}, v{I+r}')
                    a(f'v_lshl_add_u32 v{x}, v{x}, 2, v{O+r}')
                    a(f'ds_write_b8{"_d16_hi" if r & 1 else ""} v{x}, v{A + (r >> 1)} offset:16')
            pool.append(I)
            pool.append(O)
            if j & 1:
                pool.append(where[(k, 'A', j // 2)])
            nd = CFG['scd']
            store(len(pend_st) - (ns0 - (ns0 * min(j + 1, nd) + nd - 1) // nd))
            want = n0 + ((lim - n0) * min(j + 1, nd) + nd - 1) // nd
            issue(want - st['next'], lim)
            if last and p2 and j < 6:
                next(p2)
        if last and p2:
            a(f's_waitcnt vmcnt({min(ns0, a.nvm - st["tabn"])})')
        a(f'v_add_u32 v7, 0x10000, v{T16}')
        a(f'v_add_u32 v12, 0x20000, v{T16}')
        if not last:
            for i in range(4):
                a(f'v_mov_b32 v{8 + i}, 0')
        a('s_waitcnt lgkmcnt(0)')
        a('s_barrier')
        tl_mark(a, 76, k * 6 + 3, 0, 8 if last else 14)
        assert not pend_st
        a.c('flush')
        if last and p2 and ren:
            pool[:] = [24, 28, 32, 36, 76, 80, 84, 104, 68, 72]
        for j in range(10):
            b = pool.pop(0)
            base = (T16, 7, 12)[j // 4]
            a(f'ds_read_b128 {vr(b, 4)}, v{base} offset:{(j % 4) * 16384}')
            if j == 0 and not last:
                a(f'ds_write_b128 v{T16}, v[8:11]')
            pend_st.append((b, k * NW * BLK + j * 16384))
        if not last:
            a('s_waitcnt lgkmcnt(0)')
            a('s_barrier')
        elif p2:
            next(p2)
            a('s_waitcnt lgkmcnt(0)')
            a('s_barrier')
            if not ren:
                m = dict(taken)
                rest_s = [b for b in range(16, 128, 4) if b not in m]
                rest_d = [b for b in range(16, 128, 4) if b not in m.values()]
                m.update(zip(rest_s, rest_d))
                G.MEMO['ren'] = m
            for _ in p2:
                pass
            return name
        else:
            for j in range(10):
                if j >= 7:
                    a(f's_cmp_le_u32 s{sNQ}, {j - 2}')
                    a('s_cbranch_scc1 L1_fin')
                a(f's_waitcnt lgkmcnt({9 - j})')
                store(1)
    a.label('L1_fin')
    a.reset()
    G.tl_end(a)
    a.label('L1_end')
    a('s_endpgm')
    return name
```

```python
from asmlib import vr, sr, merge_vm

MF = 'v_mfma_f32_4x4x4_16b_bf16'


def gen_p2(a, G, P1=None):
    name = 'gs_acc_kernel'
    CFG = G.CFG
    SEL, ANDOR = G.SEL, G.ANDOR
    ORAND = 0xA8
    if not P1:
        G.kernel_head(a, name)
    DS = 1
    NR = DS + 1
    NA = 2
    LA, SHL, CBA, FA, CBB, KAD, KCM, PA = 0, 1, 2, 3, 4, 5, 6, 7
    WD, ID, NID = 8, 10, 12
    C = [14, 15]
    W = [16, 22, 28, 34]
    B = [w + 4 for w in W]
    EC = [w + 5 for w in W]
    EN = [40, 41, 42, 43]
    ES, KF0, NV, AI = 44, 45, 46, 47
    DA, DB = 48, 64
    OLD = [68, 70]
    OLD2 = [72, 74]
    X = [76, 80]
    P = 84
    RT = 88
    AOR = [[92, 93], [94, 95]]
    xm, xo, xa, xd = 96, 97, 98, 99
    xc, xl, xe, xt = RT, RT + 1, RT + 2, RT + 3
    MR = [[100, 102], [104, 106]]
    MP = [108 + 4 * n for n in range(5)]

    def AO(b):
        return AOR[b % NA]
    sW, sQ, sOB, sSP, sSlow, sBase, sTab, sMD, sN, sPH, sM0 = 32, 33, 34, 35, 36, 37, 39, 40, 41, 42, 38
    sP = [44, 45, 46, 47]
    PEND, TMP, INJ, OVF, INJ1 = 's[80:81]', 's[82:83]', 's[84:85]', 's[58:59]', 's[48:49]'
    rpos = [int(x) for x in CFG['rpos'].split()]
    dpos = [int(x) for x in CFG['dpos'].split()]
    mpos = [int(x) for x in CFG['mpos'].split()]
    assert dpos[0] >= 1 and dpos[1] >= 1 and max(rpos[:3]) <= 6 and rpos[3] >= 7
    order = [7, 0, 1, 2, 3, 4, 5, 6]
    ng = 8 - DS
    gs = {}
    nb = 0
    for i in range(ng):
        n = 2 if i >= ng - DS else 1
        gs[order[i]] = list(range(nb, nb + n))
        nb += n
    assert nb == 8
    b1_step = order[ng]

    def blk(p):
        return 4 * (p & 3) + (p >> 2)

    def dblk(p):
        return ((blk(p + 1) - blk(p)) * 81920) & 0xffffffff

    def head1():
        a('s_cmp_ge_u32 s2, 256')
        a('s_cbranch_scc1 L2_end')
        G.tl_start(a)
        if CFG['pprio']:
            a('s_setprio 3')
        a('s_load_dwordx2 s[30:31], s[0:1], 104')
        a('s_load_dwordx2 s[28:29], s[0:1], 0')
        a('s_load_dwordx2 s[6:7], s[0:1], 40')
        a('v_lshrrev_b32 v16, 6, v0')
        a('v_and_b32 v17, 63, v0')
        a(f'v_readfirstlane_b32 s{sW}, v16')
        a(f's_bfe_u32 s{sQ}, s2, 0x20001')
        a(f's_and_b32 s{sOB}, s2, 1')
        a(f's_lshl_b32 s{sOB}, s{sOB}, 5')
        a('s_lshr_b32 s4, s2, 3')
        a(f's_add_u32 s{sOB}, s{sOB}, s4')
        a('v_and_b32 v22, 3, v0')
        a('v_mul_u32_u24 v19, 80, v16' if not CFG['cmap'] else 'v_lshlrev_b32 v19, 6, v16')
        if CFG['dq']:
            a('v_lshrrev_b32 v18, 2, v17')
            a('v_lshl_add_u32 v18, v22, 4, v18')
            a('v_add_u32 v18, v18, v19')
        else:
            a('v_lshrrev_b32 v18, 4, v17')
            a('v_and_b32 v19, 15, v17')
            a('v_lshl_add_u32 v18, v18, 8, v19')
            a('v_lshl_add_u32 v18, v16, 4, v18')
        a(f'v_mul_u32_u24 v{CBA}, {G.BLK}, v18')
        a('v_lshrrev_b32 v18, 2, v17')
        if CFG['cmap']:
            a('v_lshl_add_u32 v18, v16, 4, v18')
            a('v_add_u32 v18, 0x400, v18')
        else:
            a('v_add3_u32 v18, v18, v19, 64')
        a(f'v_mul_u32_u24 v{CBB}, {G.BLK}, v18')
        a(f'v_lshl_add_u32 v20, v22, 4, v{CBB}')
        a('v_and_b32 v18, 3, v18')
        a('v_lshl_add_u32 v20, v18, 5, v20')
        a(f'v_lshl_add_u32 v25, v22, 5, v{CBA}')
        a(f's_mul_i32 s{sTab}, s{sQ}, 2080')
        a(f's_lshl_b32 s3, s{sOB}, 5')
        a(f's_add_u32 s{sTab}, s{sTab}, s3')
        a(f's_mul_i32 s{sMD}, s{sQ}, {16 * 81920}')
        a(f's_mul_i32 s3, s{sW}, 5120')
        a(f'v_lshl_add_u32 v{FA}, v17, 4, s3')
        a(f's_lshl_b32 s{sM0}, s{sW}, 11')
        a(f's_mul_i32 s100, s{sW}, 3072')
        a('s_waitcnt lgkmcnt(0)')
        G.srd(a, 12, 30, G.TAB_OFF, G.TAB_SZ)
        for k in (0, 2, 1, 3) if not CFG['dq'] else range(4):
            if CFG['dq']:
                a(f'v_subrev_u32 v25, {(64 - 16 * k) * G.BLK:#x}, v20')
                a(f'buffer_load_dwordx4 {vr(DA + 4 * k, 4)}, v25, s[12:15], s{sTab} offen', tag='D')
            else:
                a(f'buffer_load_dwordx4 {vr(DA + 4 * k, 4)}, v25, s[12:15], s{sTab} offen offset:{16 * k}', tag='D')
        a(f'buffer_load_dwordx4 {vr(DB, 4)}, v20, s[12:15], s{sTab} offen', tag='D')
        G.srd(a, 16, 30, G.MD_OFF, G.MD_SZ)
        G.srd(a, 24, 30, G.WT_OFF, G.WT_SZ)
        a('v_lshlrev_b32 v21, 6, v22')
        a(f'buffer_load_dwordx2 {vr(WD, 2)}, v21, s[24:27], 0 offen offset:40', tag='D')

    st = dict(inloop=False)

    def load_m(n):
        if CFG['ab_nom'] and st['inloop']:
            return
        if n == 4:
            a(f's_add_u32 s3, s{sMD}, 4096')
            a(f'buffer_load_dwordx4 {vr(MP[n], 4)}, v{FA}, s[16:19], s3 offen', tag=('M', n))
        else:
            a(f'buffer_load_dwordx4 {vr(MP[n], 4)}, v{FA}, s[16:19], s{sMD} offen offset:{n * 1024}', tag=('M', n))

    def load_m_raw(n, p, l16):
        a(f's_mul_i32 s3, s{sQ}, {16 * 80000}')
        a(f's_add_u32 s3, s3, s{sM0 if n < 2 else 100}')
        a(f's_add_u32 s3, s3, {blk(p) * 80000 + (0 if n < 2 else 32768)}')
        a(f'buffer_load_dwordx4 {vr(MP[n], 4)}, v{l16}, s[24:27], s3 offen offset:{1024 * (n if n < 2 else n - 2)}', tag=('M', n))

    def fill(n):
        a.wait_vm([('M', n)])
        if ('rawn', n) in st:
            a(f's_waitcnt vmcnt({a.nvm - st.pop(("rawn", n))})')
        if st.get('raw'):
            a(f'v_subrev_u32 v{RT}, s{100 if n < 2 else sM0}, v{FA}')
            a(f'ds_write_b128 v{RT}, {vr(MP[n], 4)} offset:{n * 1024 if n < 2 else 32768 + (n - 2) * 1024}', tag='F')
            return
        m0 = sM0 if n < 2 else 100
        if st.get('m0') != m0:
            a(f's_mov_b32 m0, s{m0}')
            st['m0'] = m0
        for jd in range(4):
            if CFG['ab'] & 8 and st['inloop']:
                continue
            a(f'ds_write_addtid_b32 v{MP[n] + jd} offset:{(n * 1024 if n < 2 else 32768 + (n - 2) * 1024) + 256 * jd}', tag='F')

    def next_m(p):
        a(f's_add_u32 s{sMD}, s{sMD}, {dblk(p):#x}')

    def head2():
        if CFG['pprio']:
            a('s_setprio 2')
        for n in (4, 2, 3, 0, 1):
            load_m(n)
        next_m(0)
        if CFG['pprio']:
            a('s_setprio 1')
        a(f'v_mad_u32_u24 v{CBB}, v22, 20, v{CBB}')
        a(f'v_or_b32 v{CBB}, 0xf0000000, v{CBB}')
        a(f'v_or_b32 v{CBA}, 0xf0000000, v{CBA}')
        a('v_lshlrev_b32 v23, 2, v22')
        a(f'v_sub_u32 v{SHL}, 28, v23')
        G.ident(a, ID, 18, 0)
        G.ident(a, NID, 18, 0, neg=True)
        a('v_lshlrev_b32 v24, 4, v0')
        a(f'v_lshl_add_u32 v{LA}, v17, 2, s{sM0}')
        a(f'v_mov_b32 v{KF0}, 0xf0000000')
        a(f'v_mov_b32 v{KAD}, 0x1fff8')
        a(f'v_mov_b32 v{KCM}, 0x07ff0000')
        for k in range(4):
            a(f's_mov_b32 s{sP[k]}, {0x04000c0c | (k << 16):#x}')
        a(f's_mov_b32 s{sSlow}, 0')
        a(f's_mov_b32 s{sPH}, 0')
        a(f's_mov_b64 {PEND}, 0')
        a(f's_mov_b64 {INJ}, 0')
        a(f's_mov_b64 {INJ1}, 0')
        if CFG['fuse']:
            a('s_load_dwordx4 s[96:99], s[6:7], 0')
            a('s_load_dwordx2 s[4:5], s[0:1], 24')
            a('s_waitcnt lgkmcnt(0)')
        G.srd(a, 8, 30, G.REC_OFF, G.REC_SZ)
        G.srd(a, 20, 30, G.PART_OFF, 80000)
        a(f's_lshl_b32 s3, s{sQ}, 6')
        a(f's_add_u32 s3, s3, s{sOB}')
        a('s_mul_i32 s3, s3, 80000')
        a('s_add_u32 s20, s20, s3')
        a('s_addc_u32 s21, s21, 0')

    if not P1:
        head1()
        head2()
    ool = []
    uid = [0]

    XAND = 0x6A
    sOv = 101

    def x_pre(j):
        uid[0] += 1
        u = uid[0]
        rs, re_ = DA + 2 * j, DA + 8 + 2 * j
        a.wait_vm('D')
        a(f'v_sub_u16 v{xc}, v{re_}, v{rs}')
        a(f'v_and_b32 v{xl}, 3, v{rs}')
        a(f'v_add3_u32 v{xd}, v{xc}, v{xl}, 3')
        a(f'v_and_b32 v{xd}, -4, v{xd}')
        a(f'v_max_u32 v{xd}, 4, v{xd}')
        fill = [f'v_and_b32 v{xo}, 0xfffc, v{rs}',
                f'v_bfm_b32 v{xm}, v{xc}, v{xl}',
                f'v_mad_u32_u24 v{xo}, v{xo}, 5, v{CBA}',
                f'v_cmp_lt_u32 vcc, 16, v{xd}',
                f'v_sub_u32 v{xa}, s{sM0}, v{xd}',
                f'v_lshrrev_b64 {vr(rs, 2)}, 16, {vr(rs, 2)}',
                f'v_lshrrev_b64 {vr(re_, 2)}, 16, {vr(re_, 2)}',
                f's_mov_b32 s{sOv}, 0']
        a(fill.pop(0))
        a(fill.pop(0))
        a(f'v_add_u32_dpp v{xt}, v{xd}, v{xd} row_shr:1 row_mask:0xf bank_mask:0xf bound_ctrl:1')
        for m in ('row_shr:2 row_mask:0xf bank_mask:0xf bound_ctrl:1', 'row_shr:4 row_mask:0xf bank_mask:0xf bound_ctrl:1',
                  'row_shr:8 row_mask:0xf bank_mask:0xf bound_ctrl:1', 'row_bcast:15 row_mask:0xa bank_mask:0xf',
                  'row_bcast:31 row_mask:0xc bank_mask:0xf'):
            for _ in range(2):
                if fill:
                    a(fill.pop(0))
            a(f'v_add_u32_dpp v{xt}, v{xt}, v{xt} {m}')
        a(f'v_add_u32 v{xa}, v{xa}, v{xt}')
        a(f'v_readlane_b32 s{sBase}, v{xt}, 63')
        a(f's_cbranch_vccnz L2_xo{u}')
        a.label(f'L2_xp{u}')
        ool.append([f'L2_xo{u}:',
                    f'v_cmp_lt_u32 vcc, 20, v{xd}',
                    f's_mov_b32 s{sOv}, 1',
                    f's_cbranch_vccz L2_xp{u}',
                    f'v_cmp_lt_u32 vcc, 32, v{xd}',
                    f'v_cmp_lt_u32 {OVF}, 31, v{xc}',
                    f's_mov_b32 s{sOv}, 2',
                    f's_or_b64 vcc, vcc, {OVF}',
                    f's_cbranch_scc0 L2_xp{u}',
                    f's_mov_b32 s{sBase}, 0x10000',
                    f's_branch L2_xp{u}'])

    def x_ent(f, t):
        f(f'v_lshlrev_b32 v{xl}, {28 - 4 * t}, v{xm}')
        if t:
            f(f'v_add_u32 v{xe}, {20 * t}, v{xo}')
        f(f'v_bitop3_b32 v{xe}, v{xl}, v{KF0}, v{xe if t else xo} bitop3:{XAND:#x}')
        f(f'ds_write_b32 v{xa}, v{xe} offset:{4 * t}')

    def x_quad(f):
        f(f'v_and_b32 v{xl}, v{KF0}, v{xl}')
        f(f'v_cmp_ne_u32 vcc, 0, v{xl}')
        f(f'v_xor_b32 v{xe}, v{xo}, v{xl}')
        f(f's_add_u32 s3, s{sBase}, s{sM0}')
        f(f'v_mbcnt_lo_u32_b32 v{xa}, vcc_lo, 0')
        f(f'v_mbcnt_hi_u32_b32 v{xa}, vcc_hi, v{xa}')
        f(f's_bcnt1_i32_b64 s{sN}, vcc')
        f(f'v_lshl_add_u32 v{xa}, v{xa}, 2, s3')
        f('s_mov_b64 exec, vcc')
        f(f'ds_write_b32 v{xa}, v{xe}')
        f('s_mov_b64 exec, -1')
        f(f's_lshl2_add_u32 s{sBase}, s{sN}, s{sBase}')

    def x_list(j, E, pbit):
        uid[0] += 1
        u = uid[0]
        a(f'v_mov_b32 v{ES}, v{E[3]}')
        a(f's_cmp_gt_u32 s{sBase}, 1024')
        a(f's_cbranch_scc1 L2_xs{u}')
        a(f's_cmp_lg_u32 s{sOv}, 0')
        a(f's_cbranch_scc1 L2_xa{u}')
        a.label(f'L2_xb{u}')
        bl = [f'L2_xa{u}:', f's_cmp_eq_u32 s{sOv}, 1', f's_cbranch_scc1 L2_xc{u}']
        x_ent(bl.append, 7)
        x_ent(bl.append, 6)
        x_ent(bl.append, 5)
        bl.append(f'L2_xc{u}:')
        x_ent(bl.append, 4)
        bl.append(f's_branch L2_xb{u}')
        ool.append(bl)
        for t in (3, 2, 1, 0):
            x_ent(a, t)
        r = DB + 2 * (j & 1)
        ls, le = j >> 1, 2 + (j >> 1)
        a(f'v_mov_b32_dpp v{xt}, v{r} quad_perm:[{ls},{ls},{ls},{ls}] row_mask:0xf bank_mask:0xf')
        a(f'v_and_b32 v{xl}, 3, v{xt}')
        a(f'v_and_b32 v{xo}, 0xfffc, v{xt}')
        a(f'v_sub_u16_dpp v{xc}, v{r}, v{xt} quad_perm:[{le},{le},{le},{le}] row_mask:0xf bank_mask:0xf')
        a(f'v_mad_u32_u24 v{xo}, v{xo}, 5, v{CBB}')
        a(f'v_add_u32 v{xd}, v{xc}, v{xl}')
        a(f'v_bfm_b32 v{xm}, v{xc}, v{xl}')
        a(f'v_cmp_lt_u32 {OVF}, 16, v{xd}')
        a(f'v_lshlrev_b32 v{xl}, v{SHL}, v{xm}')
        x_quad(a)
        a(f's_cmp_lg_u64 {OVF}, 0')
        a(f's_cbranch_scc1 L2_xe{u}')
        a.label(f'L2_xr{u}')
        bl = [f'L2_xe{u}:',
              f'v_cmp_lt_u32 vcc, 32, v{xd}',
              f'v_cmp_lt_u32 {OVF}, 31, v{xc}',
              f'v_lshrrev_b32 v{xl}, 16, v{xm}',
              f'v_add_u32 v{xo}, 80, v{xo}',
              f's_or_b64 vcc, vcc, {OVF}',
              f's_cbranch_scc1 L2_xs{u}',
              f'v_lshlrev_b32 v{xl}, v{SHL}, v{xl}']
        x_quad(bl.append)
        bl.append(f's_branch L2_xr{u}')
        ool.append(bl)
        a(f'v_add_u32 v{xa}, s{sBase}, v{LA}')
        a(f'v_mov_b32 v{xe}, -1')
        a(f'ds_write_b32 v{xa}, v{xe}')
        go = [int(x) for x in CFG['gord'].split()]
        a(f'ds_read2st64_b32 {vr(E[0], 2)}, v{LA} offset0:{go[0]} offset1:{go[1]}', tag='L')
        a(f'ds_read2st64_b32 {vr(E[2], 2)}, v{LA} offset0:{go[2]} offset1:{go[3]}', tag='L')
        E = [E[go.index(g)] for g in range(4)]
        a(f's_sub_u32 s3, s{sBase}, 768')
        a('s_cmp_gt_u32 s3, 256')
        a(f's_cbranch_scc1 L2_xf{u}')
        a.label(f'L2_xg{u}')
        bl = [f'L2_xf{u}:',
              's_waitcnt lgkmcnt(0)',
              f's_cmp_gt_u32 s{sBase}, 1024',
              f's_cbranch_scc1 L2_xs{u}',
              f'v_mov_b32 v{E[3]}, -1',
              f's_cmp_ge_u32 s{sBase}, 512',
              f's_cbranch_scc1 L2_xg{u}',
              f'v_mov_b32 v{E[2]}, -1',
              f's_cmp_ge_u32 s{sBase}, 256',
              f's_cbranch_scc1 L2_xg{u}',
              f'v_mov_b32 v{E[1]}, -1',
              f's_branch L2_xg{u}',
              f'L2_xs{u}:',
              's_waitcnt lgkmcnt(0)']
        bl += [f'v_mov_b32 v{E[g]}, -1' for g in range(4)]
        bl += [f's_add_u32 s3, s{sPH}, {pbit}',
               f's_bitset1_b32 s{sSlow}, s3',
               f's_branch L2_xg{u}']
        ool.append(bl)
        if j == 3:
            for h in range(2):
                a(f'v_lshrrev_b64 {vr(DB + 2 * h, 2)}, 16, {vr(DB + 2 * h, 2)}')

    def load_rec(g):
        E = EN[:3] + [ES]
        a(f'v_and_b32 v{AI}, 0x0fffffff, v{E[g]}')
        if CFG['ab_norec'] and st['inloop']:
            a(f'v_mov_b32 v{AI}, v{E[g]}')
            return
        a(f'v_mov_b32 v{EC[g]}, v{E[g]}')
        issue_rec(g)

    def issue_rec(g):
        if CFG['x3'] == 2:
            a(f'buffer_load_dwordx2 {vr(W[g], 2)}, v{AI}, s[8:11], 0 offen', tag=('R', g))
        elif CFG['x3'] == 3:
            a(f'buffer_load_dwordx3 {vr(W[g], 3)}, v{AI}, s[8:11], 0 offen', tag=('R', g))
        else:
            a(f'buffer_load_dwordx4 {vr(W[g], 4)}, v{AI}, s[8:11], 0 offen', tag=('R', g))
        if CFG['x3']:
            a(f'buffer_load_dwordx3 {vr(W[g] + 2, 3)}, v{AI}, s[8:11], 0 offen offset:8', tag=('R', g))
        else:
            a(f'buffer_load_dword v{B[g]}, v{AI}, s[8:11], 0 offen offset:16', tag=('R', g))

    ao_done = set()

    def gather(x, b):
        g = x >> 1
        a.wait_vm([('R', g)])
        now = (x - b) % 8 < NA
        for h in (1, 0):
            k = (2 * x + h) & 3
            w = W[g] + k
            a(f'v_and_b32 v{NV}, {1 << (28 + k):#x}, v{EC[g]}')
            a(f'v_lshrrev_b32 v{AI}, 14, v{w}')
            a(f'v_bitop3_b32 v{AI}, v{AI}, v{KAD}, v{NV} bitop3:{ANDOR:#x}')
            a(f'ds_read_b64 {vr(MR[x % NR][h], 2)}, v{AI}', tag=('m', x))
            if now:
                a(f'v_bitop3_b32 v{AO(x)[h]}, v{w}, v{KAD}, v{NV} bitop3:{ANDOR:#x}')
        if now:
            ao_done.add(x)

    def dec_ao(b):
        if b in ao_done:
            ao_done.discard(b)
            return
        g = b >> 1
        for h in range(2):
            k = (2 * b + h) & 3
            a(f'v_and_b32 v{NV}, {1 << (28 + k):#x}, v{EC[g]}')
            a(f'v_bitop3_b32 v{AO(b)[h]}, v{W[g] + k}, v{KAD}, v{NV} bitop3:{ANDOR:#x}')

    def dec_c1(b):
        g = b >> 1
        for h in (1, 0):
            k = (2 * b + h) & 3
            w = W[g] + k
            a(f'v_perm_b32 v{C[h]}, v{w}, v{B[g]}, s{sP[k]}')
            a(f'v_bitop3_b32 v{(AI, NV)[h]}, v{w}, 0.5, -0.5 bitop3:{ORAND:#x}')

    def dec_c2(b):
        for h in (1, 0):
            a(f'v_bitop3_b32 v{C[h]}, v{KCM}, v{C[h]}, v{(AI, NV)[h]} bitop3:{SEL:#x}')

    def flush_pend(mask):
        return [f's_mov_b64 exec, {mask}',
                's_nop 1',
                f'{MF} {vr(RT, 4)}, {vr(NID, 2)}, {vr(P, 2)}, 0',
                's_nop 1',
                f'{MF} {vr(RT, 4)}, {vr(ID, 2)}, {vr(P + 2, 2)}, {vr(RT, 4)}',
                's_nop 4',
                f'v_cvt_pk_bf16_f32 v{RT}, v{RT}, v{RT + 1}',
                f'v_cvt_pk_bf16_f32 v{RT + 1}, v{RT + 2}, v{RT + 3}',
                f'ds_pk_add_bf16 v{PA}, v{RT} offset:{G.A_OFFS}',
                f'ds_pk_add_bf16 v{PA}, v{RT + 1} offset:{G.A_OFFS + 4}']

    def check(b, h):
        if CFG['ab_nofix'] == 1:
            return
        uid[0] += 1
        u = uid[0]
        a(f'v_cmpx_ne_u64 vcc, {vr(OLD2[h], 2)}, {vr(OLD[h], 2)}')
        if CFG['cnt']:
            a('s_bcnt1_i32_b64 s72, vcc')
            a('s_add_u32 s63, s63, s72')
        skip = CFG['zskip'] == 1 or (CFG['zskip'] == 2 and (b & 7) >= 6)
        if skip:
            a(f's_cbranch_execz L2_z{u}')
        a(f's_and_b64 {TMP}, vcc, {PEND}')
        a(f's_cbranch_scc1 L2_c{u}')
        a.label(f'L2_d{u}')
        if CFG['mov64']:
            a(f'v_mov_b64 {vr(P, 2)}, {vr(OLD[h], 2)}')
            a(f'v_mov_b32 v{PA}, v{AO(b)[h]}')
            a(f'v_mov_b64 {vr(P + 2, 2)}, {vr(OLD2[h], 2)}')
        else:
            for n in range(2):
                a(f'v_mov_b32 v{P + n}, v{OLD[h] + n}')
                a(f'v_mov_b32 v{P + 2 + n}, v{OLD2[h] + n}')
            a(f'v_mov_b32 v{PA}, v{AO(b)[h]}')
        if skip:
            a(f's_or_b64 {PEND}, {PEND}, vcc')
            a.label(f'L2_z{u}')
            a('s_mov_b64 exec, -1')
            if h == 0 and inj_on((b + 1) & 7, 0):
                a('s_nop 0')
        else:
            a('s_mov_b64 exec, -1')
            a(f's_or_b64 {PEND}, {PEND}, vcc')
        cnt = [f's_bcnt1_i32_b64 s72, {TMP}', 's_add_u32 s67, s67, s72', 's_add_u32 s67, s67, 0x10000'] if CFG['cnt'] else []
        if not CFG['nbr']:
            ool.append([f'L2_c{u}:'] + cnt + flush_pend(TMP) + ['s_mov_b64 exec, vcc', f's_branch L2_d{u}'])
            return
        CF, TG = 's[50:51]', 's[52:53]'
        bl = [f'L2_c{u}:',
              f's_mov_b64 {CF}, vcc',
              f's_lshl_b64 {TG}, {TMP}, 1',
              f's_andn2_b64 {TG}, {TG}, {PEND}',
              f's_andn2_b64 {TG}, {TG}, {CF}',
              f's_or_b64 {PEND}, {PEND}, {TG}',
              f's_not_b64 vcc, {TG}',
              's_mov_b64 exec, -1']
        for n, r in enumerate((P, P + 1, P + 2, P + 3, PA)):
            bl.append(f'v_cndmask_b32_dpp v{r}, v{r}, v{r}, vcc wave_shr:1 row_mask:0xf bank_mask:0xf')
            if n == 1:
                bl.append(f's_lshr_b64 {TG}, {TG}, 1')
            if n == 3:
                bl.append(f's_andn2_b64 {TMP}, {TMP}, {TG}')
        bl += [f's_mov_b64 vcc, {CF}',
               f's_mov_b64 exec, {CF}',
               f's_cbranch_scc0 L2_d{u}'] + cnt + flush_pend(TMP) + ['s_mov_b64 exec, vcc', f's_branch L2_d{u}']
        ool.append(bl)

    def inj_on(b, h):
        if CFG['ab_nofix'] == 1:
            return False
        return (2 * b + h) % CFG['injs'] == 0

    def inject(b, h):
        m = INJ1 if h else INJ
        a(f's_and_b64 exec, {m}, {PEND}')
        a(f'{MF} {vr(X[h], 4)}, {vr(NID, 2)}, {vr(P, 2)}, 0')
        a(f'v_mov_b32 v{AO(b)[h]}, v{PA}')
        a(f's_andn2_b64 {PEND}, {PEND}, {m}')
        a(f'{MF} {vr(X[h], 4)}, {vr(ID, 2)}, {vr(P + 2, 2)}, {vr(X[h], 4)}')
        a('s_mov_b64 exec, -1')

    def step_a(b):
        a.wait_lg(('m', b))
        for h in (1, 0):
            a(f'{MF} {vr(X[h], 4)}, {vr(WD, 2)}, {vr(MR[b % NR][h], 2)}, 0')
        dec_c2(b)
        for h in (1, 0):
            if inj_on(b, h):
                a(f'v_cmp_lt_u32 {INJ1 if h else INJ}, v{KAD}, v{AO(b)[h]}')
        for h in (1, 0):
            if CFG['pkmul']:
                for n in (0, 2):
                    a(f'v_pk_mul_f32 {vr(X[h] + n, 2)}, {vr(X[h] + n, 2)}, {vr(C[0], 2)} op_sel:[0,{h}] op_sel_hi:[1,{h}]')
            else:
                for n in range(4):
                    a(f'v_mul_f32 v{X[h] + n}, v{C[h]}, v{X[h] + n}')

    def step_b(b, final=False, mid=None):
        a.wait_lg('x')
        for h in (1, 0):
            check(b - 1, h)
            if CFG['injearly'] and inj_on(b, h):
                inject(b, h)
        for h in (1, 0):
            if not CFG['injearly'] and inj_on(b, h):
                inject(b, h)
            a(f'ds_read_b64 {vr(OLD[h], 2)}, v{AO(b)[h]} offset:{G.A_OFFS}', tag='o')
        if not final:
            for x in gs.get(b, []):
                gather(x, b)
            mid()
        a.wait_lg('o')
        for h in (1, 0):
            a(f'{MF} {vr(X[h], 4)}, {vr(ID, 2)}, {vr(OLD[h], 2)}, {vr(X[h], 4)}')
        if not final:
            dec_ao((b + 1) & 7)
            dec_c1((b + 1) & 7)
        for h in (1, 0):
            a(f'v_cvt_pk_bf16_f32 v{X[h]}, v{X[h]}, v{X[h] + 1}')
            a(f'v_cvt_pk_bf16_f32 v{X[h] + 1}, v{X[h] + 2}, v{X[h] + 3}')
            a(f'ds_wrxchg_rtn_b64 {vr(OLD2[h], 2)}, v{AO(b)[h]}, {vr(X[h], 2)} offset:{G.A_OFFS}', tag='x')

    def stamp(i):
        if not CFG['stamp']:
            return
        a('s_memtime s[70:71]')
        a('s_waitcnt lgkmcnt(0)')
        a('s_sub_u32 s72, s70, s73')
        a('s_mov_b32 s73, s70')
        a(f's_add_u32 s{60 + i}, s{60 + i}, s72')

    ipos = [int(x) for x in CFG['ipos'].split()]
    fpos = [int(x) for x in CFG['fpos'].split()]
    fmpos = [int(x) for x in CFG['fmpos'].split()]

    ipos2 = [int(x) for x in CFG['ipos2'].split()]
    fpos2 = [int(x) for x in CFG['fpos2'].split()]

    def load_own(g):
        a(f'v_and_b32 v{AI}, 0x0fffffff, v{EC[g]}')
        issue_rec(g)
    def poll(level, lab):
        a('s_mov_b64 exec, 0xffff')
        a.label(lab)
        a(f'buffer_load_dword v{RT}, v{PA}, s[60:63], 0 offen sc1')
        a('s_waitcnt vmcnt(0)')
        a(f'v_cmp_gt_u32 vcc, {level}, v{RT}')
        a(f's_cbranch_vccnz {lab}s')
        ool.append([f'{lab}s:', f's_sleep {CFG["slp%d" % level]}', f's_branch {lab}'])
        a('s_mov_b64 exec, -1')

    def signal(level, tmp, adr):
        uid[0] += 1
        a(f's_cmp_lg_u32 s{sW}, 0')
        a(f's_cbranch_scc1 L2_sg{uid[0]}')
        vm, nvm = list(a.vm), a.nvm
        a('s_mov_b32 exec_hi, 0')
        a(f'v_mov_b32 v{tmp}, {level}')
        a(f'buffer_store_dword v{tmp}, v{adr}, s[60:63], s57 offen sc1')
        a('s_mov_b64 exec, -1')
        a.vm, a.nvm = vm, nvm
        a.label(f'L2_sg{uid[0]}')

    if P1:
        T16, sE = 0, 56
        a(f'v_lshlrev_b32 v3, 3, v{T16}')
        a('v_and_b32 v3, 0x80, v3')
        a(f's_cmp_lg_u32 s{sW}, 15')
        a('s_cbranch_scc1 L2_k0')
        vm, nvm = list(a.vm), a.nvm
        a('s_mov_b64 exec, 3')
        a('buffer_load_dword v3, v3, s[68:71], 0 offen sc1')
        a('s_mov_b64 exec, -1')
        a.vm, a.nvm = vm, nvm
        a.label('L2_k0')
        yield
        a('v_and_b32_dpp v3, v3, v3 quad_perm:[1,0,3,2] row_mask:0xf bank_mask:0xf')
        yield
        a(f'v_readlane_b32 s{sE}, v10, 15')
        a(f's_xor_b32 s{sE}, s{sE}, 0x80')
        yield
        a('s_load_dwordx2 s[28:29], s[0:1], 0')
        a('s_load_dwordx2 s[50:51], s[0:1], 40')
        a('s_load_dwordx2 s[52:53], s[0:1], 24')
        yield
        a('s_load_dwordx4 s[96:99], s[50:51], 0')
        a('s_mov_b64 s[4:5], s[52:53]')
        a(f's_bfe_u32 s{sQ}, s2, 0x20001')
        a(f's_and_b32 s{sOB}, s2, 1')
        a(f's_lshl_b32 s{sOB}, s{sOB}, 5')
        a('s_lshr_b32 s3, s2, 3')
        a(f's_add_u32 s{sOB}, s{sOB}, s3')
        a(f's_mul_i32 s{sTab}, s{sQ}, 2080')
        a(f's_lshl_b32 s3, s{sOB}, 5')
        a(f's_add_u32 s{sTab}, s{sTab}, s3')
        a(f's_mul_i32 s{sMD}, s{sQ}, {16 * 81920}')
        next_m(0)
        a(f's_lshl_b32 s{sM0}, s{sW}, 11')
        a(f's_mul_i32 s100, s{sW}, 3072')
        G.srd(a, 8, 30, G.REC_OFF, G.REC_SZ)
        G.srd(a, 12, 30, G.TAB_OFF, G.TAB_SZ)
        G.srd(a, 16, 64, 0, 32)
        G.srd(a, 24, 28, 0, G.E * 8)
        yield
        a(f'v_and_b32 v13, 0x3f0, v{T16}')
        a('v_and_b32 v14, 0x300, v13')
        a('v_bfe_u32 v15, v13, 4, 4')
        a(f's_lshl_b32 s3, s{sW}, 4')
        a('v_add3_u32 v14, v14, v15, s3')
        a(f'v_mul_u32_u24 v{CBA}, {G.BLK}, v14')
        a('v_lshrrev_b32 v14, 6, v13')
        a('s_add_u32 s3, s3, 0x400')
        a('v_add_u32 v14, s3, v14')
        a(f'v_mul_u32_u24 v{CBB}, {G.BLK}, v14')
        a('v_and_b32 v14, 3, v14')
        a('v_and_b32 v15, 0x30, v13')
        a('v_lshl_add_u32 v14, v14, 5, v15')
        a(f'v_add_u32 v6, v14, v{CBB}')
        a(f'v_lshl_add_u32 v5, v15, 1, v{CBA}')
        a('v_lshrrev_b32 v14, 3, v15')
        wb = P1['take'](100)
        for k in range(4):
            if not CFG['ab'] & 128:
                a(f'buffer_load_ushort v{wb + k}, v14, s[16:19], 0 offen offset:{k * 8}', tag='wd')
        a(f's_mul_i32 s3, s{sW}, 5120')
        a(f'v_add_u32 v{FA}, s3, v13')
        a('v_lshrrev_b32 v14, 2, v13')
        a(f'v_add_u32 v14, s{sM0}, v14')
        mo = [4, 2, 3, 0, 1]
        for _ in range(5):
            yield
            if 5 - len(mo) < CFG['m0s']:
                n = mo.pop(0)
                P1['take'](MP[n])
                load_m_raw(n, 0, 13)
        yield
        signal(1, 11, 14)
        store = P1['store']
        FS = CFG['fs']
        if FS:
            for n in range(10):
                a(f's_waitcnt lgkmcnt({9 - n})')
                store()
            store = lambda: None
            G.tl_mark(a, 76, 21, 1, RT + 2)
        yield
        st['raw'] = True
        a('s_setprio 3')
        a(f'v_mov_b32 v92, v{T16}')
        a('v_mov_b32 v93, v6')
        a('v_mov_b32 v94, v13')
        a('v_mov_b32 v95, v5')
        P1['t16'](92)
        store()
        store()
        a(f'v_mov_b32 v{LA}, v14')
        a(f'v_lshl_add_u32 v{PA}, v13, 3, s{sM0}')
        a('v_lshrrev_b32 v16, 2, v15')
        a(f'v_mad_u32_u24 v{CBB}, v16, 5, v{CBB}')
        a(f'v_or_b32 v{CBB}, 0xf0000000, v{CBB}')
        a(f'v_or_b32 v{CBA}, 0xf0000000, v{CBA}')
        a(f'v_sub_u32 v{SHL}, 28, v16')
        a('v_lshrrev_b32 v17, 2, v16')
        G.ident(a, ID, 18, 17)
        G.ident(a, NID, 18, 17, neg=True)
        a(f'v_mov_b32 v{KF0}, 0xf0000000')
        a(f'v_mov_b32 v{KAD}, 0x1fff8')
        a(f'v_mov_b32 v{KCM}, 0x07ff0000')
        for n in range(4):
            a(f'v_mov_b32 v{16 + n}, 0')
        a(f'v_add_u32 v20, {G.A_BASE}, v92')
        a(f'v_add_u32 v21, 0x10000, v20')
        for n in range(5):
            store()
            if n == 2:
                a('s_setprio 2')
            a(f'ds_write_b128 v20, v[16:19] offset:{n * 16384}' if n < 4 else 'ds_write_b128 v21, v[16:19]')
        a('s_setprio 1')
        for n in range(3):
            store()
        if not FS:
            G.tl_mark(a, 76, 21, 1, RT + 2)
        a('s_setprio 0')
        for k in range(4):
            a(f's_mov_b32 s{sP[k]}, {0x04000c0c | (k << 16):#x}')
        a(f's_mov_b32 s{sSlow}, 0')
        a(f's_mov_b32 s{sPH}, 0')
        a(f's_mov_b64 {PEND}, 0')
        a(f's_mov_b64 {INJ}, 0')
        a(f's_mov_b64 {INJ1}, 0')
        G.srd(a, 16, 30, G.MD_OFF, G.MD_SZ)
        G.srd(a, 20, 30, G.PART_OFF, 80000)
        a(f's_lshl_b32 s3, s{sQ}, 6')
        a(f's_add_u32 s3, s3, s{sOB}')
        a('s_mul_i32 s3, s3, 80000')
        a('s_add_u32 s20, s20, s3')
        a('s_addc_u32 s21, s21, 0')
        for n in range(8):
            a(f'v_mov_b32 v{OLD[0] + n}, 0')
        a('s_waitcnt vmcnt(0)')
        a(f'v_lshl_or_b32 v{WD}, v{wb + 1}, 16, v{wb}')
        a(f'v_lshl_or_b32 v{WD + 1}, v{wb + 3}, 16, v{wb + 2}')
        G.tl_end(a, mid=True)
        if CFG['ab'] & 64:
            a('s_endpgm')
        a('s_barrier')
        signal(2, RT, LA)
        for _ in range(min(CFG['m0e'], len(mo))):
            load_m_raw(mo.pop(0), 0, 94)
        a(f's_cmp_eq_u32 s{sE}, 0')
        a('s_cbranch_scc1 L2_e3')
        a('v_lshlrev_b32 v16, 3, v94')
        a('v_and_b32 v16, 0x80, v16')
        a.label('L2_e4')
        a(f'buffer_load_dword v{RT}, v16, s[68:71], 0 offen sc1')
        a('s_waitcnt vmcnt(0)')
        a(f'v_cmp_gt_u32 vcc, 0x80, v{RT}')
        a('s_cbranch_vccnz L2_e4')
        a.label('L2_e3')
        poll(1, 'L2_p1')
        a(f'v_cmp_gt_u32 vcc, 2, v{RT}')
        a(f's_and_b32 s{sE}, vcc_lo, 0xffff')
        for k in (0, 2, 1, 3):
            a(f'buffer_load_dwordx4 {vr(DA + 4 * k, 4)}, v95, s[12:15], s{sTab} offen offset:{16 * k}', tag='D')
        a(f'buffer_load_dwordx4 {vr(DB, 4)}, v93, s[12:15], s{sTab} offen', tag='D')
        while mo:
            load_m_raw(mo.pop(0), 0, 94)
        G.tl_mark(a, 76, 22, 1, RT)
        x_pre(0)
        x_list(0, EN, 0)
        x_pre(1)
        a.wait_lg('L')
        for g in range(4):
            a(f'v_mov_b32 v{EC[g]}, v{EN[g]}')
        x_list(1, EN, 1)
        for n in (4, 2, 3, 0, 1):
            fill(n)
        G.tl_mark(a, 76, 23, 1, RT)
        if CFG['r0pre']:
            a(f's_cmp_eq_u32 s{sE}, 0')
            a('s_cbranch_scc1 L2_e2')
        a('s_mov_b64 exec, 0xffff')
        a(f'buffer_load_dword v{RT}, v{PA}, s[60:63], 0 offen sc1')
        a('s_mov_b64 exec, -1')
        if not CFG['r0pre']:
            a('s_waitcnt lgkmcnt(0)')
            a('s_barrier')
            G.tl_mark(a, 76, 24, 1, RT + 2)
        a('s_waitcnt vmcnt(0)')
        a(f'v_cmp_gt_u32 vcc, 2, v{RT}')
        a(f's_and_b32 s{sE}, vcc_lo, 0xffff')
        a('s_cbranch_scc0 L2_e2')
        for n in (4, 2, 3, 0, 1):
            load_m_raw(n, 1, 94)
        poll(2, 'L2_p2')
        a.label('L2_e2')
        G.tl_start(a, mid=True)
        load_own(0)
        if CFG['r0pre']:
            a('s_waitcnt lgkmcnt(0)')
            a('s_barrier')
            G.tl_mark(a, 76, 24, 1, RT + 2)
    else:
        if CFG['stamp']:
            for i in range(8):
                a(f's_mov_b32 s{60 + i}, 0')
            a('s_mov_b32 s73, 0')
            stamp(7)
            a('s_mov_b32 s67, 0')

        for n in range(8):
            a(f'v_mov_b32 v{OLD[0] + n}, 0')
        a(f'v_add_u32 v24, {G.A_BASE}, v24')
        for n in range(4):
            a(f'ds_write_b128 v24, {vr(OLD[0], 4)} offset:{n * 16384}')
        a(f'v_add_u32 v{AI}, 0x10000, v24')
        a(f'ds_write_b128 v{AI}, {vr(OLD[0], 4)}')
        G.tl_mark(a, 76, 21, 1, RT)
        a.wait_vm('D')
        G.tl_mark(a, 76, 22, 1, RT)
        if CFG['dq']:
            Z = 26
            for src, dst, bit, qp, ev in ((DA, Z, 1, '[1,0,3,2]', 0x55555555), (Z, DA, 2, '[2,3,0,1]', 0x33333333)):
                for par in range(2):
                    m = ev if par == 0 else ev ^ 0xffffffff
                    a(f's_mov_b32 vcc_lo, {m:#x}')
                    a(f's_mov_b32 vcc_hi, {m:#x}')
                    n = 0
                    for k in range(4):
                        if bool(k & bit) != bool(par):
                            continue
                        for r in range(4):
                            a(f'v_cndmask_b32_dpp v{dst + 4 * k + r}, v{src + 4 * (k ^ bit) + r}, v{src + 4 * k + r}, vcc quad_perm:{qp} row_mask:0xf bank_mask:0xf')
                            n += 1
                            if CFG['dq'] == 2 and n % 2 == 0:
                                a(f'v_mov_b32 v{RT}, 0')
                                a(f'v_mov_b32 v{RT + 1}, 0')
        x_pre(0)
        x_list(0, EN, 0)
        x_pre(1)
        a.wait_lg('L')
        G.tl_mark(a, 76, 23, 1, RT)
        for g in range(4):
            a(f'v_mov_b32 v{EC[g]}, v{EN[g]}')
        if CFG['pprio'] < 2:
            load_own(0)
        for g in range(1, 4):
            fill((4, 2, 3)[g - 1])
            if ipos[g - 1] < 0 or CFG['ab_norec']:
                load_own(g)
        x_list(1, EN, 1)
        fill(0)
        fill(1)
        if CFG['pprio'] == 2:
            load_own(0)
        a('s_waitcnt lgkmcnt(0)')
        G.tl_mark(a, 76, 24, 1, RT)
        if CFG['ab_norec']:
            a('s_waitcnt vmcnt(0)')
        stamp(0)
    st['inloop'] = True
    prio1 = [int(x) for x in CFG['pr'].split()]
    sites = []
    FW, FM, FD, FL, FG = 48, [108, 112], [116, 117], [118, 119], [120, 121]

    def fin_preload():
        a(f's_lshl_b32 s3, s{sW}, 12')
        a(f'v_subrev_u32 v122, s3, v{FA}')
        a(f's_mul_i32 s3, s{sQ}, 20000')
        a(f'v_add_u32 v{FL[0]}, s3, v122')
        a(f'v_add_u32 v{FL[1]}, 0x4000, v{FL[0]}')
        a(f's_lshl_b32 s3, s{sOB}, 7')
        for r in range(2):
            a(f'v_lshrrev_b32 v123, 7, v{FL[r]}')
            a(f'v_and_b32 v{FG[r]}, 0x70, v{FL[r]}')
            a(f'v_lshl_add_u32 v{FG[r]}, v123, 13, v{FG[r]}')
            a(f'v_add_u32 v{FG[r]}, s3, v{FG[r]}')
        a(f'v_cmp_le_u32 vcc, {20000 - 16384}, v122')
        a('s_mov_b64 exec, vcc')
        a(f'v_mov_b32 v{FL[1]}, 2.0')
        a(f'v_mov_b32 v{FG[1]}, 2.0')
        a('s_mov_b64 exec, -1')
        a('v_and_b32 v123, 0x30, v122')
        a('v_lshlrev_b32 v123, 2, v123')
        a(f'buffer_load_dwordx4 {vr(FW, 4)}, v123, s[24:27], 0 offen', tag='fin')
        a(f'buffer_load_dwordx4 {vr(FW + 4, 4)}, v123, s[24:27], 0 offen offset:16', tag='fin')
        a(f'buffer_load_dwordx2 {vr(FW + 8, 2)}, v123, s[24:27], 0 offen offset:32', tag='fin')
        G.srd(a, 12, 4, 0, G.E * 2)
        G.srd(a, 16, 28, 0, G.E * 8)
        for r in range(2):
            a(f'v_lshrrev_b32 v123, 2, v{FG[r]}')
            a(f'buffer_load_dword v{FD[r]}, v123, s[12:15], 0 offen', tag='fin')
            a(f'buffer_load_dwordx4 {vr(FM[r], 4)}, v{FG[r]}, s[16:19], 0 offen', tag='fin')

    def phase(jj, kind):
        first, more1, more2 = kind == 'first', kind != 'last', kind in ('first', 'second', 'mid')
        second = kind == 'second'
        a.c(f'==== phase jj={jj} {kind}')
        if not (first and P1) and (first or not CFG['ab'] & 1):
            a('s_barrier')
        stamp(5)
        G.tl_mark(a, 76, f's{sPH}', 1, RT)
        site = len(sites)
        sites.append(site)
        a(f's_bitcmp1_b32 s{sSlow}, s{sPH}')
        a('s_cbranch_scc1 L2_slow')
        a.label(f'L2_ret{site}')
        hs = [None]
        st['m0'] = None

        def dhook():
            if hs[0] is None:
                return
            if CFG['sprio']:
                a(f's_setprio {3 - hs[0]}')
            for n in (4, 2, 3, 0, 1):
                if dpos[n] == hs[0]:
                    fill(n)
                    if mpos[n] < 0 and more2:
                        load_m(n)
            hs[0] += 1

        def rhook(pos):
            if first and not CFG['ab_norec']:
                if pos == 7 and CFG['pprio'] == 3:
                    load_own(0)
                for g in range(1, 4):
                    if ipos[g - 1] == pos:
                        load_own(g)
            elif second:
                for g in range(1, 3):
                    if fpos[g] == 9 and ipos2[g - 1] == pos:
                        load_own(g)
                if ipos2[2] == pos:
                    load_rec(3)
            elif rpos[3] in (pos, pos + 8):
                load_rec(3)
            if not more1:
                if pos == 1 and CFG['fuse']:
                    fin_preload()
                return
            for n in (4, 2, 3, 0, 1):
                if (fmpos if first else mpos)[n] == pos and not (first and P1):
                    load_m(n)
                elif first and P1 and fmpos[n] == pos:
                    uid[0] += 1
                    a(f'v_and_b32 v{AI}, 0x3f0, v{FA}')
                    a('s_cmp_lg_u32 s56, 0')
                    a(f's_cbranch_scc1 L2_m{uid[0]}')
                    vm, nvm = list(a.vm), a.nvm
                    load_m_raw(n, 1, AI)
                    a.vm, a.nvm = vm, nvm
                    st[('rawn', n)] = a.nvm
                    a.label(f'L2_m{uid[0]}')
            if pos == 5:
                next_m(jj + 1)
            for g in range(3):
                if (fpos if first else fpos2 if second else rpos)[g] == pos:
                    load_rec(g)
                if first and fpos[g] == 9 and pos == 6:
                    a(f'v_mov_b32 v{EC[g]}, v{EN[g]}')

        for i, b in enumerate(order):
            if b == b1_step and more1:
                a.wait_lg(('m', 7))
                stamp(1)
                if not CFG['ab'] & 2:
                    a('s_barrier')
                stamp(2)
                hs[0] = 0
                dhook()
            if (i == 0 or prio1[i] != prio1[i - 1]) and not (CFG['sprio'] and b == b1_step):
                a(f's_setprio {prio1[i]}')
            if b != 7:
                step_a(b)
            if b == CFG['xpre'] and more2 and not CFG['ab'] & 4:
                x_pre((jj + 2) & 3)
            rhook(b)
            if b == b1_step and more2 and not CFG['ab'] & 4:
                x_list((jj + 2) & 3, EN, 2)
            elif b == b1_step and more1:
                a(f'v_mov_b32 v{ES}, v{EN[3]}')
            dhook()
            if first and b == 7:
                gather(0, 7)
                dec_ao(0)
                dec_c1(0)
            else:
                step_b(b, mid=dhook)
            dhook()
        step_a(7)
        if more1:
            assert hs[0] > max(dpos)
            a(f's_add_u32 s{sPH}, s{sPH}, 1')
            a.wait_lg('F')
            stamp(4)

    phase(0, 'first')
    st['raw'] = False
    if P1:
        G.srd(a, 24, 30, G.WT_OFF, G.WT_SZ)
    phase(1, 'second')
    a.vm = merge_vm(a.vm, G.MEMO.get('back', []))
    head_vm, head_lg = list(a.vm), list(a.lg)
    a.label('L2_loop')
    for jj in (2, 3, 0, 1):
        phase(jj, 'mid')
    assert 'back' not in G.MEMO or merge_vm(head_vm, a.vm) == head_vm, (a.vm, head_vm)
    G.MEMO['back'] = list(a.vm)
    assert a.lg == head_lg
    a(f's_cmp_lg_u32 s{sPH}, 14')
    a('s_cbranch_scc1 L2_loop')
    phase(2, 'penult')
    phase(3, 'last')
    step_b(7, final=True)
    a.wait_lg('x')
    check(7, 1)
    check(7, 0)
    for ln in flush_pend(PEND):
        a(ln)
    a('s_mov_b64 exec, -1')
    if True:
        a('s_load_dwordx2 s[4:5], s[0:1], 88')
        for n in range(1, 5):
            a(f'v_add_u32 v{122 + n}, {n * 16384}, v122')
        for n in range(4):
            a(f's_lshl_b32 s{50 + 2 * n}, s{96 + n}, 16')
            a(f's_and_b32 s{51 + 2 * n}, s{96 + n}, 0xffff0000')
        a('s_waitcnt vmcnt(0) lgkmcnt(0)')
        a('s_barrier')
        G.tl_mark(a, 76, 16, 1, 106)
        a('v_add_u32 v36, 0x8000, v126')
        for n in range(5):
            if n < 3:
                a(f'ds_read_b128 {vr(16 + 4 * n, 4)}, v126 offset:{G.A_BASE - 65536 + n * 16384}')
            else:
                a(f'ds_read_b128 {vr(16 + 4 * n, 4)}, v36 offset:{G.A_BASE - 98304 + n * 16384}')
        G.srd(a, 8, 30, G.FLAG_OFF, G.FLAG_SZ)
        G.srd(a, 12, 4, 0, G.E * 8)
        a(f's_mul_i32 s3, s{sQ}, 20000')
        for n in range(5):
            a(f'v_subrev_u32 v36, s3, v{122 + n}')
            a('v_cmp_le_u32 vcc, 20000, v36')
            a(f's_waitcnt lgkmcnt({4 - n})')
            a('s_mov_b64 exec, vcc')
            a(f'buffer_store_dwordx4 {vr(16 + 4 * n, 4)}, v{122 + n}, s[20:23], 0 offen sc1', tag='st')
            a('s_mov_b64 exec, -1')
        GH = [80, 16]
        G.fin_gates(a, FD[0], 50, FW, GH[0], 60)
        if not CFG['g1late']:
            a(f's_cmp_ge_u32 s{sW}, 4')
            a('s_cbranch_scc1 L2_f1')
            G.fin_gates(a, FD[1], 50, FW, GH[1], 60)
            a.label('L2_f1')
        PL = [32, 60]
        for r in range(2):
            a(f'v_add_u32 v104, {G.A_BASE}, v{FL[r]}')
            a(f'ds_read_b128 {vr(PL[r], 4)}, v104')
        G.srd(a, 20, 30, G.PART_OFF, G.PART_SZ)
        for k in range(1, 4):
            a(f's_add_u32 s3, s{sQ}, {k}')
            a('s_and_b32 s3, s3, 3')
            a('s_lshl_b32 s3, s3, 6')
            a(f's_add_u32 s3, s3, s{sOB}')
            a(f's_mul_i32 s{43 + k}, s3, 80000')
        a(f's_lshl_b32 s3, s{sOB}, 9')
        a(f's_lshl_b32 s4, s{sQ}, 7')
        a('s_add_u32 s4, s4, s3')
        a('v_mov_b32 v104, 1')
        a('v_lshlrev_b32 v105, 3, v122')
        G.tl_mark(a, 76, 17, 1, 106)
        a('s_waitcnt vmcnt(0)')
        a('s_barrier')
        G.tl_mark(a, 76, 18, 1, 106)
        a(f's_cmp_lg_u32 s{sW}, 0')
        a('s_cbranch_scc1 L2_f2')
        a('s_mov_b64 exec, 1')
        a('buffer_store_dword v104, off, s[8:11], s4 sc1')
        a('s_mov_b64 exec, 15')
        a(f's_bitset0_b64 exec, s{sQ}')
        a.label('L2_f3')
        a('buffer_load_dword v104, v105, s[8:11], s3 offen sc1')
        a('s_waitcnt vmcnt(0)')
        a('v_cmp_ne_u32 vcc, 1, v104')
        a('s_cbranch_vccnz L2_f3')
        a.label('L2_f4')
        a('s_mov_b64 exec, -1')
        a.label('L2_f2')
        a('s_barrier')
        G.tl_mark(a, 76, 19, 1, 106)
        for r in range(2):
            if r:
                a(f's_cmp_ge_u32 s{sW}, 4')
                a('s_cbranch_scc1 L2_f5')
            for k in range(1, 4):
                a(f'buffer_load_dwordx4 {vr(PL[r] + 4 * k, 4)}, v{FL[r]}, s[20:23], s{43 + k} offen sc1')
        if CFG['g1late']:
            G.fin_gates(a, FD[1], 50, FW, GH[1], (96, 0, [104, 76]))
        a.label('L2_f5')
        a('s_waitcnt vmcnt(0) lgkmcnt(0)')
        G.tl_mark(a, 76, 20, 1, 106)
        for r in range(2):
            if r:
                a(f's_cmp_ge_u32 s{sW}, 4')
                a('s_cbranch_scc1 L2_f6')
            G.fin_out(a, PL[r], GH[r], FW, ID, FM[r], 96)
            a(f'buffer_store_dwordx4 {vr(PL[r] + 4, 4)}, v{FG[r]}, s[12:15], 0 offen{CFG["out_pol"]}')
        a.label('L2_f6')
    G.tl_end(a)
    if CFG['stamp']:
        a('s_waitcnt vmcnt(0)')
        stamp(6)
        a('s_load_dwordx2 s[74:75], s[0:1], 96')
        a('s_waitcnt lgkmcnt(0)')
        G.srd(a, 76, 74, 0, 256)
        a(f's_cmp_lg_u32 s2, {CFG["stamp"]}')
        a('s_cbranch_scc1 L2_end')
        a(f's_and_b32 s3, s{sW}, 3')
        a('s_cmp_lg_u32 s3, 0')
        a('s_cbranch_scc1 L2_end')
        a(f's_lshl_b32 s3, s{sW}, 3')
        a('v_mov_b32 v20, 0')
        for i in range(8):
            a(f'v_mov_b32 v21, s{60 + i}')
            a(f'buffer_store_dword v21, v20, s[76:79], s3 offen offset:{4 * i}')
    a.label('L2_end')
    a('s_endpgm')

    a.label('L2_slow')
    a.reset()
    sC, sS, sE, sO = 50, 51, 52, 53
    pp, t_, wa, ba, w_, b_, ao, c_, ai_ = 102, 103, 104, 105, 106, 107, 96, 97, 98
    m_ = MR[0][0]
    a(f's_lshr_b32 s{sSP}, s{sPH}, 2')
    a(f's_lshl_b32 s{sC}, s{sW}, 4')
    a(f's_and_b32 s3, s{sPH}, 3')
    a(f's_lshl_b32 s{sO}, s3, 3')
    a(f's_add_u32 s{sO}, s{sO}, s{sTab}')
    a(f's_and_b32 s3, s{sSP}, 2')
    a('s_lshl_b32 s3, s3, 1')
    a(f's_add_u32 s{sO}, s{sO}, s3')
    a(f's_and_b32 s54, s{sSP}, 1')
    a('s_lshl_b32 s54, s54, 4')
    a.label('L2_sl_seg')
    a(f's_mul_i32 s55, s{sC}, {G.BLK}')
    a(f's_and_b32 s3, s{sC}, 3')
    a('s_lshl_b32 s3, s3, 5')
    a('s_add_u32 s3, s3, s55')
    a(f's_add_u32 s3, s3, s{sO}')
    a(f'buffer_load_dword v{wa}, off, s[12:15], s3 sc1')
    a(f'buffer_load_dword v{ba}, off, s[12:15], s3 offset:32 sc1')
    a('s_waitcnt vmcnt(0)')
    a(f'v_readfirstlane_b32 s{sS}, v{wa}')
    a(f'v_readfirstlane_b32 s{sE}, v{ba}')
    a(f's_lshr_b32 s{sS}, s{sS}, s54')
    a(f's_and_b32 s{sS}, s{sS}, 0xffff')
    a(f's_lshr_b32 s{sE}, s{sE}, s54')
    a(f's_and_b32 s{sE}, s{sE}, 0xffff')
    a.label('L2_sl_rec')
    a(f's_cmp_ge_u32 s{sS}, s{sE}')
    a('s_cbranch_scc1 L2_sl_next')
    a(f'v_mbcnt_lo_u32_b32 v{pp}, -1, 0')
    a(f'v_mbcnt_hi_u32_b32 v{pp}, -1, v{pp}')
    a(f'v_add_u32 v{pp}, s{sS}, v{pp}')
    a(f'v_and_b32 v{t_}, -4, v{pp}')
    a(f'v_lshl_add_u32 v{wa}, v{pp}, 2, v{t_}')
    a(f'v_lshl_add_u32 v{ba}, v{t_}, 2, v{pp}')
    a(f'v_cmp_gt_u32 vcc, s{sE}, v{pp}')
    a('s_mov_b64 exec, vcc')
    a(f'buffer_load_dword v{w_}, v{wa}, s[8:11], s55 offen')
    a(f'buffer_load_ubyte v{b_}, v{ba}, s[8:11], s55 offen offset:16')
    a('s_waitcnt vmcnt(0)')
    a(f'v_lshrrev_b32 v{ai_}, 14, v{w_}')
    a(f'v_and_b32 v{ai_}, v{KAD}, v{ai_}')
    a(f'ds_read_b64 {vr(m_, 2)}, v{ai_}')
    a(f'v_perm_b32 v{c_}, v{w_}, v{b_}, s{sP[0]}')
    a(f'v_and_b32 v{ao}, v{KAD}, v{w_}')
    a(f'v_bitop3_b32 v{t_}, v{w_}, 0.5, -0.5 bitop3:{ORAND:#x}')
    a(f'v_bitop3_b32 v{c_}, v{KCM}, v{c_}, v{t_} bitop3:{SEL:#x}')
    a('s_waitcnt lgkmcnt(0)')
    a(f'{MF} {vr(RT, 4)}, {vr(WD, 2)}, {vr(m_, 2)}, 0')
    for n in range(4):
        a(f'v_mul_f32 v{RT + n}, v{c_}, v{RT + n}')
    a(f'v_cvt_pk_bf16_f32 v{RT}, v{RT}, v{RT + 1}')
    a(f'v_cvt_pk_bf16_f32 v{RT + 1}, v{RT + 2}, v{RT + 3}')
    a(f'ds_pk_add_bf16 v{ao}, v{RT} offset:{G.A_OFFS}')
    a(f'ds_pk_add_bf16 v{ao}, v{RT + 1} offset:{G.A_OFFS + 4}')
    a('s_mov_b64 exec, -1')
    a(f's_add_u32 s{sS}, s{sS}, 64')
    a('s_branch L2_sl_rec')
    a.label('L2_sl_next')
    a(f's_add_u32 s{sC}, s{sC}, 1')
    a(f's_and_b32 s3, s{sC}, 15')
    a('s_cbranch_scc1 L2_sl_seg')
    a(f's_add_u32 s{sC}, s{sC}, 240')
    a(f's_cmp_lt_u32 s{sC}, {G.NCH}')
    a('s_cbranch_scc1 L2_sl_seg')
    a('s_waitcnt lgkmcnt(0)')
    for ph, k in ((0, 0), (1, 1), (14, 6), (15, 7)):
        a(f's_cmp_eq_u32 s{sPH}, {ph}')
        a(f's_cbranch_scc1 L2_ret{k}')
    a(f's_and_b32 s3, s{sPH}, 3')
    for ph, k in ((2, 2), (3, 3), (0, 4)):
        a(f's_cmp_eq_u32 s3, {ph}')
        a(f's_cbranch_scc1 L2_ret{k}')
    a('s_branch L2_ret5')
    for bl in ool:
        for ln in bl:
            if ln.endswith(':'):
                a.label(ln[:-1])
                a.reset()
            else:
                a(ln)
    yield name
```

```python
from asmlib import vr, sr

MF = 'v_mfma_f32_4x4x4_16b_bf16'


def gen_p1(a, G, gen_p2=None):
    name = G.NAME + '_kernel' if gen_p2 else 'gs_sort_kernel'
    CFG = G.CFG
    SEL, ANDOR = G.SEL, G.ANDOR
    srd, tl_mark = G.srd, G.tl_mark
    T, E, CH, BLK = G.T, G.E, G.CH, G.BLK
    NW, NK = 256, 5
    G.kernel_head(a, name)
    a('s_cmp_ge_u32 s2, 256')
    a('s_cbranch_scc0 L1_go')
    a('s_endpgm')
    a.label('L1_go')
    G.tl_start(a)
    if CFG['wgx']:
        a(f's_xor_b32 s2, s2, {CFG["wgx"]}')
    a('s_load_dwordx4 s[4:7], s[0:1], 8')
    a('s_load_dwordx2 s[28:29], s[0:1], 32')
    a('s_load_dwordx2 s[30:31], s[0:1], 104')
    a('s_load_dwordx2 s[56:57], s[0:1], 96')
    a('s_load_dwordx2 s[86:87], s[0:1], 0')
    a('s_load_dwordx4 s[60:63], s[0:1], 56')
    a('s_load_dwordx4 s[64:67], s[0:1], 72')
    T16, T8, ONE, K1F, K87, KFC, K78 = 0, 1, 2, 3, 4, 5, 6
    t = list(range(7, 16))
    sW, sI, sA, sR, sT, sTmp, sI4, sA4 = 32, 33, 34, 35, 36, 37, 38, 39
    sKB, sP1, sP3, sNQ, sM10, sI5, sA5, sTK = 40, 41, 42, 43, 55, 58, 59, 84
    a('v_lshrrev_b32 v7, 6, v0')
    a(f'v_lshlrev_b32 v{T8}, 3, v0')
    a(f'v_readfirstlane_b32 s{sW}, v7')
    a(f'v_lshlrev_b32 v{T16}, 4, v0')
    IL = CFG['il']
    CUT = [int(x) for x in CFG['cut'].split()]
    assert sum(CUT) == 528 and sorted(CUT) == CUT and CUT[2] <= 256

    def qoff(k, j):
        if not IL:
            return ((2, j) if j >= 5 else (1, j)) if k == NK - 1 else (0, k * NW * 8 + j)
        if k == NK - 1 and j >= 5:
            return 2, 9472 + sum(CUT[::-1][:j - 5])
        return 0, (k * 8 + j) * NW
    ILW = CFG['ilw'] and IL == 1
    if ILW:
        a(f'v_and_b32 v{T8}, 0x1f8, v{T8}')
        a(f'v_lshlrev_b32 v15, 1, v{T8}')
        for v in range(4):
            if CFG['ilw'] == 1:
                a(f's_xor_b32 s3, s{sW}, {(v & 1) << 3}')
            elif CFG['ilw'] == 2:
                a(f's_lshr_b32 s3, s{sW}, 1')
                a(f's_and_b32 s44, s{sW}, 1')
                a('s_lshl_b32 s44, s44, 3')
                a('s_or_b32 s3, s3, s44')
            elif CFG['ilw'] == 3:
                a(f's_lshr_b32 s3, s{sW}, 1')
                a(f's_and_b32 s44, s{sW}, 1')
                a('s_lshl_b32 s44, s44, 3')
                a('s_or_b32 s3, s3, s44')
                a(f's_xor_b32 s3, s3, {(v & 1) << 3}')
            else:
                a(f's_xor_b32 s3, s{sW}, {(v & 2) << 2}')
            a('s_lshl_b32 s3, s3, 10')
            a(f's_lshl_b32 s{96 + v}, s2, 14')
            a(f's_add_u32 s{96 + v}, s{96 + v}, s3')
    elif IL >= 2:
        for v in range(4):
            a(f's_xor_b32 s44, s2, {v << 3 if CFG["ilx"] else 0}')
            a(f's_lshr_b32 s3, s44, {IL}')
            a(f's_lshl_b32 s{96 + v}, s3, {14 + IL}')
            a(f's_and_b32 s3, s44, {(1 << IL) - 1}')
            a('s_lshl_b32 s3, s3, 10')
            a(f's_add_u32 s{96 + v}, s{96 + v}, s3')
            a(f's_mul_i32 s3, s{sW}, {1024 * ((1 << IL) - 1)}')
            a(f's_add_u32 s{96 + v}, s{96 + v}, s3')
    else:
        a(f's_mul_i32 s{sI}, s2, {16384 if IL else CH * 4}')
        a(f's_mul_i32 s{sA}, s2, {8192 if IL else CH * 2}')
    a('s_waitcnt lgkmcnt(0)')
    srd(a, 8, 4, 0, T * 4)
    srd(a, 12, 6, 0, T * 4)
    srd(a, 16, 28, 0, T * 2)

    ren = G.MEMO.get('ren', {})
    pool = [ren.get(16 + 4 * i, 16 + 4 * i) for i in range(28)]
    items = []
    for k in range(NK):
        for o in range(4):
            items += [(k, 'I', 2 * o), (k, 'O', 2 * o), (k, 'A', o), (k, 'I', 2 * o + 1), (k, 'O', 2 * o + 1)]
    where = {}
    st = dict(next=0, tmp=0)

    def soff(base, off):
        r = 44 + st['tmp'] % 4
        st['tmp'] += 1
        a(f's_add_u32 s{r}, s{base}, {off:#x}')
        return r

    def gate(j, word):
        a(f's_cmp_le_u32 s{sNQ}, {j}')
        a(f's_cselect_b32 s{word}, 0, s{word}')

    def issue(n, limit):
        while n > 0 and st['next'] < min(limit, len(items)) and pool:
            it = items[st['next']]
            st['next'] += 1
            n -= 1
            b = pool.pop(0)
            where[it] = b
            k, kind, j = it
            lastk = k == NK - 1
            if kind == 'A':
                for h in range(2):
                    if lastk and 2 * j + h >= 5:
                        assert st.get('assigned') or not CFG['dyn']
                        gate(2 * j + h, 18)
                    bs, qo = qoff(k, 2 * j + h)
                    if (IL >= 2 or ILW) and bs == 0:
                        r = soff(96 + ((2 * j + h) & 3), qo * 16384)
                        a(f's_lshr_b32 s{r}, s{r}, 1')
                    else:
                        r = soff((sA, sA4, sA5)[bs], qo * 8192)
                    a(f'buffer_load_dwordx2 {vr(b + 2 * h, 2)}, v{T8}, s[16:19], s{r} offen{CFG["ld_pol"]}', tag=it)
            else:
                s = 8 if kind == 'I' else 12
                if lastk and j >= 5:
                    gate(j, s + 2)
                bs, qo = qoff(k, j)
                r = soff((96 + (j & 3) if IL >= 2 or ILW else sI, sI4, sI5)[bs], qo * 16384)
                if ILW:
                    a(f'v_lshlrev_b32 v{b}, 1, v{T8}')
                a(f'buffer_load_dwordx4 {vr(b, 4)}, v{b if ILW else T16}, s[{s}:{s+3}], s{r} offen{CFG["ld_pol"]}', tag=it)

    if not gen_p2:
        issue(CFG['p1_first'], 20)
    srd(a, 68, 62, 0, 64)
    srd(a, 72, 60, 0, 64)
    srd(a, 20, 66, 0, 32)
    srd(a, 80, 64, 0, 32)
    srd(a, 24, 30, G.WT_OFF, G.WT_SZ)
    a(f'v_lshrrev_b32 v2, 3, v{T16}')
    a('v_and_b32 v2, 6, v2')
    a(f'v_lshlrev_b32 v3, 2, v{T16}')
    a(f's_lshl_b32 s3, s{sW}, 8')
    a('s_add_u32 s3, s3, s2')
    a('s_cmp_lg_u32 s3, 254')
    a('s_cbranch_scc1 L1_wt')
    vm = list(a.vm)
    assert min(pool) <= 96 and all(b in pool for b in range(96, 128, 4))

    def load_wt(dst, s, k0):
        for k in range(4):
            a(f'buffer_load_ushort v{(dst + (k >> 1)) + 12 * (k & 1)}, v2, s[{s}:{s+3}], 0 offen offset:{(k0 + k) * 8}', tag='w')
    load_wt(96, 68, 0)
    load_wt(98, 68, 4)
    load_wt(100, 72, 0)
    load_wt(102, 72, 4)
    load_wt(104, 20, 0)
    load_wt(106, 80, 0)
    a.wait_vm('w')
    for i in range(96, 108):
        a(f'v_lshl_or_b32 v{i}, v{i + 12}, 16, v{i}')
    for n in range(3):
        a(f'buffer_store_dwordx4 {vr(96 + 4 * n, 4)}, v3, s[24:27], 0 offen offset:{16 * n} sc1', tag='st')
    a.vm = vm
    a.label('L1_wt')
    if gen_p2:
        a('s_nop 1')
        issue(CFG['p1_first'], 20)
    srd(a, 20, 30, G.REC_OFF - 16384, G.REC_SZ + 16384)
    srd(a, 24, 30, G.TAB_OFF, G.TAB_SZ)
    sKO = [72, 73, 85, 91, 93]
    if CFG['stp']:
        for j in range(5):
            a(f's_add_u32 s3, s{sW}, {16 * j}')
            a('s_mul_i32 s4, s3, 205')
            a('s_lshr_b32 s4, s4, 10')
            a('s_mul_i32 s5, s4, 5')
            a('s_sub_u32 s5, s3, s5')
            a('s_lshl_b32 s5, s5, 5')
            a('s_add_u32 s4, s4, s5')
            a(f's_sub_u32 s4, s4, s{sW}')
            a(f's_lshl_b32 s{sKO[j]}, s4, 10')
    srd(a, 80, 86, 0, E * 8)
    mc = {}

    MCN = CFG['mcn']
    MCP = 5120 // MCN
    MCH = (MCP + 15) // 16
    sMC = sTK if MCN < 256 else 2

    def mcopy_load():
        mc['b'] = [pool.pop(0) for _ in range(MCH)]
        a(f'v_lshrrev_b32 v15, 2, v{T16}')
        a(f'v_and_b32 v15, v{KFC}, v15')
        a(f's_cmp_ge_u32 s{sMC}, {MCN}')
        a('s_cselect_b32 s82, 0, s82')
        for h in range(MCH):
            a(f's_and_b32 s3, s{sMC}, {MCN // 64 - 1}')
            a(f's_mul_i32 s3, s3, {MCP}')
            a(f's_add_u32 s3, s3, s{sW}')
            if h:
                a(f's_add_u32 s3, s3, {16 * h}')
            if 16 * h + 16 > MCP:
                a(f's_cmp_ge_u32 s{sW}, {MCP - 16 * h}')
                a('s_cselect_b32 s82, 0, s82')
            a('s_mul_i32 s4, s3, 205')
            a('s_lshr_b32 s4, s4, 10')
            a('s_mul_i32 s5, s4, 5')
            a('s_sub_u32 s5, s3, s5')
            a('s_lshl_b32 s6, s4, 1')
            a('s_add_u32 s6, s6, s5')
            a('s_add_u32 s7, s6, s4')
            a('s_add_u32 s7, s7, 30')
            a('s_cmp_lt_u32 s5, 2')
            a('s_cselect_b32 s6, s6, s7')
            a('s_lshl_b32 s6, s6, 10')
            a(f's_lshr_b32 s7, s{sMC}, {(MCN // 64).bit_length() - 1}')
            a('s_mul_i32 s7, s7, 80000')
            a('s_add_u32 s6, s6, s7')
            for jd in range(4):
                a(f'buffer_load_dword v{mc["b"][h] + jd}, v15, s[80:83], s6 offen offset:{256 * jd}', tag='mc')

    def mcopy_store():
        srd(a, 80, 30, G.MD_OFF, MCP * 1024)
        a(f's_min_u32 s3, s{sMC}, {MCN - 1}')
        a(f's_mul_i32 s3, s3, {MCP * 1024}')
        a('s_add_u32 s80, s80, s3')
        a('s_addc_u32 s81, s81, 0')
        a(f's_cmp_ge_u32 s{sMC}, {MCN}')
        a('s_cselect_b32 s82, 0, s82')
        a.wait_vm('mc')
        for h in range(MCH):
            a(f'v_add_u32 v9, {h * 16384}, v{T16}')
            a(f'buffer_store_dwordx4 {vr(mc["b"][h], 4)}, v9, s[80:83], 0 offen sc1', tag='st')
        pool.extend(mc['b'])
    a(f's_mul_i32 s{sR}, s2, {BLK}')
    a(f's_and_b32 s{sTmp}, s{sW}, 3')
    a(f's_lshl_b32 s{sTmp}, s{sTmp}, 3')
    a(f's_mov_b32 s{sT}, s{sTmp}' if CFG['tabx'] else f's_add_u32 s{sT}, s{sR}, s{sTmp}')
    a(f's_lshr_b32 s{sTmp}, s{sW}, 2')
    a(f's_mul_i32 s{sTmp}, s{sTmp}, 2080')
    a(f's_add_u32 s{sT}, s{sT}, s{sTmp}')
    a(f's_and_b32 s{sTmp}, s2, 3')
    a(f's_lshl_b32 s{sTmp}, s{sTmp}, 5')
    a(f's_add_u32 s{sT}, s{sT}, s{sTmp}')
    a('s_mul_i32 s4, s2, 5')
    a('s_add_u32 s4, s4, 8192')
    a(f's_lshl_b32 s{sI4}, s4, 14')
    a(f's_lshl_b32 s{sA4}, s4, 13')

    def assign():
        n3, n2, n1 = CUT
        a(f's_min_u32 s4, s{sTK}, {n3}')
        a(f's_min_u32 s5, s{sTK}, {n2}')
        a(f's_min_u32 s6, s{sTK}, {n1}')
        a('s_add_u32 s4, s4, s5')
        a('s_add_u32 s4, s4, s6')
        a(f's_add_u32 s4, s4, {8192 + 1280 - 5}')
        if IL:
            a(f's_mov_b32 s4, s{sTK}')
        a(f's_lshl_b32 s{sI5}, s4, 14')
        if ILW:
            a(f's_lshl_b32 s5, s{sW}, 10')
            a(f's_add_u32 s{sI5}, s{sI5}, s5')
        a(f's_lshr_b32 s{sA5}, s{sI5}, 1')
        a(f's_mov_b32 s{sNQ}, 5')
        for n in CUT:
            a(f's_cmp_lt_u32 s{sTK}, {n}')
            a(f's_addc_u32 s{sNQ}, s{sNQ}, 0')
    if not CFG['dyn']:
        a('s_lshr_b32 s3, s2, 1')
        a('s_and_b32 s4, s2, 1')
        a('s_lshl_b32 s4, s4, 7')
        a(f's_add_u32 s{sTK}, s3, s4')
        assign()
    a(f'v_mov_b32 v{ONE}, 1')
    a(f'v_mov_b32 v{K87}, 0x80000007')
    a(f'v_mov_b32 v{KFC}, 0xfc')
    a(f'v_mov_b32 v{K78}, 0x78')
    a(f's_mov_b32 s{sKB}, {G.KBIAS << 3}')
    a(f's_mov_b32 s{sM10}, -10000')
    a(f's_mov_b32 s{sP1}, 0x010c0c01')
    a(f's_mov_b32 s{sP3}, 0x030c0c03')
    for i in range(4):
        a(f'v_mov_b32 v{8 + i}, 0')
    a(f'ds_write_b128 v{T16}, v[8:11]')
    if gen_p2:
        srd(a, 60, 30, G.PROG_OFF, 32768)
        a('s_mov_b64 s[66:67], s[56:57]')
        a('s_lshl_b32 s57, s2, 7')
    srd(a, 68, 30, G.FLAG_OFF, 128)
    a('s_lshl_b32 s3, s2, 7')
    a('s_add_u32 s68, s68, s3')
    a('s_addc_u32 s69, s69, 0')
    a(f's_cmp_lg_u32 s{sW}, 0')
    a('s_cbranch_scc1 L1_fl')
    vm = list(a.vm)
    a(f'buffer_store_dwordx4 v[8:11], v{T16}, s[68:71], 0 offen sc1')
    if gen_p2:
        a('s_mov_b64 exec, 0xff')
        a(f'buffer_store_dwordx4 v[8:11], v{T16}, s[60:63], s57 offen sc1')
        a('s_mov_b64 exec, -1')
        if CFG['inv']:
            a('buffer_inv sc1')
    a.vm = vm
    a.label('L1_fl')
    a('s_waitcnt lgkmcnt(0)')
    a('s_barrier')

    pend_st = []
    uid = [0]

    def store(n):
        while n > 0 and pend_st:
            b, off, ko = pend_st.pop(0)
            n -= 1
            r = soff(sR, off + 16384)
            if ko:
                a(f's_add_u32 s{r}, s{r}, s{ko}')
            a(f'buffer_store_dwordx4 {vr(b, 4)}, v{st.get("t16", T16)}, s[20:23], s{r} offen{CFG["st_pol"]}', tag='st')
            pool.append(b)

    taken = []

    def take(want):
        b = pool.pop(0)
        taken.append((b, want))
        assert not ren or b == want
        return want

    def last_store():
        j = 10 - len(pend_st)
        if j < 7:
            store(1)
            return
        uid[0] += 1
        a(f's_cmp_le_u32 s{sNQ}, {j - 2}')
        a(f's_cbranch_scc1 L1_q{uid[0]}')
        vm, nvm = list(a.vm), a.nvm
        store(1)
        a.vm, a.nvm = vm, nvm
        a.label(f'L1_q{uid[0]}')
    p2 = gen_p2(a, G, dict(take=take, store=last_store, t16=lambda r: st.update(t16=r))) if gen_p2 else None

    class skip_quad:
        def __init__(self, on, j):
            self.on, self.j = on and j >= 5, j

        def __enter__(self):
            if self.on:
                uid[0] += 1
                self.l = f'L1_s{uid[0]}'
                a(f's_cmp_le_u32 s{sNQ}, {self.j}')
                a(f's_cbranch_scc1 {self.l}')

        def __exit__(self, *x):
            if self.on:
                a.label(self.l)

    for k in range(NK):
        tl_mark(a, 76, k * 6 + 4, 0, 8)
        a.c(f'==== chunk {k}: pass A')
        lim = (k + 1) * 20 + 18
        last = k == NK - 1

        def mix(n):
            for _ in range(n):
                store(1)
                issue(1, lim)
        sa = [int(x) for x in CFG['sa']]
        sb = [int(x) for x in CFG['sb']]
        la = [int(x) for x in CFG['la']]
        lb = [int(x) for x in CFG['lb']]
        if last:
            if p2:
                assert CFG['dyn'] == 2
                next(p2)
            mix(2)
        for j in range(8):
            if CFG['p1prio']:
                if j & 1 == 0:
                    a(f's_setprio {3 - j // 2}')
            if k == 0:
                issue(3 if j & 1 else 2, 24)
            elif not last:
                mix(sa[j])
            else:
                store(la[j])
                if j == 4:
                    mcopy_load()
            if CFG['dyn'] and k == NK - 2 and j == CFG['tkpos']:
                srd(a, 68, 66 if gen_p2 else 56, 0, 256)
                a('v_mov_b32 v3, 1')
                a(f's_cmp_lg_u32 s{sW}, {CFG["tkwave"]}')
                a('s_cbranch_scc1 L1_tk')
                vm = list(a.vm)
                a('s_mov_b64 exec, 1')
                if CFG['dyn'] == 2:
                    a('s_and_b32 s3, s2, 1')
                    a('s_lshl_b32 s3, s3, 7')
                    a('buffer_atomic_add v3, off, s[68:71], s3 sc0')
                else:
                    a('buffer_atomic_add v3, off, s[68:71], 0 sc0')
                a('s_mov_b64 exec, -1')
                a.vm = vm
                st['tkn'] = a.nvm
                a.label('L1_tk')
            I, O, A = where[(k, 'I', j)], where[(k, 'O', j)], where[(k, 'A', j // 2)] + 2 * (j & 1)
            a.wait_vm([(k, 'I', j), (k, 'O', j), (k, 'A', j // 2)])
            with skip_quad(last, j):
                for p in range(2):
                    a(f'v_lshlrev_b32 v{t[2*p]}, 16, v{A+p}')
                    a(f'v_and_b32 v{t[2*p+1]}, 0xffff0000, v{A+p}')
                for p in range(4):
                    a(f'v_mul_f32 v{t[p]}, 0.15915494, v{t[p]}')
                for r in range(4):
                    u, x, y, ib = t[4], t[5], t[6], t[7]
                    a(f'v_mul_hi_u32_u24 v{ib}, 429497, v{I+r}')
                    a(f'v_lshrrev_b32 v{x}, 3, v{O+r}')
                    a(f'v_cos_f32 v{t[r]}, v{t[r]}')
                    a(f'v_lshlrev_b16 v{y}, 3, v{O+r}')
                    a(f'v_mad_i32_i24 v{u}, v{ib}, s{sM10}, v{I+r}')
                    a(f'v_bitop3_b32 v{x}, v{K78}, v{y}, v{x} bitop3:{SEL:#x}')
                    a(f'v_lshl_add_u32 v{u}, v{u}, 17, s{sKB}')
                    a(f'v_lshlrev_b16 v{ib}, 8, v{ib}')
                    a(f'v_lshrrev_b32 v{y}, 2, v{O+r}')
                    a(f'v_add_u32 v{I+r}, v{x}, v{u}')
                    a(f'v_bitop3_b32 v{O+r}, v{KFC}, v{y}, v{ib} bitop3:{ANDOR:#x}')
                    a(f'ds_add_u32 v{O+r}, v{ONE}')
                    if r & 1:
                        p = r >> 1
                        a(f'v_cvt_pk_bf16_f32 v{A+p}, v{t[2*p]}, v{t[2*p+1]}')
                        a(f'v_perm_b32 v{x}, v{A+p}, v{A+p}, s{sP1}')
                        a(f'v_bitop3_b32 v{I+r-1}, v{K87}, v{x}, v{I+r-1} bitop3:{SEL:#x}')
                        a(f'v_perm_b32 v{y}, v{A+p}, v{A+p}, s{sP3}')
                        a(f'v_bitop3_b32 v{I+r}, v{K87}, v{y}, v{I+r} bitop3:{SEL:#x}')
        tl_mark(a, 76, k * 6 + 0, 0, 8)
        a.c('scan')
        a(f'v_lshrrev_b32 v8, 2, v{T16}')
        a(f'v_and_b32 v7, 0x3c00, v{T16}')
        a(f'v_bitop3_b32 v7, v{KFC}, v8, v7 bitop3:{ANDOR:#x}')
        a('s_waitcnt lgkmcnt(0)')
        a('s_barrier')
        a('ds_read2st64_b32 v[8:9], v7 offset0:0 offset1:1')
        a('ds_read2st64_b32 v[10:11], v7 offset0:2 offset1:3')
        mix((lb if last else sb)[0])
        a('s_waitcnt lgkmcnt(0)')
        a('v_lshl_or_b32 v12, v9, 16, v8')
        a('v_lshl_or_b32 v13, v11, 16, v10')
        a('v_mov_b32 v14, v12')
        a('v_mov_b32 v15, v13')
        G.wave_scan(a, [14, 15])
        a('v_readlane_b32 s48, v14, 63')
        a('v_readlane_b32 s49, v15, 63')
        a(f's_lshl_b32 s54, s{sW}, 2')
        a('v_mov_b32 v8, s54')
        a('s_and_b32 s50, s48, 0xffff')
        a('s_lshr_b32 s51, s48, 16')
        a('s_and_b32 s52, s49, 0xffff')
        a('s_lshr_b32 s53, s49, 16')
        a('s_add_u32 s51, s51, s50')
        a('s_add_u32 s52, s52, s51')
        a('s_add_u32 s53, s53, s52')
        a('v_mov_b32 v9, s53')
        if last and p2:
            next(p2)
        a('s_mov_b64 exec, 1')
        a('ds_write_b32 v8, v9 offset:16384')
        if CFG['dyn'] and k == NK - 2:
            a(f's_waitcnt vmcnt({a.nvm - st["tkn"]})')
            a('ds_write_b32 v8, v3 offset:16448')
        if last and p2:
            a('ds_write_b32 v8, v3 offset:16448')
        a('s_mov_b64 exec, -1')
        a('v_and_b32 v8, 60, v7')
        a('s_waitcnt lgkmcnt(0)')
        a('s_barrier')
        a('ds_read_b32 v9, v8 offset:16384')
        if (CFG['dyn'] and k == NK - 2) or (last and p2):
            a('ds_read_b32 v10, v8 offset:16448')
        mix((lb if last else sb)[1])
        a('s_waitcnt lgkmcnt(0)')
        if last and p2:
            next(p2)
        if CFG['dyn'] and k == NK - 2:
            a(f'v_readlane_b32 s{sTK}, v10, {CFG["tkwave"]}')
            if CFG['dyn'] == 2:
                a('s_and_b32 s3, s2, 1')
                a('s_lshl_b32 s3, s3, 7')
                a(f's_add_u32 s{sTK}, s{sTK}, s3')
            assign()
            st['assigned'] = True
        for sh in (1, 2, 4, 8):
            a(f'v_add_u32_dpp v9, v9, v9 row_shr:{sh} row_mask:0xf bank_mask:0xf bound_ctrl:1')
        a(f'v_readlane_b32 s54, v9, s{sW}')
        a('s_sub_u32 s54, s54, s53')
        a('s_add_u32 s50, s50, s54')
        a('s_add_u32 s51, s51, s54')
        a('s_add_u32 s52, s52, s54')
        a('s_pack_ll_b32_b16 s48, s54, s50')
        a('s_pack_ll_b32_b16 s49, s51, s52')
        a('v_add_u32 v14, s48, v14')
        a('v_add_u32 v15, s49, v15')
        a('v_sub_u32 v12, v14, v12')
        a('v_sub_u32 v13, v15, v13')
        a('v_and_b32 v8, 0xffff, v12')
        a('v_lshrrev_b32 v9, 16, v12')
        a('v_and_b32 v10, 0xffff, v13')
        a('v_lshrrev_b32 v11, 16, v13')
        a('ds_write2st64_b32 v7, v8, v9 offset0:0 offset1:1')
        a('ds_write2st64_b32 v7, v10, v11 offset0:2 offset1:3')
        if CFG['tabx']:
            a(f'v_and_b32 v8, 0x3f0, v{T16}')
            a(f'v_lshl_add_u32 v8, v8, 1, s{sT}')
            a('ds_write_b64 v8, v[12:13] offset:20480')
            a('s_bitset0_b64 exec, 63')
            a('s_not_b64 exec, exec')
            a('ds_write_b64 v8, v[14:15] offset:20512')
            a('s_mov_b64 exec, -1')
        a('s_waitcnt lgkmcnt(0)')
        a('s_barrier')
        tl_mark(a, 76, k * 6 + 1, 0, 8)
        a.c('pass B')
        for j in range(8):
            if CFG['p1prio'] and j & 1 == 0:
                a(f's_setprio {3 - j // 2}')
            O = where[(k, 'O', j)]
            with skip_quad(last, j):
                for r in range(4):
                    a(f'ds_add_rtn_u32 v{O+r}, v{O+r}, v{ONE}')
            if CFG['tabx']:
                if j == 0:
                    a(f'ds_read_b128 v[12:15], v{T16} offset:20480', tag='tab')
                    a(f'v_cmp_gt_u32 vcc, {G.TAB_CH + 128}, v{T16}')
                if j == 2:
                    uid[0] += 1
                    a.wait_lg('tab')
                    a(f's_cbranch_vccz L1_p{uid[0]}')
                    vm, nvm = list(a.vm), a.nvm
                    r = soff(sR, k * NW * BLK)
                    a('s_mov_b64 exec, vcc')
                    a(f'buffer_store_dwordx4 v[12:15], v{T16}, s[24:27], s{r} offen{CFG["st_pol"]}')
                    a('s_mov_b64 exec, -1')
                    a.vm, a.nvm = vm, nvm
                    st['tabn'] = a.nvm
                    a.label(f'L1_p{uid[0]}')
                if j == 3 and last and p2:
                    next(p2)
            elif j == 0:
                r = soff(sT, k * NW * BLK)
                a(f'v_and_b32 v11, 0x3f0, v{T16}')
                a('v_add_u32 v11, v11, v11')
                a(f'buffer_store_dwordx2 v[12:13], v11, s[24:27], s{r} offen', tag='tab')
                a('s_bitset0_b64 exec, 63')
                a('s_not_b64 exec, exec')
                a(f'buffer_store_dwordx2 v[14:15], v11, s[24:27], s{r} offen offset:32', tag='tab')
                a('s_mov_b64 exec, -1')
                uid[0] += 1
                a(f'v_cmp_le_u32 vcc, s{sTmp}, v{T16}')
                a(f'v_add_u32 v10, {G.TAB_CH}, v{T16}')
                a(f's_cmp_lg_u32 s{sW}, 0')
                a(f'v_cndmask_b32 v10, v{T16}, v10, vcc')
                a(f's_cbranch_scc1 L1_p{uid[0]}')
                vm, nvm = list(a.vm), a.nvm
                r = soff(sR, k * NW * BLK)
                a('s_mov_b64 exec, 0xff')
                a(f'buffer_store_dwordx4 v[12:15], v10, s[24:27], s{r} offen')
                a('s_mov_b64 exec, -1')
                a.vm, a.nvm = vm, nvm
                a.label(f'L1_p{uid[0]}')
            mix((lb if last else sb)[2 + j])
            if last and j == 4:
                mcopy_store()
        a('s_waitcnt lgkmcnt(0)')
        a('s_barrier')
        if last and p2:
            next(p2)
        tl_mark(a, 76, k * 6 + 2, 0, 8)
        a.c('scatter')
        n0 = st['next']
        ns0 = len(pend_st)
        for j in range(8):
            if CFG['p1prio'] and j & 1 == 0:
                a(f's_setprio {3 - j // 2}')
            I, O, A = where[(k, 'I', j)], where[(k, 'O', j)], where[(k, 'A', j // 2)] + 2 * (j & 1)
            with skip_quad(last, j):
                for r in range(4):
                    x, y = t[(2 * r) % 4], t[(2 * r + 1) % 4]
                    a(f'v_and_b32 v{x}, -4, v{O+r}')
                    a(f'v_lshl_add_u32 v{y}, v{O+r}, 2, v{x}')
                    a(f'ds_write_b32 v{y}, v{I+r}')
                    a(f'v_lshl_add_u32 v{x}, v{x}, 2, v{O+r}')
                    a(f'ds_write_b8{"_d16_hi" if r & 1 else ""} v{x}, v{A + (r >> 1)} offset:16')
            pool.append(I)
            pool.append(O)
            if j & 1:
                pool.append(where[(k, 'A', j // 2)])
            nd = CFG['scd']
            store(len(pend_st) - (ns0 - (ns0 * min(j + 1, nd) + nd - 1) // nd))
            want = n0 + ((lim - n0) * min(j + 1, nd) + nd - 1) // nd
            issue(want - st['next'], lim)
            if last and p2 and j < 6:
                next(p2)
        if last and p2:
            a(f's_waitcnt vmcnt({min(ns0, a.nvm - st["tabn"])})')
        stp = CFG['stp'] and not last
        fa = [7, 12, 13, 14, 15]
        if stp:
            for j in range(5):
                a(f'v_add_u32 v{fa[j]}, s{sKO[j]}, v{T16}')
            a(f's_min_i32 s3, s{sKO[0]}, s{sKO[1]}')
            for j in range(2, 5):
                a(f's_min_i32 s3, s3, s{sKO[j]}')
            a(f'v_add_u32 v3, s3, v{T16}')
        else:
            a(f'v_add_u32 v7, 0x10000, v{T16}')
            a(f'v_add_u32 v12, 0x20000, v{T16}')
        if not last:
            for i in range(4):
                a(f'v_mov_b32 v{8 + i}, 0')
        a('s_waitcnt lgkmcnt(0)')
        a('s_barrier')
        tl_mark(a, 76, k * 6 + 3, 0, 8 if last else pool[0])
        assert not pend_st
        a.c('flush')
        if last and p2 and ren:
            pool[:] = [24, 28, 32, 36, 76, 80, 84, 104, 68, 72]
        for j in range(10):
            b = pool.pop(0)
            if stp:
                a(f'ds_read_b128 {vr(b, 4)}, v{fa[j % 5]} offset:{(j // 5) * 16384}')
                if j == 4:
                    a('ds_write_b128 v3, v[8:11]')
                pend_st.append((b, k * NW * BLK + (j // 5) * 16384, sKO[j % 5]))
                continue
            base = (T16, 7, 12)[j // 4]
            a(f'ds_read_b128 {vr(b, 4)}, v{base} offset:{(j % 4) * 16384}')
            if j == 0 and not last:
                a(f'ds_write_b128 v{T16}, v[8:11]')
            pend_st.append((b, k * NW * BLK + j * 16384, None))
        if not last:
            a('s_waitcnt lgkmcnt(0)')
            a('s_barrier')
        elif p2:
            next(p2)
            a('s_waitcnt lgkmcnt(0)')
            a('s_barrier')
            if not ren:
                m = dict(taken)
                rest_s = [b for b in range(16, 128, 4) if b not in m]
                rest_d = [b for b in range(16, 128, 4) if b not in m.values()]
                m.update(zip(rest_s, rest_d))
                G.MEMO['ren'] = m
            for _ in p2:
                pass
            return name
        else:
            for j in range(10):
                if j >= 7:
                    a(f's_cmp_le_u32 s{sNQ}, {j - 2}')
                    a('s_cbranch_scc1 L1_fin')
                a(f's_waitcnt lgkmcnt({9 - j})')
                store(1)
    a.label('L1_fin')
    a.reset()
    G.tl_end(a)
    a.label('L1_end')
    a('s_endpgm')
    return name
```

```python
from asmlib import vr, sr, merge_vm

MF = 'v_mfma_f32_4x4x4_16b_bf16'


def gen_p2(a, G, P1=None):
    name = 'gs_acc_kernel'
    CFG = G.CFG
    SEL, ANDOR = G.SEL, G.ANDOR
    ORAND = 0xA8
    if not P1:
        G.kernel_head(a, name)
    DS = 1
    NR = DS + 1
    NA = 2
    LA, SHL, CBA, FA, CBB, KAD, KCM, PA = 0, 1, 2, 3, 4, 5, 6, 7
    WD, ID, NID = 8, 10, 12
    C = [14, 15]
    W = [16, 22, 28, 34]
    B = [w + 4 for w in W]
    EC = [w + 5 for w in W]
    FOLD = CFG['fold']
    NB = 7 if FOLD else 8
    LB = NB - 1
    FG_ = FOLD - 1
    if FOLD:
        B[FG_], EC[FG_] = W[FG_] + 2, W[FG_] + 3
    XN = [W[FG_] + 4, W[FG_] + 5]
    bmap = [(g, k) for g in range(4) for k in ((0,) if FOLD and g == FG_ else (0, 2))]
    ODD, sXo = 's[6:7]', 43
    EN = [40, 41, 42, 43]
    ES, KF0, NV, AI = 44, 45, 46, 47
    DA, DB = 48, 64
    OLD = [68, 70]
    OLD2 = [72, 74]
    X = [76, 80]
    P = 84
    RT = 88
    AOR = [[92, 93], [94, 95]]
    xm, xo, xa, xd = 96, 97, 98, 99
    xc, xl, xe, xt = RT, RT + 1, RT + 2, RT + 3
    MR = [[100, 102], [104, 106]]
    MP = [108 + 4 * n for n in range(5)]

    ph = dict(par=0)

    def ring(b):
        return (b + ph['par']) & 1

    def AO(b):
        return AOR[ring(b)]

    def slot(b, h):
        g, k = bmap[b % NB]
        return g, k + h
    sW, sQ, sOB, sSP, sSlow, sBase, sTab, sMD, sN, sPH, sM0 = 32, 33, 34, 35, 36, 37, 39, 40, 41, 42, 38
    sP = [44, 45, 46, 47]
    PEND, TMP, INJ, OVF, INJ1 = 's[80:81]', 's[82:83]', 's[84:85]', 's[58:59]', 's[48:49]'
    rpos = [int(x) for x in CFG['rpos'].split()]
    dpos = [int(x) for x in CFG['dpos'].split()]
    mpos = [int(x) for x in CFG['mpos'].split()]
    assert dpos[0] >= 1 and dpos[1] >= 1
    order = list(range(-1, LB))
    gs = {b: [b + 1] for b in range(-1, LB - 2)}
    gs[LB - 2] = [LB - 1, LB]
    b1_step = LB - 1

    def blk(p):
        return 4 * (p & 3) + (p >> 2)

    def dblk(p):
        return ((blk(p + 1) - blk(p)) * 81920) & 0xffffffff

    def head1():
        a('s_cmp_ge_u32 s2, 256')
        a('s_cbranch_scc1 L2_end')
        G.tl_start(a)
        if CFG['pprio']:
            a('s_setprio 3')
        a('s_load_dwordx2 s[30:31], s[0:1], 104')
        a('s_load_dwordx2 s[28:29], s[0:1], 0')
        a('s_load_dwordx2 s[6:7], s[0:1], 40')
        a('v_lshrrev_b32 v16, 6, v0')
        a('v_and_b32 v17, 63, v0')
        a(f'v_readfirstlane_b32 s{sW}, v16')
        a(f's_bfe_u32 s{sQ}, s2, 0x20001')
        a(f's_and_b32 s{sOB}, s2, 1')
        a(f's_lshl_b32 s{sOB}, s{sOB}, 5')
        a('s_lshr_b32 s4, s2, 3')
        a(f's_add_u32 s{sOB}, s{sOB}, s4')
        a('v_and_b32 v22, 3, v0')
        a('v_mul_u32_u24 v19, 80, v16' if not CFG['cmap'] else 'v_lshlrev_b32 v19, 6, v16')
        if CFG['dq']:
            a('v_lshrrev_b32 v18, 2, v17')
            a('v_lshl_add_u32 v18, v22, 4, v18')
            a('v_add_u32 v18, v18, v19')
        else:
            a('v_lshrrev_b32 v18, 4, v17')
            a('v_and_b32 v19, 15, v17')
            a('v_lshl_add_u32 v18, v18, 8, v19')
            a('v_lshl_add_u32 v18, v16, 4, v18')
        a(f'v_mul_u32_u24 v{CBA}, {G.BLK}, v18')
        a('v_lshrrev_b32 v18, 2, v17')
        if CFG['cmap']:
            a('v_lshl_add_u32 v18, v16, 4, v18')
            a('v_add_u32 v18, 0x400, v18')
        else:
            a('v_add3_u32 v18, v18, v19, 64')
        a(f'v_mul_u32_u24 v{CBB}, {G.BLK}, v18')
        a(f'v_lshl_add_u32 v20, v22, 4, v{CBB}')
        a('v_and_b32 v18, 3, v18')
        a('v_lshl_add_u32 v20, v18, 5, v20')
        a(f'v_lshl_add_u32 v25, v22, 5, v{CBA}')
        a(f's_mul_i32 s{sTab}, s{sQ}, 2080')
        a(f's_lshl_b32 s3, s{sOB}, 5')
        a(f's_add_u32 s{sTab}, s{sTab}, s3')
        a(f's_mul_i32 s{sMD}, s{sQ}, {16 * 81920}')
        a(f's_mul_i32 s3, s{sW}, 5120')
        a(f'v_lshl_add_u32 v{FA}, v17, 4, s3')
        a(f's_lshl_b32 s{sM0}, s{sW}, 11')
        a(f's_mul_i32 s100, s{sW}, 3072')
        a('s_waitcnt lgkmcnt(0)')
        G.srd(a, 12, 30, G.TAB_OFF, G.TAB_SZ)
        for k in (0, 2, 1, 3) if not CFG['dq'] else range(4):
            if CFG['dq']:
                a(f'v_subrev_u32 v25, {(64 - 16 * k) * G.BLK:#x}, v20')
                a(f'buffer_load_dwordx4 {vr(DA + 4 * k, 4)}, v25, s[12:15], s{sTab} offen', tag='D')
            else:
                a(f'buffer_load_dwordx4 {vr(DA + 4 * k, 4)}, v25, s[12:15], s{sTab} offen offset:{16 * k}', tag='D')
        a(f'buffer_load_dwordx4 {vr(DB, 4)}, v20, s[12:15], s{sTab} offen', tag='D')
        G.srd(a, 16, 30, G.MD_OFF, G.MD_SZ)
        G.srd(a, 24, 30, G.WT_OFF, G.WT_SZ)
        a('v_lshlrev_b32 v21, 6, v22')
        a(f'buffer_load_dwordx2 {vr(WD, 2)}, v21, s[24:27], 0 offen offset:40', tag='D')

    st = dict(inloop=False)

    def load_m(n):
        if CFG['ab_nom'] and st['inloop']:
            return
        if n == 4:
            a(f's_add_u32 s3, s{sMD}, 4096')
            a(f'buffer_load_dwordx4 {vr(MP[n], 4)}, v{FA}, s[16:19], s3 offen', tag=('M', n))
        else:
            a(f'buffer_load_dwordx4 {vr(MP[n], 4)}, v{FA}, s[16:19], s{sMD} offen offset:{n * 1024}', tag=('M', n))

    def load_m_raw(n, p, l16):
        a(f's_mul_i32 s3, s{sQ}, {16 * 80000}')
        a(f's_add_u32 s3, s3, s{sM0 if n < 2 else 100}')
        a(f's_add_u32 s3, s3, {blk(p) * 80000 + (0 if n < 2 else 32768)}')
        a(f'buffer_load_dwordx4 {vr(MP[n], 4)}, v{l16}, s[24:27], s3 offen offset:{1024 * (n if n < 2 else n - 2)}', tag=('M', n))

    def fill(n):
        a.wait_vm([('M', n)])
        if ('rawn', n) in st:
            a(f's_waitcnt vmcnt({a.nvm - st.pop(("rawn", n))})')
        if st.get('raw'):
            a(f'v_subrev_u32 v{RT}, s{100 if n < 2 else sM0}, v{FA}')
            a(f'ds_write_b128 v{RT}, {vr(MP[n], 4)} offset:{n * 1024 if n < 2 else 32768 + (n - 2) * 1024}', tag='F')
            return
        m0 = sM0 if n < 2 else 100
        if st.get('m0') != m0:
            a(f's_mov_b32 m0, s{m0}')
            st['m0'] = m0
        for jd in range(4):
            if CFG['ab'] & 8 and st['inloop']:
                continue
            a(f'ds_write_addtid_b32 v{MP[n] + jd} offset:{(n * 1024 if n < 2 else 32768 + (n - 2) * 1024) + 256 * jd}', tag='F')

    def next_m(p):
        a(f's_add_u32 s{sMD}, s{sMD}, {dblk(p):#x}')

    def head2():
        if CFG['pprio']:
            a('s_setprio 2')
        for n in (4, 2, 3, 0, 1):
            load_m(n)
        next_m(0)
        if CFG['pprio']:
            a('s_setprio 1')
        a(f'v_mad_u32_u24 v{CBB}, v22, 20, v{CBB}')
        a(f'v_or_b32 v{CBB}, 0xf0000000, v{CBB}')
        a(f'v_or_b32 v{CBA}, 0xf0000000, v{CBA}')
        a('v_lshlrev_b32 v23, 2, v22')
        a(f'v_sub_u32 v{SHL}, 28, v23')
        G.ident(a, ID, 18, 0)
        G.ident(a, NID, 18, 0, neg=True)
        a('v_lshlrev_b32 v24, 4, v0')
        a(f'v_lshl_add_u32 v{LA}, v17, 2, s{sM0}')
        a(f'v_mov_b32 v{KF0}, 0xf0000000')
        a(f'v_mov_b32 v{KAD}, 0x1fff8')
        a(f'v_mov_b32 v{KCM}, 0x07ff0000')
        for k in range(4):
            a(f's_mov_b32 s{sP[k]}, {0x04000c0c | (k << 16):#x}')
        a(f's_mov_b32 s{sSlow}, 0')
        a(f's_mov_b32 s{sXo}, 0')
        a(f's_mov_b32 s{sPH}, 0')
        a(f's_mov_b64 {PEND}, 0')
        a(f's_mov_b64 {INJ}, 0')
        a(f's_mov_b64 {INJ1}, 0')
        if CFG['fuse']:
            a('s_load_dwordx4 s[96:99], s[6:7], 0')
            a('s_load_dwordx2 s[4:5], s[0:1], 24')
            a('s_waitcnt lgkmcnt(0)')
        G.srd(a, 8, 30, G.REC_OFF, G.REC_SZ)
        G.srd(a, 20, 30, G.PART_OFF, 80000)
        a(f's_lshl_b32 s3, s{sQ}, 6')
        a(f's_add_u32 s3, s3, s{sOB}')
        a('s_mul_i32 s3, s3, 80000')
        a('s_add_u32 s20, s20, s3')
        a('s_addc_u32 s21, s21, 0')

    if not P1:
        head1()
        head2()
    ool = []
    uid = [0]

    XAND = 0x6A
    sOv = 101

    def x_pre(j):
        uid[0] += 1
        u = uid[0]
        rs, re_ = DA + 2 * j, DA + 8 + 2 * j
        a.wait_vm('D')
        a(f'v_sub_u16 v{xc}, v{re_}, v{rs}')
        a(f'v_and_b32 v{xl}, 3, v{rs}')
        a(f'v_add3_u32 v{xd}, v{xc}, v{xl}, 3')
        a(f'v_and_b32 v{xd}, -4, v{xd}')
        a(f'v_max_u32 v{xd}, 4, v{xd}')
        fill = [f'v_and_b32 v{xo}, 0xfffc, v{rs}',
                f'v_bfm_b32 v{xm}, v{xc}, v{xl}',
                f'v_mad_u32_u24 v{xo}, v{xo}, 5, v{CBA}',
                f'v_cmp_lt_u32 vcc, 16, v{xd}',
                f'v_sub_u32 v{xa}, s{sM0}, v{xd}',
                f'v_lshrrev_b64 {vr(rs, 2)}, 16, {vr(rs, 2)}',
                f'v_lshrrev_b64 {vr(re_, 2)}, 16, {vr(re_, 2)}',
                f's_mov_b32 s{sOv}, 0']
        a(fill.pop(0))
        a(fill.pop(0))
        a(f'v_add_u32_dpp v{xt}, v{xd}, v{xd} row_shr:1 row_mask:0xf bank_mask:0xf bound_ctrl:1')
        for m in ('row_shr:2 row_mask:0xf bank_mask:0xf bound_ctrl:1', 'row_shr:4 row_mask:0xf bank_mask:0xf bound_ctrl:1',
                  'row_shr:8 row_mask:0xf bank_mask:0xf bound_ctrl:1', 'row_bcast:15 row_mask:0xa bank_mask:0xf',
                  'row_bcast:31 row_mask:0xc bank_mask:0xf'):
            for _ in range(2):
                if fill:
                    a(fill.pop(0))
            a(f'v_add_u32_dpp v{xt}, v{xt}, v{xt} {m}')
        a(f'v_add_u32 v{xa}, v{xa}, v{xt}')
        a(f'v_readlane_b32 s{sBase}, v{xt}, 63')
        a(f's_cbranch_vccnz L2_xo{u}')
        a.label(f'L2_xp{u}')
        ool.append([f'L2_xo{u}:',
                    f'v_cmp_lt_u32 vcc, 20, v{xd}',
                    f's_mov_b32 s{sOv}, 1',
                    f's_cbranch_vccz L2_xp{u}',
                    f'v_cmp_lt_u32 vcc, 32, v{xd}',
                    f'v_cmp_lt_u32 {OVF}, 31, v{xc}',
                    f's_mov_b32 s{sOv}, 2',
                    f's_or_b64 vcc, vcc, {OVF}',
                    f's_cbranch_scc0 L2_xp{u}',
                    f's_mov_b32 s{sBase}, 0x10000',
                    f's_branch L2_xp{u}'])

    def x_ent(f, t):
        f(f'v_lshlrev_b32 v{xl}, {28 - 4 * t}, v{xm}')
        if t:
            f(f'v_add_u32 v{xe}, {20 * t}, v{xo}')
        f(f'v_bitop3_b32 v{xe}, v{xl}, v{KF0}, v{xe if t else xo} bitop3:{XAND:#x}')
        f(f'ds_write_b32 v{xa}, v{xe} offset:{4 * t}')

    def x_quad(f):
        f(f'v_and_b32 v{xl}, v{KF0}, v{xl}')
        f(f'v_cmp_ne_u32 vcc, 0, v{xl}')
        f(f'v_xor_b32 v{xe}, v{xo}, v{xl}')
        f(f's_add_u32 s3, s{sBase}, s{sM0}')
        f(f'v_mbcnt_lo_u32_b32 v{xa}, vcc_lo, 0')
        f(f'v_mbcnt_hi_u32_b32 v{xa}, vcc_hi, v{xa}')
        f(f's_bcnt1_i32_b64 s{sN}, vcc')
        f(f'v_lshl_add_u32 v{xa}, v{xa}, 2, s3')
        f('s_mov_b64 exec, vcc')
        f(f'ds_write_b32 v{xa}, v{xe}')
        f('s_mov_b64 exec, -1')
        f(f's_lshl2_add_u32 s{sBase}, s{sN}, s{sBase}')

    def x_list(j, E, pbit):
        uid[0] += 1
        u = uid[0]
        a(f'v_mov_b32 v{ES}, v{E[3]}')
        a(f's_cmp_gt_u32 s{sBase}, 1024')
        a(f's_cbranch_scc1 L2_xs{u}')
        a(f's_cmp_lg_u32 s{sOv}, 0')
        a(f's_cbranch_scc1 L2_xa{u}')
        a.label(f'L2_xb{u}')
        bl = [f'L2_xa{u}:', f's_cmp_eq_u32 s{sOv}, 1', f's_cbranch_scc1 L2_xc{u}']
        x_ent(bl.append, 7)
        x_ent(bl.append, 6)
        x_ent(bl.append, 5)
        bl.append(f'L2_xc{u}:')
        x_ent(bl.append, 4)
        bl.append(f's_branch L2_xb{u}')
        ool.append(bl)
        for t in (3, 2, 1, 0):
            x_ent(a, t)
        r = DB + 2 * (j & 1)
        ls, le = j >> 1, 2 + (j >> 1)
        a(f'v_mov_b32_dpp v{xt}, v{r} quad_perm:[{ls},{ls},{ls},{ls}] row_mask:0xf bank_mask:0xf')
        a(f'v_and_b32 v{xl}, 3, v{xt}')
        a(f'v_and_b32 v{xo}, 0xfffc, v{xt}')
        a(f'v_sub_u16_dpp v{xc}, v{r}, v{xt} quad_perm:[{le},{le},{le},{le}] row_mask:0xf bank_mask:0xf')
        a(f'v_mad_u32_u24 v{xo}, v{xo}, 5, v{CBB}')
        a(f'v_add_u32 v{xd}, v{xc}, v{xl}')
        a(f'v_bfm_b32 v{xm}, v{xc}, v{xl}')
        a(f'v_cmp_lt_u32 {OVF}, 16, v{xd}')
        a(f'v_lshlrev_b32 v{xl}, v{SHL}, v{xm}')
        x_quad(a)
        a(f's_cmp_lg_u64 {OVF}, 0')
        a(f's_cbranch_scc1 L2_xe{u}')
        a.label(f'L2_xr{u}')
        bl = [f'L2_xe{u}:',
              f'v_cmp_lt_u32 vcc, 32, v{xd}',
              f'v_cmp_lt_u32 {OVF}, 31, v{xc}',
              f'v_lshrrev_b32 v{xl}, 16, v{xm}',
              f'v_add_u32 v{xo}, 80, v{xo}',
              f's_or_b64 vcc, vcc, {OVF}',
              f's_cbranch_scc1 L2_xs{u}',
              f'v_lshlrev_b32 v{xl}, v{SHL}, v{xl}']
        x_quad(bl.append)
        bl.append(f's_branch L2_xr{u}')
        ool.append(bl)
        a(f'v_add_u32 v{xa}, s{sBase}, v{LA}')
        a(f'v_mov_b32 v{xe}, -1')
        a(f'ds_write_b32 v{xa}, v{xe}')
        go = [int(x) for x in CFG['gord'].split()]
        if FOLD:
            go = [0, 1, 2]
            go.insert(FG_, 3)
            a(f'v_add_u32 v{xa}, s{sM0}, v{LA}')
            pr = 0 if FG_ >= 2 else 2
            a(f'ds_read2st64_b32 {vr(E[pr], 2)}, v{LA} offset0:{go[pr]} offset1:{go[pr + 1]}', tag='L')
            a(f'ds_read_b32 v{E[FG_ ^ 1]}, v{LA} offset:{256 * go[FG_ ^ 1]}', tag='L')
            a(f'v_lshrrev_b32 v{xa}, 1, v{xa}')
            a(f'v_and_b32 v{xa}, -4, v{xa}')
            a(f'ds_read_b32 v{E[FG_]}, v{xa} offset:768', tag='L')
        else:
            a(f'ds_read2st64_b32 {vr(E[0], 2)}, v{LA} offset0:{go[0]} offset1:{go[1]}', tag='L')
            a(f'ds_read2st64_b32 {vr(E[2], 2)}, v{LA} offset0:{go[2]} offset1:{go[3]}', tag='L')
        E = [E[go.index(g)] for g in range(4)]
        a(f's_sub_u32 s3, s{sBase}, 768')
        a(f's_cmp_gt_u32 s3, {128 if FOLD else 256}')
        a(f's_cbranch_scc1 L2_xf{u}')
        a.label(f'L2_xg{u}')
        bl = [f'L2_xf{u}:',
              's_waitcnt lgkmcnt(0)',
              f's_cmp_gt_u32 s{sBase}, 1024',
              f's_cbranch_scc1 L2_xs{u}']
        if FOLD:
            bl += [f's_cmp_lt_u32 s{sBase}, 768',
                   f's_cbranch_scc1 L2_xl{u}',
                   f'ds_read_b32 v{XN[j & 1]}, v{xa} offset:896',
                   f's_add_u32 s3, s{sPH}, {pbit}',
                   f's_bitset1_b32 s{sXo}, s3',
                   f's_branch L2_xg{u}',
                   f'L2_xl{u}:']
        bl += [f'v_mov_b32 v{E[3]}, -1',
              f's_cmp_ge_u32 s{sBase}, 512',
              f's_cbranch_scc1 L2_xg{u}',
              f'v_mov_b32 v{E[2]}, -1',
              f's_cmp_ge_u32 s{sBase}, 256',
              f's_cbranch_scc1 L2_xg{u}',
              f'v_mov_b32 v{E[1]}, -1',
              f's_branch L2_xg{u}',
              f'L2_xs{u}:',
              's_waitcnt lgkmcnt(0)']
        bl += [f'v_mov_b32 v{E[g]}, -1' for g in range(4)]
        bl += [f's_add_u32 s3, s{sPH}, {pbit}',
               f's_bitset1_b32 s{sSlow}, s3',
               f's_branch L2_xg{u}']
        ool.append(bl)
        if j == 3:
            for h in range(2):
                a(f'v_lshrrev_b64 {vr(DB + 2 * h, 2)}, 16, {vr(DB + 2 * h, 2)}')

    def load_rec(g, AI=AI):
        AI = st.get('ai') or AI
        E = EN[:3] + [ES]
        a(f'v_and_b32 v{AI}, 0x0fffffff, v{E[g]}')
        if CFG['ab_norec'] and st['inloop']:
            a(f'v_mov_b32 v{AI}, v{E[g]}')
            return
        a(f'v_mov_b32 v{EC[g]}, v{E[g]}')
        issue_rec(g, AI)

    def issue_fold(f, w, bb, e, AI):
        f(f'buffer_load_dword v{bb}, v{AI}, s[8:11], 0 offen offset:16')
        f(f's_mov_b64 exec, {ODD}')
        f(f'v_add_u32 v{AI}, 8, v{AI}')
        f(f'v_lshrrev_b32 v{e}, 2, v{e}')
        f('s_mov_b64 exec, -1')
        f(f'buffer_load_dwordx2 {vr(w, 2)}, v{AI}, s[8:11], 0 offen')

    def ovf_load(xn, d):
        uid[0] += 1
        u = uid[0]
        a(f's_bitcmp1_b32 s{sXo}, s{sPH}')
        a(f's_cbranch_scc1 L2_oa{u}')
        a.label(f'L2_ob{u}')
        bl = [f'L2_oa{u}:', f'v_and_b32 v{AI}, 0x0fffffff, v{xn}']
        issue_fold(bl.append, d, d + 2, xn, AI)
        ool.append(bl + [f's_branch L2_ob{u}'])
        st['ovn'] = a.nvm

    def ovf_run(xn, d):
        uid[0] += 1
        u = uid[0]
        a(f's_bitcmp1_b32 s{sXo}, s{sPH}')
        a(f's_cbranch_scc1 L2_oa{u}')
        a.label(f'L2_ob{u}')
        bl = [f'L2_oa{u}:', f's_waitcnt vmcnt({a.nvm - st["ovn"]})',
              f's_mov_b64 exec, {ODD}', f'v_lshrrev_b32 v{d + 2}, 16, v{d + 2}', 's_mov_b64 exec, -1']
        for h in range(2):
            w = d + h
            bl += [f'v_and_b32 v{NV}, {1 << (28 + h):#x}, v{xn}',
                   f'v_cmpx_eq_u32 vcc, 0, v{NV}',
                   f'v_lshrrev_b32 v{AI}, 14, v{w}',
                   f'v_and_b32 v{AI}, v{KAD}, v{AI}',
                   f'ds_read_b64 {vr(xm, 2)}, v{AI}',
                   f'v_perm_b32 v{xa}, v{w}, v{d + 2}, s{sP[h]}',
                   f'v_bitop3_b32 v{xd}, v{w}, 0.5, -0.5 bitop3:{ORAND:#x}',
                   f'v_bitop3_b32 v{xa}, v{KCM}, v{xa}, v{xd} bitop3:{SEL:#x}',
                   f'v_and_b32 v{AI}, v{KAD}, v{w}',
                   's_waitcnt lgkmcnt(0)',
                   f'{MF} {vr(RT, 4)}, {vr(WD, 2)}, {vr(xm, 2)}, 0']
            bl += [f'v_mul_f32 v{RT + n}, v{xa}, v{RT + n}' for n in range(4)]
            bl += [f'v_cvt_pk_bf16_f32 v{RT}, v{RT}, v{RT + 1}',
                   f'v_cvt_pk_bf16_f32 v{RT + 1}, v{RT + 2}, v{RT + 3}',
                   f'ds_pk_add_bf16 v{AI}, v{RT} offset:{G.A_OFFS}',
                   f'ds_pk_add_bf16 v{AI}, v{RT + 1} offset:{G.A_OFFS + 4}',
                   's_mov_b64 exec, -1']
        ool.append(bl + [f's_branch L2_ob{u}'])

    def issue_rec(g, AI=AI):
        if FOLD and g == FG_:
            issue_fold(lambda t: a(t, tag=('R', g)), W[g], B[g], EC[g], AI)
            return
        if CFG['ab'] & 256 and st['inloop']:
            a(f'buffer_load_dwordx4 {vr(W[g], 4)}, v{AI}, s[8:11], 0 offen', tag=('R', g))
            return
        if CFG['x3'] == 2:
            a(f'buffer_load_dwordx2 {vr(W[g], 2)}, v{AI}, s[8:11], 0 offen', tag=('R', g))
        elif CFG['x3'] == 3:
            a(f'buffer_load_dwordx3 {vr(W[g], 3)}, v{AI}, s[8:11], 0 offen', tag=('R', g))
        else:
            a(f'buffer_load_dwordx4 {vr(W[g], 4)}, v{AI}, s[8:11], 0 offen', tag=('R', g))
        if CFG['x3']:
            a(f'buffer_load_dwordx3 {vr(W[g] + 2, 3)}, v{AI}, s[8:11], 0 offen offset:8', tag=('R', g))
        else:
            a(f'buffer_load_dword v{B[g]}, v{AI}, s[8:11], 0 offen offset:16', tag=('R', g))

    ao_done = set()

    def gather(x, b, NV=NV, AI=AI, noao=False):
        g = slot(x, 0)[0]
        a.wait_vm([('R', g)])
        if FOLD and g == FG_:
            a(f's_mov_b64 exec, {ODD}')
            a(f'v_lshrrev_b32 v{B[g]}, 16, v{B[g]}')
            a('s_mov_b64 exec, -1')
        now = x - b < NA and not noao
        for h in (1, 0):
            k = slot(x, h)[1]
            w = W[g] + k
            a(f'v_and_b32 v{NV}, {1 << (28 + k):#x}, v{EC[g]}')
            a(f'v_lshrrev_b32 v{AI}, 14, v{w}')
            a(f'v_bitop3_b32 v{AI}, v{AI}, v{KAD}, v{NV} bitop3:{ANDOR:#x}')
            a(f'ds_read_b64 {vr(MR[ring(x)][h], 2)}, v{AI}', tag=('m', x))
            if now:
                a(f'v_bitop3_b32 v{AO(x)[h]}, v{w}, v{KAD}, v{NV} bitop3:{ANDOR:#x}')
        if now:
            ao_done.add(x)

    def dec_ao(b):
        if b in ao_done:
            ao_done.discard(b)
            return
        for h in range(2):
            g, k = slot(b, h)
            a(f'v_and_b32 v{NV}, {1 << (28 + k):#x}, v{EC[g]}')
            a(f'v_bitop3_b32 v{AO(b)[h]}, v{W[g] + k}, v{KAD}, v{NV} bitop3:{ANDOR:#x}')

    def dec_c1(b):
        for h in (1, 0):
            g, k = slot(b, h)
            w = W[g] + k
            a(f'v_perm_b32 v{C[h]}, v{w}, v{B[g]}, s{sP[k]}')
            a(f'v_bitop3_b32 v{(AI, NV)[h]}, v{w}, 0.5, -0.5 bitop3:{ORAND:#x}')

    def dec_c2(b):
        for h in (1, 0):
            a(f'v_bitop3_b32 v{C[h]}, v{KCM}, v{C[h]}, v{(AI, NV)[h]} bitop3:{SEL:#x}')

    def flush_pend(mask):
        return [f's_mov_b64 exec, {mask}',
                's_nop 1',
                f'{MF} {vr(RT, 4)}, {vr(NID, 2)}, {vr(P, 2)}, 0',
                's_nop 1',
                f'{MF} {vr(RT, 4)}, {vr(ID, 2)}, {vr(P + 2, 2)}, {vr(RT, 4)}',
                's_nop 4',
                f'v_cvt_pk_bf16_f32 v{RT}, v{RT}, v{RT + 1}',
                f'v_cvt_pk_bf16_f32 v{RT + 1}, v{RT + 2}, v{RT + 3}',
                f'ds_pk_add_bf16 v{PA}, v{RT} offset:{G.A_OFFS}',
                f'ds_pk_add_bf16 v{PA}, v{RT + 1} offset:{G.A_OFFS + 4}']

    def check(b, h):
        if CFG['ab_nofix'] == 1:
            return
        uid[0] += 1
        u = uid[0]
        a(f'v_cmpx_ne_u64 vcc, {vr(OLD2[h], 2)}, {vr(OLD[h], 2)}')
        if CFG['cnt']:
            a('s_bcnt1_i32_b64 s72, vcc')
            a('s_add_u32 s63, s63, s72')
        skip = CFG['zskip'] == 1 or (CFG['zskip'] == 2 and (b & 7) >= 6)
        if skip:
            a(f's_cbranch_execz L2_z{u}')
        a(f's_and_b64 {TMP}, vcc, {PEND}')
        a(f's_cbranch_scc1 L2_c{u}')
        a.label(f'L2_d{u}')
        if CFG['mov64']:
            a(f'v_mov_b64 {vr(P, 2)}, {vr(OLD[h], 2)}')
            a(f'v_mov_b32 v{PA}, v{AO(b)[h]}')
            a(f'v_mov_b64 {vr(P + 2, 2)}, {vr(OLD2[h], 2)}')
        else:
            for n in range(2):
                a(f'v_mov_b32 v{P + n}, v{OLD[h] + n}')
                a(f'v_mov_b32 v{P + 2 + n}, v{OLD2[h] + n}')
            a(f'v_mov_b32 v{PA}, v{AO(b)[h]}')
        if skip:
            a(f's_or_b64 {PEND}, {PEND}, vcc')
            a.label(f'L2_z{u}')
            a('s_mov_b64 exec, -1')
            if h == 0 and inj_on((b + 1) & 7, 0):
                a('s_nop 0')
        else:
            a('s_mov_b64 exec, -1')
            a(f's_or_b64 {PEND}, {PEND}, vcc')
        cnt = [f's_bcnt1_i32_b64 s72, {TMP}', 's_add_u32 s67, s67, s72', 's_add_u32 s67, s67, 0x10000'] if CFG['cnt'] else []
        if not CFG['nbr']:
            ool.append([f'L2_c{u}:'] + cnt + flush_pend(TMP) + ['s_mov_b64 exec, vcc', f's_branch L2_d{u}'])
            return
        CF, TG = 's[50:51]', 's[52:53]'
        bl = [f'L2_c{u}:',
              f's_mov_b64 {CF}, vcc',
              f's_lshl_b64 {TG}, {TMP}, 1',
              f's_andn2_b64 {TG}, {TG}, {PEND}',
              f's_andn2_b64 {TG}, {TG}, {CF}',
              f's_or_b64 {PEND}, {PEND}, {TG}',
              f's_not_b64 vcc, {TG}',
              's_mov_b64 exec, -1']
        for n, r in enumerate((P, P + 1, P + 2, P + 3, PA)):
            bl.append(f'v_cndmask_b32_dpp v{r}, v{r}, v{r}, vcc wave_shr:1 row_mask:0xf bank_mask:0xf')
            if n == 1:
                bl.append(f's_lshr_b64 {TG}, {TG}, 1')
            if n == 3:
                bl.append(f's_andn2_b64 {TMP}, {TMP}, {TG}')
        bl += [f's_mov_b64 vcc, {CF}',
               f's_mov_b64 exec, {CF}',
               f's_cbranch_scc0 L2_d{u}'] + cnt + flush_pend(TMP) + ['s_mov_b64 exec, vcc', f's_branch L2_d{u}']
        ool.append(bl)

    def check2(b, between=None):
        CM, TG = ['s[50:51]', 's[54:55]'], 's[52:53]'
        a(f'v_cmp_ne_u64 {CM[0]}, {vr(OLD2[0], 2)}, {vr(OLD[0], 2)}')
        a(f'v_cmpx_ne_u64 {CM[1]}, {vr(OLD2[1], 2)}, {vr(OLD[1], 2)}')
        for h in (1, 0):
            uid[0] += 1
            u = uid[0]
            if h == 0:
                if between:
                    a('s_mov_b64 exec, -1')
                    between()
                a(f's_mov_b64 exec, {CM[0]}')
            a(f's_and_b64 {TMP}, {CM[h]}, {PEND}')
            a(f's_cbranch_scc1 L2_c{u}')
            a.label(f'L2_d{u}')
            a(f'v_mov_b64 {vr(P, 2)}, {vr(OLD[h], 2)}')
            a(f'v_mov_b32 v{PA}, v{AO(b)[h]}')
            a(f'v_mov_b64 {vr(P + 2, 2)}, {vr(OLD2[h], 2)}')
            if h == 0:
                a('s_mov_b64 exec, -1')
            a(f's_or_b64 {PEND}, {PEND}, {CM[h]}')
            bl = [f'L2_c{u}:',
                  f's_lshl_b64 {TG}, {TMP}, 1',
                  f's_andn2_b64 {TG}, {TG}, {PEND}',
                  f's_andn2_b64 {TG}, {TG}, {CM[h]}',
                  f's_or_b64 {PEND}, {PEND}, {TG}',
                  f's_not_b64 vcc, {TG}',
                  's_mov_b64 exec, -1']
            for n, r in enumerate((P, P + 1, P + 2, P + 3, PA)):
                bl.append(f'v_cndmask_b32_dpp v{r}, v{r}, v{r}, vcc wave_shr:1 row_mask:0xf bank_mask:0xf')
                if n == 1:
                    bl.append(f's_lshr_b64 {TG}, {TG}, 1')
                if n == 3:
                    bl.append(f's_andn2_b64 {TMP}, {TMP}, {TG}')
            bl += [f's_mov_b64 exec, {CM[h]}',
                   f's_cbranch_scc0 L2_d{u}'] + flush_pend(TMP) + [f's_mov_b64 exec, {CM[h]}', f's_branch L2_d{u}']
            ool.append(bl)

    def inj_on(b, h):
        if CFG['ab_nofix'] == 1:
            return False
        return (2 * (b % NB) + h) % CFG['injs'] == 0

    def inject(b, h):
        m = INJ1 if h else INJ
        a(f's_and_b64 exec, {m}, {PEND}')
        a(f'{MF} {vr(X[h], 4)}, {vr(NID, 2)}, {vr(P, 2)}, 0')
        a(f'v_mov_b32 v{AO(b)[h]}, v{PA}')
        a(f's_andn2_b64 {PEND}, {PEND}, {m}')
        a(f'{MF} {vr(X[h], 4)}, {vr(ID, 2)}, {vr(P + 2, 2)}, {vr(X[h], 4)}')
        a('s_mov_b64 exec, -1')

    def step_a(b):
        a.wait_lg(('m', b))
        for h in (1, 0):
            a(f'{MF} {vr(X[h], 4)}, {vr(WD, 2)}, {vr(MR[ring(b)][h], 2)}, 0')
        dec_c2(b)
        for h in (1, 0):
            if inj_on(b, h):
                a(f'v_cmp_lt_u32 {INJ1 if h else INJ}, v{KAD}, v{AO(b)[h]}')
        for h in (1, 0):
            if CFG['pkmul']:
                for n in (0, 2):
                    a(f'v_pk_mul_f32 {vr(X[h] + n, 2)}, {vr(X[h] + n, 2)}, {vr(C[0], 2)} op_sel:[0,{h}] op_sel_hi:[1,{h}]')
            else:
                for n in range(4):
                    a(f'v_mul_f32 v{X[h] + n}, v{C[h]}, v{X[h] + n}')

    SB = CFG['sbar']
    sT0, sT1 = 56, 57

    def sb_arrive(c):
        a('s_mov_b64 exec, 1')
        a(f'ds_inc_u32 v{KAD}, v{KF0} offset:{161920 - 0x1fff8 + 8 * c}')
        a('s_mov_b64 exec, -1')

    def sb_look(c):
        a(f'ds_read_b32 v{RT}, v{KAD} offset:{161920 - 0x1fff8 + 8 * c}', tag='sb')

    def sb_wait(c):
        uid[0] += 1
        u = uid[0]
        a(f's_lshl_b32 s3, s{sPH}, 4')
        if c:
            a('s_add_u32 s3, s3, 16')
        a.wait_lg('sb')
        a.label(f'L2_w{u}')
        a(f'v_cmp_gt_u32 vcc, s3, v{RT}')
        a(f's_cbranch_vccnz L2_v{u}')
        ool.append([f'L2_v{u}:', f'ds_read_b32 v{RT}, v{KAD} offset:{161920 - 0x1fff8 + 8 * c}', 's_waitcnt lgkmcnt(0)', f's_branch L2_w{u}'])

    def step_b(b, final=False, mid=None, nogather=False):
        a.wait_lg('x')

        def rd(h):
            if not CFG['injearly'] and inj_on(b, h):
                inject(b, h)
            a(f'ds_read_b64 {vr(OLD[h], 2)}, v{AO(b)[h]} offset:{G.A_OFFS}', tag='o')
        if CFG['chk'] == 1:
            check2(b - 1)
        elif CFG['chk'] == 2:
            check2(b - 1, lambda: rd(1))
        else:
            for h in (1, 0):
                check(b - 1, h)
                if CFG['injearly'] and inj_on(b, h):
                    inject(b, h)
                if CFG['chk'] == 3 and h == 1:
                    rd(1)
        if CFG['chk'] < 2:
            rd(1)
        rd(0)
        if not final:
            if nogather:
                a.wait_vm([('R', 0)])
            else:
                for x in gs.get(b, []):
                    gather(x, b)
            mid()
        a.wait_lg('o')
        for h in (1, 0):
            a(f'{MF} {vr(X[h], 4)}, {vr(ID, 2)}, {vr(OLD[h], 2)}, {vr(X[h], 4)}')
        if not final:
            dec_ao(b + 1)
            dec_c1(b + 1)
        for h in (1, 0):
            a(f'v_cvt_pk_bf16_f32 v{X[h]}, v{X[h]}, v{X[h] + 1}')
            a(f'v_cvt_pk_bf16_f32 v{X[h] + 1}, v{X[h] + 2}, v{X[h] + 3}')
            a(f'ds_wrxchg_rtn_b64 {vr(OLD2[h], 2)}, v{AO(b)[h]}, {vr(X[h], 2)} offset:{G.A_OFFS}', tag='x')

    def stamp(i):
        if not CFG['stamp']:
            return
        a('s_memtime s[70:71]')
        a('s_waitcnt lgkmcnt(0)')
        a('s_sub_u32 s72, s70, s73')
        a('s_mov_b32 s73, s70')
        a(f's_add_u32 s{60 + i}, s{60 + i}, s72')

    ipos = [int(x) for x in CFG['ipos'].split()]
    fpos = [int(x) for x in CFG['fpos'].split()]
    fmpos = [int(x) for x in CFG['fmpos'].split()]

    ipos2 = [int(x) for x in CFG['ipos2'].split()]
    fpos2 = [int(x) for x in CFG['fpos2'].split()]

    def load_own(g):
        if g == 0:
            a('s_mov_b32 s6, 0xaaaaaaaa')
            a('s_mov_b32 s7, 0xaaaaaaaa')
        ai = st.get('ai') or AI
        a(f'v_and_b32 v{ai}, 0x0fffffff, v{EC[g]}')
        issue_rec(g, ai)
    def poll(level, lab):
        a('s_mov_b64 exec, 0xffff')
        a.label(lab)
        a(f'buffer_load_dword v{RT}, v{PA}, s[60:63], 0 offen sc1')
        a('s_waitcnt vmcnt(0)')
        a(f'v_cmp_gt_u32 vcc, {level}, v{RT}')
        a(f's_cbranch_vccnz {lab}s')
        ool.append([f'{lab}s:', f's_sleep {CFG["slp%d" % level]}', f's_branch {lab}'])
        a('s_mov_b64 exec, -1')

    def signal(level, tmp, adr):
        uid[0] += 1
        a(f's_cmp_lg_u32 s{sW}, 0')
        a(f's_cbranch_scc1 L2_sg{uid[0]}')
        vm, nvm = list(a.vm), a.nvm
        a('s_mov_b32 exec_hi, 0')
        a(f'v_mov_b32 v{tmp}, {level}')
        a(f'buffer_store_dword v{tmp}, v{adr}, s[60:63], s57 offen sc1')
        a('s_mov_b64 exec, -1')
        a.vm, a.nvm = vm, nvm
        a.label(f'L2_sg{uid[0]}')

    if P1:
        T16, sE = 0, 56
        a(f'v_lshlrev_b32 v3, 3, v{T16}')
        a('v_and_b32 v3, 0x80, v3')
        a(f's_cmp_lg_u32 s{sW}, 15')
        a('s_cbranch_scc1 L2_k0')
        vm, nvm = list(a.vm), a.nvm
        a('s_mov_b64 exec, 3')
        a('buffer_load_dword v3, v3, s[68:71], 0 offen sc1')
        a('s_mov_b64 exec, -1')
        a.vm, a.nvm = vm, nvm
        a.label('L2_k0')
        yield
        a('v_and_b32_dpp v3, v3, v3 quad_perm:[1,0,3,2] row_mask:0xf bank_mask:0xf')
        yield
        a(f'v_readlane_b32 s{sE}, v10, 15')
        a(f's_xor_b32 s{sE}, s{sE}, 0x80')
        yield
        a('s_load_dwordx2 s[28:29], s[0:1], 0')
        a('s_load_dwordx2 s[50:51], s[0:1], 40')
        a('s_load_dwordx2 s[52:53], s[0:1], 24')
        yield
        a('s_load_dwordx4 s[96:99], s[50:51], 0')
        a('s_mov_b64 s[4:5], s[52:53]')
        a(f's_bfe_u32 s{sQ}, s2, 0x20001')
        a(f's_and_b32 s{sOB}, s2, 1')
        a(f's_lshl_b32 s{sOB}, s{sOB}, 5')
        a('s_lshr_b32 s3, s2, 3')
        a(f's_add_u32 s{sOB}, s{sOB}, s3')
        a(f's_mul_i32 s{sTab}, s{sQ}, 2080')
        a(f's_lshl_b32 s3, s{sOB}, 5')
        a(f's_add_u32 s{sTab}, s{sTab}, s3')
        a(f's_mul_i32 s{sMD}, s{sQ}, {16 * 81920}')
        next_m(0)
        a(f's_lshl_b32 s{sM0}, s{sW}, 11')
        a(f's_mul_i32 s100, s{sW}, 3072')
        G.srd(a, 8, 30, G.REC_OFF, G.REC_SZ)
        G.srd(a, 12, 30, G.TAB_OFF, G.TAB_SZ)
        G.srd(a, 16, 64, 0, 32)
        G.srd(a, 24, 28, 0, G.E * 8)
        yield
        a(f'v_and_b32 v13, 0x3f0, v{T16}')
        a('v_and_b32 v14, 0x300, v13')
        a('v_bfe_u32 v15, v13, 4, 4')
        a(f's_lshl_b32 s3, s{sW}, 4')
        a('v_add3_u32 v14, v14, v15, s3')
        a(f'v_mul_u32_u24 v{CBA}, {G.BLK}, v14')
        a('v_lshrrev_b32 v14, 6, v13')
        a('s_add_u32 s3, s3, 0x400')
        a('v_add_u32 v14, s3, v14')
        a(f'v_mul_u32_u24 v{CBB}, {G.BLK}, v14')
        a('v_and_b32 v14, 3, v14')
        a('v_and_b32 v15, 0x30, v13')
        a('v_lshl_add_u32 v14, v14, 5, v15')
        a(f'v_add_u32 v6, v14, v{CBB}')
        a(f'v_lshl_add_u32 v5, v15, 1, v{CBA}')
        a('v_lshrrev_b32 v14, 3, v15')
        wb = P1['take'](100)
        for k in range(4):
            if not CFG['ab'] & 128:
                a(f'buffer_load_ushort v{wb + k}, v14, s[16:19], 0 offen offset:{k * 8}', tag='wd')
        a(f's_mul_i32 s3, s{sW}, 5120')
        a(f'v_add_u32 v{FA}, s3, v13')
        a('v_lshrrev_b32 v14, 2, v13')
        a(f'v_add_u32 v14, s{sM0}, v14')
        mo = [4, 2, 3, 0, 1]
        for _ in range(5):
            yield
            if 5 - len(mo) < CFG['m0s']:
                n = mo.pop(0)
                P1['take'](MP[n])
                load_m_raw(n, 0, 13)
        yield
        signal(1, 11, 14)
        store = P1['store']
        FS = CFG['fs']
        if FS:
            for n in range(10):
                a(f's_waitcnt lgkmcnt({9 - n})')
                store()
            store = lambda: None
            G.tl_mark(a, 76, 21, 1, RT + 2)
        yield
        st['raw'] = True
        a('s_setprio 3')
        a(f'v_mov_b32 v92, v{T16}')
        a('v_mov_b32 v93, v6')
        a('v_mov_b32 v94, v13')
        a('v_mov_b32 v95, v5')
        P1['t16'](92)
        store()
        store()
        a(f'v_mov_b32 v{LA}, v14')
        a(f'v_lshl_add_u32 v{PA}, v13, 3, s{sM0}')
        a('v_lshrrev_b32 v16, 2, v15')
        a(f'v_mad_u32_u24 v{CBB}, v16, 5, v{CBB}')
        a(f'v_or_b32 v{CBB}, 0xf0000000, v{CBB}')
        a(f'v_or_b32 v{CBA}, 0xf0000000, v{CBA}')
        a(f'v_sub_u32 v{SHL}, 28, v16')
        a('v_lshrrev_b32 v17, 2, v16')
        G.ident(a, ID, 18, 17)
        G.ident(a, NID, 18, 17, neg=True)
        a(f'v_mov_b32 v{KF0}, 0xf0000000')
        a(f'v_mov_b32 v{KAD}, 0x1fff8')
        a(f'v_mov_b32 v{KCM}, 0x07ff0000')
        for n in range(4):
            a(f'v_mov_b32 v{16 + n}, 0')
        a(f'v_add_u32 v20, {G.A_BASE}, v92')
        a(f'v_add_u32 v21, 0x10000, v20')
        for n in range(5):
            store()
            if n == 2:
                a('s_setprio 2')
            a(f'ds_write_b128 v20, v[16:19] offset:{n * 16384}' if n < 4 else 'ds_write_b128 v21, v[16:19]')
        a('s_setprio 1')
        for n in range(3):
            store()
        if not FS:
            G.tl_mark(a, 76, 21, 1, RT + 2)
        a('s_setprio 0')
        for k in range(4):
            a(f's_mov_b32 s{sP[k]}, {0x04000c0c | (k << 16):#x}')
        a(f's_mov_b32 s{sSlow}, 0')
        a(f's_mov_b32 s{sXo}, 0')
        a(f's_mov_b32 s{sPH}, 0')
        a(f's_mov_b64 {PEND}, 0')
        a(f's_mov_b64 {INJ}, 0')
        a(f's_mov_b64 {INJ1}, 0')
        G.srd(a, 16, 30, G.MD_OFF, G.MD_SZ)
        G.srd(a, 20, 30, G.PART_OFF, 80000)
        a(f's_lshl_b32 s3, s{sQ}, 6')
        a(f's_add_u32 s3, s3, s{sOB}')
        a('s_mul_i32 s3, s3, 80000')
        a('s_add_u32 s20, s20, s3')
        a('s_addc_u32 s21, s21, 0')
        for n in range(8):
            a(f'v_mov_b32 v{OLD[0] + n}, 0')
        a('s_waitcnt vmcnt(0)')
        a(f'v_lshl_or_b32 v{WD}, v{wb + 1}, 16, v{wb}')
        a(f'v_lshl_or_b32 v{WD + 1}, v{wb + 3}, 16, v{wb + 2}')
        G.tl_end(a, mid=True)
        if CFG['ab'] & 64:
            a('s_endpgm')
        a('s_barrier')
        signal(2, RT, LA)
        for _ in range(min(CFG['m0e'], len(mo))):
            load_m_raw(mo.pop(0), 0, 94)
        a(f's_cmp_eq_u32 s{sE}, 0')
        a('s_cbranch_scc1 L2_e3')
        a('v_lshlrev_b32 v16, 3, v94')
        a('v_and_b32 v16, 0x80, v16')
        a.label('L2_e4')
        a(f'buffer_load_dword v{RT}, v16, s[68:71], 0 offen sc1')
        a('s_waitcnt vmcnt(0)')
        a(f'v_cmp_gt_u32 vcc, 0x80, v{RT}')
        a('s_cbranch_vccnz L2_e4')
        a.label('L2_e3')
        poll(1, 'L2_p1')
        a(f'v_cmp_gt_u32 vcc, 2, v{RT}')
        a(f's_and_b32 s{sE}, vcc_lo, 0xffff')
        for k in (0, 2, 1, 3):
            a(f'buffer_load_dwordx4 {vr(DA + 4 * k, 4)}, v95, s[12:15], s{sTab} offen offset:{16 * k}', tag='D')
        a(f'buffer_load_dwordx4 {vr(DB, 4)}, v93, s[12:15], s{sTab} offen', tag='D')
        while mo:
            load_m_raw(mo.pop(0), 0, 94)
        G.tl_mark(a, 76, 22, 1, RT)
        x_pre(0)
        x_list(0, EN, 0)
        x_pre(1)
        a.wait_lg('L')
        for g in range(4):
            a(f'v_mov_b32 v{EC[g]}, v{EN[g]}')
        x_list(1, EN, 1)
        for n in (4, 2, 3, 0, 1):
            fill(n)
        G.tl_mark(a, 76, 23, 1, RT)
        if CFG['r0pre']:
            a(f's_cmp_eq_u32 s{sE}, 0')
            a('s_cbranch_scc1 L2_e2')
        a('s_mov_b64 exec, 0xffff')
        a(f'buffer_load_dword v{RT}, v{PA}, s[60:63], 0 offen sc1')
        a('s_mov_b64 exec, -1')
        if not CFG['r0pre']:
            a('s_waitcnt lgkmcnt(0)')
            a('s_barrier')
            G.tl_mark(a, 76, 24, 1, RT + 2)
        a('s_waitcnt vmcnt(0)')
        a(f'v_cmp_gt_u32 vcc, 2, v{RT}')
        a(f's_and_b32 s{sE}, vcc_lo, 0xffff')
        a('s_cbranch_scc0 L2_e2')
        for n in (4, 2, 3, 0, 1):
            load_m_raw(n, 1, 94)
        poll(2, 'L2_p2')
        a.label('L2_e2')
        G.tl_start(a, mid=True)
        load_own(0)
        if CFG['r0pre']:
            a('s_waitcnt lgkmcnt(0)')
            a('s_barrier')
            G.tl_mark(a, 76, 24, 1, RT + 2)
    else:
        if CFG['stamp']:
            for i in range(8):
                a(f's_mov_b32 s{60 + i}, 0')
            a('s_mov_b32 s73, 0')
            stamp(7)
            a('s_mov_b32 s67, 0')

        for n in range(8):
            a(f'v_mov_b32 v{OLD[0] + n}, 0')
        a(f'v_add_u32 v24, {G.A_BASE}, v24')
        for n in range(4):
            a(f'ds_write_b128 v24, {vr(OLD[0], 4)} offset:{n * 16384}')
        a(f'v_add_u32 v{AI}, 0x10000, v24')
        a(f'ds_write_b128 v{AI}, {vr(OLD[0], 4)}')
        G.tl_mark(a, 76, 21, 1, RT)
        a.wait_vm('D')
        G.tl_mark(a, 76, 22, 1, RT)
        if CFG['dq']:
            Z = 26
            for src, dst, bit, qp, ev in ((DA, Z, 1, '[1,0,3,2]', 0x55555555), (Z, DA, 2, '[2,3,0,1]', 0x33333333)):
                for par in range(2):
                    m = ev if par == 0 else ev ^ 0xffffffff
                    a(f's_mov_b32 vcc_lo, {m:#x}')
                    a(f's_mov_b32 vcc_hi, {m:#x}')
                    n = 0
                    for k in range(4):
                        if bool(k & bit) != bool(par):
                            continue
                        for r in range(4):
                            a(f'v_cndmask_b32_dpp v{dst + 4 * k + r}, v{src + 4 * (k ^ bit) + r}, v{src + 4 * k + r}, vcc quad_perm:{qp} row_mask:0xf bank_mask:0xf')
                            n += 1
                            if CFG['dq'] == 2 and n % 2 == 0:
                                a(f'v_mov_b32 v{RT}, 0')
                                a(f'v_mov_b32 v{RT + 1}, 0')
        x_pre(0)
        x_list(0, EN, 0)
        x_pre(1)
        a.wait_lg('L')
        G.tl_mark(a, 76, 23, 1, RT)
        for g in range(4):
            a(f'v_mov_b32 v{EC[g]}, v{EN[g]}')
        if CFG['pprio'] < 2:
            load_own(0)
        for g in range(1, 4):
            fill((4, 2, 3)[g - 1])
            if ipos[g - 1] < 0 or CFG['ab_norec']:
                load_own(g)
        x_list(1, EN, 1)
        fill(0)
        fill(1)
        if CFG['pprio'] == 2:
            load_own(0)
        a('s_waitcnt lgkmcnt(0)')
        G.tl_mark(a, 76, 24, 1, RT)
        if CFG['ab_norec']:
            a('s_waitcnt vmcnt(0)')
        stamp(0)
    st['inloop'] = True
    prio1 = [int(x) for x in CFG['pr'].split()]
    sites = []
    FW, FM, FD, FL, FG = 48, [108, 112], [116, 117], [118, 119], [120, 121]

    def fin_preload():
        a(f's_lshl_b32 s3, s{sW}, 12')
        a(f'v_subrev_u32 v122, s3, v{FA}')
        a(f's_mul_i32 s3, s{sQ}, 20000')
        a(f'v_add_u32 v{FL[0]}, s3, v122')
        a(f'v_add_u32 v{FL[1]}, 0x4000, v{FL[0]}')
        a(f's_lshl_b32 s3, s{sOB}, 7')
        for r in range(2):
            a(f'v_lshrrev_b32 v123, 7, v{FL[r]}')
            a(f'v_and_b32 v{FG[r]}, 0x70, v{FL[r]}')
            a(f'v_lshl_add_u32 v{FG[r]}, v123, 13, v{FG[r]}')
            a(f'v_add_u32 v{FG[r]}, s3, v{FG[r]}')
        a(f'v_cmp_le_u32 vcc, {20000 - 16384}, v122')
        a('s_mov_b64 exec, vcc')
        a(f'v_mov_b32 v{FL[1]}, 2.0')
        a(f'v_mov_b32 v{FG[1]}, 2.0')
        a('s_mov_b64 exec, -1')
        a('v_and_b32 v123, 0x30, v122')
        a('v_lshlrev_b32 v123, 2, v123')
        a(f'buffer_load_dwordx4 {vr(FW, 4)}, v123, s[24:27], 0 offen', tag='fin')
        a(f'buffer_load_dwordx4 {vr(FW + 4, 4)}, v123, s[24:27], 0 offen offset:16', tag='fin')
        a(f'buffer_load_dwordx2 {vr(FW + 8, 2)}, v123, s[24:27], 0 offen offset:32', tag='fin')
        G.srd(a, 12, 4, 0, G.E * 2)
        G.srd(a, 16, 28, 0, G.E * 8)
        for r in range(2):
            a(f'v_lshrrev_b32 v123, 2, v{FG[r]}')
            a(f'buffer_load_dword v{FD[r]}, v123, s[12:15], 0 offen', tag='fin')
            a(f'buffer_load_dwordx4 {vr(FM[r], 4)}, v{FG[r]}, s[16:19], 0 offen', tag='fin')

    def phase(jj, kind):
        first, more1, more2 = kind == 'first', kind != 'last', kind in ('first', 'second', 'mid')
        second = kind == 'second'
        ph['par'] = (jj * NB) & 1
        a.c(f'==== phase jj={jj} {kind}')
        site = len(sites)
        sites.append(site)

        def slow_site():
            stamp(5)
            G.tl_mark(a, 76, f's{sPH}', 1, RT)
            a(f's_bitcmp1_b32 s{sSlow}, s{sPH}')
            a('s_cbranch_scc1 L2_slow')
            a.label(f'L2_ret{site}')
        if first or not SB:
            if not (first and P1) and (first or not CFG['ab'] & 1):
                a('s_barrier')
            slow_site()
        hs = [None]
        st['m0'] = None

        def dhook():
            if hs[0] is None:
                return
            if CFG['sprio']:
                a(f's_setprio {3 - hs[0]}')
            for n in (4, 2, 3, 0, 1):
                if dpos[n] == hs[0]:
                    fill(n)
                if mpos[n] < 0 and more2 and max(dpos[n], -1 - mpos[n]) == hs[0]:
                    load_m(n)
            hs[0] += 1

        def rhook(pos):
            if FOLD:
                if pos == 7:
                    ovf_load(XN[jj & 1], X[0] if first else MP[1])
                if pos == (7 if first else mpos[1]):
                    ovf_run(XN[jj & 1], X[0] if first else MP[1])
            if first and not CFG['ab_norec']:
                if pos == 7 and CFG['pprio'] == 3:
                    load_own(0)
                for g in range(1, 4):
                    if ipos[g - 1] == pos:
                        load_own(g)
            elif second:
                for g in range(1, 3):
                    if fpos[g] == 9 and ipos2[g - 1] == pos:
                        load_own(g)
                if ipos2[2] == pos:
                    load_rec(3)
            elif rpos[3] in (pos, pos + 8) and rpos[3] < 10:
                load_rec(3)
            if not more1:
                if pos == 3 and CFG['fuse']:
                    fin_preload()
                return
            for n in (4, 2, 3, 0, 1):
                if (fmpos if first else mpos)[n] == pos and not (first and P1):
                    load_m(n)
                elif first and P1 and fmpos[n] == pos:
                    uid[0] += 1
                    a(f'v_and_b32 v{AI}, 0x3f0, v{FA}')
                    a('s_cmp_lg_u32 s56, 0')
                    a(f's_cbranch_scc1 L2_m{uid[0]}')
                    vm, nvm = list(a.vm), a.nvm
                    load_m_raw(n, 1, AI)
                    a.vm, a.nvm = vm, nvm
                    st[('rawn', n)] = a.nvm
                    a.label(f'L2_m{uid[0]}')
            if pos == b1_step - 1:
                next_m(jj + 1)
            for g in range(3):
                if (fpos if first else fpos2 if second else rpos)[g] == pos:
                    load_rec(g)
                if first and fpos[g] == 9 and pos == b1_step:
                    a(f'v_mov_b32 v{EC[g]}, v{EN[g]}')

        for i, b in enumerate(order if SB else []):
            if i == 0 or prio1[i] != prio1[i - 1]:
                a(f's_setprio {prio1[i]}')
            if b >= 0:
                step_a(b)
            if b == CFG['xpre'] and more2:
                x_pre((jj + 2) & 3)
            if b >= 0 or first:
                rhook(b & 7)
            if first and b < 0:
                gather(0, -1)
                dec_ao(0)
                dec_c1(0)
            elif b < 0:
                step_b(b, mid=lambda: sb_look(0), nogather=True)
                sb_wait(0)
                slow_site()
                gather(0, -1, RT, RT + 1, True)
                st['ai'] = RT
                rhook(7)
                st['ai'] = None
            elif b == b1_step - 1 and more1:
                step_b(b, mid=lambda: sb_arrive(1))
            elif b == b1_step and more1:
                step_b(b, mid=lambda: sb_look(1))
            else:
                step_b(b, mid=lambda: None)
            if more1 and not first:
                for g in range(3 if second else 0, 4):
                    if rpos[g] == 10 + b and b < b1_step:
                        load_rec(g, RT)
            if b == b1_step and more1:
                if SB == 2:
                    step_a(LB)
                sb_wait(1)
                hs[0] = 0
                dhook()
                if more2:
                    x_list((jj + 2) & 3, EN, 2)
                else:
                    a(f'v_mov_b32 v{ES}, v{EN[3]}')
                for _ in range(3):
                    dhook()
                sb_arrive(0)
                a(f's_add_u32 s{sPH}, s{sPH}, 1')
                if rpos[3] == 10 + b and not first:
                    a.wait_lg('L')
                    load_rec(3, RT)
        if SB:
            if SB == 1 or not more1:
                step_a(LB)
            return
        for i, b in enumerate(order):
            if b == b1_step and more1:
                a.wait_lg(('m', LB))
                stamp(1)
                if not CFG['ab'] & 2:
                    a('s_barrier')
                stamp(2)
                hs[0] = 0
                dhook()
            if (i == 0 or prio1[i] != prio1[i - 1]) and not (CFG['sprio'] and b == b1_step):
                a(f's_setprio {prio1[i]}')
            if b >= 0:
                step_a(b)
            if FOLD:
                assert CFG['xpre'] >= mpos[1] >= 0
                rhook(b & 7)
            if b == CFG['xpre'] and more2 and not CFG['ab'] & 4:
                x_pre((jj + 2) & 3)
            if not FOLD:
                rhook(b & 7)
            if b == b1_step and more2 and not CFG['ab'] & 4:
                x_list((jj + 2) & 3, EN, 2)
            elif b == b1_step and more1:
                a(f'v_mov_b32 v{ES}, v{EN[3]}')
            dhook()
            if first and b < 0:
                gather(0, -1)
                dec_ao(0)
                dec_c1(0)
            else:
                step_b(b, mid=dhook)
            if more1 and not first:
                for g in range(3 if second else 0, 4):
                    if rpos[g] == 10 + b:
                        load_rec(g, RT)
            dhook()
        step_a(LB)
        if more1:
            assert hs[0] > max(dpos)
            a(f's_add_u32 s{sPH}, s{sPH}, 1')
            a.wait_lg('F')
            stamp(4)

    phase(0, 'first')
    st['raw'] = False
    if P1:
        G.srd(a, 24, 30, G.WT_OFF, G.WT_SZ)
    phase(1, 'second')
    a.vm = merge_vm(a.vm, G.MEMO.get('back', []))
    head_vm, head_lg = list(a.vm), list(a.lg)
    a.label('L2_loop')
    for jj in (2, 3, 0, 1):
        phase(jj, 'mid')
    assert 'back' not in G.MEMO or merge_vm(head_vm, a.vm) == head_vm, (a.vm, head_vm)
    G.MEMO['back'] = list(a.vm)
    assert a.lg == head_lg
    a(f's_cmp_lg_u32 s{sPH}, 14')
    a('s_cbranch_scc1 L2_loop')
    phase(2, 'penult')
    phase(3, 'last')
    step_b(LB, final=True)
    a.wait_lg('x')
    check(LB, 1)
    check(LB, 0)
    for ln in flush_pend(PEND):
        a(ln)
    a('s_mov_b64 exec, -1')
    if True:
        a('s_load_dwordx2 s[4:5], s[0:1], 88')
        for n in range(1, 5):
            a(f'v_add_u32 v{122 + n}, {n * 16384}, v122')
        for n in range(4):
            a(f's_lshl_b32 s{50 + 2 * n}, s{96 + n}, 16')
            a(f's_and_b32 s{51 + 2 * n}, s{96 + n}, 0xffff0000')
        a('s_waitcnt vmcnt(0) lgkmcnt(0)')
        a('s_barrier')
        G.tl_mark(a, 76, 16, 1, 106)
        a('v_add_u32 v36, 0x8000, v126')
        for n in range(5):
            if n < 3:
                a(f'ds_read_b128 {vr(16 + 4 * n, 4)}, v126 offset:{G.A_BASE - 65536 + n * 16384}')
            else:
                a(f'ds_read_b128 {vr(16 + 4 * n, 4)}, v36 offset:{G.A_BASE - 98304 + n * 16384}')
        G.srd(a, 8, 30, G.FLAG_OFF, G.FLAG_SZ)
        G.srd(a, 12, 4, 0, G.E * 8)
        a(f's_mul_i32 s3, s{sQ}, 20000')
        for n in range(5):
            a(f'v_subrev_u32 v36, s3, v{122 + n}')
            a('v_cmp_le_u32 vcc, 20000, v36')
            a(f's_waitcnt lgkmcnt({4 - n})')
            a('s_mov_b64 exec, vcc')
            a(f'buffer_store_dwordx4 {vr(16 + 4 * n, 4)}, v{122 + n}, s[20:23], 0 offen sc1', tag='st')
            a('s_mov_b64 exec, -1')
        GH = [80, 16]
        G.fin_gates(a, FD[0], 50, FW, GH[0], 60)
        if not CFG['g1late']:
            a(f's_cmp_ge_u32 s{sW}, 4')
            a('s_cbranch_scc1 L2_f1')
            G.fin_gates(a, FD[1], 50, FW, GH[1], 60)
            a.label('L2_f1')
        PL = [32, 60]
        for r in range(2):
            a(f'v_add_u32 v104, {G.A_BASE}, v{FL[r]}')
            a(f'ds_read_b128 {vr(PL[r], 4)}, v104')
        G.srd(a, 20, 30, G.PART_OFF, G.PART_SZ)
        for k in range(1, 4):
            a(f's_add_u32 s3, s{sQ}, {k}')
            a('s_and_b32 s3, s3, 3')
            a('s_lshl_b32 s3, s3, 6')
            a(f's_add_u32 s3, s3, s{sOB}')
            a(f's_mul_i32 s{43 + k}, s3, 80000')
        a(f's_lshl_b32 s3, s{sOB}, 9')
        a(f's_lshl_b32 s4, s{sQ}, 7')
        a('s_add_u32 s4, s4, s3')
        a('v_mov_b32 v104, 1')
        a('v_lshlrev_b32 v105, 3, v122')
        G.tl_mark(a, 76, 17, 1, 106)
        a('s_waitcnt vmcnt(0)')
        a('s_barrier')
        G.tl_mark(a, 76, 18, 1, 106)
        a(f's_cmp_lg_u32 s{sW}, 0')
        a('s_cbranch_scc1 L2_f2')
        a('s_mov_b64 exec, 1')
        a('buffer_store_dword v104, off, s[8:11], s4 sc1')
        a('s_mov_b64 exec, 15')
        a(f's_bitset0_b64 exec, s{sQ}')
        a.label('L2_f3')
        a('buffer_load_dword v104, v105, s[8:11], s3 offen sc1')
        a('s_waitcnt vmcnt(0)')
        a('v_cmp_ne_u32 vcc, 1, v104')
        a('s_cbranch_vccnz L2_f3')
        a.label('L2_f4')
        a('s_mov_b64 exec, -1')
        a.label('L2_f2')
        a('s_barrier')
        G.tl_mark(a, 76, 19, 1, 106)
        for r in range(2):
            if r:
                a(f's_cmp_ge_u32 s{sW}, 4')
                a('s_cbranch_scc1 L2_f5')
            for k in range(1, 4):
                a(f'buffer_load_dwordx4 {vr(PL[r] + 4 * k, 4)}, v{FL[r]}, s[20:23], s{43 + k} offen sc1')
        if CFG['g1late']:
            G.fin_gates(a, FD[1], 50, FW, GH[1], (96, 0, [104, 76]))
        a.label('L2_f5')
        a('s_waitcnt vmcnt(0) lgkmcnt(0)')
        G.tl_mark(a, 76, 20, 1, 106)
        for r in range(2):
            if r:
                a(f's_cmp_ge_u32 s{sW}, 4')
                a('s_cbranch_scc1 L2_f6')
            G.fin_out(a, PL[r], GH[r], FW, ID, FM[r], 96)
            a(f'buffer_store_dwordx4 {vr(PL[r] + 4, 4)}, v{FG[r]}, s[12:15], 0 offen{CFG["out_pol"]}')
        a.label('L2_f6')
    G.tl_end(a)
    if CFG['stamp']:
        a('s_waitcnt vmcnt(0)')
        stamp(6)
        a('s_load_dwordx2 s[74:75], s[0:1], 96')
        a('s_waitcnt lgkmcnt(0)')
        G.srd(a, 76, 74, 0, 256)
        a(f's_cmp_lg_u32 s2, {CFG["stamp"]}')
        a('s_cbranch_scc1 L2_end')
        a(f's_and_b32 s3, s{sW}, 3')
        a('s_cmp_lg_u32 s3, 0')
        a('s_cbranch_scc1 L2_end')
        a(f's_lshl_b32 s3, s{sW}, 3')
        a('v_mov_b32 v20, 0')
        for i in range(8):
            a(f'v_mov_b32 v21, s{60 + i}')
            a(f'buffer_store_dword v21, v20, s[76:79], s3 offen offset:{4 * i}')
    a.label('L2_end')
    a('s_endpgm')

    a.label('L2_slow')
    a.reset()
    sC, sS, sE, sO = 50, 51, 52, 53
    pp, t_, wa, ba, w_, b_, ao, c_, ai_ = 102, 103, 104, 105, 106, 107, 96, 97, 98
    m_ = MR[0][0]
    a(f's_lshr_b32 s{sSP}, s{sPH}, 2')
    a(f's_lshl_b32 s{sC}, s{sW}, 4')
    a(f's_and_b32 s3, s{sPH}, 3')
    a(f's_lshl_b32 s{sO}, s3, 3')
    a(f's_add_u32 s{sO}, s{sO}, s{sTab}')
    a(f's_and_b32 s3, s{sSP}, 2')
    a('s_lshl_b32 s3, s3, 1')
    a(f's_add_u32 s{sO}, s{sO}, s3')
    a(f's_and_b32 s54, s{sSP}, 1')
    a('s_lshl_b32 s54, s54, 4')
    a.label('L2_sl_seg')
    a(f's_mul_i32 s55, s{sC}, {G.BLK}')
    a(f's_and_b32 s3, s{sC}, 3')
    a('s_lshl_b32 s3, s3, 5')
    a('s_add_u32 s3, s3, s55')
    a(f's_add_u32 s3, s3, s{sO}')
    a(f'buffer_load_dword v{wa}, off, s[12:15], s3 sc1')
    a(f'buffer_load_dword v{ba}, off, s[12:15], s3 offset:32 sc1')
    a('s_waitcnt vmcnt(0)')
    a(f'v_readfirstlane_b32 s{sS}, v{wa}')
    a(f'v_readfirstlane_b32 s{sE}, v{ba}')
    a(f's_lshr_b32 s{sS}, s{sS}, s54')
    a(f's_and_b32 s{sS}, s{sS}, 0xffff')
    a(f's_lshr_b32 s{sE}, s{sE}, s54')
    a(f's_and_b32 s{sE}, s{sE}, 0xffff')
    a.label('L2_sl_rec')
    a(f's_cmp_ge_u32 s{sS}, s{sE}')
    a('s_cbranch_scc1 L2_sl_next')
    a(f'v_mbcnt_lo_u32_b32 v{pp}, -1, 0')
    a(f'v_mbcnt_hi_u32_b32 v{pp}, -1, v{pp}')
    a(f'v_add_u32 v{pp}, s{sS}, v{pp}')
    a(f'v_and_b32 v{t_}, -4, v{pp}')
    a(f'v_lshl_add_u32 v{wa}, v{pp}, 2, v{t_}')
    a(f'v_lshl_add_u32 v{ba}, v{t_}, 2, v{pp}')
    a(f'v_cmp_gt_u32 vcc, s{sE}, v{pp}')
    a('s_mov_b64 exec, vcc')
    a(f'buffer_load_dword v{w_}, v{wa}, s[8:11], s55 offen')
    a(f'buffer_load_ubyte v{b_}, v{ba}, s[8:11], s55 offen offset:16')
    a('s_waitcnt vmcnt(0)')
    a(f'v_lshrrev_b32 v{ai_}, 14, v{w_}')
    a(f'v_and_b32 v{ai_}, v{KAD}, v{ai_}')
    a(f'ds_read_b64 {vr(m_, 2)}, v{ai_}')
    a(f'v_perm_b32 v{c_}, v{w_}, v{b_}, s{sP[0]}')
    a(f'v_and_b32 v{ao}, v{KAD}, v{w_}')
    a(f'v_bitop3_b32 v{t_}, v{w_}, 0.5, -0.5 bitop3:{ORAND:#x}')
    a(f'v_bitop3_b32 v{c_}, v{KCM}, v{c_}, v{t_} bitop3:{SEL:#x}')
    a('s_waitcnt lgkmcnt(0)')
    a(f'{MF} {vr(RT, 4)}, {vr(WD, 2)}, {vr(m_, 2)}, 0')
    for n in range(4):
        a(f'v_mul_f32 v{RT + n}, v{c_}, v{RT + n}')
    a(f'v_cvt_pk_bf16_f32 v{RT}, v{RT}, v{RT + 1}')
    a(f'v_cvt_pk_bf16_f32 v{RT + 1}, v{RT + 2}, v{RT + 3}')
    a(f'ds_pk_add_bf16 v{ao}, v{RT} offset:{G.A_OFFS}')
    a(f'ds_pk_add_bf16 v{ao}, v{RT + 1} offset:{G.A_OFFS + 4}')
    a('s_mov_b64 exec, -1')
    a(f's_add_u32 s{sS}, s{sS}, 64')
    a('s_branch L2_sl_rec')
    a.label('L2_sl_next')
    a(f's_add_u32 s{sC}, s{sC}, 1')
    a(f's_and_b32 s3, s{sC}, 15')
    a('s_cbranch_scc1 L2_sl_seg')
    a(f's_add_u32 s{sC}, s{sC}, 240')
    a(f's_cmp_lt_u32 s{sC}, {G.NCH}')
    a('s_cbranch_scc1 L2_sl_seg')
    a('s_waitcnt lgkmcnt(0)')
    for ph, k in ((0, 0), (1, 1), (14, 6), (15, 7)):
        a(f's_cmp_eq_u32 s{sPH}, {ph}')
        a(f's_cbranch_scc1 L2_ret{k}')
    a(f's_and_b32 s3, s{sPH}, 3')
    for ph, k in ((2, 2), (3, 3), (0, 4)):
        a(f's_cmp_eq_u32 s3, {ph}')
        a(f's_cbranch_scc1 L2_ret{k}')
    a('s_branch L2_ret5')
    for bl in ool:
        for ln in bl:
            if ln.endswith(':'):
                a.label(ln[:-1])
                a.reset()
            else:
                a(ln)
    yield name
```

```python
import os
import sys
from asmlib import Asm, vr, sr

NAME = 'gather_scatter__molecular_angular_gemnet__graph'
CFG = dict(
    ld_pol=' nt',
    st_pol=' sc1',
    pad=9216, one=1, p1_first=8, mcn=128, tabx=1, ab_p1=0, il=1, ilx=1, ilw=0, sa='20010010', sb='1000100100', la='01101000', lb='1000100000', scd=8, p1prio=1, warm=2, dyn=2, cut='96 192 240', slp1=32, slp2=8, inv=1, m0s=0, m0e=5, fs=1, r0pre=1, tkpos=7, tkwave=15, wgx=0,
    ab=0, ab_nofix=0, ab_norec=0, ab_nom=0, stamp=0, tl=0, tlw=0, dup2=0, dup1=0, wsoff=16384, stp=1, nulls=0, dup3=0, cnt=0,
    x3=2, rpos='10 12 14 16', dpos='2 3 0 0 1', mpos='7 0 -1 -1 -2', ipos='7 0 2', fpos='3 5 6', fmpos='3 3 1 2 1', ipos2='7 0 7', fpos2='1 3 5', pprio=0, dq=0, nbr=1, sbar=0, fold=0, chk=1, zskip=0, cmap=1, gord='0 1 2 3', sprio=1, xpre=1, pkmul=1, mov64=1, injs=4, injearly=0, pr='3 3 2 2 1 1 0 1', part_pol=' sc1', fuse=1, out_pol='', mimic=1, g1late=1,
)
for arg in sys.argv[2:]:
    k, v = arg.split('=', 1)
    CFG[k] = type(CFG[k])(v.replace('_', ' ')) if isinstance(CFG.get(k), str) else int(v)

E = 640000
T = 40960000
CH = 32768
NCH = 1280
REC_CH = CH * 5
TAB_CH = 16 * 65 * 8
BLK = REC_CH + CFG['pad']
REC_OFF = CFG['wsoff']
REC_SZ = NCH * BLK
TAB_OFF = REC_OFF + REC_CH
TAB_SZ = NCH * BLK - REC_CH
MD_OFF = REC_OFF + REC_SZ
MD_SZ = 64 * 81920
PART_OFF = MD_OFF + MD_SZ + 4096
PART_SZ = 4 * E * 8
WT_OFF = PART_OFF + PART_SZ
WT_SZ = 256
FLAG_OFF = WT_OFF + 4096
FLAG_SZ = 256 * 128
PROG_OFF = FLAG_OFF + FLAG_SZ
KBIAS = 2064
A_BASE = 81920
A_OFFS = A_BASE - KBIAS * 8

MEMO = {}
SEL = 0xCA
ANDOR = 0xEA
XANDN = 0x9A


def srd(a, d, base, off, size):
    if off:
        a(f's_add_u32 s{d}, s{base}, {off:#x}')
        a(f's_addc_u32 s{d+1}, s{base+1}, 0')
    else:
        a(f's_mov_b32 s{d}, s{base}')
        a(f's_mov_b32 s{d+1}, s{base+1}')
    a(f's_mov_b32 s{d+2}, {size:#x}')
    a(f's_mov_b32 s{d+3}, 0x20000')


def kernel_head(a, name):
    a.raw('.text')
    a.raw(f'.globl {name}')
    a.raw('.p2align 8')
    a.raw(f'.type {name},@function')
    a.label(name)
    a.reset()


def kernel_desc(a, name, vgpr, sgpr=96):
    a.raw('.p2align 6')
    a.raw(f'.amdhsa_kernel {name}')
    a.raw(f'  .amdhsa_next_free_vgpr {vgpr}')
    a.raw(f'  .amdhsa_next_free_sgpr {sgpr}')
    a.raw(f'  .amdhsa_accum_offset {(vgpr + 3) // 4 * 4}')
    a.raw('  .amdhsa_group_segment_fixed_size 0')
    a.raw('  .amdhsa_kernarg_size 112')
    a.raw('  .amdhsa_user_sgpr_count 2')
    a.raw('  .amdhsa_user_sgpr_kernarg_segment_ptr 1')
    a.raw('  .amdhsa_system_sgpr_workgroup_id_x 1')
    a.raw('  .amdhsa_float_denorm_mode_32 3')
    a.raw('.end_amdhsa_kernel')


TL_OFF = 600000000
tl_idx = [0]


def tl_start(a, mid=False):
    if not CFG['tl']:
        return
    a('s_memrealtime s[90:91]')
    a('s_memtime s[92:93]')
    if not mid:
        a('v_readfirstlane_b32 s94, v0')
    a('s_waitcnt lgkmcnt(0)')


def tl_end(a, mid=False):
    if not CFG['tl']:
        return
    vb, va = (88, 47) if mid else (4, 0)
    vm, nvm = list(a.vm), a.nvm
    if not mid:
        a('s_waitcnt vmcnt(0) lgkmcnt(0)')
    a('s_memrealtime s[86:87]')
    a('s_memtime s[88:89]')
    a('s_load_dwordx2 s[74:75], s[0:1], 104')
    a('s_waitcnt lgkmcnt(0)')
    srd(a, 76, 74, TL_OFF + tl_idx[0] * 0x100000, 0x100000)
    tl_idx[0] += 1
    a('s_mov_b64 exec, 1')
    a('s_lshr_b32 s91, s94, 2')
    a('s_lshl_b32 s95, s2, 8')
    a('s_add_u32 s95, s91, s95')
    a('s_sub_u32 s88, s88, s92')
    a('s_getreg_b32 s89, hwreg(HW_REG_XCC_ID)')
    a('s_and_b32 s89, s89, 15')
    a('s_lshl_b32 s87, s84, 8')
    a('s_or_b32 s89, s89, s87')
    a(f'v_mov_b32 v{va}, s95')
    for i, r in enumerate((90, 86, 88, 89)):
        a(f'v_mov_b32 v{vb + i}, s{r}')
    a(f'buffer_store_dwordx4 v[{vb}:{vb + 3}], v{va}, s[76:79], 0 offen')
    a('s_mov_b64 exec, -1')
    a('s_nop 1')
    a.vm, a.nvm = vm, nvm


def tl_mark(a, srdreg, slot_sgpr_or_int, kidx, vtmp):
    if CFG['tl'] < 2:
        return
    a('s_memrealtime s[86:87]')
    a('s_memtime s[88:89]')
    a('s_load_dwordx2 s[74:75], s[0:1], 104')
    a('s_waitcnt lgkmcnt(0)')
    srd(a, 76, 74, TL_OFF + (4 + kidx) * 0x100000, 0x100000)
    a(f's_cmp_eq_u32 s94, {CFG["tlw"] * 64}')
    a('s_cselect_b64 exec, 1, 0')
    a('s_lshl_b32 s95, s2, 9')
    if isinstance(slot_sgpr_or_int, int):
        a(f's_add_u32 s95, s95, {slot_sgpr_or_int * 8}')
    else:
        a(f's_lshl_b32 s87, {slot_sgpr_or_int}, 3')
        a('s_add_u32 s95, s95, s87')
    a(f'v_mov_b32 v{vtmp}, s86')
    a(f'v_mov_b32 v{vtmp + 1}, s88')
    vm, nvm = list(a.vm), a.nvm
    a(f'buffer_store_dwordx2 v[{vtmp}:{vtmp + 1}], off, s[76:79], s95')
    a.vm, a.nvm = vm, nvm
    a('s_mov_b64 exec, -1')


def wave_scan(a, regs):
    for sh in (1, 2, 4, 8):
        for x in regs:
            a(f'v_add_u32_dpp v{x}, v{x}, v{x} row_shr:{sh} row_mask:0xf bank_mask:0xf bound_ctrl:1')
    for x in regs:
        a(f'v_add_u32_dpp v{x}, v{x}, v{x} row_bcast:15 row_mask:0xa bank_mask:0xf')
    for x in regs:
        a(f'v_add_u32_dpp v{x}, v{x}, v{x} row_bcast:31 row_mask:0xc bank_mask:0xf')


def ident(a, d, tmp, lane, neg=False):
    one = 0xbf80 if neg else 0x3f80
    a(f'v_and_b32 v{tmp}, 3, v{lane}')
    a(f'v_lshlrev_b32 v{tmp}, 4, v{tmp}')
    a(f'v_mov_b32 v{d}, {one:#x}')
    a(f'v_mov_b32 v{d+1}, 0')
    a(f'v_lshlrev_b64 {vr(d, 2)}, v{tmp}, {vr(d, 2)}')


MF = 'v_mfma_f32_4x4x4_16b_bf16'


def fin_gates(a, dist, sc, wt, gh, tmp):
    X, Y, RB, d = (tmp, tmp + 8, [tmp + 12, tmp + 16], gh) if isinstance(tmp, int) else tmp + (gh,)
    for r in range(2):
        if r == 0:
            a(f'v_lshlrev_b32 v{d}, 16, v{dist}')
        else:
            a(f'v_and_b32 v{d}, 0xffff0000, v{dist}')

        def rnd():
            if not CFG['mimic']:
                return
            for n in range(4):
                a(f'v_cvt_pk_bf16_f32 v{Y + n}, v{X + 2 * n}, v{X + 2 * n + 1}')
            for n in range(4):
                a(f'v_lshlrev_b32 v{X + 2 * n}, 16, v{Y + n}')
                a(f'v_and_b32 v{X + 2 * n + 1}, 0xffff0000, v{Y + n}')
        for n in range(8):
            a(f'v_subrev_f32 v{X + n}, s{sc + n}, v{d}')
        rnd()
        for n in range(8):
            a(f'v_mul_f32 v{X + n}, v{X + n}, v{X + n}')
        rnd()
        if CFG['mimic']:
            for n in range(8):
                a(f'v_mul_f32 v{X + n}, 0xc1200000, v{X + n}')
            rnd()
        for n in range(8):
            a(f'v_mul_f32 v{X + n}, {"0x3fb8aa3b" if CFG["mimic"] else "0xc166d4ca"}, v{X + n}')
        for n in range(8):
            a(f'v_exp_f32 v{X + n}, v{X + n}')
        for n in range(4):
            a(f'v_cvt_pk_bf16_f32 v{RB[r] + n}, v{X + 2 * n}, v{X + 2 * n + 1}')
    for k in range(2):
        for r in range(2):
            for w in range(2):
                o = gh + 8 * w + 4 * r
                a(f'{MF} {vr(o, 4)}, {vr(wt + 4 * w + 2 * k, 2)}, {vr(RB[r] + 2 * k, 2)}, {vr(o, 4) if k else 0}')


def fin_out(a, pl, gh, wt, ident_, m, S):
    S = [S, S + 4]
    G_, H_ = [gh, gh + 4], [gh + 8, gh + 12]
    for q in range(4):
        for r in range(2):
            a(f'{MF} {vr(S[r], 4)}, {vr(ident_, 2)}, {vr(pl + 4 * q + 2 * r, 2)}, {vr(S[r], 4) if q else 0}')
    for r in range(2):
        for n in range(4):
            a(f'v_mul_f32 v{S[r] + n}, v{S[r] + n}, v{G_[r] + n}')
        a(f'v_cvt_pk_bf16_f32 v{pl + 2 * r}, v{S[r]}, v{S[r] + 1}')
        a(f'v_cvt_pk_bf16_f32 v{pl + 1 + 2 * r}, v{S[r] + 2}, v{S[r] + 3}')
    for r in range(2):
        a(f'{MF} {vr(G_[r], 4)}, {vr(wt + 8, 2)}, {vr(pl + 2 * r, 2)}, 0')
    for r in range(2):
        for n in range(4):
            a(f'v_mul_f32 v{G_[r] + n}, v{G_[r] + n}, v{H_[r] + n}')
    for r in range(2):
        a(f'{MF} {vr(S[r], 4)}, {vr(ident_, 2)}, {vr(m + 2 * r, 2)}, {vr(G_[r], 4)}')
    for r in range(2):
        a(f'v_cvt_pk_bf16_f32 v{pl + 4 + 2 * r}, v{S[r]}, v{S[r] + 1}')
        a(f'v_cvt_pk_bf16_f32 v{pl + 5 + 2 * r}, v{S[r] + 2}, v{S[r] + 3}')


def gen_p3(a):
    name = 'gs_final_kernel'
    kernel_head(a, name)
    a('s_cmp_ge_u32 s2, 1250')
    a('s_cbranch_scc1 L3_end')
    tl_start(a)
    a('s_load_dwordx2 s[4:5], s[0:1], 0')
    a('s_load_dwordx2 s[6:7], s[0:1], 24')
    a('s_load_dwordx2 s[28:29], s[0:1], 40')
    a('s_load_dwordx2 s[30:31], s[0:1], 88')
    a('s_load_dwordx2 s[32:33], s[0:1], 104')
    a('s_lshl_b32 s3, s2, 8')
    a('v_add_u32 v1, s3, v0')
    a('v_lshlrev_b32 v2, 4, v1')
    a('v_lshlrev_b32 v3, 2, v1')
    a('v_bfe_u32 v4, v1, 3, 6')
    a('s_mov_b32 s3, 80000')
    a('v_mul_lo_u32 v4, v4, s3')
    a('v_lshrrev_b32 v5, 9, v1')
    a('v_lshl_add_u32 v4, v5, 7, v4')
    a('v_and_b32 v5, 7, v1')
    a('v_lshl_add_u32 v4, v5, 4, v4')
    a('v_and_b32 v5, 3, v0')
    a('v_lshlrev_b32 v5, 6, v5')
    a('s_waitcnt lgkmcnt(0)')
    a('s_load_dwordx4 s[36:39], s[28:29], 0')
    srd(a, 8, 4, 0, E * 8)
    srd(a, 12, 6, 0, E * 2)
    srd(a, 16, 30, 0, E * 8)
    srd(a, 20, 32, PART_OFF, PART_SZ)
    srd(a, 24, 32, WT_OFF, WT_SZ)
    a('buffer_load_dword v6, v3, s[12:15], 0 offen', tag='d')
    a('buffer_load_dwordx4 v[8:11], v5, s[24:27], 0 offen', tag='w')
    a('buffer_load_dwordx4 v[12:15], v5, s[24:27], 0 offen offset:16', tag='w')
    a('buffer_load_dwordx2 v[16:17], v5, s[24:27], 0 offen offset:32', tag='w')
    for q in range(4):
        a(f's_mov_b32 s{40+q}, {q * E * 8}')
        a(f'buffer_load_dwordx4 {vr(20 + 4 * q, 4)}, v4, s[20:23], s{40+q} offen', tag='p')
    a('buffer_load_dwordx4 v[36:39], v2, s[8:11], 0 offen', tag='m')
    ident(a, 18, 7, 0)
    a('s_waitcnt lgkmcnt(0)')
    for n in range(4):
        a(f's_lshl_b32 s{44 + 2 * n}, s{36 + n}, 16')
        a(f's_and_b32 s{45 + 2 * n}, s{36 + n}, 0xffff0000')
    a.wait_vm('d')
    RB = [40, 44]
    for r in range(2):
        if r == 0:
            a('v_lshlrev_b32 v7, 16, v6')
        else:
            a('v_and_b32 v7, 0xffff0000, v6')
        X = 48

        def rnd():
            for n in range(4):
                a(f'v_cvt_pk_bf16_f32 v{56 + n}, v{X + 2 * n}, v{X + 2 * n + 1}')
            for n in range(4):
                a(f'v_lshlrev_b32 v{X + 2 * n}, 16, v{56 + n}')
                a(f'v_and_b32 v{X + 2 * n + 1}, 0xffff0000, v{56 + n}')
        for n in range(8):
            a(f'v_subrev_f32 v{X + n}, s{44 + n}, v7')
        rnd()
        for n in range(8):
            a(f'v_mul_f32 v{X + n}, v{X + n}, v{X + n}')
        rnd()
        for n in range(8):
            a(f'v_mul_f32 v{X + n}, 0xc1200000, v{X + n}')
        rnd()
        for n in range(8):
            a(f'v_mul_f32 v{X + n}, 0x3fb8aa3b, v{X + n}')
        for n in range(8):
            a(f'v_exp_f32 v{X + n}, v{X + n}')
        for n in range(4):
            a(f'v_cvt_pk_bf16_f32 v{RB[r] + n}, v{X + 2 * n}, v{X + 2 * n + 1}')
    a.wait_vm('w')
    G = [48, 52]
    H = [56, 60]
    S = [64, 68]
    mf = 'v_mfma_f32_4x4x4_16b_bf16'
    for r in range(2):
        a(f'{mf} {vr(G[r], 4)}, v[8:9], {vr(RB[r], 2)}, 0')
        a(f'{mf} {vr(H[r], 4)}, v[12:13], {vr(RB[r], 2)}, 0')
    for r in range(2):
        a(f'{mf} {vr(G[r], 4)}, v[10:11], {vr(RB[r] + 2, 2)}, {vr(G[r], 4)}')
        a(f'{mf} {vr(H[r], 4)}, v[14:15], {vr(RB[r] + 2, 2)}, {vr(H[r], 4)}')
    a.wait_vm('p')
    for q in range(4):
        for r in range(2):
            a(f'{mf} {vr(S[r], 4)}, v[18:19], {vr(20 + 4 * q + 2 * r, 2)}, {vr(S[r], 4) if q else 0}')
    for r in range(2):
        for n in range(4):
            a(f'v_mul_f32 v{S[r] + n}, v{S[r] + n}, v{G[r] + n}')
        a(f'v_cvt_pk_bf16_f32 v{20 + 2 * r}, v{S[r]}, v{S[r] + 1}')
        a(f'v_cvt_pk_bf16_f32 v{21 + 2 * r}, v{S[r] + 2}, v{S[r] + 3}')
    for r in range(2):
        a(f'{mf} {vr(G[r], 4)}, v[16:17], {vr(20 + 2 * r, 2)}, 0')
    for r in range(2):
        for n in range(4):
            a(f'v_mul_f32 v{G[r] + n}, v{G[r] + n}, v{H[r] + n}')
    a.wait_vm('m')
    for r in range(2):
        a(f'{mf} {vr(S[r], 4)}, v[18:19], {vr(36 + 2 * r, 2)}, {vr(G[r], 4)}')
    for r in range(2):
        a(f'v_cvt_pk_bf16_f32 v{24 + 2 * r}, v{S[r]}, v{S[r] + 1}')
        a(f'v_cvt_pk_bf16_f32 v{25 + 2 * r}, v{S[r] + 2}, v{S[r] + 3}')
    a('buffer_store_dwordx4 v[24:27], v2, s[16:19], 0 offen', tag='st')
    tl_end(a)
    a.label('L3_end')
    a('s_endpgm')
    return name


from p1 import gen_p1
from p2 import gen_p2


def main():
    a = Asm()
    root = os.path.dirname(os.path.dirname(os.path.abspath(__file__))) + '/'
    ref = open(root + NAME + '.s.ref').read().splitlines()
    for ln in ref:
        if ln.startswith('; Override') or not ln.startswith(';'):
            break
        a.raw(ln)
    if CFG['one']:
        a.raw('; Generated by gen/gen.py (hand-written generator).  One persistent launch: sort, accumulate, final.')
        if CFG['one'] == 2:
            a.raw(f'; @launch kernel={NAME}_kernel grid=(256,1,1) block=(1024,1,1) lds=163840')
        else:
            a.raw('; @launch grid=(256,1,1) block=(1024,1,1) lds=163840')
        a.raw('.amdgcn_target "amdgcn-amd-amdhsa--gfx950"')
        gen_p1(Asm(), sys.modules[__name__], gen_p2)
        tl_idx[0] = 0
        k1 = gen_p1(a, sys.modules[__name__], gen_p2)
        a.raw('.section .rodata,"a"')
        kernel_desc(a, k1, 128, 102)
    else:
        a.raw('; Generated by gen/gen.py (hand-written generator).  Launches: sort, accumulate (+ final).')
        a.raw('; @launch kernel=gs_sort_kernel grid=(256,1,1) block=(1024,1,1) lds=163840')
        if CFG['dup1']:
            a.raw('; @launch kernel=gs_sort_kernel grid=(256,1,1) block=(1024,1,1) lds=163840')
        a.raw('; @launch kernel=gs_acc_kernel grid=(256,1,1) block=(1024,1,1) lds=163840')
        if CFG['dup2']:
            a.raw('; @launch kernel=gs_acc_kernel grid=(256,1,1) block=(1024,1,1) lds=163840')
        if not CFG['fuse']:
            a.raw('; @launch kernel=gs_final_kernel grid=(1250,1,1) block=(256,1,1) lds=0')
        for _ in range(CFG['dup3']):
            a.raw('; @launch kernel=gs_final_kernel grid=(1250,1,1) block=(256,1,1) lds=0')
        for _ in range(CFG['nulls']):
            a.raw('; @launch kernel=gs_null_kernel grid=(256,1,1) block=(64,1,1) lds=0')
        a.raw('.amdgcn_target "amdgcn-amd-amdhsa--gfx950"')
        k1 = gen_p1(a, sys.modules[__name__])
        t = tl_idx[0]
        list(gen_p2(Asm(), sys.modules[__name__]))
        tl_idx[0] = t
        k2 = list(gen_p2(a, sys.modules[__name__]))[-1]
        k3 = None if CFG['fuse'] else gen_p3(a)
        if CFG['nulls']:
            kernel_head(a, 'gs_null_kernel')
            a('s_endpgm')
        a.raw('.section .rodata,"a"')
        if CFG['nulls']:
            kernel_desc(a, 'gs_null_kernel', 8, 16)
        kernel_desc(a, k1, 128, 102)
        kernel_desc(a, k2, 128, 102)
        if k3:
            kernel_desc(a, k3, 72, 96 if CFG['tl'] else 64)
    out = sys.argv[1] if len(sys.argv) > 1 else root + NAME + '.s'
    txt = a.text()
    if CFG['ab_p1']:
        o = []
        on = False
        for ln in txt.split('\n'):
            if 'chunk 0: pass A' in ln:
                on = True
            if ln.startswith('L1_fin'):
                on = False
            t = ln.strip()
            if on:
                if t.startswith('ds_') and (CFG['ab_p1'] & 1):
                    continue
                if t.startswith('v_') and (CFG['ab_p1'] & 2) and not t.startswith(('v_add_u32', 'v_and_b32 v11', 'v_mov', 'v_readlane')):
                    continue
                if t.startswith('s_barrier') and (CFG['ab_p1'] & 4):
                    continue
                if t.startswith('buffer_store_dwordx2') and (CFG['ab_p1'] & 8):
                    ln = ln.replace('offen', 'offen').replace('s[24:27]', 's[96:99]')
                if t.startswith('buffer_store_dwordx4') and (CFG['ab_p1'] & 16):
                    ln = ln.replace('s[20:23]', 's[96:99]')
            o.append(ln)
            if 'chunk 0: pass A' in ln:
                o.append('    s_mov_b32 s96, s20\n    s_mov_b32 s97, s21\n    s_mov_b32 s98, 0\n    s_mov_b32 s99, 0x20000')
        txt = '\n'.join(o).replace('next_free_sgpr 96', 'next_free_sgpr 100')
        txt = '\n'.join(l for l in txt.split('\n') if not ('@launch' in l and 'sort' not in l))
    open(out, 'w').write(txt)


if __name__ == '__main__':
    main()
```

```python
from asmlib import vr, sr

MF = 'v_mfma_f32_4x4x4_16b_bf16'


def gen_p1(a, G, gen_p2=None):
    name = G.NAME + '_kernel' if gen_p2 else 'gs_sort_kernel'
    CFG = G.CFG
    SEL, ANDOR = G.SEL, G.ANDOR
    srd, tl_mark = G.srd, G.tl_mark
    T, E, CH, BLK = G.T, G.E, G.CH, G.BLK
    NW, NK = 256, 5
    G.kernel_head(a, name)
    a('s_cmp_ge_u32 s2, 256')
    a('s_cbranch_scc0 L1_go')
    a('s_endpgm')
    a.label('L1_go')
    G.tl_start(a)
    if CFG['diag']:
        a('s_memrealtime s[88:89]')
    if CFG['wgx']:
        a(f's_xor_b32 s2, s2, {CFG["wgx"]}')
    a('s_load_dwordx4 s[4:7], s[0:1], 8')
    a('s_load_dwordx2 s[28:29], s[0:1], 32')
    a('s_load_dwordx2 s[30:31], s[0:1], 104')
    a('s_load_dwordx2 s[56:57], s[0:1], 96')
    a('s_load_dwordx2 s[86:87], s[0:1], 0')
    a('s_load_dwordx4 s[60:63], s[0:1], 56')
    a('s_load_dwordx4 s[64:67], s[0:1], 72')
    T16, T8, ONE, K1F, K87, KFC, K78 = 0, 1, 2, 3, 4, 5, 6
    t = list(range(7, 16))
    sW, sI, sA, sR, sT, sTmp, sI4, sA4 = 32, 33, 34, 35, 36, 37, 38, 39
    sKB, sP1, sP3, sNQ, sM10, sI5, sA5, sTK = 40, 41, 42, 43, 55, 58, 59, 84
    a('v_lshrrev_b32 v7, 6, v0')
    a(f'v_lshlrev_b32 v{T8}, 3, v0')
    a(f'v_readfirstlane_b32 s{sW}, v7')
    a(f'v_lshlrev_b32 v{T16}, 4, v0')
    IL = CFG['il']
    CUT = [int(x) for x in CFG['cut'].split()]
    assert sum(CUT) == 528 and sorted(CUT) == CUT and CUT[2] <= 256

    def qoff(k, j):
        if not IL:
            return ((2, j) if j >= 5 else (1, j)) if k == NK - 1 else (0, k * NW * 8 + j)
        if k == NK - 1 and j >= 5:
            return 2, 9472 + sum(CUT[::-1][:j - 5])
        return 0, (k * 8 + j) * NW
    ILW = CFG['ilw'] and IL == 1
    if ILW:
        a(f'v_and_b32 v{T8}, 0x1f8, v{T8}')
        a(f'v_lshlrev_b32 v15, 1, v{T8}')
        for v in range(4):
            if CFG['ilw'] == 1:
                a(f's_xor_b32 s3, s{sW}, {(v & 1) << 3}')
            elif CFG['ilw'] == 2:
                a(f's_lshr_b32 s3, s{sW}, 1')
                a(f's_and_b32 s44, s{sW}, 1')
                a('s_lshl_b32 s44, s44, 3')
                a('s_or_b32 s3, s3, s44')
            elif CFG['ilw'] == 3:
                a(f's_lshr_b32 s3, s{sW}, 1')
                a(f's_and_b32 s44, s{sW}, 1')
                a('s_lshl_b32 s44, s44, 3')
                a('s_or_b32 s3, s3, s44')
                a(f's_xor_b32 s3, s3, {(v & 1) << 3}')
            else:
                a(f's_xor_b32 s3, s{sW}, {(v & 2) << 2}')
            a('s_lshl_b32 s3, s3, 10')
            a(f's_lshl_b32 s{96 + v}, s2, 14')
            a(f's_add_u32 s{96 + v}, s{96 + v}, s3')
    elif IL >= 2:
        for v in range(4):
            a(f's_xor_b32 s44, s2, {v << 3 if CFG["ilx"] else 0}')
            a(f's_lshr_b32 s3, s44, {IL}')
            a(f's_lshl_b32 s{96 + v}, s3, {14 + IL}')
            a(f's_and_b32 s3, s44, {(1 << IL) - 1}')
            a('s_lshl_b32 s3, s3, 10')
            a(f's_add_u32 s{96 + v}, s{96 + v}, s3')
            a(f's_mul_i32 s3, s{sW}, {1024 * ((1 << IL) - 1)}')
            a(f's_add_u32 s{96 + v}, s{96 + v}, s3')
    else:
        a(f's_mul_i32 s{sI}, s2, {16384 if IL else CH * 4}')
        a(f's_mul_i32 s{sA}, s2, {8192 if IL else CH * 2}')
    a('s_waitcnt lgkmcnt(0)')
    srd(a, 8, 4, 0, T * 4)
    srd(a, 12, 6, 0, T * 4)
    srd(a, 16, 28, 0, T * 2)

    ren = G.MEMO.get('ren', {})
    pool = [ren.get(16 + 4 * i, 16 + 4 * i) for i in range(28)]
    items = []
    for k in range(NK):
        for o in range(4):
            items += [(k, 'I', 2 * o), (k, 'O', 2 * o), (k, 'A', o), (k, 'I', 2 * o + 1), (k, 'O', 2 * o + 1)]
    where = {}
    st = dict(next=0, tmp=0)

    def soff(base, off):
        r = 44 + st['tmp'] % 4
        st['tmp'] += 1
        a(f's_add_u32 s{r}, s{base}, {off:#x}')
        return r

    def gate(j, word):
        a(f's_cmp_le_u32 s{sNQ}, {j}')
        a(f's_cselect_b32 s{word}, 0, s{word}')

    def issue(n, limit):
        while n > 0 and st['next'] < min(limit, len(items)) and pool:
            it = items[st['next']]
            st['next'] += 1
            n -= 1
            b = pool.pop(0)
            where[it] = b
            k, kind, j = it
            lastk = k == NK - 1
            if kind == 'A':
                for h in range(2):
                    if lastk and 2 * j + h >= 5:
                        assert st.get('assigned') or not CFG['dyn']
                        gate(2 * j + h, 18)
                    bs, qo = qoff(k, 2 * j + h)
                    if (IL >= 2 or ILW) and bs == 0:
                        r = soff(96 + ((2 * j + h) & 3), qo * 16384)
                        a(f's_lshr_b32 s{r}, s{r}, 1')
                    else:
                        r = soff((sA, sA4, sA5)[bs], qo * 8192)
                    a(f'buffer_load_dwordx2 {vr(b + 2 * h, 2)}, v{T8}, s[16:19], s{r} offen{CFG["ld_pol"]}', tag=it)
            else:
                s = 8 if kind == 'I' else 12
                if lastk and j >= 5:
                    gate(j, s + 2)
                bs, qo = qoff(k, j)
                r = soff((96 + (j & 3) if IL >= 2 or ILW else sI, sI4, sI5)[bs], qo * 16384)
                if ILW:
                    a(f'v_lshlrev_b32 v{b}, 1, v{T8}')
                a(f'buffer_load_dwordx4 {vr(b, 4)}, v{b if ILW else T16}, s[{s}:{s+3}], s{r} offen{CFG["ld_pol"]}', tag=it)

    if not gen_p2:
        issue(CFG['p1_first'], 20)
    srd(a, 68, 62, 0, 64)
    srd(a, 72, 60, 0, 64)
    srd(a, 20, 66, 0, 32)
    srd(a, 80, 64, 0, 32)
    srd(a, 24, 30, G.WT_OFF, G.WT_SZ)
    a(f'v_lshrrev_b32 v2, 3, v{T16}')
    a('v_and_b32 v2, 6, v2')
    a(f'v_lshlrev_b32 v3, 2, v{T16}')
    a(f's_lshl_b32 s3, s{sW}, 8')
    a('s_add_u32 s3, s3, s2')
    a('s_cmp_lg_u32 s3, 254')
    a('s_cbranch_scc1 L1_wt')
    vm = list(a.vm)
    assert min(pool) <= 96 and all(b in pool for b in range(96, 128, 4))

    def load_wt(dst, s, k0):
        for k in range(4):
            a(f'buffer_load_ushort v{(dst + (k >> 1)) + 12 * (k & 1)}, v2, s[{s}:{s+3}], 0 offen offset:{(k0 + k) * 8}', tag='w')
    load_wt(96, 68, 0)
    load_wt(98, 68, 4)
    load_wt(100, 72, 0)
    load_wt(102, 72, 4)
    load_wt(104, 20, 0)
    load_wt(106, 80, 0)
    a.wait_vm('w')
    for i in range(96, 108):
        a(f'v_lshl_or_b32 v{i}, v{i + 12}, 16, v{i}')
    for n in range(3):
        a(f'buffer_store_dwordx4 {vr(96 + 4 * n, 4)}, v3, s[24:27], 0 offen offset:{16 * n} sc1', tag='st')
    a.vm = vm
    a.label('L1_wt')
    if gen_p2:
        a('s_nop 1')
        issue(CFG['p1_first'], 20)
    srd(a, 20, 30, G.REC_OFF - 16384, G.REC_SZ + 16384)
    srd(a, 24, 30, G.TAB_OFF, G.TAB_SZ)
    if CFG['tlbw']:
        a(f's_cmp_lg_u32 s{sW}, {CFG["tlbw"] - 1}')
        a(f'v_and_b32 v12, 0x30, v{T16}')
        a('s_cbranch_scc1 L1_tw')
        vm, nvm = list(a.vm), a.nvm
        a('s_lshr_b32 s3, s2, 3')
        a('v_lshl_add_u32 v12, v12, 1, s3')
        a('v_lshlrev_b32 v13, 21, v12')
        a(f's_mov_b32 s3, {12 * BLK}')
        a('v_mul_lo_u32 v12, v12, s3')
        a(f's_mov_b32 s3, {16384 + BLK - 128}')
        a('s_mov_b64 exec, 15')
        for sr_ in (8, 12, 16):
            a(f'buffer_load_dword v3, v13, s[{sr_}:{sr_ + 3}], 0 offen nt')
        a('buffer_load_dword v3, v12, s[20:23], s3 offen nt')
        a('s_mov_b64 exec, -1')
        a.vm, a.nvm = vm, nvm
        a.label('L1_tw')
    sKO = [72, 73, 85, 91, 93]
    if CFG['stp']:
        for j in range(5):
            a(f's_add_u32 s3, s{sW}, {16 * j}')
            a('s_mul_i32 s4, s3, 205')
            a('s_lshr_b32 s4, s4, 10')
            a('s_mul_i32 s5, s4, 5')
            a('s_sub_u32 s5, s3, s5')
            a('s_lshl_b32 s5, s5, 5')
            a('s_add_u32 s4, s4, s5')
            a(f's_sub_u32 s4, s4, s{sW}')
            a(f's_lshl_b32 s{sKO[j]}, s4, 10')
    srd(a, 80, 86, 0, E * 8)
    mc = {}

    MCN = CFG['mcn']
    MCP = 5120 // MCN
    MCH = (MCP + 15) // 16
    sMC = sTK if MCN < 256 else 2

    def mcopy_load():
        if CFG['mc1'] == 30 and p2:
            mc['b'] = [take(108 + 4 * h) for h in range(MCH)]
            if CFG['mc0'] >= 20:
                a(f's_waitcnt vmcnt({st["nrec"] - st["tabr"]})')
                st['tabok'] = True
        else:
            mc['b'] = [pool.pop(0) for _ in range(MCH)]
        mt = 15 if CFG['mc0'] < 10 else 11
        a(f'v_lshrrev_b32 v{mt}, 2, v{T16}')
        a(f'v_and_b32 v{mt}, 0xfc, v{mt}')
        a(f's_cmp_ge_u32 s{sMC}, {MCN}')
        a('s_cselect_b32 s82, 0, s82')
        for h in range(MCH):
            a(f's_and_b32 s3, s{sMC}, {MCN // 64 - 1}')
            a(f's_mul_i32 s3, s3, {MCP}')
            a(f's_add_u32 s3, s3, s{sW}')
            if h:
                a(f's_add_u32 s3, s3, {16 * h}')
            if 16 * h + 16 > MCP:
                a(f's_cmp_ge_u32 s{sW}, {MCP - 16 * h}')
                a('s_cselect_b32 s82, 0, s82')
            a('s_mul_i32 s74, s3, 205')
            a('s_lshr_b32 s74, s74, 10')
            a('s_mul_i32 s75, s74, 5')
            a('s_sub_u32 s75, s3, s75')
            a('s_lshl_b32 s48, s74, 1')
            a('s_add_u32 s48, s48, s75')
            a('s_add_u32 s49, s48, s74')
            a('s_add_u32 s49, s49, 30')
            a('s_cmp_lt_u32 s75, 2')
            a('s_cselect_b32 s48, s48, s49')
            a('s_lshl_b32 s48, s48, 10')
            a(f's_lshr_b32 s49, s{sMC}, {(MCN // 64).bit_length() - 1}')
            a('s_mul_i32 s49, s49, 80000')
            a('s_add_u32 s48, s48, s49')
            for jd in range(4):
                a(f'buffer_load_dword v{mc["b"][h] + jd}, v{mt}, s[80:83], s48 offen offset:{256 * jd}', tag='mc')

    def mhook(pos):
        if pos == CFG['mc0']:
            mcopy_load()
        if pos == CFG['mc1']:
            mcopy_store()

    def mcopy_store():
        srd(a, 80, 30, G.MD_OFF, MCP * 1024)
        a(f's_min_u32 s3, s{sMC}, {MCN - 1}')
        a(f's_mul_i32 s3, s3, {MCP * 1024}')
        a('s_add_u32 s80, s80, s3')
        a('s_addc_u32 s81, s81, 0')
        a(f's_cmp_ge_u32 s{sMC}, {MCN}')
        a('s_cselect_b32 s82, 0, s82')
        a.wait_vm('mc')
        if CFG['mc0'] > 20 and len(a.vm) <= st['nrec'] - st['tabr']:
            st['tabok'] = True
        for h in range(MCH):
            a(f'v_add_u32 v11, {h * 16384}, v{T16}')
            a(f'buffer_store_dwordx4 {vr(mc["b"][h], 4)}, v11, s[80:83], 0 offen sc1', tag='mst')
        pool.extend(mc['b'])
    a(f's_mul_i32 s{sR}, s2, {BLK}')
    a(f's_and_b32 s{sTmp}, s{sW}, 3')
    a(f's_lshl_b32 s{sTmp}, s{sTmp}, 3')
    a(f's_mov_b32 s{sT}, s{sTmp}' if CFG['tabx'] else f's_add_u32 s{sT}, s{sR}, s{sTmp}')
    a(f's_lshr_b32 s{sTmp}, s{sW}, 2')
    a(f's_mul_i32 s{sTmp}, s{sTmp}, 2080')
    a(f's_add_u32 s{sT}, s{sT}, s{sTmp}')
    a(f's_and_b32 s{sTmp}, s2, 3')
    a(f's_lshl_b32 s{sTmp}, s{sTmp}, 5')
    a(f's_add_u32 s{sT}, s{sT}, s{sTmp}')
    a('s_mul_i32 s4, s2, 5')
    a('s_add_u32 s4, s4, 8192')
    a(f's_lshl_b32 s{sI4}, s4, 14')
    a(f's_lshl_b32 s{sA4}, s4, 13')

    def assign():
        n3, n2, n1 = CUT
        a(f's_min_u32 s4, s{sTK}, {n3}')
        a(f's_min_u32 s5, s{sTK}, {n2}')
        a(f's_min_u32 s6, s{sTK}, {n1}')
        a('s_add_u32 s4, s4, s5')
        a('s_add_u32 s4, s4, s6')
        a(f's_add_u32 s4, s4, {8192 + 1280 - 5}')
        if IL:
            a(f's_mov_b32 s4, s{sTK}')
        a(f's_lshl_b32 s{sI5}, s4, 14')
        if ILW:
            a(f's_lshl_b32 s5, s{sW}, 10')
            a(f's_add_u32 s{sI5}, s{sI5}, s5')
        a(f's_lshr_b32 s{sA5}, s{sI5}, 1')
        a(f's_mov_b32 s{sNQ}, 5')
        for n in CUT:
            a(f's_cmp_lt_u32 s{sTK}, {n}')
            a(f's_addc_u32 s{sNQ}, s{sNQ}, 0')
    if not CFG['dyn']:
        a('s_lshr_b32 s3, s2, 1')
        a('s_and_b32 s4, s2, 1')
        a('s_lshl_b32 s4, s4, 7')
        a(f's_add_u32 s{sTK}, s3, s4')
        assign()
    a(f'v_mov_b32 v{ONE}, 1')
    a(f'v_mov_b32 v{K87}, 0x80000007')
    a(f'v_mov_b32 v{KFC}, 0xfc')
    a(f'v_mov_b32 v{K78}, 0x78')
    a(f's_mov_b32 s{sKB}, {G.KBIAS << 3}')
    a(f's_mov_b32 s{sM10}, -10000')
    a(f's_mov_b32 s{sP1}, 0x010c0c01')
    a(f's_mov_b32 s{sP3}, 0x030c0c03')
    for i in range(4):
        a(f'v_mov_b32 v{8 + i}, 0')
    a(f'ds_write_b128 v{T16}, v[8:11]')
    if gen_p2:
        srd(a, 60, 30, G.PROG_OFF, 32768)
        a('s_mov_b64 s[66:67], s[56:57]')
        a('s_lshl_b32 s57, s2, 7')
    srd(a, 68, 30, G.FLAG_OFF, 128)
    a('s_lshl_b32 s3, s2, 7')
    a('s_add_u32 s68, s68, s3')
    a('s_addc_u32 s69, s69, 0')
    a(f's_cmp_lg_u32 s{sW}, 0')
    a('s_cbranch_scc1 L1_fl')
    vm = list(a.vm)
    a(f'buffer_store_dwordx4 v[8:11], v{T16}, s[68:71], 0 offen sc1')
    if gen_p2:
        a('s_mov_b64 exec, 0xff')
        a(f'buffer_store_dwordx4 v[8:11], v{T16}, s[60:63], s57 offen sc1')
        a('s_mov_b64 exec, -1')
        if CFG['inv']:
            a('buffer_inv sc1')
    a.vm = vm
    a.label('L1_fl')
    a('s_waitcnt lgkmcnt(0)')
    a('s_barrier')

    pend_st = []
    uid = [0]

    def store(n):
        while n > 0 and pend_st:
            b, off, ko = pend_st.pop(0)
            n -= 1
            r = soff(sR, off + 16384)
            if ko:
                a(f's_add_u32 s{r}, s{r}, s{ko}')
            a(f'buffer_store_dwordx4 {vr(b, 4)}, v{st.get("t16", T16)}, s[20:23], s{r} offen{CFG["st_pol"]}', tag='st')
            pool.append(b)
            st['nrec'] = st.get('nrec', 0) + 1

    taken = []

    def take(want):
        b = pool.pop(0)
        taken.append((b, want))
        assert not ren or b == want
        return want

    def last_store():
        j = 10 - len(pend_st)
        if j < 7:
            store(1)
            return
        uid[0] += 1
        a(f's_cmp_le_u32 s{sNQ}, {j - 2}')
        a(f's_cbranch_scc1 L1_q{uid[0]}')
        vm, nvm = list(a.vm), a.nvm
        store(1)
        a.vm, a.nvm = vm, nvm
        a.label(f'L1_q{uid[0]}')
    p2 = gen_p2(a, G, dict(take=take, store=last_store, mhook=mhook, t16=lambda r: st.update(t16=r))) if gen_p2 else None

    class skip_quad:
        def __init__(self, on, j):
            self.on, self.j = on and j >= 5, j

        def __enter__(self):
            if self.on:
                uid[0] += 1
                self.l = f'L1_s{uid[0]}'
                a(f's_cmp_le_u32 s{sNQ}, {self.j}')
                a(f's_cbranch_scc1 {self.l}')

        def __exit__(self, *x):
            if self.on:
                a.label(self.l)

    for k in range(NK):
        tl_mark(a, 76, k * 6 + 4, 0, 8)
        a.c(f'==== chunk {k}: pass A')
        lim = (k + 1) * 20 + 18
        last = k == NK - 1

        def mix(n):
            for _ in range(n):
                store(1)
                issue(1, lim)
        sa = [int(x) for x in CFG['sa']]
        sb = [int(x) for x in CFG['sb']]
        la = [int(x) for x in CFG['la']]
        lb = [int(x) for x in CFG['lb']]
        if last:
            if p2:
                assert CFG['dyn'] == 2
                next(p2)
            mix(2)
        for j in range(8):
            if CFG['p1prio']:
                if j & 1 == 0:
                    a(f's_setprio {3 - j // 2}')
            if k == 0:
                if CFG['mc0'] < 0 and j == 0:
                    a('s_lshr_b32 s3, s2, 1')
                    a('s_and_b32 s4, s2, 1')
                    a('s_lshl_b32 s4, s4, 7')
                    a(f's_add_u32 s{sTK}, s3, s4')
                mhook(j - 10)
                issue(3 if j & 1 else 2, 24)
            elif not last:
                mix(sa[j])
            else:
                store(la[j])
                mhook(j)
            if CFG['dyn'] and k == NK - 2 and j == CFG['tkpos']:
                srd(a, 68, 66 if gen_p2 else 56, 0, 256)
                a('v_mov_b32 v3, 1')
                a(f's_cmp_lg_u32 s{sW}, {CFG["tkwave"]}')
                a('s_cbranch_scc1 L1_tk')
                vm = list(a.vm)
                a('s_mov_b64 exec, 1')
                if CFG['dyn'] == 2:
                    a('s_and_b32 s3, s2, 1')
                    a('s_lshl_b32 s3, s3, 7')
                    a('buffer_atomic_add v3, off, s[68:71], s3 sc0')
                else:
                    a('buffer_atomic_add v3, off, s[68:71], 0 sc0')
                a('s_mov_b64 exec, -1')
                a.vm = vm
                st['tkn'] = a.nld
                a.label('L1_tk')
            I, O, A = where[(k, 'I', j)], where[(k, 'O', j)], where[(k, 'A', j // 2)] + 2 * (j & 1)
            a.wait_vm([(k, 'I', j), (k, 'O', j), (k, 'A', j // 2)])
            with skip_quad(last, j):
                for p in range(2):
                    a(f'v_lshlrev_b32 v{t[2*p]}, 16, v{A+p}')
                    a(f'v_and_b32 v{t[2*p+1]}, 0xffff0000, v{A+p}')
                for p in range(4):
                    a(f'v_mul_f32 v{t[p]}, 0.15915494, v{t[p]}')
                for r in range(4):
                    u, x, y, ib = t[4], t[5], t[6], t[7]
                    a(f'v_mul_hi_u32_u24 v{ib}, 429497, v{I+r}')
                    a(f'v_lshrrev_b32 v{x}, 3, v{O+r}')
                    a(f'v_cos_f32 v{t[r]}, v{t[r]}')
                    a(f'v_lshlrev_b16 v{y}, 3, v{O+r}')
                    a(f'v_mad_i32_i24 v{u}, v{ib}, s{sM10}, v{I+r}')
                    a(f'v_bitop3_b32 v{x}, v{K78}, v{y}, v{x} bitop3:{SEL:#x}')
                    a(f'v_lshl_add_u32 v{u}, v{u}, 17, s{sKB}')
                    a(f'v_lshlrev_b16 v{ib}, 8, v{ib}')
                    a(f'v_lshrrev_b32 v{y}, 2, v{O+r}')
                    a(f'v_add_u32 v{I+r}, v{x}, v{u}')
                    a(f'v_bitop3_b32 v{O+r}, v{KFC}, v{y}, v{ib} bitop3:{ANDOR:#x}')
                    a(f'ds_add_u32 v{O+r}, v{ONE}')
                    if r & 1:
                        p = r >> 1
                        a(f'v_cvt_pk_bf16_f32 v{A+p}, v{t[2*p]}, v{t[2*p+1]}')
                        a(f'v_perm_b32 v{x}, v{A+p}, v{A+p}, s{sP1}')
                        a(f'v_bitop3_b32 v{I+r-1}, v{K87}, v{x}, v{I+r-1} bitop3:{SEL:#x}')
                        a(f'v_perm_b32 v{y}, v{A+p}, v{A+p}, s{sP3}')
                        a(f'v_bitop3_b32 v{I+r}, v{K87}, v{y}, v{I+r} bitop3:{SEL:#x}')
        tl_mark(a, 76, k * 6 + 0, 0, 8)
        a.c('scan')
        a(f'v_lshrrev_b32 v8, 2, v{T16}')
        a(f'v_and_b32 v7, 0x3c00, v{T16}')
        a(f'v_bitop3_b32 v7, v{KFC}, v8, v7 bitop3:{ANDOR:#x}')
        a('s_waitcnt lgkmcnt(0)')
        a('s_barrier')
        a('ds_read2st64_b32 v[8:9], v7 offset0:0 offset1:1')
        a('ds_read2st64_b32 v[10:11], v7 offset0:2 offset1:3')
        mix((lb if last else sb)[0])
        a('s_waitcnt lgkmcnt(0)')
        a('v_lshl_or_b32 v12, v9, 16, v8')
        a('v_lshl_or_b32 v13, v11, 16, v10')
        a('v_mov_b32 v14, v12')
        a('v_mov_b32 v15, v13')
        G.wave_scan(a, [14, 15])
        a('v_readlane_b32 s48, v14, 63')
        a('v_readlane_b32 s49, v15, 63')
        a(f's_lshl_b32 s54, s{sW}, 2')
        a('v_mov_b32 v8, s54')
        a('s_and_b32 s50, s48, 0xffff')
        a('s_lshr_b32 s51, s48, 16')
        a('s_and_b32 s52, s49, 0xffff')
        a('s_lshr_b32 s53, s49, 16')
        a('s_add_u32 s51, s51, s50')
        a('s_add_u32 s52, s52, s51')
        a('s_add_u32 s53, s53, s52')
        a('v_mov_b32 v9, s53')
        if last and p2:
            next(p2)
        a('s_mov_b64 exec, 1')
        a('ds_write_b32 v8, v9 offset:16384')
        if CFG['dyn'] and k == NK - 2:
            a(f's_cmp_lg_u32 s{sW}, {CFG["tkwave"]}')
            a('s_cbranch_scc1 L1_tk2')
            vm = list(a.vm)
            a(f's_waitcnt vmcnt({a.nld - st["tkn"]})')
            a.vm = vm
            a.label('L1_tk2')
            a('ds_write_b32 v8, v3 offset:16448')
        if last and p2:
            a('ds_write_b32 v8, v3 offset:16448')
        a('s_mov_b64 exec, -1')
        a('v_and_b32 v8, 60, v7')
        a('s_waitcnt lgkmcnt(0)')
        a('s_barrier')
        a('ds_read_b32 v9, v8 offset:16384')
        if (CFG['dyn'] and k == NK - 2) or (last and p2):
            a('ds_read_b32 v10, v8 offset:16448')
        mix((lb if last else sb)[1])
        a('s_waitcnt lgkmcnt(0)')
        if last and p2:
            next(p2)
        if CFG['dyn'] and k == NK - 2:
            a(f'v_readlane_b32 s{sTK}, v10, {CFG["tkwave"]}')
            if CFG['dyn'] == 2:
                a('s_and_b32 s3, s2, 1')
                a('s_lshl_b32 s3, s3, 7')
                a(f's_add_u32 s{sTK}, s{sTK}, s3')
            assign()
            st['assigned'] = True
        for sh in (1, 2, 4, 8):
            a(f'v_add_u32_dpp v9, v9, v9 row_shr:{sh} row_mask:0xf bank_mask:0xf bound_ctrl:1')
        a(f'v_readlane_b32 s54, v9, s{sW}')
        a('s_sub_u32 s54, s54, s53')
        a('s_add_u32 s50, s50, s54')
        a('s_add_u32 s51, s51, s54')
        a('s_add_u32 s52, s52, s54')
        a('s_pack_ll_b32_b16 s48, s54, s50')
        a('s_pack_ll_b32_b16 s49, s51, s52')
        a('v_add_u32 v14, s48, v14')
        a('v_add_u32 v15, s49, v15')
        a('v_sub_u32 v12, v14, v12')
        a('v_sub_u32 v13, v15, v13')
        a('v_and_b32 v8, 0xffff, v12')
        a('v_lshrrev_b32 v9, 16, v12')
        a('v_and_b32 v10, 0xffff, v13')
        a('v_lshrrev_b32 v11, 16, v13')
        a('ds_write2st64_b32 v7, v8, v9 offset0:0 offset1:1')
        a('ds_write2st64_b32 v7, v10, v11 offset0:2 offset1:3')
        if CFG['tabx']:
            a(f'v_and_b32 v8, 0x3f0, v{T16}')
            a(f'v_lshl_add_u32 v8, v8, 1, s{sT}')
            a('ds_write_b64 v8, v[12:13] offset:20480')
            a('s_bitset0_b64 exec, 63')
            a('s_not_b64 exec, exec')
            a('ds_write_b64 v8, v[14:15] offset:20512')
            a('s_mov_b64 exec, -1')
        a('s_waitcnt lgkmcnt(0)')
        a('s_barrier')
        tl_mark(a, 76, k * 6 + 1, 0, 8)
        a.c('pass B')
        for j in range(8):
            if CFG['p1prio'] and j & 1 == 0:
                a(f's_setprio {3 - j // 2}')
            O = where[(k, 'O', j)]
            with skip_quad(last, j):
                for r in range(4):
                    a(f'ds_add_rtn_u32 v{O+r}, v{O+r}, v{ONE}')
            if CFG['tabx']:
                if j == 0:
                    a(f'ds_read_b128 v[12:15], v{T16} offset:20480', tag='tab')
                    a(f'v_cmp_gt_u32 vcc, {G.TAB_CH + 128}, v{T16}')
                if j == 2:
                    uid[0] += 1
                    a.wait_lg('tab')
                    a(f's_cbranch_vccz L1_p{uid[0]}')
                    vm, nvm = list(a.vm), a.nvm
                    r = soff(sR, k * NW * BLK)
                    a('s_mov_b64 exec, vcc')
                    a(f'buffer_store_dwordx4 v[12:15], v{T16}, s[24:27], s{r} offen{CFG["st_pol"]}')
                    a('s_mov_b64 exec, -1')
                    a.vm, a.nvm = vm, nvm
                    st['tabn'] = a.nvm
                    st['tabr'] = st.get('nrec', 0)
                    a.label(f'L1_p{uid[0]}')
                if j == 3 and last and p2:
                    next(p2)
            elif j == 0:
                r = soff(sT, k * NW * BLK)
                a(f'v_and_b32 v11, 0x3f0, v{T16}')
                a('v_add_u32 v11, v11, v11')
                a(f'buffer_store_dwordx2 v[12:13], v11, s[24:27], s{r} offen', tag='tab')
                a('s_bitset0_b64 exec, 63')
                a('s_not_b64 exec, exec')
                a(f'buffer_store_dwordx2 v[14:15], v11, s[24:27], s{r} offen offset:32', tag='tab')
                a('s_mov_b64 exec, -1')
                uid[0] += 1
                a(f'v_cmp_le_u32 vcc, s{sTmp}, v{T16}')
                a(f'v_add_u32 v10, {G.TAB_CH}, v{T16}')
                a(f's_cmp_lg_u32 s{sW}, 0')
                a(f'v_cndmask_b32 v10, v{T16}, v10, vcc')
                a(f's_cbranch_scc1 L1_p{uid[0]}')
                vm, nvm = list(a.vm), a.nvm
                r = soff(sR, k * NW * BLK)
                a('s_mov_b64 exec, 0xff')
                a(f'buffer_store_dwordx4 v[12:15], v10, s[24:27], s{r} offen')
                a('s_mov_b64 exec, -1')
                a.vm, a.nvm = vm, nvm
                a.label(f'L1_p{uid[0]}')
            mix((lb if last else sb)[2 + j])
            if last:
                mhook(10 + j)
        a('s_waitcnt lgkmcnt(0)')
        a('s_barrier')
        if last and p2:
            next(p2)
        tl_mark(a, 76, k * 6 + 2, 0, 8)
        a.c('scatter')
        n0 = st['next']
        ns0 = len(pend_st)
        for j in range(8):
            if CFG['p1prio'] and j & 1 == 0:
                a(f's_setprio {3 - j // 2}')
            I, O, A = where[(k, 'I', j)], where[(k, 'O', j)], where[(k, 'A', j // 2)] + 2 * (j & 1)
            with skip_quad(last, j):
                for r in range(4):
                    x, y = t[(2 * r) % 4], t[(2 * r + 1) % 4]
                    a(f'v_and_b32 v{x}, -4, v{O+r}')
                    a(f'v_lshl_add_u32 v{y}, v{O+r}, 2, v{x}')
                    a(f'ds_write_b32 v{y}, v{I+r}')
                    a(f'v_lshl_add_u32 v{x}, v{x}, 2, v{O+r}')
                    a(f'ds_write_b8{"_d16_hi" if r & 1 else ""} v{x}, v{A + (r >> 1)} offset:16')
            pool.append(I)
            pool.append(O)
            if j & 1:
                pool.append(where[(k, 'A', j // 2)])
            nd = CFG['scd']
            store(len(pend_st) - (ns0 - (ns0 * min(j + 1, nd) + nd - 1) // nd))
            want = n0 + ((lim - n0) * min(j + 1, nd) + nd - 1) // nd
            issue(want - st['next'], lim)
            if last:
                mhook(20 + j)
            if last and p2 and j < 6:
                next(p2)
        if last and p2 and not st.get('tabok'):
            a(f's_waitcnt vmcnt({min(ns0, a.nvm - st["tabn"])})')
        stp = CFG['stp'] and not last
        fa = [7, 12, 13, 14, 15]
        if stp:
            for j in range(5):
                a(f'v_add_u32 v{fa[j]}, s{sKO[j]}, v{T16}')
            a(f's_min_i32 s3, s{sKO[0]}, s{sKO[1]}')
            for j in range(2, 5):
                a(f's_min_i32 s3, s3, s{sKO[j]}')
            a(f'v_add_u32 v3, s3, v{T16}')
        else:
            a(f'v_add_u32 v7, 0x10000, v{T16}')
            a(f'v_add_u32 v12, 0x20000, v{T16}')
        if not last:
            for i in range(4):
                a(f'v_mov_b32 v{8 + i}, 0')
        a('s_waitcnt lgkmcnt(0)')
        a('s_barrier')
        tl_mark(a, 76, k * 6 + 3, 0, 8 if last else pool[0])
        assert not pend_st
        a.c('flush')
        if last and p2 and ren:
            pool[:] = [24, 28, 32, 36, 76, 80, 84, 104, 68, 72]
        for j in range(10):
            b = pool.pop(0)
            if stp:
                a(f'ds_read_b128 {vr(b, 4)}, v{fa[j % 5]} offset:{(j // 5) * 16384}')
                if j == 4:
                    a('ds_write_b128 v3, v[8:11]')
                pend_st.append((b, k * NW * BLK + (j // 5) * 16384, sKO[j % 5]))
                continue
            base = (T16, 7, 12)[j // 4]
            a(f'ds_read_b128 {vr(b, 4)}, v{base} offset:{(j % 4) * 16384}')
            if j == 0 and not last:
                a(f'ds_write_b128 v{T16}, v[8:11]')
            pend_st.append((b, k * NW * BLK + j * 16384, None))
        if not last:
            a('s_waitcnt lgkmcnt(0)')
            a('s_barrier')
        elif p2:
            next(p2)
            a('s_waitcnt lgkmcnt(0)')
            if CFG['fs'] < 2:
                a('s_barrier')
            if not ren:
                m = dict(taken)
                rest_s = [b for b in range(16, 128, 4) if b not in m]
                rest_d = [b for b in range(16, 128, 4) if b not in m.values()]
                m.update(zip(rest_s, rest_d))
                G.MEMO['ren'] = m
            for _ in p2:
                pass
            return name
        else:
            for j in range(10):
                if j >= 7:
                    a(f's_cmp_le_u32 s{sNQ}, {j - 2}')
                    a('s_cbranch_scc1 L1_fin')
                a(f's_waitcnt lgkmcnt({9 - j})')
                store(1)
                if j == 6:
                    mhook(30)
    a.label('L1_fin')
    a.reset()
    G.tl_end(a)
    a.label('L1_end')
    a('s_endpgm')
    return name
```

```python
from asmlib import vr, sr, merge_vm

MF = 'v_mfma_f32_4x4x4_16b_bf16'


def gen_p2(a, G, P1=None):
    name = 'gs_acc_kernel'
    CFG = G.CFG
    SEL, ANDOR = G.SEL, G.ANDOR
    ORAND = 0xA8
    if not P1:
        G.kernel_head(a, name)
    DS = 1
    NR = DS + 1
    NA = 2
    LA, SHL, CBA, FA, CBB, KAD, KCM, PA = 0, 1, 2, 3, 4, 5, 6, 7
    WD, ID, NID = 8, 10, 12
    C = [14, 15]
    W = [16, 22, 28, 34]
    B = [w + 4 for w in W]
    EC = [w + 5 for w in W]
    FOLD = CFG['fold']
    NB = 7 if FOLD else 8
    LB = NB - 1
    FG_ = FOLD - 1
    if FOLD:
        B[FG_], EC[FG_] = W[FG_] + 2, W[FG_] + 3
    XN = [W[FG_] + 4, W[FG_] + 5]
    bmap = [(g, k) for g in range(4) for k in ((0,) if FOLD and g == FG_ else (0, 2))]
    ODD, sXo = 's[6:7]', 43
    EN = [40, 41, 42, 43]
    ES, KF0, NV, AI = 44, 45, 46, 47
    DA, DB = 48, 64
    OLD = [68, 70]
    OLD2 = [72, 74]
    X = [76, 80]
    P = 84
    RT = 88
    AOR = [[92, 93], [94, 95]]
    xm, xo, xa, xd = 96, 97, 98, 99
    xc, xl, xe, xt = RT, RT + 1, RT + 2, RT + 3
    MR = [[100, 102], [104, 106]]
    MP = [108 + 4 * n for n in range(5)]

    ph = dict(par=0)

    def ring(b):
        return (b + ph['par']) & 1

    def AO(b):
        return AOR[ring(b)]

    def slot(b, h):
        g, k = bmap[b % NB]
        return g, k + h
    sW, sQ, sOB, sSP, sSlow, sBase, sTab, sMD, sN, sPH, sM0 = 32, 33, 34, 35, 36, 37, 39, 40, 41, 42, 38
    sP = [44, 45, 46, 47]
    PEND, TMP, INJ, OVF, INJ1 = 's[80:81]', 's[82:83]', 's[84:85]', 's[58:59]', 's[48:49]'
    rpos = [int(x) for x in CFG['rpos'].split()]
    dpos = [int(x) for x in CFG['dpos'].split()]
    mpos = [int(x) for x in CFG['mpos'].split()]
    assert dpos[0] >= 1 and dpos[1] >= 1
    order = list(range(-1, LB))
    gs = {b: [b + 1] for b in range(-1, LB - 2)}
    gs[LB - 2] = [LB - 1, LB]
    b1_step = LB - 1

    def blk(p):
        return 4 * (p & 3) + (p >> 2)

    def dblk(p):
        return ((blk(p + 1) - blk(p)) * 81920) & 0xffffffff

    def head1():
        a('s_cmp_ge_u32 s2, 256')
        a('s_cbranch_scc1 L2_end')
        G.tl_start(a)
        if CFG['pprio']:
            a('s_setprio 3')
        a('s_load_dwordx2 s[30:31], s[0:1], 104')
        a('s_load_dwordx2 s[28:29], s[0:1], 0')
        a('s_load_dwordx2 s[6:7], s[0:1], 40')
        a('v_lshrrev_b32 v16, 6, v0')
        a('v_and_b32 v17, 63, v0')
        a(f'v_readfirstlane_b32 s{sW}, v16')
        a(f's_bfe_u32 s{sQ}, s2, 0x20001')
        a(f's_and_b32 s{sOB}, s2, 1')
        a(f's_lshl_b32 s{sOB}, s{sOB}, 5')
        a('s_lshr_b32 s4, s2, 3')
        a(f's_add_u32 s{sOB}, s{sOB}, s4')
        a('v_and_b32 v22, 3, v0')
        a('v_mul_u32_u24 v19, 80, v16' if not CFG['cmap'] else 'v_lshlrev_b32 v19, 6, v16')
        if CFG['dq']:
            a('v_lshrrev_b32 v18, 2, v17')
            a('v_lshl_add_u32 v18, v22, 4, v18')
            a('v_add_u32 v18, v18, v19')
        else:
            a('v_lshrrev_b32 v18, 4, v17')
            a('v_and_b32 v19, 15, v17')
            a('v_lshl_add_u32 v18, v18, 8, v19')
            a('v_lshl_add_u32 v18, v16, 4, v18')
        a(f'v_mul_u32_u24 v{CBA}, {G.BLK}, v18')
        a('v_lshrrev_b32 v18, 2, v17')
        if CFG['cmap']:
            a('v_lshl_add_u32 v18, v16, 4, v18')
            a('v_add_u32 v18, 0x400, v18')
        else:
            a('v_add3_u32 v18, v18, v19, 64')
        a(f'v_mul_u32_u24 v{CBB}, {G.BLK}, v18')
        a(f'v_lshl_add_u32 v20, v22, 4, v{CBB}')
        a('v_and_b32 v18, 3, v18')
        a('v_lshl_add_u32 v20, v18, 5, v20')
        a(f'v_lshl_add_u32 v25, v22, 5, v{CBA}')
        a(f's_mul_i32 s{sTab}, s{sQ}, 2080')
        a(f's_lshl_b32 s3, s{sOB}, 5')
        a(f's_add_u32 s{sTab}, s{sTab}, s3')
        a(f's_mul_i32 s{sMD}, s{sQ}, {16 * 81920}')
        a(f's_mul_i32 s3, s{sW}, 5120')
        a(f'v_lshl_add_u32 v{FA}, v17, 4, s3')
        a(f's_lshl_b32 s{sM0}, s{sW}, 11')
        a(f's_mul_i32 s100, s{sW}, 3072')
        a('s_waitcnt lgkmcnt(0)')
        G.srd(a, 12, 30, G.TAB_OFF, G.TAB_SZ)
        for k in (0, 2, 1, 3) if not CFG['dq'] else range(4):
            if CFG['dq']:
                a(f'v_subrev_u32 v25, {(64 - 16 * k) * G.BLK:#x}, v20')
                a(f'buffer_load_dwordx4 {vr(DA + 4 * k, 4)}, v25, s[12:15], s{sTab} offen', tag='D')
            else:
                a(f'buffer_load_dwordx4 {vr(DA + 4 * k, 4)}, v25, s[12:15], s{sTab} offen offset:{16 * k}', tag='D')
        a(f'buffer_load_dwordx4 {vr(DB, 4)}, v20, s[12:15], s{sTab} offen', tag='D')
        G.srd(a, 16, 30, G.MD_OFF, G.MD_SZ)
        G.srd(a, 24, 30, G.WT_OFF, G.WT_SZ)
        a('v_lshlrev_b32 v21, 6, v22')
        a(f'buffer_load_dwordx2 {vr(WD, 2)}, v21, s[24:27], 0 offen offset:40', tag='D')

    st = dict(inloop=False)

    def load_m(n):
        if CFG['ab_nom'] and st['inloop']:
            return
        if n == 4:
            a(f's_add_u32 s3, s{sMD}, 4096')
            a(f'buffer_load_dwordx4 {vr(MP[n], 4)}, v{FA}, s[16:19], s3 offen', tag=('M', n))
        else:
            a(f'buffer_load_dwordx4 {vr(MP[n], 4)}, v{FA}, s[16:19], s{sMD} offen offset:{n * 1024}', tag=('M', n))

    def load_m_raw(n, p, l16):
        a(f's_mul_i32 s3, s{sQ}, {16 * 80000}')
        a(f's_add_u32 s3, s3, s{sM0 if n < 2 else 100}')
        a(f's_add_u32 s3, s3, {blk(p) * 80000 + (0 if n < 2 else 32768)}')
        a(f'buffer_load_dwordx4 {vr(MP[n], 4)}, v{l16}, s[24:27], s3 offen offset:{1024 * (n if n < 2 else n - 2)}', tag=('M', n))

    def fill(n):
        a.wait_vm([('M', n)])
        if ('rawn', n) in st:
            a(f's_waitcnt vmcnt({a.nvm - st.pop(("rawn", n))})')
        if st.get('raw'):
            a(f'v_subrev_u32 v{RT}, s{100 if n < 2 else sM0}, v{FA}')
            a(f'ds_write_b128 v{RT}, {vr(MP[n], 4)} offset:{n * 1024 if n < 2 else 32768 + (n - 2) * 1024}', tag='F')
            return
        m0 = sM0 if n < 2 else 100
        if st.get('m0') != m0:
            a(f's_mov_b32 m0, s{m0}')
            st['m0'] = m0
        for jd in range(4):
            if CFG['ab'] & 8 and st['inloop']:
                continue
            a(f'ds_write_addtid_b32 v{MP[n] + jd} offset:{(n * 1024 if n < 2 else 32768 + (n - 2) * 1024) + 256 * jd}', tag='F')

    def next_m(p):
        a(f's_add_u32 s{sMD}, s{sMD}, {dblk(p):#x}')

    def head2():
        if CFG['pprio']:
            a('s_setprio 2')
        for n in (4, 2, 3, 0, 1):
            load_m(n)
        next_m(0)
        if CFG['pprio']:
            a('s_setprio 1')
        a(f'v_mad_u32_u24 v{CBB}, v22, 20, v{CBB}')
        a(f'v_or_b32 v{CBB}, 0xf0000000, v{CBB}')
        a(f'v_or_b32 v{CBA}, 0xf0000000, v{CBA}')
        a('v_lshlrev_b32 v23, 2, v22')
        a(f'v_sub_u32 v{SHL}, 28, v23')
        G.ident(a, ID, 18, 0)
        G.ident(a, NID, 18, 0, neg=True)
        a('v_lshlrev_b32 v24, 4, v0')
        a(f'v_lshl_add_u32 v{LA}, v17, 2, s{sM0}')
        a(f'v_mov_b32 v{KF0}, 0xf0000000')
        a(f'v_mov_b32 v{KAD}, 0x1fff8')
        a(f'v_mov_b32 v{KCM}, 0x07ff0000')
        for k in range(4):
            a(f's_mov_b32 s{sP[k]}, {0x04000c0c | (k << 16):#x}')
        a(f's_mov_b32 s{sSlow}, 0')
        a(f's_mov_b32 s{sXo}, 0')
        a(f's_mov_b32 s{sPH}, 0')
        a(f's_mov_b64 {PEND}, 0')
        a(f's_mov_b64 {INJ}, 0')
        a(f's_mov_b64 {INJ1}, 0')
        if CFG['fuse']:
            a('s_load_dwordx4 s[96:99], s[6:7], 0')
            a('s_load_dwordx2 s[4:5], s[0:1], 24')
            a('s_waitcnt lgkmcnt(0)')
        G.srd(a, 8, 30, G.REC_OFF, G.REC_SZ)

    if not P1:
        head1()
        head2()
    ool = []
    uid = [0]

    XAND = 0x6A
    sOv = 101

    def x_pre(j):
        uid[0] += 1
        u = uid[0]
        rs, re_ = DA + 2 * j, DA + 8 + 2 * j
        a.wait_vm('D')
        a(f'v_sub_u16 v{xc}, v{re_}, v{rs}')
        a(f'v_and_b32 v{xl}, 3, v{rs}')
        a(f'v_add3_u32 v{xd}, v{xc}, v{xl}, 3')
        a(f'v_and_b32 v{xd}, -4, v{xd}')
        a(f'v_max_u32 v{xd}, 4, v{xd}')
        fill = [f'v_and_b32 v{xo}, 0xfffc, v{rs}',
                f'v_bfm_b32 v{xm}, v{xc}, v{xl}',
                f'v_mad_u32_u24 v{xo}, v{xo}, 5, v{CBA}',
                f'v_cmp_lt_u32 vcc, 16, v{xd}',
                f'v_sub_u32 v{xa}, s{sM0}, v{xd}',
                f'v_lshrrev_b64 {vr(rs, 2)}, 16, {vr(rs, 2)}',
                f'v_lshrrev_b64 {vr(re_, 2)}, 16, {vr(re_, 2)}',
                f's_mov_b32 s{sOv}, 0']
        a(fill.pop(0))
        a(fill.pop(0))
        a(f'v_add_u32_dpp v{xt}, v{xd}, v{xd} row_shr:1 row_mask:0xf bank_mask:0xf bound_ctrl:1')
        for m in ('row_shr:2 row_mask:0xf bank_mask:0xf bound_ctrl:1', 'row_shr:4 row_mask:0xf bank_mask:0xf bound_ctrl:1',
                  'row_shr:8 row_mask:0xf bank_mask:0xf bound_ctrl:1', 'row_bcast:15 row_mask:0xa bank_mask:0xf',
                  'row_bcast:31 row_mask:0xc bank_mask:0xf'):
            for _ in range(2):
                if fill:
                    a(fill.pop(0))
            a(f'v_add_u32_dpp v{xt}, v{xt}, v{xt} {m}')
        a(f'v_add_u32 v{xa}, v{xa}, v{xt}')
        a(f'v_readlane_b32 s{sBase}, v{xt}, 63')
        a(f's_cbranch_vccnz L2_xo{u}')
        a.label(f'L2_xp{u}')
        ool.append([f'L2_xo{u}:',
                    f'v_cmp_lt_u32 vcc, 20, v{xd}',
                    f's_mov_b32 s{sOv}, 1',
                    f's_cbranch_vccz L2_xp{u}',
                    f'v_cmp_lt_u32 vcc, 32, v{xd}',
                    f'v_cmp_lt_u32 {OVF}, 31, v{xc}',
                    f's_mov_b32 s{sOv}, 2',
                    f's_or_b64 vcc, vcc, {OVF}',
                    f's_cbranch_scc0 L2_xp{u}',
                    f's_mov_b32 s{sBase}, 0x10000',
                    f's_branch L2_xp{u}'])

    def x_ent(f, t):
        f(f'v_lshlrev_b32 v{xl}, {28 - 4 * t}, v{xm}')
        if t:
            f(f'v_add_u32 v{xe}, {20 * t}, v{xo}')
        f(f'v_bitop3_b32 v{xe}, v{xl}, v{KF0}, v{xe if t else xo} bitop3:{XAND:#x}')
        f(f'ds_write_b32 v{xa}, v{xe} offset:{4 * t}')

    def x_quad(f):
        f(f'v_and_b32 v{xl}, v{KF0}, v{xl}')
        f(f'v_cmp_ne_u32 vcc, 0, v{xl}')
        f(f'v_xor_b32 v{xe}, v{xo}, v{xl}')
        f(f's_add_u32 s3, s{sBase}, s{sM0}')
        f(f'v_mbcnt_lo_u32_b32 v{xa}, vcc_lo, 0')
        f(f'v_mbcnt_hi_u32_b32 v{xa}, vcc_hi, v{xa}')
        f(f's_bcnt1_i32_b64 s{sN}, vcc')
        f(f'v_lshl_add_u32 v{xa}, v{xa}, 2, s3')
        f('s_mov_b64 exec, vcc')
        f(f'ds_write_b32 v{xa}, v{xe}')
        f('s_mov_b64 exec, -1')
        f(f's_lshl2_add_u32 s{sBase}, s{sN}, s{sBase}')

    def x_list(j, E, pbit):
        uid[0] += 1
        u = uid[0]
        a(f'v_mov_b32 v{ES}, v{E[3]}')
        a(f's_cmp_gt_u32 s{sBase}, 1024')
        a(f's_cbranch_scc1 L2_xs{u}')
        a(f's_cmp_lg_u32 s{sOv}, 0')
        a(f's_cbranch_scc1 L2_xa{u}')
        a.label(f'L2_xb{u}')
        bl = [f'L2_xa{u}:', f's_cmp_eq_u32 s{sOv}, 1', f's_cbranch_scc1 L2_xc{u}']
        x_ent(bl.append, 7)
        x_ent(bl.append, 6)
        x_ent(bl.append, 5)
        bl.append(f'L2_xc{u}:')
        x_ent(bl.append, 4)
        bl.append(f's_branch L2_xb{u}')
        ool.append(bl)
        for t in (3, 2, 1, 0):
            x_ent(a, t)
        r = DB + 2 * (j & 1)
        ls, le = j >> 1, 2 + (j >> 1)
        a(f'v_mov_b32_dpp v{xt}, v{r} quad_perm:[{ls},{ls},{ls},{ls}] row_mask:0xf bank_mask:0xf')
        a(f'v_and_b32 v{xl}, 3, v{xt}')
        a(f'v_and_b32 v{xo}, 0xfffc, v{xt}')
        a(f'v_sub_u16_dpp v{xc}, v{r}, v{xt} quad_perm:[{le},{le},{le},{le}] row_mask:0xf bank_mask:0xf')
        a(f'v_mad_u32_u24 v{xo}, v{xo}, 5, v{CBB}')
        a(f'v_add_u32 v{xd}, v{xc}, v{xl}')
        a(f'v_bfm_b32 v{xm}, v{xc}, v{xl}')
        a(f'v_cmp_lt_u32 {OVF}, 16, v{xd}')
        a(f'v_lshlrev_b32 v{xl}, v{SHL}, v{xm}')
        x_quad(a)
        a(f's_cmp_lg_u64 {OVF}, 0')
        a(f's_cbranch_scc1 L2_xe{u}')
        a.label(f'L2_xr{u}')
        bl = [f'L2_xe{u}:',
              f'v_cmp_lt_u32 vcc, 32, v{xd}',
              f'v_cmp_lt_u32 {OVF}, 31, v{xc}',
              f'v_lshrrev_b32 v{xl}, 16, v{xm}',
              f'v_add_u32 v{xo}, 80, v{xo}',
              f's_or_b64 vcc, vcc, {OVF}',
              f's_cbranch_scc1 L2_xs{u}',
              f'v_lshlrev_b32 v{xl}, v{SHL}, v{xl}']
        x_quad(bl.append)
        bl.append(f's_branch L2_xr{u}')
        ool.append(bl)
        a(f'v_add_u32 v{xa}, s{sBase}, v{LA}')
        a(f'v_mov_b32 v{xe}, -1')
        a(f'ds_write_b32 v{xa}, v{xe}')
        go = [int(x) for x in CFG['gord'].split()]
        if FOLD:
            go = [0, 1, 2]
            go.insert(FG_, 3)
            a(f'v_add_u32 v{xa}, s{sM0}, v{LA}')
            pr = 0 if FG_ >= 2 else 2
            a(f'ds_read2st64_b32 {vr(E[pr], 2)}, v{LA} offset0:{go[pr]} offset1:{go[pr + 1]}', tag='L')
            a(f'ds_read_b32 v{E[FG_ ^ 1]}, v{LA} offset:{256 * go[FG_ ^ 1]}', tag='L')
            a(f'v_lshrrev_b32 v{xa}, 1, v{xa}')
            a(f'v_and_b32 v{xa}, -4, v{xa}')
            a(f'ds_read_b32 v{E[FG_]}, v{xa} offset:768', tag='L')
        else:
            a(f'ds_read2st64_b32 {vr(E[0], 2)}, v{LA} offset0:{go[0]} offset1:{go[1]}', tag='L')
            a(f'ds_read2st64_b32 {vr(E[2], 2)}, v{LA} offset0:{go[2]} offset1:{go[3]}', tag='L')
        E = [E[go.index(g)] for g in range(4)]
        a(f's_sub_u32 s3, s{sBase}, 768')
        a(f's_cmp_gt_u32 s3, {128 if FOLD else 256}')
        a(f's_cbranch_scc1 L2_xf{u}')
        a.label(f'L2_xg{u}')
        bl = [f'L2_xf{u}:',
              's_waitcnt lgkmcnt(0)',
              f's_cmp_gt_u32 s{sBase}, 1024',
              f's_cbranch_scc1 L2_xs{u}']
        if FOLD:
            bl += [f's_cmp_lt_u32 s{sBase}, 768',
                   f's_cbranch_scc1 L2_xl{u}',
                   f'ds_read_b32 v{XN[j & 1]}, v{xa} offset:896',
                   f's_add_u32 s3, s{sPH}, {pbit}',
                   f's_bitset1_b32 s{sXo}, s3',
                   f's_branch L2_xg{u}',
                   f'L2_xl{u}:']
        bl += [f'v_mov_b32 v{E[3]}, -1',
              f's_cmp_ge_u32 s{sBase}, 512',
              f's_cbranch_scc1 L2_xg{u}',
              f'v_mov_b32 v{E[2]}, -1',
              f's_cmp_ge_u32 s{sBase}, 256',
              f's_cbranch_scc1 L2_xg{u}',
              f'v_mov_b32 v{E[1]}, -1',
              f's_branch L2_xg{u}',
              f'L2_xs{u}:',
              's_waitcnt lgkmcnt(0)']
        bl += [f'v_mov_b32 v{E[g]}, -1' for g in range(4)]
        bl += [f's_add_u32 s3, s{sPH}, {pbit}',
               f's_bitset1_b32 s{sSlow}, s3',
               f's_branch L2_xg{u}']
        ool.append(bl)
        if j == 3:
            for h in range(2):
                a(f'v_lshrrev_b64 {vr(DB + 2 * h, 2)}, 16, {vr(DB + 2 * h, 2)}')

    def load_rec(g, AI=AI):
        AI = st.get('ai') or AI
        E = EN[:3] + [ES]
        a(f'v_and_b32 v{AI}, 0x0fffffff, v{E[g]}')
        if CFG['ab_norec'] and st['inloop']:
            a(f'v_mov_b32 v{AI}, v{E[g]}')
            return
        a(f'v_mov_b32 v{EC[g]}, v{E[g]}')
        issue_rec(g, AI)

    def issue_fold(f, w, bb, e, AI):
        f(f'buffer_load_dword v{bb}, v{AI}, s[8:11], 0 offen offset:16')
        f(f's_mov_b64 exec, {ODD}')
        f(f'v_add_u32 v{AI}, 8, v{AI}')
        f(f'v_lshrrev_b32 v{e}, 2, v{e}')
        f('s_mov_b64 exec, -1')
        f(f'buffer_load_dwordx2 {vr(w, 2)}, v{AI}, s[8:11], 0 offen')

    def ovf_load(xn, d):
        uid[0] += 1
        u = uid[0]
        a(f's_bitcmp1_b32 s{sXo}, s{sPH}')
        a(f's_cbranch_scc1 L2_oa{u}')
        a.label(f'L2_ob{u}')
        bl = [f'L2_oa{u}:', f'v_and_b32 v{AI}, 0x0fffffff, v{xn}']
        issue_fold(bl.append, d, d + 2, xn, AI)
        ool.append(bl + [f's_branch L2_ob{u}'])
        st['ovn'] = a.nvm

    def ovf_run(xn, d):
        uid[0] += 1
        u = uid[0]
        a(f's_bitcmp1_b32 s{sXo}, s{sPH}')
        a(f's_cbranch_scc1 L2_oa{u}')
        a.label(f'L2_ob{u}')
        bl = [f'L2_oa{u}:', f's_waitcnt vmcnt({a.nvm - st["ovn"]})',
              f's_mov_b64 exec, {ODD}', f'v_lshrrev_b32 v{d + 2}, 16, v{d + 2}', 's_mov_b64 exec, -1']
        for h in range(2):
            w = d + h
            bl += [f'v_and_b32 v{NV}, {1 << (28 + h):#x}, v{xn}',
                   f'v_cmpx_eq_u32 vcc, 0, v{NV}',
                   f'v_lshrrev_b32 v{AI}, 14, v{w}',
                   f'v_and_b32 v{AI}, v{KAD}, v{AI}',
                   f'ds_read_b64 {vr(xm, 2)}, v{AI}',
                   f'v_perm_b32 v{xa}, v{w}, v{d + 2}, s{sP[h]}',
                   f'v_bitop3_b32 v{xd}, v{w}, 0.5, -0.5 bitop3:{ORAND:#x}',
                   f'v_bitop3_b32 v{xa}, v{KCM}, v{xa}, v{xd} bitop3:{SEL:#x}',
                   f'v_and_b32 v{AI}, v{KAD}, v{w}',
                   's_waitcnt lgkmcnt(0)',
                   f'{MF} {vr(RT, 4)}, {vr(WD, 2)}, {vr(xm, 2)}, 0']
            bl += [f'v_mul_f32 v{RT + n}, v{xa}, v{RT + n}' for n in range(4)]
            bl += [f'v_cvt_pk_bf16_f32 v{RT}, v{RT}, v{RT + 1}',
                   f'v_cvt_pk_bf16_f32 v{RT + 1}, v{RT + 2}, v{RT + 3}',
                   f'ds_pk_add_bf16 v{AI}, v{RT} offset:{G.A_OFFS}',
                   f'ds_pk_add_bf16 v{AI}, v{RT + 1} offset:{G.A_OFFS + 4}',
                   's_mov_b64 exec, -1']
        ool.append(bl + [f's_branch L2_ob{u}'])

    def issue_rec(g, AI=AI):
        if FOLD and g == FG_:
            issue_fold(lambda t: a(t, tag=('R', g)), W[g], B[g], EC[g], AI)
            return
        if CFG['ab'] & 256 and st['inloop']:
            a(f'buffer_load_dwordx4 {vr(W[g], 4)}, v{AI}, s[8:11], 0 offen', tag=('R', g))
            return
        if CFG['x3'] == 2:
            a(f'buffer_load_dwordx2 {vr(W[g], 2)}, v{AI}, s[8:11], 0 offen', tag=('R', g))
        elif CFG['x3'] == 3:
            a(f'buffer_load_dwordx3 {vr(W[g], 3)}, v{AI}, s[8:11], 0 offen', tag=('R', g))
        else:
            a(f'buffer_load_dwordx4 {vr(W[g], 4)}, v{AI}, s[8:11], 0 offen', tag=('R', g))
        if CFG['x3']:
            a(f'buffer_load_dwordx3 {vr(W[g] + 2, 3)}, v{AI}, s[8:11], 0 offen offset:8', tag=('R', g))
        else:
            a(f'buffer_load_dword v{B[g]}, v{AI}, s[8:11], 0 offen offset:16', tag=('R', g))

    ao_done = set()

    def gather(x, b, NV=NV, AI=AI, noao=False):
        g = slot(x, 0)[0]
        a.wait_vm([('R', g)])
        if FOLD and g == FG_:
            a(f's_mov_b64 exec, {ODD}')
            a(f'v_lshrrev_b32 v{B[g]}, 16, v{B[g]}')
            a('s_mov_b64 exec, -1')
        now = x - b < NA and not noao
        for h in (1, 0):
            k = slot(x, h)[1]
            w = W[g] + k
            a(f'v_and_b32 v{NV}, {1 << (28 + k):#x}, v{EC[g]}')
            a(f'v_lshrrev_b32 v{AI}, 14, v{w}')
            a(f'v_bitop3_b32 v{AI}, v{AI}, v{KAD}, v{NV} bitop3:{ANDOR:#x}')
            a(f'ds_read_b64 {vr(MR[ring(x)][h], 2)}, v{AI}', tag=('m', x))
            if now:
                a(f'v_bitop3_b32 v{AO(x)[h]}, v{w}, v{KAD}, v{NV} bitop3:{ANDOR:#x}')
        if now:
            ao_done.add(x)

    def dec_ao(b):
        if b in ao_done:
            ao_done.discard(b)
            return
        for h in range(2):
            g, k = slot(b, h)
            a(f'v_and_b32 v{NV}, {1 << (28 + k):#x}, v{EC[g]}')
            a(f'v_bitop3_b32 v{AO(b)[h]}, v{W[g] + k}, v{KAD}, v{NV} bitop3:{ANDOR:#x}')

    def dec_c1(b):
        for h in (1, 0):
            g, k = slot(b, h)
            w = W[g] + k
            a(f'v_perm_b32 v{C[h]}, v{w}, v{B[g]}, s{sP[k]}')
            a(f'v_bitop3_b32 v{(AI, NV)[h]}, v{w}, 0.5, -0.5 bitop3:{ORAND:#x}')

    def dec_c2(b):
        for h in (1, 0):
            a(f'v_bitop3_b32 v{C[h]}, v{KCM}, v{C[h]}, v{(AI, NV)[h]} bitop3:{SEL:#x}')

    def flush_pend(mask):
        return [f's_mov_b64 exec, {mask}',
                's_nop 1',
                f'{MF} {vr(RT, 4)}, {vr(NID, 2)}, {vr(P, 2)}, 0',
                's_nop 1',
                f'{MF} {vr(RT, 4)}, {vr(ID, 2)}, {vr(P + 2, 2)}, {vr(RT, 4)}',
                's_nop 4',
                f'v_cvt_pk_bf16_f32 v{RT}, v{RT}, v{RT + 1}',
                f'v_cvt_pk_bf16_f32 v{RT + 1}, v{RT + 2}, v{RT + 3}',
                f'ds_pk_add_bf16 v{PA}, v{RT} offset:{G.A_OFFS}',
                f'ds_pk_add_bf16 v{PA}, v{RT + 1} offset:{G.A_OFFS + 4}']

    def check(b, h):
        if CFG['ab_nofix'] == 1:
            return
        uid[0] += 1
        u = uid[0]
        a(f'v_cmpx_ne_u64 vcc, {vr(OLD2[h], 2)}, {vr(OLD[h], 2)}')
        if CFG['cnt']:
            a('s_bcnt1_i32_b64 s72, vcc')
            a('s_add_u32 s63, s63, s72')
        skip = CFG['zskip'] == 1 or (CFG['zskip'] == 2 and (b & 7) >= 6)
        if skip:
            a(f's_cbranch_execz L2_z{u}')
        a(f's_and_b64 {TMP}, vcc, {PEND}')
        a(f's_cbranch_scc1 L2_c{u}')
        a.label(f'L2_d{u}')
        if CFG['mov64']:
            a(f'v_mov_b64 {vr(P, 2)}, {vr(OLD[h], 2)}')
            a(f'v_mov_b32 v{PA}, v{AO(b)[h]}')
            a(f'v_mov_b64 {vr(P + 2, 2)}, {vr(OLD2[h], 2)}')
        else:
            for n in range(2):
                a(f'v_mov_b32 v{P + n}, v{OLD[h] + n}')
                a(f'v_mov_b32 v{P + 2 + n}, v{OLD2[h] + n}')
            a(f'v_mov_b32 v{PA}, v{AO(b)[h]}')
        if skip:
            a(f's_or_b64 {PEND}, {PEND}, vcc')
            a.label(f'L2_z{u}')
            a('s_mov_b64 exec, -1')
            if h == 0 and inj_on((b + 1) & 7, 0):
                a('s_nop 0')
        else:
            a('s_mov_b64 exec, -1')
            a(f's_or_b64 {PEND}, {PEND}, vcc')
        cnt = [f's_bcnt1_i32_b64 s72, {TMP}', 's_add_u32 s67, s67, s72', 's_add_u32 s67, s67, 0x10000'] if CFG['cnt'] else []
        if not CFG['nbr']:
            ool.append([f'L2_c{u}:'] + cnt + flush_pend(TMP) + ['s_mov_b64 exec, vcc', f's_branch L2_d{u}'])
            return
        CF, TG = 's[50:51]', 's[52:53]'
        bl = [f'L2_c{u}:',
              f's_mov_b64 {CF}, vcc',
              f's_lshl_b64 {TG}, {TMP}, 1',
              f's_andn2_b64 {TG}, {TG}, {PEND}',
              f's_andn2_b64 {TG}, {TG}, {CF}',
              f's_or_b64 {PEND}, {PEND}, {TG}',
              f's_not_b64 vcc, {TG}',
              's_mov_b64 exec, -1']
        for n, r in enumerate((P, P + 1, P + 2, P + 3, PA)):
            bl.append(f'v_cndmask_b32_dpp v{r}, v{r}, v{r}, vcc wave_shr:1 row_mask:0xf bank_mask:0xf')
            if n == 1:
                bl.append(f's_lshr_b64 {TG}, {TG}, 1')
            if n == 3:
                bl.append(f's_andn2_b64 {TMP}, {TMP}, {TG}')
        bl += [f's_mov_b64 vcc, {CF}',
               f's_mov_b64 exec, {CF}',
               f's_cbranch_scc0 L2_d{u}'] + cnt + flush_pend(TMP) + ['s_mov_b64 exec, vcc', f's_branch L2_d{u}']
        ool.append(bl)

    def check2(b, between=None):
        CM, TG = ['s[50:51]', 's[54:55]'], 's[52:53]'
        a(f'v_cmp_ne_u64 {CM[0]}, {vr(OLD2[0], 2)}, {vr(OLD[0], 2)}')
        a(f'v_cmpx_ne_u64 {CM[1]}, {vr(OLD2[1], 2)}, {vr(OLD[1], 2)}')
        for h in (1, 0):
            uid[0] += 1
            u = uid[0]
            if h == 0:
                if between:
                    a('s_mov_b64 exec, -1')
                    between()
                a(f's_mov_b64 exec, {CM[0]}')
            a(f's_and_b64 {TMP}, {CM[h]}, {PEND}')
            a(f's_cbranch_scc1 L2_c{u}')
            a.label(f'L2_d{u}')
            a(f'v_mov_b64 {vr(P, 2)}, {vr(OLD[h], 2)}')
            a(f'v_mov_b32 v{PA}, v{AO(b)[h]}')
            a(f'v_mov_b64 {vr(P + 2, 2)}, {vr(OLD2[h], 2)}')
            if h == 0:
                a('s_mov_b64 exec, -1')
            a(f's_or_b64 {PEND}, {PEND}, {CM[h]}')
            bl = [f'L2_c{u}:',
                  f's_lshl_b64 {TG}, {TMP}, 1',
                  f's_andn2_b64 {TG}, {TG}, {PEND}',
                  f's_andn2_b64 {TG}, {TG}, {CM[h]}',
                  f's_or_b64 {PEND}, {PEND}, {TG}',
                  f's_not_b64 vcc, {TG}',
                  's_mov_b64 exec, -1']
            for n, r in enumerate((P, P + 1, P + 2, P + 3, PA)):
                bl.append(f'v_cndmask_b32_dpp v{r}, v{r}, v{r}, vcc wave_shr:1 row_mask:0xf bank_mask:0xf')
                if n == 1:
                    bl.append(f's_lshr_b64 {TG}, {TG}, 1')
                if n == 3:
                    bl.append(f's_andn2_b64 {TMP}, {TMP}, {TG}')
            bl += [f's_mov_b64 exec, {CM[h]}',
                   f's_cbranch_scc0 L2_d{u}'] + flush_pend(TMP) + [f's_mov_b64 exec, {CM[h]}', f's_branch L2_d{u}']
            ool.append(bl)

    def inj_on(b, h):
        if CFG['ab_nofix'] == 1:
            return False
        if st.get('last') and b >= CFG['injl']:
            return True
        return (2 * (b % NB) + h) % CFG['injs'] == 0

    def inject(b, h):
        m = INJ1 if h else INJ
        a(f's_and_b64 exec, {m}, {PEND}')
        a(f'{MF} {vr(X[h], 4)}, {vr(NID, 2)}, {vr(P, 2)}, 0')
        a(f'v_mov_b32 v{AO(b)[h]}, v{PA}')
        a(f's_andn2_b64 {PEND}, {PEND}, {m}')
        a(f'{MF} {vr(X[h], 4)}, {vr(ID, 2)}, {vr(P + 2, 2)}, {vr(X[h], 4)}')
        a('s_mov_b64 exec, -1')

    def step_a(b):
        a.wait_lg(('m', b))
        for h in (1, 0):
            a(f'{MF} {vr(X[h], 4)}, {vr(WD, 2)}, {vr(MR[ring(b)][h], 2)}, 0')
        dec_c2(b)
        for h in (1, 0):
            if inj_on(b, h):
                a(f'v_cmp_lt_u32 {INJ1 if h else INJ}, v{KAD}, v{AO(b)[h]}')
        for h in (1, 0):
            if CFG['pkmul']:
                for n in (0, 2):
                    a(f'v_pk_mul_f32 {vr(X[h] + n, 2)}, {vr(X[h] + n, 2)}, {vr(C[0], 2)} op_sel:[0,{h}] op_sel_hi:[1,{h}]')
            else:
                for n in range(4):
                    a(f'v_mul_f32 v{X[h] + n}, v{C[h]}, v{X[h] + n}')

    SB = CFG['sbar']
    sT0, sT1 = 56, 57

    def sb_arrive(c):
        a('s_mov_b64 exec, 1')
        a(f'ds_inc_u32 v{KAD}, v{KF0} offset:{161920 - 0x1fff8 + 8 * c}')
        a('s_mov_b64 exec, -1')

    def sb_look(c):
        a(f'ds_read_b32 v{RT}, v{KAD} offset:{161920 - 0x1fff8 + 8 * c}', tag='sb')

    def sb_wait(c):
        uid[0] += 1
        u = uid[0]
        a(f's_lshl_b32 s3, s{sPH}, 4')
        if c:
            a('s_add_u32 s3, s3, 16')
        a.wait_lg('sb')
        a.label(f'L2_w{u}')
        a(f'v_cmp_gt_u32 vcc, s3, v{RT}')
        a(f's_cbranch_vccnz L2_v{u}')
        ool.append([f'L2_v{u}:', f'ds_read_b32 v{RT}, v{KAD} offset:{161920 - 0x1fff8 + 8 * c}', 's_waitcnt lgkmcnt(0)', f's_branch L2_w{u}'])

    def step_b(b, final=False, mid=None, nogather=False):
        GE = CFG['gearly'] and not final and not nogather
        if GE:
            for x in gs.get(b, []):
                gather(x, b, noao=True)
        a.wait_lg('x')

        def rd(h):
            if not CFG['injearly'] and inj_on(b, h):
                inject(b, h)
            a(f'ds_read_b64 {vr(OLD[h], 2)}, v{AO(b)[h]} offset:{G.A_OFFS}', tag='o')
        if CFG['chk'] == 1:
            check2(b - 1)
        elif CFG['chk'] == 2:
            check2(b - 1, lambda: rd(1))
        else:
            for h in (1, 0):
                check(b - 1, h)
                if CFG['injearly'] and inj_on(b, h):
                    inject(b, h)
                if CFG['chk'] == 3 and h == 1:
                    rd(1)
        if CFG['chk'] < 2:
            rd(1)
        rd(0)
        if not final:
            if nogather:
                a.wait_vm([('R', 0)])
            elif not GE:
                for x in gs.get(b, []):
                    gather(x, b)
            elif CFG['gearly'] == 2:
                dec_ao(b + 1)
                ao_done.add(b + 1)
            mid()
        if CFG['wprio']:
            a('s_setprio 3')
        a.wait_lg('o')
        for h in (1, 0):
            a(f'{MF} {vr(X[h], 4)}, {vr(ID, 2)}, {vr(OLD[h], 2)}, {vr(X[h], 4)}')
        if not final:
            dec_ao(b + 1)
            dec_c1(b + 1)
        for h in (1, 0):
            a(f'v_cvt_pk_bf16_f32 v{X[h]}, v{X[h]}, v{X[h] + 1}')
            a(f'v_cvt_pk_bf16_f32 v{X[h] + 1}, v{X[h] + 2}, v{X[h] + 3}')
            a(f'ds_wrxchg_rtn_b64 {vr(OLD2[h], 2)}, v{AO(b)[h]}, {vr(X[h], 2)} offset:{G.A_OFFS}', tag='x')

    def stamp(i):
        if not CFG['stamp']:
            return
        a('s_memtime s[70:71]')
        a('s_waitcnt lgkmcnt(0)')
        a('s_sub_u32 s72, s70, s73')
        a('s_mov_b32 s73, s70')
        a(f's_add_u32 s{60 + i}, s{60 + i}, s72')

    ipos = [int(x) for x in CFG['ipos'].split()]
    fpos = [int(x) for x in CFG['fpos'].split()]
    fmpos = [int(x) for x in CFG['fmpos'].split()]

    ipos2 = [int(x) for x in CFG['ipos2'].split()]
    fpos2 = [int(x) for x in CFG['fpos2'].split()]

    def load_own(g):
        if g == 0:
            a('s_mov_b32 s6, 0xaaaaaaaa')
            a('s_mov_b32 s7, 0xaaaaaaaa')
        ai = st.get('ai') or AI
        a(f'v_and_b32 v{ai}, 0x0fffffff, v{EC[g]}')
        issue_rec(g, ai)
    def poll(level, lab):
        if level == 2:
            a(f's_mov_b32 exec_lo, s56')
            a('s_mov_b32 exec_hi, 0')
        else:
            a('s_mov_b64 exec, 0xffff')
        a.label(lab)
        a(f'buffer_load_dword v{RT}, v{PA}, s[60:63], 0 offen sc1')
        a('s_waitcnt vmcnt(0)')
        a(f'v_cmpx_gt_u32 vcc, {level}, v{RT}')
        a(f's_cbranch_vccnz {lab}s')
        ool.append([f'{lab}s:', f's_sleep {CFG["slp%d" % level]}', f's_branch {lab}'])
        a('s_mov_b64 exec, -1')

    def signal(level, tmp, adr):
        uid[0] += 1
        a(f's_cmp_lg_u32 s{sW}, 0')
        a(f's_cbranch_scc1 L2_sg{uid[0]}')
        vm, nvm = list(a.vm), a.nvm
        a('s_mov_b32 exec_hi, 0')
        a(f'v_mov_b32 v{tmp}, {level}')
        a(f'buffer_store_dword v{tmp}, v{adr}, s[60:63], s57 offen sc1')
        a('s_mov_b64 exec, -1')
        a.vm, a.nvm = vm, nvm
        a.label(f'L2_sg{uid[0]}')

    if P1:
        T16, sE = 0, 56
        a(f'v_lshlrev_b32 v3, 3, v{T16}')
        a('v_and_b32 v3, 0x80, v3')
        a(f's_cmp_lg_u32 s{sW}, {99 if CFG["ab"] & 16 else 15}')
        a('s_cbranch_scc1 L2_k0')
        vm, nvm = list(a.vm), a.nvm
        a('s_mov_b64 exec, 3')
        a('buffer_load_dword v3, v3, s[68:71], 0 offen sc1')
        a('s_mov_b64 exec, -1')
        a.vm, a.nvm = vm, nvm
        a.label('L2_k0')
        yield
        a('v_and_b32_dpp v3, v3, v3 quad_perm:[1,0,3,2] row_mask:0xf bank_mask:0xf')
        yield
        a(f'v_readlane_b32 s{sE}, v10, 15')
        a(f's_xor_b32 s{sE}, s{sE}, 0x80')
        yield
        a('s_load_dwordx2 s[28:29], s[0:1], 0')
        a('s_load_dwordx2 s[50:51], s[0:1], 40')
        a('s_load_dwordx2 s[52:53], s[0:1], 24')
        yield
        a('s_load_dwordx4 s[96:99], s[50:51], 0')
        a('s_mov_b64 s[4:5], s[52:53]')
        a(f's_bfe_u32 s{sQ}, s2, 0x20001')
        a(f's_and_b32 s{sOB}, s2, 1')
        a(f's_lshl_b32 s{sOB}, s{sOB}, 5')
        a('s_lshr_b32 s3, s2, 3')
        a(f's_add_u32 s{sOB}, s{sOB}, s3')
        a(f's_mul_i32 s{sTab}, s{sQ}, 2080')
        a(f's_lshl_b32 s3, s{sOB}, 5')
        a(f's_add_u32 s{sTab}, s{sTab}, s3')
        a(f's_mul_i32 s{sMD}, s{sQ}, {16 * 81920}')
        next_m(0)
        a(f's_lshl_b32 s{sM0}, s{sW}, 11')
        a(f's_mul_i32 s100, s{sW}, 3072')
        G.srd(a, 8, 30, G.REC_OFF, G.REC_SZ)
        G.srd(a, 12, 30, G.TAB_OFF, G.TAB_SZ)
        G.srd(a, 16, 64, 0, 32)
        G.srd(a, 24, 28, 0, G.E * 8)
        yield
        a(f'v_and_b32 v13, 0x3f0, v{T16}')
        a('v_and_b32 v14, 0x300, v13')
        a('v_bfe_u32 v15, v13, 4, 4')
        a(f's_lshl_b32 s3, s{sW}, 4')
        a('v_add3_u32 v14, v14, v15, s3')
        a(f'v_mul_u32_u24 v{CBA}, {G.BLK}, v14')
        a('v_lshrrev_b32 v14, 6, v13')
        a('s_add_u32 s3, s3, 0x400')
        a('v_add_u32 v14, s3, v14')
        a(f'v_mul_u32_u24 v{CBB}, {G.BLK}, v14')
        a('v_and_b32 v14, 3, v14')
        a('v_and_b32 v15, 0x30, v13')
        a('v_lshl_add_u32 v14, v14, 5, v15')
        a(f'v_add_u32 v6, v14, v{CBB}')
        a(f'v_lshl_add_u32 v5, v15, 1, v{CBA}')
        a('v_lshrrev_b32 v14, 3, v15')
        wb = P1['take'](100)
        for k in range(4):
            if not CFG['ab'] & 128:
                a(f'buffer_load_ushort v{wb + k}, v14, s[16:19], 0 offen offset:{k * 8}', tag='wd')
        a(f's_mul_i32 s3, s{sW}, 5120')
        a(f'v_add_u32 v{FA}, s3, v13')
        a('v_lshrrev_b32 v14, 2, v13')
        a(f'v_add_u32 v14, s{sM0}, v14')
        mo = [4, 2, 3, 0, 1]
        for _ in range(5):
            yield
            if 5 - len(mo) < CFG['m0s']:
                n = mo.pop(0)
                P1['take'](MP[n])
                load_m_raw(n, 0, 13)
        yield
        if not CFG['ab'] & 32:
            signal(1, 11, 14)
        store = P1['store']
        FS = CFG['fs']
        if FS:
            for n in range(10):
                a(f's_waitcnt lgkmcnt({9 - n})')
                store()
                if n == 6:
                    P1['mhook'](30)
            store = lambda: None
            G.tl_mark(a, 76, 21, 1, RT + 2)
        yield
        st['raw'] = True
        a('s_setprio 3')
        a(f'v_mov_b32 v92, v{T16}')
        a('v_mov_b32 v93, v6')
        a('v_mov_b32 v94, v13')
        a('v_mov_b32 v95, v5')
        P1['t16'](92)
        store()
        store()
        a(f'v_mov_b32 v{LA}, v14')
        a(f'v_lshl_add_u32 v{PA}, v13, 3, s{sM0}')
        a('v_lshrrev_b32 v16, 2, v15')
        a(f'v_mad_u32_u24 v{CBB}, v16, 5, v{CBB}')
        a(f'v_or_b32 v{CBB}, 0xf0000000, v{CBB}')
        a(f'v_or_b32 v{CBA}, 0xf0000000, v{CBA}')
        a(f'v_sub_u32 v{SHL}, 28, v16')
        a('v_lshrrev_b32 v17, 2, v16')
        G.ident(a, ID, 18, 17)
        G.ident(a, NID, 18, 17, neg=True)
        a(f'v_mov_b32 v{KF0}, 0xf0000000')
        a(f'v_mov_b32 v{KAD}, 0x1fff8')
        a(f'v_mov_b32 v{KCM}, 0x07ff0000')
        for n in range(4):
            a(f'v_mov_b32 v{16 + n}, 0')
        a(f'v_add_u32 v20, {G.A_BASE}, v92')
        a(f'v_add_u32 v21, 0x10000, v20')
        def zero():
            for n in range(5):
                store()
                if n == 2 and FS < 2:
                    a('s_setprio 2')
                a(f'ds_write_b128 v20, v[16:19] offset:{n * 16384}' if n < 4 else 'ds_write_b128 v21, v[16:19]')
        if FS < 2:
            zero()
        a('s_setprio 1')
        for n in range(3):
            store()
        if not FS:
            G.tl_mark(a, 76, 21, 1, RT + 2)
        a(f's_setprio {2 if min(ipos) < 0 else 0}')
        for k in range(4):
            a(f's_mov_b32 s{sP[k]}, {0x04000c0c | (k << 16):#x}')
        a(f's_mov_b32 s{sSlow}, 0')
        a(f's_mov_b32 s{sXo}, 0')
        a(f's_mov_b32 s{sPH}, 0')
        a(f's_mov_b64 {PEND}, 0')
        a(f's_mov_b64 {INJ1}, 0')
        G.srd(a, 16, 30, G.MD_OFF, G.MD_SZ)
        for n in range(8):
            a(f'v_mov_b32 v{OLD[0] + n}, 0')
        a('s_waitcnt vmcnt(0)')
        a(f'v_lshl_or_b32 v{WD}, v{wb + 1}, 16, v{wb}')
        a(f'v_lshl_or_b32 v{WD + 1}, v{wb + 3}, 16, v{wb + 2}')
        G.tl_end(a, mid=True)
        if CFG['ab'] & 64:
            a('s_endpgm')
        a('s_barrier')
        signal(2, RT, LA)
        a(f's_mov_b64 {INJ}, 0')
        for _ in range(min(CFG['m0e'], len(mo))):
            load_m_raw(mo.pop(0), 0, 94)
        if FS == 2:
            zero()
        a(f's_cmp_eq_u32 s{sE}, 0')
        a('s_cbranch_scc1 L2_e3')
        a('v_lshlrev_b32 v16, 3, v94')
        a('v_and_b32 v16, 0x80, v16')
        a.label('L2_e4')
        a(f'buffer_load_dword v{RT}, v16, s[68:71], 0 offen sc1')
        a('s_waitcnt vmcnt(0)')
        a(f'v_cmp_gt_u32 vcc, 0x80, v{RT}')
        a('s_cbranch_vccnz L2_e4')
        a.label('L2_e3')
        poll(1, 'L2_p1')
        a(f'v_cmp_gt_u32 vcc, 2, v{RT}')
        a(f's_and_b32 s{sE}, vcc_lo, 0xffff')
        for k in (0, 2, 1, 3):
            a(f'buffer_load_dwordx4 {vr(DA + 4 * k, 4)}, v95, s[12:15], s{sTab} offen offset:{16 * k}', tag='D')
        a(f'buffer_load_dwordx4 {vr(DB, 4)}, v93, s[12:15], s{sTab} offen', tag='D')
        while mo:
            load_m_raw(mo.pop(0), 0, 94)
        G.tl_mark(a, 76, 22, 1, RT)
        x_pre(0)
        x_list(0, EN, 0)
        x_pre(1)
        a.wait_lg('L')
        for g in range(4):
            a(f'v_mov_b32 v{EC[g]}, v{EN[g]}')
        x_list(1, EN, 1)
        for n in (4, 2, 3, 0, 1):
            fill(n)
        G.tl_mark(a, 76, 23, 1, RT)
        if CFG['r0pre']:
            a(f's_cmp_eq_u32 s{sE}, 0')
            a('s_cbranch_scc1 L2_e2')
        assert CFG['r0pre']
        a(f's_mov_b32 exec_lo, s{sE}')
        a('s_mov_b32 exec_hi, 0')
        a(f'buffer_load_dword v{RT}, v{PA}, s[60:63], 0 offen sc1')
        a('s_mov_b64 exec, -1')
        a('s_waitcnt vmcnt(0)')
        a(f'v_cmp_gt_u32 vcc, 2, v{RT}')
        a(f's_and_b32 s{sE}, vcc_lo, s{sE}')
        a('s_cbranch_scc0 L2_e2')
        for n in (4, 2, 3, 0, 1):
            load_m_raw(n, 1, 94)
        poll(2, 'L2_p2')
        a.label('L2_e2')
        G.tl_start(a, mid=True)
        load_own(0)
        for g in range(1, 4):
            if ipos[g - 1] < 0:
                a(f's_setprio {max(0, 2 - g)}')
                load_own(g)
        if CFG['r0pre']:
            a('s_waitcnt lgkmcnt(0)')
            a('s_barrier')
            G.tl_mark(a, 76, 24, 1, RT + 2)
    else:
        if CFG['stamp']:
            for i in range(8):
                a(f's_mov_b32 s{60 + i}, 0')
            a('s_mov_b32 s73, 0')
            stamp(7)
            a('s_mov_b32 s67, 0')

        for n in range(8):
            a(f'v_mov_b32 v{OLD[0] + n}, 0')
        a(f'v_add_u32 v24, {G.A_BASE}, v24')
        for n in range(4):
            a(f'ds_write_b128 v24, {vr(OLD[0], 4)} offset:{n * 16384}')
        a(f'v_add_u32 v{AI}, 0x10000, v24')
        a(f'ds_write_b128 v{AI}, {vr(OLD[0], 4)}')
        G.tl_mark(a, 76, 21, 1, RT)
        a.wait_vm('D')
        G.tl_mark(a, 76, 22, 1, RT)
        if CFG['dq']:
            Z = 26
            for src, dst, bit, qp, ev in ((DA, Z, 1, '[1,0,3,2]', 0x55555555), (Z, DA, 2, '[2,3,0,1]', 0x33333333)):
                for par in range(2):
                    m = ev if par == 0 else ev ^ 0xffffffff
                    a(f's_mov_b32 vcc_lo, {m:#x}')
                    a(f's_mov_b32 vcc_hi, {m:#x}')
                    n = 0
                    for k in range(4):
                        if bool(k & bit) != bool(par):
                            continue
                        for r in range(4):
                            a(f'v_cndmask_b32_dpp v{dst + 4 * k + r}, v{src + 4 * (k ^ bit) + r}, v{src + 4 * k + r}, vcc quad_perm:{qp} row_mask:0xf bank_mask:0xf')
                            n += 1
                            if CFG['dq'] == 2 and n % 2 == 0:
                                a(f'v_mov_b32 v{RT}, 0')
                                a(f'v_mov_b32 v{RT + 1}, 0')
        x_pre(0)
        x_list(0, EN, 0)
        x_pre(1)
        a.wait_lg('L')
        G.tl_mark(a, 76, 23, 1, RT)
        for g in range(4):
            a(f'v_mov_b32 v{EC[g]}, v{EN[g]}')
        if CFG['pprio'] < 2:
            load_own(0)
        for g in range(1, 4):
            fill((4, 2, 3)[g - 1])
            if ipos[g - 1] < 0 or CFG['ab_norec']:
                load_own(g)
        x_list(1, EN, 1)
        fill(0)
        fill(1)
        if CFG['pprio'] == 2:
            load_own(0)
        a('s_waitcnt lgkmcnt(0)')
        G.tl_mark(a, 76, 24, 1, RT)
        if CFG['ab_norec']:
            a('s_waitcnt vmcnt(0)')
        stamp(0)
    st['inloop'] = True
    prio1 = [int(x) for x in CFG['pr'].split()]
    sites = []
    FW, FM, FD, FL, FG = 48, [108, 112], [116, 117], [118, 119], [120, 121]

    def fin_preload():
        a(f's_lshl_b32 s3, s{sW}, 12')
        a(f'v_subrev_u32 v122, s3, v{FA}')
        a(f's_mul_i32 s3, s{sQ}, 20000')
        a(f'v_add_u32 v{FL[0]}, s3, v122')
        a(f'v_add_u32 v{FL[1]}, 0x4000, v{FL[0]}')
        a(f's_lshl_b32 s3, s{sOB}, 7')
        for r in range(2):
            a(f'v_lshrrev_b32 v123, 7, v{FL[r]}')
            a(f'v_and_b32 v{FG[r]}, 0x70, v{FL[r]}')
            a(f'v_lshl_add_u32 v{FG[r]}, v123, 13, v{FG[r]}')
            a(f'v_add_u32 v{FG[r]}, s3, v{FG[r]}')
        a(f'v_cmp_le_u32 vcc, {20000 - 16384}, v122')
        a('s_mov_b64 exec, vcc')
        a(f'v_mov_b32 v{FL[1]}, 2.0')
        a(f'v_mov_b32 v{FG[1]}, 2.0')
        a('s_mov_b64 exec, -1')
        a('v_and_b32 v123, 0x30, v122')
        a('v_lshlrev_b32 v123, 2, v123')
        a(f'buffer_load_dwordx4 {vr(FW, 4)}, v123, s[24:27], 0 offen', tag='fin')
        a(f'buffer_load_dwordx4 {vr(FW + 4, 4)}, v123, s[24:27], 0 offen offset:16', tag='fin')
        a(f'buffer_load_dwordx2 {vr(FW + 8, 2)}, v123, s[24:27], 0 offen offset:32', tag='fin')
        G.srd(a, 12, 4, 0, G.E * 2)
        G.srd(a, 16, 28, 0, G.E * 8)
        for r in range(2):
            a(f'v_lshrrev_b32 v123, 2, v{FG[r]}')
            a(f'buffer_load_dword v{FD[r]}, v123, s[12:15], 0 offen', tag='fin')
            a(f'buffer_load_dwordx4 {vr(FM[r], 4)}, v{FG[r]}, s[16:19], 0 offen', tag='fin')

    def phase(jj, kind):
        first, more1, more2 = kind == 'first', kind != 'last', kind in ('first', 'second', 'mid')
        second = kind == 'second'
        ph['par'] = (jj * NB) & 1
        st['last'] = kind == 'last'
        a.c(f'==== phase jj={jj} {kind}')
        site = len(sites)
        sites.append(site)

        def slow_site():
            stamp(5)
            G.tl_mark(a, 76, f's{sPH}', 1, RT)
            a(f's_bitcmp1_b32 s{sSlow}, s{sPH}')
            a('s_cbranch_scc1 L2_slow')
            a.label(f'L2_ret{site}')
        if first or not SB:
            if not (first and P1) and (first or not CFG['ab'] & 1):
                a('s_barrier')
            slow_site()
        hs = [None]
        st['m0'] = None

        def dhook():
            if hs[0] is None:
                return
            if CFG['sprio']:
                a(f's_setprio {3 - hs[0]}')
            for n in (4, 2, 3, 0, 1):
                if dpos[n] == hs[0]:
                    fill(n)
                if mpos[n] < 0 and more2 and max(dpos[n], -1 - mpos[n]) == hs[0]:
                    load_m(n)
            hs[0] += 1

        def rhook(pos):
            if FOLD:
                if pos == 7:
                    ovf_load(XN[jj & 1], X[0] if first else MP[1])
                if pos == (7 if first else mpos[1]):
                    ovf_run(XN[jj & 1], X[0] if first else MP[1])
            if first and not CFG['ab_norec']:
                if pos == 7 and CFG['pprio'] == 3:
                    load_own(0)
                for g in range(1, 4):
                    if ipos[g - 1] == pos:
                        load_own(g)
            elif second:
                for g in range(1, 3):
                    if fpos[g] == 9 and ipos2[g - 1] == pos:
                        load_own(g)
                if ipos2[2] == pos:
                    load_rec(3)
            elif rpos[3] in (pos, pos + 8) and rpos[3] < 10:
                load_rec(3)
            if not more1:
                if pos == CFG['finp'] and CFG['fuse']:
                    fin_preload()
                return
            for n in (4, 2, 3, 0, 1):
                if (fmpos if first else mpos)[n] == pos and not (first and P1):
                    load_m(n)
                elif first and P1 and fmpos[n] == pos:
                    uid[0] += 1
                    a(f'v_and_b32 v{AI}, 0x3f0, v{FA}')
                    a('s_cmp_lg_u32 s56, 0')
                    a(f's_cbranch_scc1 L2_m{uid[0]}')
                    vm, nvm = list(a.vm), a.nvm
                    load_m_raw(n, 1, AI)
                    a.vm, a.nvm = vm, nvm
                    st[('rawn', n)] = a.nvm
                    a.label(f'L2_m{uid[0]}')
            if pos == b1_step - 1:
                next_m(jj + 1)
            for g in range(3):
                if (fpos if first else fpos2 if second else rpos)[g] == pos:
                    load_rec(g)
                if first and fpos[g] == 9 and pos == b1_step:
                    a(f'v_mov_b32 v{EC[g]}, v{EN[g]}')

        for i, b in enumerate(order if SB else []):
            if i == 0 or prio1[i] != prio1[i - 1]:
                a(f's_setprio {prio1[i]}')
            if b >= 0:
                step_a(b)
            if b == CFG['xpre'] and more2:
                x_pre((jj + 2) & 3)
            if b >= 0 or first:
                rhook(b & 7)
            if first and b < 0:
                gather(0, -1)
                dec_ao(0)
                dec_c1(0)
            elif b < 0:
                step_b(b, mid=lambda: sb_look(0), nogather=True)
                sb_wait(0)
                slow_site()
                gather(0, -1, RT, RT + 1, True)
                st['ai'] = RT
                rhook(7)
                st['ai'] = None
            elif b == b1_step - 1 and more1:
                step_b(b, mid=lambda: sb_arrive(1))
            elif b == b1_step and more1:
                step_b(b, mid=lambda: sb_look(1))
            else:
                step_b(b, mid=lambda: None)
            if more1 and not first:
                for g in range(3 if second else 0, 4):
                    if rpos[g] == 10 + b and b < b1_step:
                        load_rec(g, RT)
            if b == b1_step and more1:
                if SB == 2:
                    step_a(LB)
                sb_wait(1)
                hs[0] = 0
                dhook()
                if more2:
                    x_list((jj + 2) & 3, EN, 2)
                else:
                    a(f'v_mov_b32 v{ES}, v{EN[3]}')
                for _ in range(3):
                    dhook()
                sb_arrive(0)
                a(f's_add_u32 s{sPH}, s{sPH}, 1')
                if rpos[3] == 10 + b and not first:
                    a.wait_lg('L')
                    load_rec(3, RT)
        if SB:
            if SB == 1 or not more1:
                step_a(LB)
            return
        for i, b in enumerate(order):
            if b == b1_step and more1:
                a.wait_lg(('m', LB))
                stamp(1)
                if not CFG['ab'] & 2:
                    a('s_barrier')
                stamp(2)
                hs[0] = 0
                dhook()
            if (i == 0 or prio1[i] != prio1[i - 1] or CFG['wprio']) and not (CFG['sprio'] and b == b1_step):
                a(f's_setprio {prio1[i]}')
            if b >= 0:
                step_a(b)
            if FOLD:
                assert CFG['xpre'] >= mpos[1] >= 0
                rhook(b & 7)
            if b == CFG['xpre'] and more2 and not CFG['ab'] & 4:
                x_pre((jj + 2) & 3)
            if not FOLD:
                rhook(b & 7)
            if b == b1_step and more2 and not CFG['ab'] & 4:
                x_list((jj + 2) & 3, EN, 2)
            elif b == b1_step and more1:
                a(f'v_mov_b32 v{ES}, v{EN[3]}')
            dhook()
            if first and b < 0:
                gather(0, -1)
                dec_ao(0)
                dec_c1(0)
            else:
                step_b(b, mid=dhook)
            if more1 and not first:
                for g in range(3 if second else 0, 4):
                    if rpos[g] == 10 + b:
                        load_rec(g, RT)
            dhook()
        step_a(LB)
        if more1:
            assert hs[0] > max(dpos)
            a(f's_add_u32 s{sPH}, s{sPH}, 1')
            a.wait_lg('F')
            stamp(4)

    phase(0, 'first')
    st['raw'] = False
    if P1:
        G.srd(a, 24, 30, G.WT_OFF, G.WT_SZ)
    phase(1, 'second')
    a.vm = merge_vm(a.vm, G.MEMO.get('back', []))
    head_vm, head_lg = list(a.vm), list(a.lg)
    a.label('L2_loop')
    for jj in (2, 3, 0, 1):
        phase(jj, 'mid')
    assert 'back' not in G.MEMO or merge_vm(head_vm, a.vm) == head_vm, (a.vm, head_vm)
    G.MEMO['back'] = list(a.vm)
    assert a.lg == head_lg
    a(f's_cmp_lg_u32 s{sPH}, 14')
    a('s_cbranch_scc1 L2_loop')
    phase(2, 'penult')
    phase(3, 'last')
    step_b(LB, final=True)
    a.wait_lg('x')
    check(LB, 1)
    check(LB, 0)
    if CFG['drain']:
        a(f's_mov_b64 exec, {PEND}')
        a(f'ds_read_b64 {vr(OLD[0], 2)}, v{PA} offset:{G.A_OFFS}')
        a(f'{MF} {vr(X[0], 4)}, {vr(NID, 2)}, {vr(P, 2)}, 0')
        a(f'{MF} {vr(X[0], 4)}, {vr(ID, 2)}, {vr(P + 2, 2)}, {vr(X[0], 4)}')
        a('s_waitcnt lgkmcnt(0)')
        a(f'{MF} {vr(X[0], 4)}, {vr(ID, 2)}, {vr(OLD[0], 2)}, {vr(X[0], 4)}')
        a(f'v_mov_b64 {vr(P, 2)}, {vr(OLD[0], 2)}')
        a(f'v_cvt_pk_bf16_f32 v{X[0]}, v{X[0]}, v{X[0] + 1}')
        a(f'v_cvt_pk_bf16_f32 v{X[0] + 1}, v{X[0] + 2}, v{X[0] + 3}')
        a(f'ds_wrxchg_rtn_b64 {vr(P + 2, 2)}, v{PA}, {vr(X[0], 2)} offset:{G.A_OFFS}')
        a('s_waitcnt lgkmcnt(0)')
        a(f'v_cmp_ne_u64 {PEND}, {vr(P + 2, 2)}, {vr(P, 2)}')
    for ln in flush_pend(PEND):
        a(ln)
    a('s_mov_b64 exec, -1')
    if True:
        a('s_load_dwordx2 s[4:5], s[0:1], 88')
        a('v_add_u32 v123, 0x4000, v122')
        for n in range(4):
            a(f's_lshl_b32 s{50 + 2 * n}, s{96 + n}, 16')
            a(f's_and_b32 s{51 + 2 * n}, s{96 + n}, 0xffff0000')
        a('s_waitcnt vmcnt(0) lgkmcnt(0)')
        a('s_barrier')
        G.tl_mark(a, 76, 16, 1, 106)
        GH = [80, 16]
        PL = [32, 60]
        WX = CFG['wavex']
        G.srd(a, 8, 30, G.FLAG_OFF, G.FLAG_SZ)
        G.srd(a, 12, 4, 0, G.E * 8)
        G.srd(a, 20, 30, G.PART_OFF, G.PART_SZ)
        a(f's_lshl2_add_u32 s4, s{sOB}, s{sQ}')
        a('s_mul_i32 s4, s4, 81920')
        for k in range(1, 4):
            a(f's_add_u32 s3, s{sQ}, {k}')
            a('s_and_b32 s3, s3, 3')
            a(f's_mul_i32 s{35 + k}, s3, 20000')
            a(f's_add_u32 s{35 + k}, s{35 + k}, {G.A_BASE}')
            a(f's_mul_i32 s{39 + k}, s3, 20480')
            a(f's_add_u32 s{39 + k}, s{39 + k}, s4')
            a(f's_lshl2_add_u32 s3, s{sOB}, s3')
            a('s_mul_i32 s3, s3, 81920')
            a(f's_mul_i32 s{43 + k}, s{sQ}, 20480')
            a(f's_add_u32 s{43 + k}, s{43 + k}, s3')
        SB_ = [[16, 20, 24], [36, 40, 44]]
        for r in range(2):
            if r:
                a(f's_cmp_ge_u32 s{sW}, 4')
                a('s_cbranch_scc1 L2_g0')
            for k in range(1, 4):
                a(f'v_add_u32 v104, s{35 + k}, v{122 + r}')
                a(f'ds_read_b128 {vr(SB_[r][k - 1], 4)}, v104')
            for k in range(1, 4):
                a(f's_waitcnt lgkmcnt({3 - k})')
                a(f'buffer_store_dwordx4 {vr(SB_[r][k - 1], 4)}, v{122 + r}, s[20:23], s{39 + k} offen sc1')
        a.label('L2_g0')
        if WX != 2:
            G.fin_gates(a, FD[0], 50, FW, GH[0], 60)
        a(f's_lshl_b32 s3, s{sOB}, 9')
        if WX:
            a(f's_lshl2_add_u32 s3, s{sW}, s3')
        a(f's_lshl_b32 s4, s{sQ}, 7')
        a('s_add_u32 s4, s4, s3')
        a('v_mov_b32 v104, 1')
        a('v_and_b32 v105, 0x3f0, v122')
        a('v_lshlrev_b32 v105, 3, v105')
        if WX != 2:
            for r in range(2):
                a(f'v_add_u32 v106, {G.A_BASE}, v{FL[r]}')
                a(f'ds_read_b128 {vr(PL[r], 4)}, v106')
        a('s_waitcnt vmcnt(0)')
        if not WX:
            a('s_barrier')
        G.tl_mark(a, 76, 18, 1, 106)
        if not WX:
            a(f's_cmp_lg_u32 s{sW}, 0')
            a('s_cbranch_scc1 L2_f2')
        a('s_mov_b64 exec, 1')
        a('buffer_store_dword v104, off, s[8:11], s4 sc1')
        if WX == 2:
            a('s_mov_b64 exec, -1')
            G.fin_gates(a, FD[0], 50, FW, GH[0], 60)
            for r in range(2):
                a(f'v_add_u32 v106, {G.A_BASE}, v{FL[r]}')
                a(f'ds_read_b128 {vr(PL[r], 4)}, v106')
        a('s_mov_b64 exec, 15')
        a(f's_bitset0_b64 exec, s{sQ}')
        a.label('L2_f3')
        a('buffer_load_dword v104, v105, s[8:11], s3 offen sc1')
        a('s_waitcnt vmcnt(0)')
        a('v_cmp_ne_u32 vcc, 1, v104')
        a('s_cbranch_vccnz L2_f3s')
        ool.append(['L2_f3s:'] + ([f's_sleep {CFG["slp3"]}'] if CFG['slp3'] else []) + ['s_branch L2_f3'])
        a('s_mov_b64 exec, -1')
        if not WX:
            a.label('L2_f2')
            a('s_barrier')
        G.tl_mark(a, 76, 19, 1, 106)
        for r in range(2):
            if r:
                a(f's_cmp_ge_u32 s{sW}, 4')
                a('s_cbranch_scc1 L2_f5')
            for k in range(1, 4):
                a(f'buffer_load_dwordx4 {vr(PL[r] + 4 * k, 4)}, v{122 + r}, s[20:23], s{43 + k} offen sc1')
        if CFG['g1late']:
            G.fin_gates(a, FD[1], 50, FW, GH[1], (96, 0, [104, 76]))
        a.label('L2_f5')
        a('s_waitcnt vmcnt(0) lgkmcnt(0)')
        G.tl_mark(a, 76, 20, 1, 106)
        for r in range(2):
            if r:
                a(f's_cmp_ge_u32 s{sW}, 4')
                a('s_cbranch_scc1 L2_f6')
            G.fin_out(a, PL[r], GH[r], FW, ID, FM[r], 96)
            a(f'buffer_store_dwordx4 {vr(PL[r] + 4, 4)}, v{FG[r]}, s[12:15], 0 offen{CFG["out_pol"]}')
        a.label('L2_f6')
    G.tl_end(a)
    if CFG['stamp']:
        a('s_waitcnt vmcnt(0)')
        stamp(6)
        a('s_load_dwordx2 s[74:75], s[0:1], 96')
        a('s_waitcnt lgkmcnt(0)')
        G.srd(a, 76, 74, 0, 256)
        a(f's_cmp_lg_u32 s2, {CFG["stamp"]}')
        a('s_cbranch_scc1 L2_end')
        a(f's_and_b32 s3, s{sW}, 3')
        a('s_cmp_lg_u32 s3, 0')
        a('s_cbranch_scc1 L2_end')
        a(f's_lshl_b32 s3, s{sW}, 3')
        a('v_mov_b32 v20, 0')
        for i in range(8):
            a(f'v_mov_b32 v21, s{60 + i}')
            a(f'buffer_store_dword v21, v20, s[76:79], s3 offen offset:{4 * i}')
    a.label('L2_end')
    a('s_endpgm')

    a.label('L2_slow')
    a.reset()
    sC, sS, sE, sO = 50, 51, 52, 53
    pp, t_, wa, ba, w_, b_, ao, c_, ai_ = 102, 103, 104, 105, 106, 107, 96, 97, 98
    m_ = MR[0][0]
    a(f's_lshr_b32 s{sSP}, s{sPH}, 2')
    a(f's_lshl_b32 s{sC}, s{sW}, 4')
    a(f's_and_b32 s3, s{sPH}, 3')
    a(f's_lshl_b32 s{sO}, s3, 3')
    a(f's_add_u32 s{sO}, s{sO}, s{sTab}')
    a(f's_and_b32 s3, s{sSP}, 2')
    a('s_lshl_b32 s3, s3, 1')
    a(f's_add_u32 s{sO}, s{sO}, s3')
    a(f's_and_b32 s54, s{sSP}, 1')
    a('s_lshl_b32 s54, s54, 4')
    a.label('L2_sl_seg')
    a(f's_mul_i32 s55, s{sC}, {G.BLK}')
    a(f's_and_b32 s3, s{sC}, 3')
    a('s_lshl_b32 s3, s3, 5')
    a('s_add_u32 s3, s3, s55')
    a(f's_add_u32 s3, s3, s{sO}')
    a(f'buffer_load_dword v{wa}, off, s[12:15], s3 sc1')
    a(f'buffer_load_dword v{ba}, off, s[12:15], s3 offset:32 sc1')
    a('s_waitcnt vmcnt(0)')
    a(f'v_readfirstlane_b32 s{sS}, v{wa}')
    a(f'v_readfirstlane_b32 s{sE}, v{ba}')
    a(f's_lshr_b32 s{sS}, s{sS}, s54')
    a(f's_and_b32 s{sS}, s{sS}, 0xffff')
    a(f's_lshr_b32 s{sE}, s{sE}, s54')
    a(f's_and_b32 s{sE}, s{sE}, 0xffff')
    a.label('L2_sl_rec')
    a(f's_cmp_ge_u32 s{sS}, s{sE}')
    a('s_cbranch_scc1 L2_sl_next')
    a(f'v_mbcnt_lo_u32_b32 v{pp}, -1, 0')
    a(f'v_mbcnt_hi_u32_b32 v{pp}, -1, v{pp}')
    a(f'v_add_u32 v{pp}, s{sS}, v{pp}')
    a(f'v_and_b32 v{t_}, -4, v{pp}')
    a(f'v_lshl_add_u32 v{wa}, v{pp}, 2, v{t_}')
    a(f'v_lshl_add_u32 v{ba}, v{t_}, 2, v{pp}')
    a(f'v_cmp_gt_u32 vcc, s{sE}, v{pp}')
    a('s_mov_b64 exec, vcc')
    a(f'buffer_load_dword v{w_}, v{wa}, s[8:11], s55 offen')
    a(f'buffer_load_ubyte v{b_}, v{ba}, s[8:11], s55 offen offset:16')
    a('s_waitcnt vmcnt(0)')
    a(f'v_lshrrev_b32 v{ai_}, 14, v{w_}')
    a(f'v_and_b32 v{ai_}, v{KAD}, v{ai_}')
    a(f'ds_read_b64 {vr(m_, 2)}, v{ai_}')
    a(f'v_perm_b32 v{c_}, v{w_}, v{b_}, s{sP[0]}')
    a(f'v_and_b32 v{ao}, v{KAD}, v{w_}')
    a(f'v_bitop3_b32 v{t_}, v{w_}, 0.5, -0.5 bitop3:{ORAND:#x}')
    a(f'v_bitop3_b32 v{c_}, v{KCM}, v{c_}, v{t_} bitop3:{SEL:#x}')
    a('s_waitcnt lgkmcnt(0)')
    a(f'{MF} {vr(RT, 4)}, {vr(WD, 2)}, {vr(m_, 2)}, 0')
    for n in range(4):
        a(f'v_mul_f32 v{RT + n}, v{c_}, v{RT + n}')
    a(f'v_cvt_pk_bf16_f32 v{RT}, v{RT}, v{RT + 1}')
    a(f'v_cvt_pk_bf16_f32 v{RT + 1}, v{RT + 2}, v{RT + 3}')
    a(f'ds_pk_add_bf16 v{ao}, v{RT} offset:{G.A_OFFS}')
    a(f'ds_pk_add_bf16 v{ao}, v{RT + 1} offset:{G.A_OFFS + 4}')
    a('s_mov_b64 exec, -1')
    a(f's_add_u32 s{sS}, s{sS}, 64')
    a('s_branch L2_sl_rec')
    a.label('L2_sl_next')
    a(f's_add_u32 s{sC}, s{sC}, 1')
    a(f's_and_b32 s3, s{sC}, 15')
    a('s_cbranch_scc1 L2_sl_seg')
    a(f's_add_u32 s{sC}, s{sC}, 240')
    a(f's_cmp_lt_u32 s{sC}, {G.NCH}')
    a('s_cbranch_scc1 L2_sl_seg')
    a('s_waitcnt lgkmcnt(0)')
    for ph, k in ((0, 0), (1, 1), (14, 6), (15, 7)):
        a(f's_cmp_eq_u32 s{sPH}, {ph}')
        a(f's_cbranch_scc1 L2_ret{k}')
    a(f's_and_b32 s3, s{sPH}, 3')
    for ph, k in ((2, 2), (3, 3), (0, 4)):
        a(f's_cmp_eq_u32 s3, {ph}')
        a(f's_cbranch_scc1 L2_ret{k}')
    a('s_branch L2_ret5')
    for bl in ool:
        for ln in bl:
            if ln.endswith(':'):
                a.label(ln[:-1])
                a.reset()
            else:
                a(ln)
    yield name
```

```python
import os
import sys
from asmlib import Asm, vr, sr

NAME = 'gather_scatter__molecular_angular_gemnet__graph'
CFG = dict(
    ld_pol=' nt',
    st_pol=' sc1',
    pad=9216, one=1, p1_first=8, mcn=128, tlbw=0, mc0=21, mc1=26, tabx=1, ab_p1=0, il=1, ilx=1, ilw=2, sa='20010010', sb='1000100100', la='00100100', lb='1000100100', scd=8, p1prio=1, warm=2, dyn=2, cut='72 216 240', slp1=32, slp2=8, inv=0, m0s=0, m0e=5, fs=2, r0pre=1, tkpos=5, tkwave=15, wgx=0,
    ab=0, ab_nofix=0, ab_norec=0, ab_nom=0, stamp=0, tl=0, tlw=0, diag=0, dup2=0, dup1=0, wsoff=16384, stp=1, nulls=0, dup3=0, cnt=0,
    x3=2, rpos='10 12 4 15', dpos='3 3 0 0 0', mpos='0 2 -1 -1 -1', ipos='-1 1 0', fpos='3 4 5', fmpos='3 3 1 2 1', ipos2='7 0 7', fpos2='1 3 5', pprio=0, dq=0, nbr=1, m_pol=' sc1', mpf=0, injm='', l1k=0, osep=1, cpos=1, injl=9, finp=3, drain=1, wavex=0, slp3=0, gearly=3, wprio=0, sbar=0, fold=3, chk=1, zskip=0, cmap=1, gord='0 1 2 3', sprio=1, xpre=2, pkmul=1, mov64=1, injs=3, injearly=2, pr='3 3 2 1 1 0 0 0', part_pol=' sc1', fuse=1, out_pol=' nt', mimic=1, g1late=1,
)
for arg in sys.argv[2:]:
    k, v = arg.split('=', 1)
    CFG[k] = type(CFG[k])(v.replace('_', ' ')) if isinstance(CFG.get(k), str) else int(v)

E = 640000
T = 40960000
CH = 32768
NCH = 1280
REC_CH = CH * 5
TAB_CH = 16 * 65 * 8
BLK = REC_CH + CFG['pad']
REC_OFF = CFG['wsoff']
REC_SZ = NCH * BLK
TAB_OFF = REC_OFF + REC_CH
TAB_SZ = NCH * BLK - REC_CH
MD_OFF = REC_OFF + REC_SZ
MD_SZ = 64 * 81920
PART_OFF = MD_OFF + MD_SZ + 4096
PART_SZ = 256 * 81920
WT_OFF = PART_OFF + PART_SZ
WT_SZ = 256
FLAG_OFF = WT_OFF + 4096
FLAG_SZ = 256 * 128
PROG_OFF = FLAG_OFF + FLAG_SZ
KBIAS = 2064
A_BASE = 81920
A_OFFS = A_BASE - KBIAS * 8

MEMO = {}
SEL = 0xCA
ANDOR = 0xEA
XANDN = 0x9A


def srd(a, d, base, off, size):
    if off:
        a(f's_add_u32 s{d}, s{base}, {off:#x}')
        a(f's_addc_u32 s{d+1}, s{base+1}, 0')
    else:
        a(f's_mov_b32 s{d}, s{base}')
        a(f's_mov_b32 s{d+1}, s{base+1}')
    a(f's_mov_b32 s{d+2}, {size:#x}')
    a(f's_mov_b32 s{d+3}, 0x20000')


def kernel_head(a, name):
    a.raw('.text')
    a.raw(f'.globl {name}')
    a.raw('.p2align 8')
    a.raw(f'.type {name},@function')
    a.label(name)
    a.reset()


def kernel_desc(a, name, vgpr, sgpr=96):
    a.raw('.p2align 6')
    a.raw(f'.amdhsa_kernel {name}')
    a.raw(f'  .amdhsa_next_free_vgpr {vgpr}')
    a.raw(f'  .amdhsa_next_free_sgpr {sgpr}')
    a.raw(f'  .amdhsa_accum_offset {(vgpr + 3) // 4 * 4}')
    a.raw('  .amdhsa_group_segment_fixed_size 0')
    a.raw('  .amdhsa_kernarg_size 112')
    a.raw('  .amdhsa_user_sgpr_count 2')
    a.raw('  .amdhsa_user_sgpr_kernarg_segment_ptr 1')
    a.raw('  .amdhsa_system_sgpr_workgroup_id_x 1')
    a.raw('  .amdhsa_float_denorm_mode_32 3')
    a.raw('.end_amdhsa_kernel')


TL_OFF = 600000000
tl_idx = [0]


def tl_start(a, mid=False):
    if not CFG['tl']:
        return
    a('s_memrealtime s[90:91]')
    a('s_memtime s[92:93]')
    if not mid:
        a('v_readfirstlane_b32 s94, v0')
    a('s_waitcnt lgkmcnt(0)')


def tl_end(a, mid=False):
    if not CFG['tl']:
        return
    vb, va = (88, 47) if mid else (4, 0)
    vm, nvm = list(a.vm), a.nvm
    if not mid:
        a('s_waitcnt vmcnt(0) lgkmcnt(0)')
    a('s_memrealtime s[86:87]')
    a('s_memtime s[88:89]')
    a('s_load_dwordx2 s[74:75], s[0:1], 104')
    a('s_waitcnt lgkmcnt(0)')
    srd(a, 76, 74, TL_OFF + tl_idx[0] * 0x100000, 0x100000)
    tl_idx[0] += 1
    a('s_mov_b64 exec, 1')
    a('s_lshr_b32 s91, s94, 2')
    a('s_lshl_b32 s95, s2, 8')
    a('s_add_u32 s95, s91, s95')
    a('s_sub_u32 s88, s88, s92')
    a('s_getreg_b32 s89, hwreg(HW_REG_XCC_ID)')
    a('s_and_b32 s89, s89, 15')
    a('s_lshl_b32 s87, s84, 8')
    a('s_or_b32 s89, s89, s87')
    a(f'v_mov_b32 v{va}, s95')
    for i, r in enumerate((90, 86, 88, 89)):
        a(f'v_mov_b32 v{vb + i}, s{r}')
    a(f'buffer_store_dwordx4 v[{vb}:{vb + 3}], v{va}, s[76:79], 0 offen')
    a('s_mov_b64 exec, -1')
    a('s_nop 1')
    a.vm, a.nvm = vm, nvm


def tl_mark(a, srdreg, slot_sgpr_or_int, kidx, vtmp):
    if CFG['tl'] < 2:
        return
    a('s_memrealtime s[86:87]')
    a('s_memtime s[88:89]')
    a('s_load_dwordx2 s[74:75], s[0:1], 104')
    a('s_waitcnt lgkmcnt(0)')
    srd(a, 76, 74, TL_OFF + (4 + kidx) * 0x100000, 0x100000)
    a(f's_cmp_eq_u32 s94, {CFG["tlw"] * 64}')
    a('s_cselect_b64 exec, 1, 0')
    a('s_lshl_b32 s95, s2, 9')
    if isinstance(slot_sgpr_or_int, int):
        a(f's_add_u32 s95, s95, {slot_sgpr_or_int * 8}')
    else:
        a(f's_lshl_b32 s87, {slot_sgpr_or_int}, 3')
        a('s_add_u32 s95, s95, s87')
    a(f'v_mov_b32 v{vtmp}, s86')
    a(f'v_mov_b32 v{vtmp + 1}, s88')
    vm, nvm = list(a.vm), a.nvm
    a(f'buffer_store_dwordx2 v[{vtmp}:{vtmp + 1}], off, s[76:79], s95')
    a.vm, a.nvm = vm, nvm
    a('s_mov_b64 exec, -1')


def wave_scan(a, regs):
    for sh in (1, 2, 4, 8):
        for x in regs:
            a(f'v_add_u32_dpp v{x}, v{x}, v{x} row_shr:{sh} row_mask:0xf bank_mask:0xf bound_ctrl:1')
    for x in regs:
        a(f'v_add_u32_dpp v{x}, v{x}, v{x} row_bcast:15 row_mask:0xa bank_mask:0xf')
    for x in regs:
        a(f'v_add_u32_dpp v{x}, v{x}, v{x} row_bcast:31 row_mask:0xc bank_mask:0xf')


def ident(a, d, tmp, lane, neg=False):
    one = 0xbf80 if neg else 0x3f80
    a(f'v_and_b32 v{tmp}, 3, v{lane}')
    a(f'v_lshlrev_b32 v{tmp}, 4, v{tmp}')
    a(f'v_mov_b32 v{d}, {one:#x}')
    a(f'v_mov_b32 v{d+1}, 0')
    a(f'v_lshlrev_b64 {vr(d, 2)}, v{tmp}, {vr(d, 2)}')


MF = 'v_mfma_f32_4x4x4_16b_bf16'


def fin_gates(a, dist, sc, wt, gh, tmp):
    X, Y, RB, d = (tmp, tmp + 8, [tmp + 12, tmp + 16], gh) if isinstance(tmp, int) else tmp + (gh,)
    for r in range(2):
        if r == 0:
            a(f'v_lshlrev_b32 v{d}, 16, v{dist}')
        else:
            a(f'v_and_b32 v{d}, 0xffff0000, v{dist}')

        def rnd():
            if not CFG['mimic']:
                return
            for n in range(4):
                a(f'v_cvt_pk_bf16_f32 v{Y + n}, v{X + 2 * n}, v{X + 2 * n + 1}')
            for n in range(4):
                a(f'v_lshlrev_b32 v{X + 2 * n}, 16, v{Y + n}')
                a(f'v_and_b32 v{X + 2 * n + 1}, 0xffff0000, v{Y + n}')
        for n in range(8):
            a(f'v_subrev_f32 v{X + n}, s{sc + n}, v{d}')
        rnd()
        for n in range(8):
            a(f'v_mul_f32 v{X + n}, v{X + n}, v{X + n}')
        rnd()
        if CFG['mimic']:
            for n in range(8):
                a(f'v_mul_f32 v{X + n}, 0xc1200000, v{X + n}')
            rnd()
        for n in range(8):
            a(f'v_mul_f32 v{X + n}, {"0x3fb8aa3b" if CFG["mimic"] else "0xc166d4ca"}, v{X + n}')
        for n in range(8):
            a(f'v_exp_f32 v{X + n}, v{X + n}')
        for n in range(4):
            a(f'v_cvt_pk_bf16_f32 v{RB[r] + n}, v{X + 2 * n}, v{X + 2 * n + 1}')
    for k in range(2):
        for r in range(2):
            for w in range(2):
                o = gh + 8 * w + 4 * r
                a(f'{MF} {vr(o, 4)}, {vr(wt + 4 * w + 2 * k, 2)}, {vr(RB[r] + 2 * k, 2)}, {vr(o, 4) if k else 0}')


def fin_out(a, pl, gh, wt, ident_, m, S):
    S = [S, S + 4]
    G_, H_ = [gh, gh + 4], [gh + 8, gh + 12]
    for q in range(4):
        for r in range(2):
            a(f'{MF} {vr(S[r], 4)}, {vr(ident_, 2)}, {vr(pl + 4 * q + 2 * r, 2)}, {vr(S[r], 4) if q else 0}')
    for r in range(2):
        for n in range(4):
            a(f'v_mul_f32 v{S[r] + n}, v{S[r] + n}, v{G_[r] + n}')
        a(f'v_cvt_pk_bf16_f32 v{pl + 2 * r}, v{S[r]}, v{S[r] + 1}')
        a(f'v_cvt_pk_bf16_f32 v{pl + 1 + 2 * r}, v{S[r] + 2}, v{S[r] + 3}')
    for r in range(2):
        a(f'{MF} {vr(G_[r], 4)}, {vr(wt + 8, 2)}, {vr(pl + 2 * r, 2)}, 0')
    for r in range(2):
        for n in range(4):
            a(f'v_mul_f32 v{G_[r] + n}, v{G_[r] + n}, v{H_[r] + n}')
    for r in range(2):
        a(f'{MF} {vr(S[r], 4)}, {vr(ident_, 2)}, {vr(m + 2 * r, 2)}, {vr(G_[r], 4)}')
    for r in range(2):
        a(f'v_cvt_pk_bf16_f32 v{pl + 4 + 2 * r}, v{S[r]}, v{S[r] + 1}')
        a(f'v_cvt_pk_bf16_f32 v{pl + 5 + 2 * r}, v{S[r] + 2}, v{S[r] + 3}')


def gen_p3(a):
    name = 'gs_final_kernel'
    kernel_head(a, name)
    a('s_cmp_ge_u32 s2, 1250')
    a('s_cbranch_scc1 L3_end')
    tl_start(a)
    a('s_load_dwordx2 s[4:5], s[0:1], 0')
    a('s_load_dwordx2 s[6:7], s[0:1], 24')
    a('s_load_dwordx2 s[28:29], s[0:1], 40')
    a('s_load_dwordx2 s[30:31], s[0:1], 88')
    a('s_load_dwordx2 s[32:33], s[0:1], 104')
    a('s_lshl_b32 s3, s2, 8')
    a('v_add_u32 v1, s3, v0')
    a('v_lshlrev_b32 v2, 4, v1')
    a('v_lshlrev_b32 v3, 2, v1')
    a('v_bfe_u32 v4, v1, 3, 6')
    a('s_mov_b32 s3, 80000')
    a('v_mul_lo_u32 v4, v4, s3')
    a('v_lshrrev_b32 v5, 9, v1')
    a('v_lshl_add_u32 v4, v5, 7, v4')
    a('v_and_b32 v5, 7, v1')
    a('v_lshl_add_u32 v4, v5, 4, v4')
    a('v_and_b32 v5, 3, v0')
    a('v_lshlrev_b32 v5, 6, v5')
    a('s_waitcnt lgkmcnt(0)')
    a('s_load_dwordx4 s[36:39], s[28:29], 0')
    srd(a, 8, 4, 0, E * 8)
    srd(a, 12, 6, 0, E * 2)
    srd(a, 16, 30, 0, E * 8)
    srd(a, 20, 32, PART_OFF, PART_SZ)
    srd(a, 24, 32, WT_OFF, WT_SZ)
    a('buffer_load_dword v6, v3, s[12:15], 0 offen', tag='d')
    a('buffer_load_dwordx4 v[8:11], v5, s[24:27], 0 offen', tag='w')
    a('buffer_load_dwordx4 v[12:15], v5, s[24:27], 0 offen offset:16', tag='w')
    a('buffer_load_dwordx2 v[16:17], v5, s[24:27], 0 offen offset:32', tag='w')
    for q in range(4):
        a(f's_mov_b32 s{40+q}, {q * E * 8}')
        a(f'buffer_load_dwordx4 {vr(20 + 4 * q, 4)}, v4, s[20:23], s{40+q} offen', tag='p')
    a('buffer_load_dwordx4 v[36:39], v2, s[8:11], 0 offen', tag='m')
    ident(a, 18, 7, 0)
    a('s_waitcnt lgkmcnt(0)')
    for n in range(4):
        a(f's_lshl_b32 s{44 + 2 * n}, s{36 + n}, 16')
        a(f's_and_b32 s{45 + 2 * n}, s{36 + n}, 0xffff0000')
    a.wait_vm('d')
    RB = [40, 44]
    for r in range(2):
        if r == 0:
            a('v_lshlrev_b32 v7, 16, v6')
        else:
            a('v_and_b32 v7, 0xffff0000, v6')
        X = 48

        def rnd():
            for n in range(4):
                a(f'v_cvt_pk_bf16_f32 v{56 + n}, v{X + 2 * n}, v{X + 2 * n + 1}')
            for n in range(4):
                a(f'v_lshlrev_b32 v{X + 2 * n}, 16, v{56 + n}')
                a(f'v_and_b32 v{X + 2 * n + 1}, 0xffff0000, v{56 + n}')
        for n in range(8):
            a(f'v_subrev_f32 v{X + n}, s{44 + n}, v7')
        rnd()
        for n in range(8):
            a(f'v_mul_f32 v{X + n}, v{X + n}, v{X + n}')
        rnd()
        for n in range(8):
            a(f'v_mul_f32 v{X + n}, 0xc1200000, v{X + n}')
        rnd()
        for n in range(8):
            a(f'v_mul_f32 v{X + n}, 0x3fb8aa3b, v{X + n}')
        for n in range(8):
            a(f'v_exp_f32 v{X + n}, v{X + n}')
        for n in range(4):
            a(f'v_cvt_pk_bf16_f32 v{RB[r] + n}, v{X + 2 * n}, v{X + 2 * n + 1}')
    a.wait_vm('w')
    G = [48, 52]
    H = [56, 60]
    S = [64, 68]
    mf = 'v_mfma_f32_4x4x4_16b_bf16'
    for r in range(2):
        a(f'{mf} {vr(G[r], 4)}, v[8:9], {vr(RB[r], 2)}, 0')
        a(f'{mf} {vr(H[r], 4)}, v[12:13], {vr(RB[r], 2)}, 0')
    for r in range(2):
        a(f'{mf} {vr(G[r], 4)}, v[10:11], {vr(RB[r] + 2, 2)}, {vr(G[r], 4)}')
        a(f'{mf} {vr(H[r], 4)}, v[14:15], {vr(RB[r] + 2, 2)}, {vr(H[r], 4)}')
    a.wait_vm('p')
    for q in range(4):
        for r in range(2):
            a(f'{mf} {vr(S[r], 4)}, v[18:19], {vr(20 + 4 * q + 2 * r, 2)}, {vr(S[r], 4) if q else 0}')
    for r in range(2):
        for n in range(4):
            a(f'v_mul_f32 v{S[r] + n}, v{S[r] + n}, v{G[r] + n}')
        a(f'v_cvt_pk_bf16_f32 v{20 + 2 * r}, v{S[r]}, v{S[r] + 1}')
        a(f'v_cvt_pk_bf16_f32 v{21 + 2 * r}, v{S[r] + 2}, v{S[r] + 3}')
    for r in range(2):
        a(f'{mf} {vr(G[r], 4)}, v[16:17], {vr(20 + 2 * r, 2)}, 0')
    for r in range(2):
        for n in range(4):
            a(f'v_mul_f32 v{G[r] + n}, v{G[r] + n}, v{H[r] + n}')
    a.wait_vm('m')
    for r in range(2):
        a(f'{mf} {vr(S[r], 4)}, v[18:19], {vr(36 + 2 * r, 2)}, {vr(G[r], 4)}')
    for r in range(2):
        a(f'v_cvt_pk_bf16_f32 v{24 + 2 * r}, v{S[r]}, v{S[r] + 1}')
        a(f'v_cvt_pk_bf16_f32 v{25 + 2 * r}, v{S[r] + 2}, v{S[r] + 3}')
    a('buffer_store_dwordx4 v[24:27], v2, s[16:19], 0 offen', tag='st')
    tl_end(a)
    a.label('L3_end')
    a('s_endpgm')
    return name


from p1 import gen_p1
from p2 import gen_p2


def main():
    a = Asm()
    root = os.path.dirname(os.path.dirname(os.path.abspath(__file__))) + '/'
    ref = open(root + NAME + '.s.ref').read().splitlines()
    for ln in ref:
        if ln.startswith('; Override') or not ln.startswith(';'):
            break
        a.raw(ln)
    if CFG['one']:
        a.raw('; Generated by gen/gen.py (hand-written generator).  One persistent launch: sort, accumulate, final.')
        if CFG['one'] == 2:
            a.raw(f'; @launch kernel={NAME}_kernel grid=(256,1,1) block=(1024,1,1) lds=163840')
        else:
            a.raw('; @launch grid=(256,1,1) block=(1024,1,1) lds=163840')
        a.raw('.amdgcn_target "amdgcn-amd-amdhsa--gfx950"')
        gen_p1(Asm(), sys.modules[__name__], gen_p2)
        tl_idx[0] = 0
        k1 = gen_p1(a, sys.modules[__name__], gen_p2)
        a.raw('.section .rodata,"a"')
        kernel_desc(a, k1, 128, 102)
    else:
        a.raw('; Generated by gen/gen.py (hand-written generator).  Launches: sort, accumulate (+ final).')
        a.raw('; @launch kernel=gs_sort_kernel grid=(256,1,1) block=(1024,1,1) lds=163840')
        if CFG['dup1']:
            a.raw('; @launch kernel=gs_sort_kernel grid=(256,1,1) block=(1024,1,1) lds=163840')
        a.raw('; @launch kernel=gs_acc_kernel grid=(256,1,1) block=(1024,1,1) lds=163840')
        if CFG['dup2']:
            a.raw('; @launch kernel=gs_acc_kernel grid=(256,1,1) block=(1024,1,1) lds=163840')
        if not CFG['fuse']:
            a.raw('; @launch kernel=gs_final_kernel grid=(1250,1,1) block=(256,1,1) lds=0')
        for _ in range(CFG['dup3']):
            a.raw('; @launch kernel=gs_final_kernel grid=(1250,1,1) block=(256,1,1) lds=0')
        for _ in range(CFG['nulls']):
            a.raw('; @launch kernel=gs_null_kernel grid=(256,1,1) block=(64,1,1) lds=0')
        a.raw('.amdgcn_target "amdgcn-amd-amdhsa--gfx950"')
        k1 = gen_p1(a, sys.modules[__name__])
        t = tl_idx[0]
        list(gen_p2(Asm(), sys.modules[__name__]))
        tl_idx[0] = t
        k2 = list(gen_p2(a, sys.modules[__name__]))[-1]
        k3 = None if CFG['fuse'] else gen_p3(a)
        if CFG['nulls']:
            kernel_head(a, 'gs_null_kernel')
            a('s_endpgm')
        a.raw('.section .rodata,"a"')
        if CFG['nulls']:
            kernel_desc(a, 'gs_null_kernel', 8, 16)
        kernel_desc(a, k1, 128, 102)
        kernel_desc(a, k2, 128, 102)
        if k3:
            kernel_desc(a, k3, 72, 96 if CFG['tl'] else 64)
    out = sys.argv[1] if len(sys.argv) > 1 else root + NAME + '.s'
    txt = a.text()
    if CFG['ab_p1']:
        o = []
        on = False
        for ln in txt.split('\n'):
            if 'chunk 0: pass A' in ln:
                on = True
            if ln.startswith('L1_fin'):
                on = False
            t = ln.strip()
            if on:
                if t.startswith('ds_') and (CFG['ab_p1'] & 1):
                    continue
                if t.startswith('v_') and (CFG['ab_p1'] & 2) and not t.startswith(('v_add_u32', 'v_and_b32 v11', 'v_mov', 'v_readlane')):
                    continue
                if t.startswith('s_barrier') and (CFG['ab_p1'] & 4):
                    continue
                if t.startswith('buffer_store_dwordx2') and (CFG['ab_p1'] & 8):
                    ln = ln.replace('offen', 'offen').replace('s[24:27]', 's[96:99]')
                if t.startswith('buffer_store_dwordx4') and (CFG['ab_p1'] & 16):
                    ln = ln.replace('s[20:23]', 's[96:99]')
            o.append(ln)
            if 'chunk 0: pass A' in ln:
                o.append('    s_mov_b32 s96, s20\n    s_mov_b32 s97, s21\n    s_mov_b32 s98, 0\n    s_mov_b32 s99, 0x20000')
        txt = '\n'.join(o).replace('next_free_sgpr 96', 'next_free_sgpr 100')
        txt = '\n'.join(l for l in txt.split('\n') if not ('@launch' in l and 'sort' not in l))
    open(out, 'w').write(txt)


if __name__ == '__main__':
    main()
```

```python
from asmlib import vr, sr, merge_vm

MF = 'v_mfma_f32_4x4x4_16b_bf16'


def gen_p2(a, G, P1=None):
    name = 'gs_acc_kernel'
    CFG = G.CFG
    SEL, ANDOR = G.SEL, G.ANDOR
    ORAND = 0xA8
    if not P1:
        G.kernel_head(a, name)
    DS = 1
    NR = DS + 1
    NA = 2
    LA, SHL, CBA, FA, CBB, KAD, KCM, PA = 0, 1, 2, 3, 4, 5, 6, 7
    WD, ID, NID = 8, 10, 12
    C = [14, 15]
    W = [16, 22, 28, 34]
    B = [w + 4 for w in W]
    EC = [w + 5 for w in W]
    FOLD = CFG['fold']
    NB = 7 if FOLD else 8
    LB = NB - 1
    FG_ = FOLD - 1
    if FOLD:
        B[FG_], EC[FG_] = W[FG_] + 2, W[FG_] + 3
    XN = [W[FG_] + 4, W[FG_] + 5]
    bmap = [(g, k) for g in range(4) for k in ((0,) if FOLD and g == FG_ else (0, 2))]
    ODD, sXo = 's[6:7]', 43
    EN = [40, 41, 42, 43]
    ES, KF0, NV, AI = 44, 45, 46, 47
    DA, DB = 48, 64
    OLD = [68, 70]
    OLD2 = [72, 74]
    X = [76, 80]
    P = 84
    RT = 88
    AOR = [[92, 93], [94, 95]]
    xm, xo, xa, xd = 96, 97, 98, 99
    xc, xl, xe, xt = RT, RT + 1, RT + 2, RT + 3
    MR = [[100, 102], [104, 106]]
    MP = [108 + 4 * n for n in range(5)]

    ph = dict(par=0)

    def ring(b):
        return (b + ph['par']) & 1

    def AO(b):
        return AOR[ring(b)]

    def slot(b, h):
        g, k = bmap[b % NB]
        return g, k + h
    sW, sQ, sOB, sSP, sSlow, sBase, sTab, sMD, sN, sPH, sM0 = 32, 33, 34, 35, 36, 37, 39, 40, 41, 42, 38
    sP = [44, 45, 46, 47]
    PEND, TMP, INJ, OVF, INJ1 = 's[80:81]', 's[82:83]', 's[84:85]', 's[58:59]', 's[48:49]'
    rpos = [int(x) for x in CFG['rpos'].split()]
    dpos = [int(x) for x in CFG['dpos'].split()]
    mpos = [int(x) for x in CFG['mpos'].split()]
    L1K = CFG['l1k']
    OP = 0 if L1K else 1
    assert dpos[0] >= 1 and (dpos[1] >= 1 or L1K)
    order = list(range(-1, LB))
    gs = {b: [b + 1] for b in range(-1, LB - 2)}
    gs[LB - 2] = [LB - 1, LB]
    b1_step = LB - 1

    def blk(p):
        return 4 * (p & 3) + (p >> 2)

    def dblk(p):
        return ((blk(p + 1) - blk(p)) * 81920) & 0xffffffff

    def head1():
        a('s_cmp_ge_u32 s2, 256')
        a('s_cbranch_scc1 L2_end')
        G.tl_start(a)
        if CFG['pprio']:
            a('s_setprio 3')
        a('s_load_dwordx2 s[30:31], s[0:1], 104')
        a('s_load_dwordx2 s[28:29], s[0:1], 0')
        a('s_load_dwordx2 s[6:7], s[0:1], 40')
        a('v_lshrrev_b32 v16, 6, v0')
        a('v_and_b32 v17, 63, v0')
        a(f'v_readfirstlane_b32 s{sW}, v16')
        a(f's_bfe_u32 s{sQ}, s2, 0x20001')
        a(f's_and_b32 s{sOB}, s2, 1')
        a(f's_lshl_b32 s{sOB}, s{sOB}, 5')
        a('s_lshr_b32 s4, s2, 3')
        a(f's_add_u32 s{sOB}, s{sOB}, s4')
        a('v_and_b32 v22, 3, v0')
        a('v_mul_u32_u24 v19, 80, v16' if not CFG['cmap'] else 'v_lshlrev_b32 v19, 6, v16')
        if CFG['dq']:
            a('v_lshrrev_b32 v18, 2, v17')
            a('v_lshl_add_u32 v18, v22, 4, v18')
            a('v_add_u32 v18, v18, v19')
        else:
            a('v_lshrrev_b32 v18, 4, v17')
            a('v_and_b32 v19, 15, v17')
            a('v_lshl_add_u32 v18, v18, 8, v19')
            a('v_lshl_add_u32 v18, v16, 4, v18')
        a(f'v_mul_u32_u24 v{CBA}, {G.BLK}, v18')
        a('v_lshrrev_b32 v18, 2, v17')
        if CFG['cmap']:
            a('v_lshl_add_u32 v18, v16, 4, v18')
            a('v_add_u32 v18, 0x400, v18')
        else:
            a('v_add3_u32 v18, v18, v19, 64')
        a(f'v_mul_u32_u24 v{CBB}, {G.BLK}, v18')
        a(f'v_lshl_add_u32 v20, v22, 4, v{CBB}')
        a('v_and_b32 v18, 3, v18')
        a('v_lshl_add_u32 v20, v18, 5, v20')
        a(f'v_lshl_add_u32 v25, v22, 5, v{CBA}')
        a(f's_mul_i32 s{sTab}, s{sQ}, 2080')
        a(f's_lshl_b32 s3, s{sOB}, 5')
        a(f's_add_u32 s{sTab}, s{sTab}, s3')
        a(f's_mul_i32 s{sMD}, s{sQ}, {16 * 81920}')
        a(f's_mul_i32 s3, s{sW}, 5120')
        a(f'v_lshl_add_u32 v{FA}, v17, 4, s3')
        a(f's_lshl_b32 s{sM0}, s{sW}, 11')
        a(f's_mul_i32 s100, s{sW}, 3072')
        a('s_waitcnt lgkmcnt(0)')
        G.srd(a, 12, 30, G.TAB_OFF, G.TAB_SZ)
        for k in (0, 2, 1, 3) if not CFG['dq'] else range(4):
            if CFG['dq']:
                a(f'v_subrev_u32 v25, {(64 - 16 * k) * G.BLK:#x}, v20')
                a(f'buffer_load_dwordx4 {vr(DA + 4 * k, 4)}, v25, s[12:15], s{sTab} offen', tag='D')
            else:
                a(f'buffer_load_dwordx4 {vr(DA + 4 * k, 4)}, v25, s[12:15], s{sTab} offen offset:{16 * k}', tag='D')
        a(f'buffer_load_dwordx4 {vr(DB, 4)}, v20, s[12:15], s{sTab} offen', tag='D')
        G.srd(a, 16, 30, G.MD_OFF, G.MD_SZ)
        G.srd(a, 24, 30, G.WT_OFF, G.WT_SZ)
        a('v_lshlrev_b32 v21, 6, v22')
        a(f'buffer_load_dwordx2 {vr(WD, 2)}, v21, s[24:27], 0 offen offset:40', tag='D')

    st = dict(inloop=False)

    def load_m(n):
        if CFG['ab_nom'] and st['inloop']:
            return
        if n == 4:
            a(f's_add_u32 s3, s{sMD}, 4096')
            a(f'buffer_load_dwordx4 {vr(MP[n], 4)}, v{FA}, s[16:19], s3 offen{CFG["m_pol"]}', tag=('M', n))
        else:
            a(f'buffer_load_dwordx4 {vr(MP[n], 4)}, v{FA}, s[16:19], s{sMD} offen offset:{n * 1024}{CFG["m_pol"]}', tag=('M', n))

    def load_m_raw(n, p, l16):
        a(f's_mul_i32 s3, s{sQ}, {16 * 80000}')
        a(f's_add_u32 s3, s3, s{sM0 if n < 2 else 100}')
        a(f's_add_u32 s3, s3, {blk(p) * 80000 + (0 if n < 2 else 32768)}')
        a(f'buffer_load_dwordx4 {vr(MP[n], 4)}, v{l16}, s[24:27], s3 offen offset:{1024 * (n if n < 2 else n - 2)}', tag=('M', n))

    def fill(n):
        a.wait_vm([('M', n)])
        if ('rawn', n) in st:
            a(f's_waitcnt vmcnt({a.nvm - st.pop(("rawn", n))})')
        if st.get('raw'):
            a(f'v_subrev_u32 v{RT}, s{100 if n < 2 else sM0}, v{FA}')
            a(f'ds_write_b128 v{RT}, {vr(MP[n], 4)} offset:{n * 1024 if n < 2 else 32768 + (n - 2) * 1024}', tag='F')
            return
        m0 = sM0 if n < 2 else 100
        if st.get('m0') != m0:
            a(f's_mov_b32 m0, s{m0}')
            st['m0'] = m0
        for jd in range(4):
            if CFG['ab'] & 8 and st['inloop']:
                continue
            a(f'ds_write_addtid_b32 v{MP[n] + jd} offset:{(n * 1024 if n < 2 else 32768 + (n - 2) * 1024) + 256 * jd}', tag='F')

    def next_m(p):
        a(f's_add_u32 s{sMD}, s{sMD}, {dblk(p):#x}')

    def head2():
        if CFG['pprio']:
            a('s_setprio 2')
        for n in (4, 2, 3, 0, 1):
            load_m(n)
        next_m(0)
        if CFG['pprio']:
            a('s_setprio 1')
        a(f'v_mad_u32_u24 v{CBB}, v22, 20, v{CBB}')
        a(f'v_or_b32 v{CBB}, 0xf0000000, v{CBB}')
        a(f'v_or_b32 v{CBA}, 0xf0000000, v{CBA}')
        a('v_lshlrev_b32 v23, 2, v22')
        a(f'v_sub_u32 v{SHL}, 28, v23')
        G.ident(a, ID, 18, 0)
        G.ident(a, NID, 18, 0, neg=True)
        a('v_lshlrev_b32 v24, 4, v0')
        a(f'v_lshl_add_u32 v{LA}, v17, 2, s{sM0}')
        a(f'v_mov_b32 v{KF0}, 0xf0000000')
        a(f'v_mov_b32 v{KAD}, 0x1fff8')
        a(f'v_mov_b32 v{KCM}, 0x07ff0000')
        for k in range(4):
            a(f's_mov_b32 s{sP[k]}, {0x04000c0c | (k << 16):#x}')
        a(f's_mov_b32 s{sSlow}, 0')
        a(f's_mov_b32 s{sXo}, 0')
        a(f's_mov_b32 s{sPH}, 0')
        a(f's_mov_b64 {PEND}, 0')
        a(f's_mov_b64 {INJ}, 0')
        a(f's_mov_b64 {INJ1}, 0')
        if CFG['fuse']:
            a('s_load_dwordx4 s[96:99], s[6:7], 0')
            a('s_load_dwordx2 s[4:5], s[0:1], 24')
            a('s_waitcnt lgkmcnt(0)')
        G.srd(a, 8, 30, G.REC_OFF, G.REC_SZ)

    if not P1:
        head1()
        head2()
    ool = []
    uid = [0]

    XAND = 0x6A
    sOv = 101

    def x_pre(j):
        uid[0] += 1
        u = uid[0]
        rs, re_ = DA + 2 * j, DA + 8 + 2 * j
        a.wait_vm('D')
        a(f'v_sub_u16 v{xc}, v{re_}, v{rs}')
        a(f'v_and_b32 v{xl}, 3, v{rs}')
        a(f'v_add3_u32 v{xd}, v{xc}, v{xl}, 3')
        a(f'v_and_b32 v{xd}, -4, v{xd}')
        a(f'v_max_u32 v{xd}, 4, v{xd}')
        fill = [f'v_and_b32 v{xo}, 0xfffc, v{rs}',
                f'v_bfm_b32 v{xm}, v{xc}, v{xl}',
                f'v_mad_u32_u24 v{xo}, v{xo}, 5, v{CBA}',
                f'v_cmp_lt_u32 vcc, 16, v{xd}',
                f'v_sub_u32 v{xa}, s{sM0}, v{xd}',
                f'v_lshrrev_b64 {vr(rs, 2)}, 16, {vr(rs, 2)}',
                f'v_lshrrev_b64 {vr(re_, 2)}, 16, {vr(re_, 2)}',
                f's_mov_b32 s{sOv}, 0']
        a(fill.pop(0))
        a(fill.pop(0))
        a(f'v_add_u32_dpp v{xt}, v{xd}, v{xd} row_shr:1 row_mask:0xf bank_mask:0xf bound_ctrl:1')
        for m in ('row_shr:2 row_mask:0xf bank_mask:0xf bound_ctrl:1', 'row_shr:4 row_mask:0xf bank_mask:0xf bound_ctrl:1',
                  'row_shr:8 row_mask:0xf bank_mask:0xf bound_ctrl:1', 'row_bcast:15 row_mask:0xa bank_mask:0xf',
                  'row_bcast:31 row_mask:0xc bank_mask:0xf'):
            for _ in range(2):
                if fill:
                    a(fill.pop(0))
            a(f'v_add_u32_dpp v{xt}, v{xt}, v{xt} {m}')
        a(f'v_add_u32 v{xa}, v{xa}, v{xt}')
        a(f'v_readlane_b32 s{sBase}, v{xt}, 63')
        a(f's_cbranch_vccnz L2_xo{u}')
        a.label(f'L2_xp{u}')
        ool.append([f'L2_xo{u}:',
                    f'v_cmp_lt_u32 vcc, 20, v{xd}',
                    f's_mov_b32 s{sOv}, 1',
                    f's_cbranch_vccz L2_xp{u}',
                    f'v_cmp_lt_u32 vcc, 32, v{xd}',
                    f'v_cmp_lt_u32 {OVF}, 31, v{xc}',
                    f's_mov_b32 s{sOv}, 2',
                    f's_or_b64 vcc, vcc, {OVF}',
                    f's_cbranch_scc0 L2_xp{u}',
                    f's_mov_b32 s{sBase}, 0x10000',
                    f's_branch L2_xp{u}'])

    def x_ent(f, t):
        f(f'v_lshlrev_b32 v{xl}, {28 - 4 * t}, v{xm}')
        if t:
            f(f'v_add_u32 v{xe}, {20 * t}, v{xo}')
        f(f'v_bitop3_b32 v{xe}, v{xl}, v{KF0}, v{xe if t else xo} bitop3:{XAND:#x}')
        f(f'ds_write_b32 v{xa}, v{xe} offset:{4 * t}')

    def x_quad(f, u):
        f(f'v_and_b32 v{xl}, v{KF0}, v{xl}')
        f(f'v_cmp_ne_u32 vcc, 0, v{xl}')
        f(f'v_xor_b32 v{xe}, v{xo}, v{xl}')
        f(f's_add_u32 s3, s{sBase}, s{sM0}')
        f(f'v_mbcnt_lo_u32_b32 v{xa}, vcc_lo, 0')
        f(f'v_mbcnt_hi_u32_b32 v{xa}, vcc_hi, v{xa}')
        f(f's_bcnt1_i32_b64 s{sN}, vcc')
        f(f'v_lshl_add_u32 v{xa}, v{xa}, 2, s3')
        f(f's_lshl2_add_u32 s{sBase}, s{sN}, s{sBase}')
        if L1K:
            f(f's_cmp_gt_u32 s{sBase}, 1020')
            f(f's_cbranch_scc1 L2_xs{u}')
        f('s_mov_b64 exec, vcc')
        f(f'ds_write_b32 v{xa}, v{xe}')
        f('s_mov_b64 exec, -1')

    def x_list(j, E, pbit):
        uid[0] += 1
        u = uid[0]
        a(f'v_mov_b32 v{ES}, v{E[3]}')
        a(f's_cmp_gt_u32 s{sBase}, {992 if L1K else 1024}')
        a(f's_cbranch_scc1 L2_xs{u}')
        a(f's_cmp_lg_u32 s{sOv}, 0')
        a(f's_cbranch_scc1 L2_xa{u}')
        a.label(f'L2_xb{u}')
        bl = [f'L2_xa{u}:', f's_cmp_eq_u32 s{sOv}, 1', f's_cbranch_scc1 L2_xc{u}']
        x_ent(bl.append, 7)
        x_ent(bl.append, 6)
        x_ent(bl.append, 5)
        bl.append(f'L2_xc{u}:')
        x_ent(bl.append, 4)
        bl.append(f's_branch L2_xb{u}')
        ool.append(bl)
        for t in (3, 2, 1, 0):
            x_ent(a, t)
        r = DB + 2 * (j & 1)
        ls, le = j >> 1, 2 + (j >> 1)
        a(f'v_mov_b32_dpp v{xt}, v{r} quad_perm:[{ls},{ls},{ls},{ls}] row_mask:0xf bank_mask:0xf')
        a(f'v_and_b32 v{xl}, 3, v{xt}')
        a(f'v_and_b32 v{xo}, 0xfffc, v{xt}')
        a(f'v_sub_u16_dpp v{xc}, v{r}, v{xt} quad_perm:[{le},{le},{le},{le}] row_mask:0xf bank_mask:0xf')
        a(f'v_mad_u32_u24 v{xo}, v{xo}, 5, v{CBB}')
        a(f'v_add_u32 v{xd}, v{xc}, v{xl}')
        a(f'v_bfm_b32 v{xm}, v{xc}, v{xl}')
        a(f'v_cmp_lt_u32 {OVF}, 16, v{xd}')
        a(f'v_lshlrev_b32 v{xl}, v{SHL}, v{xm}')
        x_quad(a, u)
        a(f's_cmp_lg_u64 {OVF}, 0')
        a(f's_cbranch_scc1 L2_xe{u}')
        a.label(f'L2_xr{u}')
        bl = [f'L2_xe{u}:',
              f'v_cmp_lt_u32 vcc, 32, v{xd}',
              f'v_cmp_lt_u32 {OVF}, 31, v{xc}',
              f'v_lshrrev_b32 v{xl}, 16, v{xm}',
              f'v_add_u32 v{xo}, 80, v{xo}',
              f's_or_b64 vcc, vcc, {OVF}',
              f's_cbranch_scc1 L2_xs{u}',
              f'v_lshlrev_b32 v{xl}, v{SHL}, v{xl}']
        x_quad(bl.append, u)
        bl.append(f's_branch L2_xr{u}')
        ool.append(bl)
        a(f'v_add_u32 v{xa}, s{sBase}, v{LA}')
        a(f'v_mov_b32 v{xe}, -1')
        if CFG['mpf'] and st['inloop']:
            a(f's_add_u32 s3, s{sMD}, s74')
            a(f's_add_u32 s3, s3, {(dblk(j) + dblk(j + 1)) & 0xffffffff:#x}')
            a('s_mov_b64 exec, s[72:73]')
            a(f'v_lshl_add_u32 v{xe}, v{LA}, 5, s3')
            a('s_mov_b64 exec, -1')
        if L1K:
            a(f's_max_u32 s3, s{sBase}, 768')
            a('s_lshr_b32 s3, s3, 2')
            a('s_lshr_b64 exec, -1, s3')
        a(f'ds_write_b32 v{xa}, v{xe}')
        if L1K:
            a('s_mov_b64 exec, -1')
        go = [int(x) for x in CFG['gord'].split()]
        if FOLD:
            go = [0, 1, 2]
            go.insert(FG_, 3)
            a(f'v_add_u32 v{xa}, s{sM0}, v{LA}')
            pr = 0 if FG_ >= 2 else 2
            a(f'ds_read2st64_b32 {vr(E[pr], 2)}, v{LA} offset0:{go[pr]} offset1:{go[pr + 1]}', tag='L')
            a(f'ds_read_b32 v{E[FG_ ^ 1]}, v{LA} offset:{256 * go[FG_ ^ 1]}', tag='L')
            a(f'v_lshrrev_b32 v{xa}, 1, v{xa}')
            a(f'v_and_b32 v{xa}, -4, v{xa}')
            a(f'ds_read_b32 v{E[FG_]}, v{xa} offset:768', tag='L')
        else:
            a(f'ds_read2st64_b32 {vr(E[0], 2)}, v{LA} offset0:{go[0]} offset1:{go[1]}', tag='L')
            a(f'ds_read2st64_b32 {vr(E[2], 2)}, v{LA} offset0:{go[2]} offset1:{go[3]}', tag='L')
        E = [E[go.index(g)] for g in range(4)]
        a(f's_sub_u32 s3, s{sBase}, 768')
        a(f's_cmp_gt_u32 s3, {128 if FOLD else 256}')
        a(f's_cbranch_scc1 L2_xf{u}')
        a.label(f'L2_xg{u}')
        bl = [f'L2_xf{u}:',
              's_waitcnt lgkmcnt(0)',
              f's_cmp_gt_u32 s{sBase}, 1024',
              f's_cbranch_scc1 L2_xs{u}']
        if FOLD:
            bl += [f's_cmp_lt_u32 s{sBase}, 768',
                   f's_cbranch_scc1 L2_xl{u}',
                   f'ds_read_b32 v{XN[j & 1]}, v{xa} offset:896',
                   f's_add_u32 s3, s{sPH}, {pbit}',
                   f's_bitset1_b32 s{sXo}, s3',
                   f's_branch L2_xg{u}',
                   f'L2_xl{u}:']
        bl += [f'v_mov_b32 v{E[3]}, -1',
              f's_cmp_ge_u32 s{sBase}, 512',
              f's_cbranch_scc1 L2_xg{u}',
              f'v_mov_b32 v{E[2]}, -1',
              f's_cmp_ge_u32 s{sBase}, 256',
              f's_cbranch_scc1 L2_xg{u}',
              f'v_mov_b32 v{E[1]}, -1',
              f's_branch L2_xg{u}',
              f'L2_xs{u}:',
              's_waitcnt lgkmcnt(0)']
        bl += [f'v_mov_b32 v{E[g]}, -1' for g in range(4)]
        bl += [f's_add_u32 s3, s{sPH}, {pbit}',
               f's_bitset1_b32 s{sSlow}, s3',
               f's_branch L2_xg{u}']
        ool.append(bl)
        if j == 3:
            for h in range(2):
                a(f'v_lshrrev_b64 {vr(DB + 2 * h, 2)}, 16, {vr(DB + 2 * h, 2)}')

    def load_rec(g, AI=AI):
        AI = st.get('ai') or AI
        E = EN[:3] + [ES]
        a(f'v_and_b32 v{AI}, 0x0fffffff, v{E[g]}')
        if CFG['ab_norec'] and st['inloop']:
            a(f'v_mov_b32 v{AI}, v{E[g]}')
            return
        a(f'v_mov_b32 v{EC[g]}, v{E[g]}')
        issue_rec(g, AI)

    def issue_fold(f, w, bb, e, AI):
        f(f'buffer_load_dword v{bb}, v{AI}, s[8:11], 0 offen offset:16')
        f(f's_mov_b64 exec, {ODD}')
        f(f'v_add_u32 v{AI}, 8, v{AI}')
        f(f'v_lshrrev_b32 v{e}, 2, v{e}')
        f('s_mov_b64 exec, -1')
        f(f'buffer_load_dwordx2 {vr(w, 2)}, v{AI}, s[8:11], 0 offen')

    def ovf_load(xn, d):
        uid[0] += 1
        u = uid[0]
        a(f's_bitcmp1_b32 s{sXo}, s{sPH}')
        a(f's_cbranch_scc1 L2_oa{u}')
        a.label(f'L2_ob{u}')
        bl = [f'L2_oa{u}:', f'v_and_b32 v{AI}, 0x0fffffff, v{xn}']
        issue_fold(bl.append, d, d + 2, xn, AI)
        ool.append(bl + [f's_branch L2_ob{u}'])
        st['ovn'] = a.nvm

    def ovf_run(xn, d):
        uid[0] += 1
        u = uid[0]
        a(f's_bitcmp1_b32 s{sXo}, s{sPH}')
        a(f's_cbranch_scc1 L2_oa{u}')
        a.label(f'L2_ob{u}')
        bl = [f'L2_oa{u}:', f's_waitcnt vmcnt({a.nvm - st["ovn"]})',
              f's_mov_b64 exec, {ODD}', f'v_lshrrev_b32 v{d + 2}, 16, v{d + 2}', 's_mov_b64 exec, -1']
        for h in range(2):
            w = d + h
            bl += [f'v_and_b32 v{NV}, {1 << (28 + h):#x}, v{xn}',
                   f'v_cmpx_eq_u32 vcc, 0, v{NV}',
                   f'v_lshrrev_b32 v{AI}, 14, v{w}',
                   f'v_and_b32 v{AI}, v{KAD}, v{AI}',
                   f'ds_read_b64 {vr(xm, 2)}, v{AI}',
                   f'v_perm_b32 v{xa}, v{w}, v{d + 2}, s{sP[h]}',
                   f'v_bitop3_b32 v{xd}, v{w}, 0.5, -0.5 bitop3:{ORAND:#x}',
                   f'v_bitop3_b32 v{xa}, v{KCM}, v{xa}, v{xd} bitop3:{SEL:#x}',
                   f'v_and_b32 v{AI}, v{KAD}, v{w}',
                   's_waitcnt lgkmcnt(0)',
                   f'{MF} {vr(RT, 4)}, {vr(WD, 2)}, {vr(xm, 2)}, 0']
            bl += [f'v_mul_f32 v{RT + n}, v{xa}, v{RT + n}' for n in range(4)]
            bl += [f'v_cvt_pk_bf16_f32 v{RT}, v{RT}, v{RT + 1}',
                   f'v_cvt_pk_bf16_f32 v{RT + 1}, v{RT + 2}, v{RT + 3}',
                   f'ds_pk_add_bf16 v{AI}, v{RT} offset:{G.A_OFFS}',
                   f'ds_pk_add_bf16 v{AI}, v{RT + 1} offset:{G.A_OFFS + 4}',
                   's_mov_b64 exec, -1']
        ool.append(bl + [f's_branch L2_ob{u}'])

    def issue_rec(g, AI=AI):
        if FOLD and g == FG_:
            issue_fold(lambda t: a(t, tag=('R', g)), W[g], B[g], EC[g], AI)
            return
        if CFG['ab'] & 256 and st['inloop']:
            a(f'buffer_load_dwordx4 {vr(W[g], 4)}, v{AI}, s[8:11], 0 offen', tag=('R', g))
            return
        if CFG['x3'] == 4:
            a(f'buffer_load_dwordx3 {vr(W[g] + 2, 3)}, v{AI}, s[8:11], 0 offen offset:8', tag=('R', g))
            a(f'buffer_load_dwordx2 {vr(W[g], 2)}, v{AI}, s[8:11], 0 offen', tag=('R', g))
            return
        if CFG['x3'] == 2:
            a(f'buffer_load_dwordx2 {vr(W[g], 2)}, v{AI}, s[8:11], 0 offen', tag=('R', g))
        elif CFG['x3'] == 3:
            a(f'buffer_load_dwordx3 {vr(W[g], 3)}, v{AI}, s[8:11], 0 offen', tag=('R', g))
        else:
            a(f'buffer_load_dwordx4 {vr(W[g], 4)}, v{AI}, s[8:11], 0 offen', tag=('R', g))
        if CFG['x3']:
            a(f'buffer_load_dwordx3 {vr(W[g] + 2, 3)}, v{AI}, s[8:11], 0 offen offset:8', tag=('R', g))
        else:
            a(f'buffer_load_dword v{B[g]}, v{AI}, s[8:11], 0 offen offset:16', tag=('R', g))

    ao_done = set()

    def gather(x, b, NV=NV, AI=AI, noao=False, NV0=None):
        NV1 = NV
        g = slot(x, 0)[0]
        a.wait_vm([('R', g)])
        if FOLD and g == FG_:
            a(f's_mov_b64 exec, {ODD}')
            a(f'v_lshrrev_b32 v{B[g]}, 16, v{B[g]}')
            a('s_mov_b64 exec, -1')
        now = x - b < NA and not noao
        for h in (1, 0):
            k = slot(x, h)[1]
            w = W[g] + k
            NV = NV1 if h or NV0 is None else NV0
            a(f'v_and_b32 v{NV}, {1 << (28 + k):#x}, v{EC[g]}')
            a(f'v_lshrrev_b32 v{AI}, 14, v{w}')
            a(f'v_bitop3_b32 v{AI}, v{AI}, v{KAD}, v{NV} bitop3:{ANDOR:#x}')
            a(f'ds_read_b64 {vr(MR[ring(x)][h], 2)}, v{AI}', tag=('m', x))
            if now:
                a(f'v_bitop3_b32 v{AO(x)[h]}, v{w}, v{KAD}, v{NV} bitop3:{ANDOR:#x}')
        if now:
            ao_done.add(x)

    def dec_ao(b):
        if b in ao_done:
            ao_done.discard(b)
            return
        for h in range(2):
            g, k = slot(b, h)
            a(f'v_and_b32 v{NV}, {1 << (28 + k):#x}, v{EC[g]}')
            a(f'v_bitop3_b32 v{AO(b)[h]}, v{W[g] + k}, v{KAD}, v{NV} bitop3:{ANDOR:#x}')

    def dec_c1(b):
        for h in (1, 0):
            g, k = slot(b, h)
            w = W[g] + k
            a(f'v_perm_b32 v{C[h]}, v{w}, v{B[g]}, s{sP[k]}')
            a(f'v_bitop3_b32 v{(AI, NV)[h]}, v{w}, 0.5, -0.5 bitop3:{ORAND:#x}')

    def dec_c2(b):
        for h in (1, 0):
            a(f'v_bitop3_b32 v{C[h]}, v{KCM}, v{C[h]}, v{(AI, NV)[h]} bitop3:{SEL:#x}')

    def flush_pend(mask):
        return [f's_mov_b64 exec, {mask}',
                's_nop 1',
                f'{MF} {vr(RT, 4)}, {vr(NID, 2)}, {vr(P, 2)}, 0',
                's_nop 1',
                f'{MF} {vr(RT, 4)}, {vr(ID, 2)}, {vr(P + 2, 2)}, {vr(RT, 4)}',
                's_nop 4',
                f'v_cvt_pk_bf16_f32 v{RT}, v{RT}, v{RT + 1}',
                f'v_cvt_pk_bf16_f32 v{RT + 1}, v{RT + 2}, v{RT + 3}',
                f'ds_pk_add_bf16 v{PA}, v{RT} offset:{G.A_OFFS}',
                f'ds_pk_add_bf16 v{PA}, v{RT + 1} offset:{G.A_OFFS + 4}']

    def check(b, h):
        if CFG['ab_nofix'] == 1:
            return
        uid[0] += 1
        u = uid[0]
        a(f'v_cmpx_ne_u64 vcc, {vr(OLD2[h], 2)}, {vr(OLD[h], 2)}')
        if CFG['cnt']:
            a('s_bcnt1_i32_b64 s72, vcc')
            a('s_add_u32 s63, s63, s72')
        skip = CFG['zskip'] == 1 or (CFG['zskip'] == 2 and (b & 7) >= 6)
        if skip:
            a(f's_cbranch_execz L2_z{u}')
        a(f's_and_b64 {TMP}, vcc, {PEND}')
        a(f's_cbranch_scc1 L2_c{u}')
        a.label(f'L2_d{u}')
        if CFG['mov64']:
            a(f'v_mov_b64 {vr(P, 2)}, {vr(OLD[h], 2)}')
            a(f'v_mov_b32 v{PA}, v{AO(b)[h]}')
            a(f'v_mov_b64 {vr(P + 2, 2)}, {vr(OLD2[h], 2)}')
        else:
            for n in range(2):
                a(f'v_mov_b32 v{P + n}, v{OLD[h] + n}')
                a(f'v_mov_b32 v{P + 2 + n}, v{OLD2[h] + n}')
            a(f'v_mov_b32 v{PA}, v{AO(b)[h]}')
        if skip:
            a(f's_or_b64 {PEND}, {PEND}, vcc')
            a.label(f'L2_z{u}')
            a('s_mov_b64 exec, -1')
            if h == 0 and inj_on((b + 1) & 7, 0):
                a('s_nop 0')
        else:
            a('s_mov_b64 exec, -1')
            a(f's_or_b64 {PEND}, {PEND}, vcc')
        cnt = [f's_bcnt1_i32_b64 s72, {TMP}', 's_add_u32 s67, s67, s72', 's_add_u32 s67, s67, 0x10000'] if CFG['cnt'] else []
        if not CFG['nbr']:
            ool.append([f'L2_c{u}:'] + cnt + flush_pend(TMP) + ['s_mov_b64 exec, vcc', f's_branch L2_d{u}'])
            return
        CF, TG = 's[50:51]', 's[52:53]'
        bl = [f'L2_c{u}:',
              f's_mov_b64 {CF}, vcc',
              f's_lshl_b64 {TG}, {TMP}, 1',
              f's_andn2_b64 {TG}, {TG}, {PEND}',
              f's_andn2_b64 {TG}, {TG}, {CF}',
              f's_or_b64 {PEND}, {PEND}, {TG}',
              f's_not_b64 vcc, {TG}',
              's_mov_b64 exec, -1']
        for n, r in enumerate((P, P + 1, P + 2, P + 3, PA)):
            bl.append(f'v_cndmask_b32_dpp v{r}, v{r}, v{r}, vcc wave_shr:1 row_mask:0xf bank_mask:0xf')
            if n == 1:
                bl.append(f's_lshr_b64 {TG}, {TG}, 1')
            if n == 3:
                bl.append(f's_andn2_b64 {TMP}, {TMP}, {TG}')
        bl += [f's_mov_b64 vcc, {CF}',
               f's_mov_b64 exec, {CF}',
               f's_cbranch_scc0 L2_d{u}'] + cnt + flush_pend(TMP) + ['s_mov_b64 exec, vcc', f's_branch L2_d{u}']
        ool.append(bl)

    def check2(b, between=None):
        if CFG['ab_nofix'] == 1:
            return
        CM, TG = ['s[50:51]', 's[54:55]'], 's[52:53]'
        a(f'v_cmp_ne_u64 {CM[0]}, {vr(OLD2[0], 2)}, {vr(OLD[0], 2)}')
        a(f'v_cmpx_ne_u64 {CM[1]}, {vr(OLD2[1], 2)}, {vr(OLD[1], 2)}')
        for h in (1, 0):
            uid[0] += 1
            u = uid[0]
            if h == 0:
                if between:
                    a('s_mov_b64 exec, -1')
                    between()
                a(f's_mov_b64 exec, {CM[0]}')
            if CFG['ab_nofix'] != 2:
                a(f's_and_b64 {TMP}, {CM[h]}, {PEND}')
                a(f's_cbranch_scc1 L2_c{u}')
            a.label(f'L2_d{u}')
            a(f'v_mov_b64 {vr(P, 2)}, {vr(OLD[h], 2)}')
            a(f'v_mov_b32 v{PA}, v{AO(b)[h]}')
            a(f'v_mov_b64 {vr(P + 2, 2)}, {vr(OLD2[h], 2)}')
            if h == 0:
                a('s_mov_b64 exec, -1')
            a(f's_or_b64 {PEND}, {PEND}, {CM[h]}')
            bl = [f'L2_c{u}:',
                  f's_lshl_b64 {TG}, {TMP}, 1',
                  f's_andn2_b64 {TG}, {TG}, {PEND}',
                  f's_andn2_b64 {TG}, {TG}, {CM[h]}',
                  f's_or_b64 {PEND}, {PEND}, {TG}',
                  f's_not_b64 vcc, {TG}',
                  's_mov_b64 exec, -1']
            for n, r in enumerate((P, P + 1, P + 2, P + 3, PA)):
                bl.append(f'v_cndmask_b32_dpp v{r}, v{r}, v{r}, vcc wave_shr:1 row_mask:0xf bank_mask:0xf')
                if n == 1:
                    bl.append(f's_lshr_b64 {TG}, {TG}, 1')
                if n == 3:
                    bl.append(f's_andn2_b64 {TMP}, {TMP}, {TG}')
            bl += [f's_mov_b64 exec, {CM[h]}',
                   f's_cbranch_scc0 L2_d{u}'] + flush_pend(TMP) + [f's_mov_b64 exec, {CM[h]}', f's_branch L2_d{u}']
            ool.append(bl)

    def inj_on(b, h):
        if CFG['ab_nofix'] == 1:
            return False
        if st.get('last') and b >= CFG['injl']:
            return True
        if CFG['injm']:
            return CFG['injm'][2 * (b % NB) + h] == '1'
        return (2 * (b % NB) + h) % CFG['injs'] == 0

    def inject(b, h):
        m = INJ1 if h else INJ
        a(f's_and_b64 exec, {m}, {PEND}')
        a(f'{MF} {vr(X[h], 4)}, {vr(NID, 2)}, {vr(P, 2)}, 0')
        a(f'v_mov_b32 v{AO(b)[h]}, v{PA}')
        a(f's_andn2_b64 {PEND}, {PEND}, {m}')
        a(f'{MF} {vr(X[h], 4)}, {vr(ID, 2)}, {vr(P + 2, 2)}, {vr(X[h], 4)}')
        a('s_mov_b64 exec, -1')

    def step_a(b):
        a.wait_lg(('m', b))
        for h in (1, 0):
            a(f'{MF} {vr(X[h], 4)}, {vr(WD, 2)}, {vr(MR[ring(b)][h], 2)}, 0')
        if not CFG['cpos']:
            dec_c2(b)
        if CFG['gearly'] == 4:
            for x in reversed(gs.get(b, [])):
                gather(x, b, noao=True, NV0=xd)
        for h in (1, 0):
            if inj_on(b, h):
                a(f'v_cmp_lt_u32 {INJ1 if h else INJ}, v{KAD}, v{AO(b)[h]}')
        for h in (1, 0):
            if CFG['pkmul']:
                for n in (0, 2):
                    a(f'v_pk_mul_f32 {vr(X[h] + n, 2)}, {vr(X[h] + n, 2)}, {vr(C[0], 2)} op_sel:[0,{h}] op_sel_hi:[1,{h}]')
            else:
                for n in range(4):
                    a(f'v_mul_f32 v{X[h] + n}, v{C[h]}, v{X[h] + n}')

    SB = CFG['sbar']
    sT0, sT1 = 56, 57

    def sb_arrive(c):
        a('s_mov_b64 exec, 1')
        a(f'ds_inc_u32 v{KAD}, v{KF0} offset:{161920 - 0x1fff8 + 8 * c}')
        a('s_mov_b64 exec, -1')

    def sb_look(c):
        a(f'ds_read_b32 v{RT}, v{KAD} offset:{161920 - 0x1fff8 + 8 * c}', tag='sb')

    def sb_wait(c):
        uid[0] += 1
        u = uid[0]
        a(f's_lshl_b32 s3, s{sPH}, 4')
        if c:
            a('s_add_u32 s3, s3, 16')
        a.wait_lg('sb')
        a.label(f'L2_w{u}')
        a(f'v_cmp_gt_u32 vcc, s3, v{RT}')
        a(f's_cbranch_vccnz L2_v{u}')
        ool.append([f'L2_v{u}:', f'ds_read_b32 v{RT}, v{KAD} offset:{161920 - 0x1fff8 + 8 * c}', 's_waitcnt lgkmcnt(0)', f's_branch L2_w{u}'])

    def step_b(b, final=False, mid=None, nogather=False):
        GE = CFG['gearly'] and not final and not nogather
        keep = GE and CFG['gearly'] >= 3 and gs.get(b)
        if GE and not (CFG['gearly'] == 4 and b >= 0):
            for x in reversed(gs.get(b, [])) if keep else gs.get(b, []):
                gather(x, b, noao=True, NV0=xd if keep else NV)
        a.wait_lg('x')

        def rd(h):
            if CFG['injearly'] == 2 and h == 1:
                for k in (1, 0):
                    if inj_on(b, k):
                        inject(b, k)
            if not CFG['injearly'] and inj_on(b, h):
                inject(b, h)
            a(f'ds_read_b64 {vr(OLD[h], 2)}, v{AO(b)[h]} offset:{G.A_OFFS}', tag=('o', h))
        if CFG['chk'] == 1:
            check2(b - 1)
        elif CFG['chk'] == 2:
            check2(b - 1, lambda: rd(1))
        else:
            for h in (1, 0):
                check(b - 1, h)
                if CFG['injearly'] and inj_on(b, h):
                    inject(b, h)
                if CFG['chk'] == 3 and h == 1:
                    rd(1)
        if CFG['chk'] < 2:
            rd(1)
        rd(0)
        if not final:
            if nogather:
                a.wait_vm([('R', 0)])
            elif not GE:
                for x in gs.get(b, []):
                    gather(x, b)
            elif keep:
                for h in range(2):
                    g, k = slot(b + 1, h)
                    a(f'v_bitop3_b32 v{AO(b + 1)[h]}, v{W[g] + k}, v{KAD}, v{(xd, NV)[h]} bitop3:{ANDOR:#x}')
                ao_done.add(b + 1)
            elif CFG['gearly'] >= 2:
                dec_ao(b + 1)
                ao_done.add(b + 1)
            if CFG['cpos'] == 1:
                dec_c1(b + 1)
                dec_c2(b + 1)
            elif CFG['cpos'] == 2:
                dec_c1(b + 1)
            mid()
        if CFG['wprio']:
            a('s_setprio 3')
        if not CFG['osep']:
            a.wait_lg(('o', 0), ('o', 1))
        for h in (1, 0):
            a.wait_lg(('o', h))
            a(f'{MF} {vr(X[h], 4)}, {vr(ID, 2)}, {vr(OLD[h], 2)}, {vr(X[h], 4)}')
        if not final:
            dec_ao(b + 1)
            if not CFG['cpos']:
                dec_c1(b + 1)
            elif CFG['cpos'] == 2:
                dec_c2(b + 1)
        for h in (1, 0):
            a(f'v_cvt_pk_bf16_f32 v{X[h]}, v{X[h]}, v{X[h] + 1}')
            a(f'v_cvt_pk_bf16_f32 v{X[h] + 1}, v{X[h] + 2}, v{X[h] + 3}')
            a(f'ds_wrxchg_rtn_b64 {vr(OLD2[h], 2)}, v{AO(b)[h]}, {vr(X[h], 2)} offset:{G.A_OFFS}', tag='x')

    def stamp(i):
        if not CFG['stamp']:
            return
        a('s_memtime s[70:71]')
        a('s_waitcnt lgkmcnt(0)')
        a('s_sub_u32 s72, s70, s73')
        a('s_mov_b32 s73, s70')
        a(f's_add_u32 s{60 + i}, s{60 + i}, s72')

    ipos = [int(x) for x in CFG['ipos'].split()]
    fpos = [int(x) for x in CFG['fpos'].split()]
    fmpos = [int(x) for x in CFG['fmpos'].split()]

    ipos2 = [int(x) for x in CFG['ipos2'].split()]
    fpos2 = [int(x) for x in CFG['fpos2'].split()]

    def load_own(g):
        if g == 0:
            a('s_mov_b32 s6, 0xaaaaaaaa')
            a('s_mov_b32 s7, 0xaaaaaaaa')
        ai = st.get('ai') or AI
        a(f'v_and_b32 v{ai}, 0x0fffffff, v{EC[g]}')
        issue_rec(g, ai)
    def poll(level, lab):
        if level == 2:
            a(f's_mov_b32 exec_lo, s56')
            a('s_mov_b32 exec_hi, 0')
        else:
            a('s_mov_b64 exec, 0xffff')
        a.label(lab)
        a(f'buffer_load_dword v{RT}, v{PA}, s[60:63], 0 offen sc1')
        a('s_waitcnt vmcnt(0)')
        a(f'v_cmpx_gt_u32 vcc, {level}, v{RT}')
        a(f's_cbranch_vccnz {lab}s')
        ool.append([f'{lab}s:', f's_sleep {CFG["slp%d" % level]}', f's_branch {lab}'])
        a('s_mov_b64 exec, -1')

    def signal(level, tmp, adr):
        uid[0] += 1
        a(f's_cmp_lg_u32 s{sW}, 0')
        a(f's_cbranch_scc1 L2_sg{uid[0]}')
        vm, nvm = list(a.vm), a.nvm
        a('s_mov_b32 exec_hi, 0')
        a(f'v_mov_b32 v{tmp}, {level}')
        a(f'buffer_store_dword v{tmp}, v{adr}, s[60:63], s57 offen sc1')
        a('s_mov_b64 exec, -1')
        a.vm, a.nvm = vm, nvm
        a.label(f'L2_sg{uid[0]}')

    if P1:
        T16, sE = 0, 56
        a(f'v_lshlrev_b32 v3, 3, v{T16}')
        a('v_and_b32 v3, 0x80, v3')
        a(f's_cmp_lg_u32 s{sW}, {99 if CFG["ab"] & 16 else 15}')
        a('s_cbranch_scc1 L2_k0')
        vm, nvm = list(a.vm), a.nvm
        a('s_mov_b64 exec, 3')
        a('buffer_load_dword v3, v3, s[68:71], 0 offen sc1')
        a('s_mov_b64 exec, -1')
        a.vm, a.nvm = vm, nvm
        a.label('L2_k0')
        yield
        a('v_and_b32_dpp v3, v3, v3 quad_perm:[1,0,3,2] row_mask:0xf bank_mask:0xf')
        yield
        a(f'v_readlane_b32 s{sE}, v10, 15')
        a(f's_xor_b32 s{sE}, s{sE}, 0x80')
        yield
        a('s_load_dwordx2 s[28:29], s[0:1], 0')
        a('s_load_dwordx2 s[50:51], s[0:1], 40')
        a('s_load_dwordx2 s[52:53], s[0:1], 24')
        yield
        a('s_load_dwordx4 s[96:99], s[50:51], 0')
        a('s_mov_b64 s[4:5], s[52:53]')
        a(f's_bfe_u32 s{sQ}, s2, 0x20001')
        a(f's_and_b32 s{sOB}, s2, 1')
        a(f's_lshl_b32 s{sOB}, s{sOB}, 5')
        a('s_lshr_b32 s3, s2, 3')
        a(f's_add_u32 s{sOB}, s{sOB}, s3')
        a(f's_mul_i32 s{sTab}, s{sQ}, 2080')
        a(f's_lshl_b32 s3, s{sOB}, 5')
        a(f's_add_u32 s{sTab}, s{sTab}, s3')
        a(f's_mul_i32 s{sMD}, s{sQ}, {16 * 81920}')
        next_m(0)
        a(f's_lshl_b32 s{sM0}, s{sW}, 11')
        a(f's_mul_i32 s100, s{sW}, 3072')
        G.srd(a, 8, 30, G.REC_OFF, G.REC_SZ)
        G.srd(a, 12, 30, G.TAB_OFF, G.TAB_SZ)
        G.srd(a, 16, 64, 0, 32)
        G.srd(a, 24, 28, 0, G.E * 8)
        yield
        a(f'v_and_b32 v13, 0x3f0, v{T16}')
        a('v_and_b32 v14, 0x300, v13')
        a('v_bfe_u32 v15, v13, 4, 4')
        a(f's_lshl_b32 s3, s{sW}, 4')
        a('v_add3_u32 v14, v14, v15, s3')
        a(f'v_mul_u32_u24 v{CBA}, {G.BLK}, v14')
        a('v_lshrrev_b32 v14, 6, v13')
        a('s_add_u32 s3, s3, 0x400')
        a('v_add_u32 v14, s3, v14')
        a(f'v_mul_u32_u24 v{CBB}, {G.BLK}, v14')
        a('v_and_b32 v14, 3, v14')
        a('v_and_b32 v15, 0x30, v13')
        a('v_lshl_add_u32 v14, v14, 5, v15')
        a(f'v_add_u32 v6, v14, v{CBB}')
        a(f'v_lshl_add_u32 v5, v15, 1, v{CBA}')
        a('v_lshrrev_b32 v14, 3, v15')
        wb = P1['take'](100)
        for k in range(4):
            if not CFG['ab'] & 128:
                a(f'buffer_load_ushort v{wb + k}, v14, s[16:19], 0 offen offset:{k * 8}', tag='wd')
        a(f's_mul_i32 s3, s{sW}, 5120')
        a(f'v_add_u32 v{FA}, s3, v13')
        a('v_lshrrev_b32 v14, 2, v13')
        a(f'v_add_u32 v14, s{sM0}, v14')
        mo = [4, 2, 3, 0, 1]
        for _ in range(5):
            yield
            if 5 - len(mo) < CFG['m0s']:
                n = mo.pop(0)
                P1['take'](MP[n])
                load_m_raw(n, 0, 13)
        yield
        if not CFG['ab'] & 32:
            signal(1, 11, 14)
        store = P1['store']
        FS = CFG['fs']
        if FS:
            for n in range(10):
                a(f's_waitcnt lgkmcnt({9 - n})')
                store()
                if n == 6:
                    P1['mhook'](30)
            store = lambda: None
            G.tl_mark(a, 76, 21, 1, RT + 2)
        yield
        st['raw'] = True
        a('s_setprio 3')
        a(f'v_mov_b32 v92, v{T16}')
        a('v_mov_b32 v93, v6')
        a('v_mov_b32 v94, v13')
        a('v_mov_b32 v95, v5')
        P1['t16'](92)
        store()
        store()
        a(f'v_mov_b32 v{LA}, v14')
        a(f'v_lshl_add_u32 v{PA}, v13, 3, s{sM0}')
        a('v_lshrrev_b32 v16, 2, v15')
        a(f'v_mad_u32_u24 v{CBB}, v16, 5, v{CBB}')
        a(f'v_or_b32 v{CBB}, 0xf0000000, v{CBB}')
        a(f'v_or_b32 v{CBA}, 0xf0000000, v{CBA}')
        a(f'v_sub_u32 v{SHL}, 28, v16')
        a('v_lshrrev_b32 v17, 2, v16')
        G.ident(a, ID, 18, 17)
        G.ident(a, NID, 18, 17, neg=True)
        a(f'v_mov_b32 v{KF0}, 0xf0000000')
        a(f'v_mov_b32 v{KAD}, 0x1fff8')
        a(f'v_mov_b32 v{KCM}, 0x07ff0000')
        for n in range(4):
            a(f'v_mov_b32 v{16 + n}, 0')
        a(f'v_add_u32 v20, {G.A_BASE}, v92')
        a(f'v_add_u32 v21, 0x10000, v20')
        def zero():
            for n in range(5):
                store()
                if n == 2 and FS < 2:
                    a('s_setprio 2')
                a(f'ds_write_b128 v20, v[16:19] offset:{n * 16384}' if n < 4 else 'ds_write_b128 v21, v[16:19]')
        if FS < 2:
            zero()
        a('s_setprio 1')
        for n in range(3):
            store()
        if not FS:
            G.tl_mark(a, 76, 21, 1, RT + 2)
        a(f's_setprio {2 if min(ipos) < 0 else 0}')
        for k in range(4):
            a(f's_mov_b32 s{sP[k]}, {0x04000c0c | (k << 16):#x}')
        a(f's_mov_b32 s{sSlow}, 0')
        a(f's_mov_b32 s{sXo}, 0')
        a(f's_mov_b32 s{sPH}, 0')
        a(f's_mov_b64 {PEND}, 0')
        a(f's_mov_b64 {INJ1}, 0')
        G.srd(a, 16, 30, G.MD_OFF, G.MD_SZ)
        for n in range(8):
            a(f'v_mov_b32 v{OLD[0] + n}, 0')
        a('s_waitcnt vmcnt(0)')
        a(f'v_lshl_or_b32 v{WD}, v{wb + 1}, 16, v{wb}')
        a(f'v_lshl_or_b32 v{WD + 1}, v{wb + 3}, 16, v{wb + 2}')
        G.tl_end(a, mid=True)
        if CFG['ab'] & 64:
            a('s_endpgm')
        a('s_barrier')
        signal(2, RT, LA)
        a(f's_mov_b64 {INJ}, 0')
        for _ in range(min(CFG['m0e'], len(mo))):
            load_m_raw(mo.pop(0), 0, 94)
        if FS == 2:
            zero()
        a(f's_cmp_eq_u32 s{sE}, 0')
        a('s_cbranch_scc1 L2_e3')
        a('v_lshlrev_b32 v16, 3, v94')
        a('v_and_b32 v16, 0x80, v16')
        a.label('L2_e4')
        a(f'buffer_load_dword v{RT}, v16, s[68:71], 0 offen sc1')
        a('s_waitcnt vmcnt(0)')
        a(f'v_cmp_gt_u32 vcc, 0x80, v{RT}')
        a('s_cbranch_vccnz L2_e4')
        a.label('L2_e3')
        poll(1, 'L2_p1')
        a(f'v_cmp_gt_u32 vcc, 2, v{RT}')
        a(f's_and_b32 s{sE}, vcc_lo, 0xffff')
        for k in (0, 2, 1, 3):
            a(f'buffer_load_dwordx4 {vr(DA + 4 * k, 4)}, v95, s[12:15], s{sTab} offen offset:{16 * k}', tag='D')
        a(f'buffer_load_dwordx4 {vr(DB, 4)}, v93, s[12:15], s{sTab} offen', tag='D')
        while mo:
            load_m_raw(mo.pop(0), 0, 94)
        G.tl_mark(a, 76, 22, 1, RT)
        x_pre(0)
        x_list(0, EN, 0)
        x_pre(1)
        a.wait_lg('L')
        for g in range(4):
            a(f'v_mov_b32 v{EC[g]}, v{EN[g]}')
        x_list(1, EN, 1)
        for n in (4, 2, 3, 0, 1):
            fill(n)
        G.tl_mark(a, 76, 23, 1, RT)
        if CFG['r0pre']:
            a(f's_cmp_eq_u32 s{sE}, 0')
            a('s_cbranch_scc1 L2_e2')
        assert CFG['r0pre']
        a(f's_mov_b32 exec_lo, s{sE}')
        a('s_mov_b32 exec_hi, 0')
        a(f'buffer_load_dword v{RT}, v{PA}, s[60:63], 0 offen sc1')
        a('s_mov_b64 exec, -1')
        a('s_waitcnt vmcnt(0)')
        a(f'v_cmp_gt_u32 vcc, 2, v{RT}')
        a(f's_and_b32 s{sE}, vcc_lo, s{sE}')
        a('s_cbranch_scc0 L2_e2')
        for n in (4, 2, 3, 0, 1):
            load_m_raw(n, 1, 94)
        poll(2, 'L2_p2')
        a.label('L2_e2')
        G.tl_start(a, mid=True)
        load_own(0)
        for g in range(1, 4):
            if ipos[g - 1] < 0:
                a(f's_setprio {max(0, 2 - g)}')
                load_own(g)
        if CFG['r0pre']:
            a('s_waitcnt lgkmcnt(0)')
            a('s_barrier')
            G.tl_mark(a, 76, 24, 1, RT + 2)
    else:
        if CFG['stamp']:
            for i in range(8):
                a(f's_mov_b32 s{60 + i}, 0')
            a('s_mov_b32 s73, 0')
            stamp(7)
            a('s_mov_b32 s67, 0')

        for n in range(8):
            a(f'v_mov_b32 v{OLD[0] + n}, 0')
        a(f'v_add_u32 v24, {G.A_BASE}, v24')
        for n in range(4):
            a(f'ds_write_b128 v24, {vr(OLD[0], 4)} offset:{n * 16384}')
        a(f'v_add_u32 v{AI}, 0x10000, v24')
        a(f'ds_write_b128 v{AI}, {vr(OLD[0], 4)}')
        G.tl_mark(a, 76, 21, 1, RT)
        a.wait_vm('D')
        G.tl_mark(a, 76, 22, 1, RT)
        if CFG['dq']:
            Z = 26
            for src, dst, bit, qp, ev in ((DA, Z, 1, '[1,0,3,2]', 0x55555555), (Z, DA, 2, '[2,3,0,1]', 0x33333333)):
                for par in range(2):
                    m = ev if par == 0 else ev ^ 0xffffffff
                    a(f's_mov_b32 vcc_lo, {m:#x}')
                    a(f's_mov_b32 vcc_hi, {m:#x}')
                    n = 0
                    for k in range(4):
                        if bool(k & bit) != bool(par):
                            continue
                        for r in range(4):
                            a(f'v_cndmask_b32_dpp v{dst + 4 * k + r}, v{src + 4 * (k ^ bit) + r}, v{src + 4 * k + r}, vcc quad_perm:{qp} row_mask:0xf bank_mask:0xf')
                            n += 1
                            if CFG['dq'] == 2 and n % 2 == 0:
                                a(f'v_mov_b32 v{RT}, 0')
                                a(f'v_mov_b32 v{RT + 1}, 0')
        x_pre(0)
        x_list(0, EN, 0)
        x_pre(1)
        a.wait_lg('L')
        G.tl_mark(a, 76, 23, 1, RT)
        for g in range(4):
            a(f'v_mov_b32 v{EC[g]}, v{EN[g]}')
        if CFG['pprio'] < 2:
            load_own(0)
        for g in range(1, 4):
            fill((4, 2, 3)[g - 1])
            if ipos[g - 1] < 0 or CFG['ab_norec']:
                load_own(g)
        x_list(1, EN, 1)
        fill(0)
        fill(1)
        if CFG['pprio'] == 2:
            load_own(0)
        a('s_waitcnt lgkmcnt(0)')
        G.tl_mark(a, 76, 24, 1, RT)
        if CFG['ab_norec']:
            a('s_waitcnt vmcnt(0)')
        stamp(0)
    st['inloop'] = True
    if CFG['mpf']:
        a(f's_cmp_lt_u32 s{sW}, 10')
        a('s_cselect_b64 s[72:73], 3, 0')
        a('s_lshr_b32 s3, s2, 3')
        a('s_mul_i32 s74, s3, 2560')
        a(f's_mul_i32 s3, s{sW}, {256 - 65536}')
        a('s_add_u32 s74, s74, s3')
        a(f's_add_u32 s74, s74, {0xf0000000 + G.MD_OFF - G.REC_OFF:#x}')
        a(f's_mov_b32 s10, {G.REC_SZ + G.MD_SZ:#x}')
    prio1 = [int(x) for x in CFG['pr'].split()]
    sites = []
    FW, FM, FD, FL, FG = 48, [108, 112], [116, 117], [118, 119], [120, 121]

    def fin_preload():
        a(f's_lshl_b32 s3, s{sW}, 12')
        a(f'v_subrev_u32 v122, s3, v{FA}')
        a(f's_mul_i32 s3, s{sQ}, 20000')
        a(f'v_add_u32 v{FL[0]}, s3, v122')
        a(f'v_add_u32 v{FL[1]}, 0x4000, v{FL[0]}')
        a(f's_lshl_b32 s3, s{sOB}, 7')
        for r in range(2):
            a(f'v_lshrrev_b32 v123, 7, v{FL[r]}')
            a(f'v_and_b32 v{FG[r]}, 0x70, v{FL[r]}')
            a(f'v_lshl_add_u32 v{FG[r]}, v123, 13, v{FG[r]}')
            a(f'v_add_u32 v{FG[r]}, s3, v{FG[r]}')
        a(f'v_cmp_le_u32 vcc, {20000 - 16384}, v122')
        a('s_mov_b64 exec, vcc')
        a(f'v_mov_b32 v{FL[1]}, 2.0')
        a(f'v_mov_b32 v{FG[1]}, 2.0')
        a('s_mov_b64 exec, -1')
        a('v_and_b32 v123, 0x30, v122')
        a('v_lshlrev_b32 v123, 2, v123')
        a(f'buffer_load_dwordx4 {vr(FW, 4)}, v123, s[24:27], 0 offen', tag='fin')
        a(f'buffer_load_dwordx4 {vr(FW + 4, 4)}, v123, s[24:27], 0 offen offset:16', tag='fin')
        a(f'buffer_load_dwordx2 {vr(FW + 8, 2)}, v123, s[24:27], 0 offen offset:32', tag='fin')
        G.srd(a, 12, 4, 0, G.E * 2)
        G.srd(a, 16, 28, 0, G.E * 8)
        for r in range(2):
            a(f'v_lshrrev_b32 v123, 2, v{FG[r]}')
            a(f'buffer_load_dword v{FD[r]}, v123, s[12:15], 0 offen', tag='fin')
            a(f'buffer_load_dwordx4 {vr(FM[r], 4)}, v{FG[r]}, s[16:19], 0 offen', tag='fin')

    def phase(jj, kind):
        first, more1, more2 = kind == 'first', kind != 'last', kind in ('first', 'second', 'mid')
        second = kind == 'second'
        ph['par'] = (jj * NB) & 1
        st['last'] = kind == 'last'
        a.c(f'==== phase jj={jj} {kind}')
        site = len(sites)
        sites.append(site)

        def slow_site():
            stamp(5)
            G.tl_mark(a, 76, f's{sPH}', 1, RT)
            a(f's_bitcmp1_b32 s{sSlow}, s{sPH}')
            a('s_cbranch_scc1 L2_slow')
            a.label(f'L2_ret{site}')
        if first or not SB:
            if not (first and P1) and (first or not CFG['ab'] & 1):
                a('s_barrier')
            slow_site()
        hs = [None]
        st['m0'] = None

        def dhook():
            if hs[0] is None:
                return
            if CFG['sprio']:
                a(f's_setprio {3 - hs[0]}')
            for n in (4, 2, 3, 0, 1):
                if dpos[n] == hs[0]:
                    fill(n)
                if mpos[n] < 0 and more2 and max(dpos[n], -1 - mpos[n]) == hs[0]:
                    load_m(n)
            hs[0] += 1

        def rhook(pos):
            if FOLD and not CFG['ab'] & 512:
                if pos == 7:
                    ovf_load(XN[jj & 1], X[0] if first else MP[OP])
                if pos == (7 if first else mpos[OP]):
                    ovf_run(XN[jj & 1], X[0] if first else MP[OP])
            if first and not CFG['ab_norec']:
                if pos == 7 and CFG['pprio'] == 3:
                    load_own(0)
                for g in range(1, 4):
                    if ipos[g - 1] == pos:
                        load_own(g)
            elif second:
                for g in range(1, 3):
                    if fpos[g] == 9 and ipos2[g - 1] == pos:
                        load_own(g)
                if ipos2[2] == pos:
                    load_rec(3)
            elif rpos[3] in (pos, pos + 8) and rpos[3] < 10:
                load_rec(3)
            if not more1:
                if pos == CFG['finp'] and CFG['fuse']:
                    fin_preload()
                return
            for n in (4, 2, 3, 0, 1):
                if (fmpos if first else mpos)[n] == pos and not (first and P1):
                    load_m(n)
                elif first and P1 and fmpos[n] == pos:
                    uid[0] += 1
                    a(f'v_and_b32 v{AI}, 0x3f0, v{FA}')
                    a('s_cmp_lg_u32 s56, 0')
                    a(f's_cbranch_scc1 L2_m{uid[0]}')
                    vm, nvm = list(a.vm), a.nvm
                    load_m_raw(n, 1, AI)
                    a.vm, a.nvm = vm, nvm
                    st[('rawn', n)] = a.nvm
                    a.label(f'L2_m{uid[0]}')
            if pos == b1_step - 1:
                next_m(jj + 1)
            for g in range(3):
                if (fpos if first else fpos2 if second else rpos)[g] == pos:
                    load_rec(g)
                if first and fpos[g] == 9 and pos == b1_step:
                    a(f'v_mov_b32 v{EC[g]}, v{EN[g]}')

        for i, b in enumerate(order if SB else []):
            if i == 0 or prio1[i] != prio1[i - 1]:
                a(f's_setprio {prio1[i]}')
            if b >= 0:
                step_a(b)
            if b == CFG['xpre'] and more2:
                x_pre((jj + 2) & 3)
            if b >= 0 or first:
                rhook(b & 7)
            if first and b < 0:
                gather(0, -1)
                dec_ao(0)
                dec_c1(0)
            elif b < 0:
                step_b(b, mid=lambda: sb_look(0), nogather=True)
                sb_wait(0)
                slow_site()
                gather(0, -1, RT, RT + 1, True)
                st['ai'] = RT
                rhook(7)
                st['ai'] = None
            elif b == b1_step - 1 and more1:
                step_b(b, mid=lambda: sb_arrive(1))
            elif b == b1_step and more1:
                step_b(b, mid=lambda: sb_look(1))
            else:
                step_b(b, mid=lambda: None)
            if more1 and not first:
                for g in range(3 if second else 0, 4):
                    if rpos[g] == 10 + b and b < b1_step:
                        load_rec(g, RT)
            if b == b1_step and more1:
                if SB == 2:
                    step_a(LB)
                sb_wait(1)
                hs[0] = 0
                dhook()
                if more2:
                    x_list((jj + 2) & 3, EN, 2)
                else:
                    a(f'v_mov_b32 v{ES}, v{EN[3]}')
                for _ in range(3):
                    dhook()
                sb_arrive(0)
                a(f's_add_u32 s{sPH}, s{sPH}, 1')
                if rpos[3] == 10 + b and not first:
                    a.wait_lg('L')
                    load_rec(3, RT)
        if SB:
            if SB == 1 or not more1:
                step_a(LB)
            return
        for i, b in enumerate(order):
            if b == b1_step and more1:
                a.wait_lg(('m', LB), ('m', LB - 1))
                stamp(1)
                if not CFG['ab'] & 2:
                    a('s_barrier')
                stamp(2)
                hs[0] = 0
                dhook()
            if (i == 0 or prio1[i] != prio1[i - 1] or CFG['wprio']) and not (CFG['sprio'] and b == b1_step):
                a(f's_setprio {prio1[i]}')
            hf = CFG['gearly'] == 4 and b != b1_step
            if b >= 0 and not hf:
                step_a(b)
            if FOLD:
                assert CFG['xpre'] >= mpos[OP] >= 0 and CFG['finp'] >= mpos[OP]
                rhook(b & 7)
            if b == CFG['xpre'] and more2 and not CFG['ab'] & 4:
                x_pre((jj + 2) & 3)
            if not FOLD:
                rhook(b & 7)
            if b >= 0 and hf:
                assert CFG['cpos']
                step_a(b)
            if b == b1_step and more2 and not CFG['ab'] & 4:
                x_list((jj + 2) & 3, EN, 2)
            elif b == b1_step and more1:
                a(f'v_mov_b32 v{ES}, v{EN[3]}')
            dhook()
            if first and b < 0:
                gather(0, -1)
                dec_ao(0)
                dec_c1(0)
                if CFG['cpos']:
                    dec_c2(0)
            else:
                step_b(b, mid=dhook)
            if more1 and not first:
                for g in range(3 if second else 0, 4):
                    if rpos[g] == 10 + b:
                        load_rec(g, RT)
            dhook()
        step_a(LB)
        if more1:
            assert hs[0] > max(dpos)
            a(f's_add_u32 s{sPH}, s{sPH}, 1')
            a.wait_lg('F')
            stamp(4)

    phase(0, 'first')
    st['raw'] = False
    if P1:
        G.srd(a, 24, 30, G.WT_OFF, G.WT_SZ)
    phase(1, 'second')
    a.vm = merge_vm(a.vm, G.MEMO.get('back', []))
    head_vm, head_lg = list(a.vm), list(a.lg)
    a.label('L2_loop')
    for jj in (2, 3, 0, 1):
        phase(jj, 'mid')
    assert 'back' not in G.MEMO or merge_vm(head_vm, a.vm) == head_vm, (a.vm, head_vm)
    G.MEMO['back'] = list(a.vm)
    assert a.lg == head_lg
    a(f's_cmp_lg_u32 s{sPH}, 14')
    a('s_cbranch_scc1 L2_loop')
    phase(2, 'penult')
    phase(3, 'last')
    step_b(LB, final=True)
    a.wait_lg('x')
    check(LB, 1)
    check(LB, 0)
    if CFG['drain']:
        a(f's_mov_b64 exec, {PEND}')
        a(f'ds_read_b64 {vr(OLD[0], 2)}, v{PA} offset:{G.A_OFFS}')
        a(f'{MF} {vr(X[0], 4)}, {vr(NID, 2)}, {vr(P, 2)}, 0')
        a(f'{MF} {vr(X[0], 4)}, {vr(ID, 2)}, {vr(P + 2, 2)}, {vr(X[0], 4)}')
        a('s_waitcnt lgkmcnt(0)')
        a(f'{MF} {vr(X[0], 4)}, {vr(ID, 2)}, {vr(OLD[0], 2)}, {vr(X[0], 4)}')
        a(f'v_mov_b64 {vr(P, 2)}, {vr(OLD[0], 2)}')
        a(f'v_cvt_pk_bf16_f32 v{X[0]}, v{X[0]}, v{X[0] + 1}')
        a(f'v_cvt_pk_bf16_f32 v{X[0] + 1}, v{X[0] + 2}, v{X[0] + 3}')
        a(f'ds_wrxchg_rtn_b64 {vr(P + 2, 2)}, v{PA}, {vr(X[0], 2)} offset:{G.A_OFFS}')
        a('s_waitcnt lgkmcnt(0)')
        a(f'v_cmp_ne_u64 {PEND}, {vr(P + 2, 2)}, {vr(P, 2)}')
    for ln in flush_pend(PEND):
        a(ln)
    a('s_mov_b64 exec, -1')
    if True:
        a('s_load_dwordx2 s[4:5], s[0:1], 88')
        a('v_add_u32 v123, 0x4000, v122')
        for n in range(4):
            a(f's_lshl_b32 s{50 + 2 * n}, s{96 + n}, 16')
            a(f's_and_b32 s{51 + 2 * n}, s{96 + n}, 0xffff0000')
        a('s_waitcnt vmcnt(0) lgkmcnt(0)')
        a('s_barrier')
        G.tl_mark(a, 76, 16, 1, 106)
        GH = [80, 16]
        PL = [32, 60]
        WX = CFG['wavex']
        G.srd(a, 8, 30, G.FLAG_OFF, G.FLAG_SZ)
        G.srd(a, 12, 4, 0, G.E * 8)
        G.srd(a, 20, 30, G.PART_OFF, G.PART_SZ)
        a(f's_lshl2_add_u32 s4, s{sOB}, s{sQ}')
        a('s_mul_i32 s4, s4, 81920')
        for k in range(1, 4):
            a(f's_add_u32 s3, s{sQ}, {k}')
            a('s_and_b32 s3, s3, 3')
            a(f's_mul_i32 s{35 + k}, s3, 20000')
            a(f's_add_u32 s{35 + k}, s{35 + k}, {G.A_BASE}')
            a(f's_mul_i32 s{39 + k}, s3, 20480')
            a(f's_add_u32 s{39 + k}, s{39 + k}, s4')
            a(f's_lshl2_add_u32 s3, s{sOB}, s3')
            a('s_mul_i32 s3, s3, 81920')
            a(f's_mul_i32 s{43 + k}, s{sQ}, 20480')
            a(f's_add_u32 s{43 + k}, s{43 + k}, s3')
        SB_ = [[16, 20, 24], [36, 40, 44]]
        for r in range(2):
            if r:
                a(f's_cmp_ge_u32 s{sW}, 4')
                a('s_cbranch_scc1 L2_g0')
            for k in range(1, 4):
                a(f'v_add_u32 v104, s{35 + k}, v{122 + r}')
                a(f'ds_read_b128 {vr(SB_[r][k - 1], 4)}, v104')
            for k in range(1, 4):
                a(f's_waitcnt lgkmcnt({3 - k})')
                a(f'buffer_store_dwordx4 {vr(SB_[r][k - 1], 4)}, v{122 + r}, s[20:23], s{39 + k} offen sc1')
        a.label('L2_g0')
        if WX != 2:
            G.fin_gates(a, FD[0], 50, FW, GH[0], 60)
        a(f's_lshl_b32 s3, s{sOB}, 9')
        if WX:
            a(f's_lshl2_add_u32 s3, s{sW}, s3')
        a(f's_lshl_b32 s4, s{sQ}, 7')
        a('s_add_u32 s4, s4, s3')
        a('v_mov_b32 v104, 1')
        a('v_and_b32 v105, 0x3f0, v122')
        a('v_lshlrev_b32 v105, 3, v105')
        if WX != 2:
            for r in range(2):
                a(f'v_add_u32 v106, {G.A_BASE}, v{FL[r]}')
                a(f'ds_read_b128 {vr(PL[r], 4)}, v106')
        a('s_waitcnt vmcnt(0)')
        if not WX:
            a('s_barrier')
        G.tl_mark(a, 76, 18, 1, 106)
        if not WX:
            a(f's_cmp_lg_u32 s{sW}, 0')
            a('s_cbranch_scc1 L2_f2')
        a('s_mov_b64 exec, 1')
        a('buffer_store_dword v104, off, s[8:11], s4 sc1')
        if WX == 2:
            a('s_mov_b64 exec, -1')
            G.fin_gates(a, FD[0], 50, FW, GH[0], 60)
            for r in range(2):
                a(f'v_add_u32 v106, {G.A_BASE}, v{FL[r]}')
                a(f'ds_read_b128 {vr(PL[r], 4)}, v106')
        a('s_mov_b64 exec, 15')
        a(f's_bitset0_b64 exec, s{sQ}')
        a.label('L2_f3')
        a('buffer_load_dword v104, v105, s[8:11], s3 offen sc1')
        a('s_waitcnt vmcnt(0)')
        a('v_cmp_ne_u32 vcc, 1, v104')
        a('s_cbranch_vccnz L2_f3s')
        ool.append(['L2_f3s:'] + ([f's_sleep {CFG["slp3"]}'] if CFG['slp3'] else []) + ['s_branch L2_f3'])
        a('s_mov_b64 exec, -1')
        if not WX:
            a.label('L2_f2')
            a('s_barrier')
        G.tl_mark(a, 76, 19, 1, 106)
        for r in range(2):
            if r:
                a(f's_cmp_ge_u32 s{sW}, 4')
                a('s_cbranch_scc1 L2_f5')
            for k in range(1, 4):
                a(f'buffer_load_dwordx4 {vr(PL[r] + 4 * k, 4)}, v{122 + r}, s[20:23], s{43 + k} offen sc1')
        if CFG['g1late']:
            G.fin_gates(a, FD[1], 50, FW, GH[1], (96, 0, [104, 76]))
        a.label('L2_f5')
        a('s_waitcnt vmcnt(0) lgkmcnt(0)')
        G.tl_mark(a, 76, 20, 1, 106)
        for r in range(2):
            if r:
                a(f's_cmp_ge_u32 s{sW}, 4')
                a('s_cbranch_scc1 L2_f6')
            G.fin_out(a, PL[r], GH[r], FW, ID, FM[r], 96)
            a(f'buffer_store_dwordx4 {vr(PL[r] + 4, 4)}, v{FG[r]}, s[12:15], 0 offen{CFG["out_pol"]}')
        a.label('L2_f6')
    G.tl_end(a)
    if CFG['stamp']:
        a('s_waitcnt vmcnt(0)')
        stamp(6)
        a('s_load_dwordx2 s[74:75], s[0:1], 96')
        a('s_waitcnt lgkmcnt(0)')
        G.srd(a, 76, 74, 0, 256)
        a(f's_cmp_lg_u32 s2, {CFG["stamp"]}')
        a('s_cbranch_scc1 L2_end')
        a(f's_and_b32 s3, s{sW}, 3')
        a('s_cmp_lg_u32 s3, 0')
        a('s_cbranch_scc1 L2_end')
        a(f's_lshl_b32 s3, s{sW}, 3')
        a('v_mov_b32 v20, 0')
        for i in range(8):
            a(f'v_mov_b32 v21, s{60 + i}')
            a(f'buffer_store_dword v21, v20, s[76:79], s3 offen offset:{4 * i}')
    a.label('L2_end')
    a('s_endpgm')

    a.label('L2_slow')
    a.reset()
    sC, sS, sE, sO = 50, 51, 52, 53
    pp, t_, wa, ba, w_, b_, ao, c_, ai_ = 102, 103, 104, 105, 106, 107, 96, 97, 98
    m_ = MR[0][0]
    a(f's_lshr_b32 s{sSP}, s{sPH}, 2')
    a(f's_lshl_b32 s{sC}, s{sW}, 4')
    a(f's_and_b32 s3, s{sPH}, 3')
    a(f's_lshl_b32 s{sO}, s3, 3')
    a(f's_add_u32 s{sO}, s{sO}, s{sTab}')
    a(f's_and_b32 s3, s{sSP}, 2')
    a('s_lshl_b32 s3, s3, 1')
    a(f's_add_u32 s{sO}, s{sO}, s3')
    a(f's_and_b32 s54, s{sSP}, 1')
    a('s_lshl_b32 s54, s54, 4')
    a.label('L2_sl_seg')
    a(f's_mul_i32 s55, s{sC}, {G.BLK}')
    a(f's_and_b32 s3, s{sC}, 3')
    a('s_lshl_b32 s3, s3, 5')
    a('s_add_u32 s3, s3, s55')
    a(f's_add_u32 s3, s3, s{sO}')
    a(f'buffer_load_dword v{wa}, off, s[12:15], s3 sc1')
    a(f'buffer_load_dword v{ba}, off, s[12:15], s3 offset:32 sc1')
    a('s_waitcnt vmcnt(0)')
    a(f'v_readfirstlane_b32 s{sS}, v{wa}')
    a(f'v_readfirstlane_b32 s{sE}, v{ba}')
    a(f's_lshr_b32 s{sS}, s{sS}, s54')
    a(f's_and_b32 s{sS}, s{sS}, 0xffff')
    a(f's_lshr_b32 s{sE}, s{sE}, s54')
    a(f's_and_b32 s{sE}, s{sE}, 0xffff')
    a.label('L2_sl_rec')
    a(f's_cmp_ge_u32 s{sS}, s{sE}')
    a('s_cbranch_scc1 L2_sl_next')
    a(f'v_mbcnt_lo_u32_b32 v{pp}, -1, 0')
    a(f'v_mbcnt_hi_u32_b32 v{pp}, -1, v{pp}')
    a(f'v_add_u32 v{pp}, s{sS}, v{pp}')
    a(f'v_and_b32 v{t_}, -4, v{pp}')
    a(f'v_lshl_add_u32 v{wa}, v{pp}, 2, v{t_}')
    a(f'v_lshl_add_u32 v{ba}, v{t_}, 2, v{pp}')
    a(f'v_cmp_gt_u32 vcc, s{sE}, v{pp}')
    a('s_mov_b64 exec, vcc')
    a(f'buffer_load_dword v{w_}, v{wa}, s[8:11], s55 offen')
    a(f'buffer_load_ubyte v{b_}, v{ba}, s[8:11], s55 offen offset:16')
    a('s_waitcnt vmcnt(0)')
    a(f'v_lshrrev_b32 v{ai_}, 14, v{w_}')
    a(f'v_and_b32 v{ai_}, v{KAD}, v{ai_}')
    a(f'ds_read_b64 {vr(m_, 2)}, v{ai_}')
    a(f'v_perm_b32 v{c_}, v{w_}, v{b_}, s{sP[0]}')
    a(f'v_and_b32 v{ao}, v{KAD}, v{w_}')
    a(f'v_bitop3_b32 v{t_}, v{w_}, 0.5, -0.5 bitop3:{ORAND:#x}')
    a(f'v_bitop3_b32 v{c_}, v{KCM}, v{c_}, v{t_} bitop3:{SEL:#x}')
    a('s_waitcnt lgkmcnt(0)')
    a(f'{MF} {vr(RT, 4)}, {vr(WD, 2)}, {vr(m_, 2)}, 0')
    for n in range(4):
        a(f'v_mul_f32 v{RT + n}, v{c_}, v{RT + n}')
    a(f'v_cvt_pk_bf16_f32 v{RT}, v{RT}, v{RT + 1}')
    a(f'v_cvt_pk_bf16_f32 v{RT + 1}, v{RT + 2}, v{RT + 3}')
    a(f'ds_pk_add_bf16 v{ao}, v{RT} offset:{G.A_OFFS}')
    a(f'ds_pk_add_bf16 v{ao}, v{RT + 1} offset:{G.A_OFFS + 4}')
    a('s_mov_b64 exec, -1')
    a(f's_add_u32 s{sS}, s{sS}, 64')
    a('s_branch L2_sl_rec')
    a.label('L2_sl_next')
    a(f's_add_u32 s{sC}, s{sC}, 1')
    a(f's_and_b32 s3, s{sC}, 15')
    a('s_cbranch_scc1 L2_sl_seg')
    a(f's_add_u32 s{sC}, s{sC}, 240')
    a(f's_cmp_lt_u32 s{sC}, {G.NCH}')
    a('s_cbranch_scc1 L2_sl_seg')
    a('s_waitcnt lgkmcnt(0)')
    for ph, k in ((0, 0), (1, 1), (14, 6), (15, 7)):
        a(f's_cmp_eq_u32 s{sPH}, {ph}')
        a(f's_cbranch_scc1 L2_ret{k}')
    a(f's_and_b32 s3, s{sPH}, 3')
    for ph, k in ((2, 2), (3, 3), (0, 4)):
        a(f's_cmp_eq_u32 s3, {ph}')
        a(f's_cbranch_scc1 L2_ret{k}')
    a('s_branch L2_ret5')
    for bl in ool:
        for ln in bl:
            if ln.endswith(':'):
                a.label(ln[:-1])
                a.reset()
            else:
                a(ln)
    yield name
```

```python
from asmlib import vr, sr, merge_vm

MF = 'v_mfma_f32_4x4x4_16b_bf16'


def gen_p2(a, G, P1=None):
    name = 'gs_acc_kernel'
    CFG = G.CFG
    SEL, ANDOR = G.SEL, G.ANDOR
    ORAND = 0xA8
    if not P1:
        G.kernel_head(a, name)
    DS = 1
    NR = DS + 1
    NA = 2
    LA, SHL, CBA, FA, CBB, KAD, KCM, PA = 0, 1, 2, 3, 4, 5, 6, 7
    WD, ID, NID = 8, 10, 12
    C = [14, 15]
    W = [16, 22, 28, 34]
    B = [w + 4 for w in W]
    EC = [w + 5 for w in W]
    FOLD = CFG['fold']
    NB = 7 if FOLD else 8
    LB = NB - 1
    FG_ = FOLD - 1
    if FOLD:
        B[FG_], EC[FG_] = W[FG_] + 2, W[FG_] + 3
    XN = [W[FG_] + 4, W[FG_] + 5]
    bmap = [(g, k) for g in range(4) for k in ((0,) if FOLD and g == FG_ else (0, 2))]
    ODD, sXo = 's[6:7]', 43
    EN = [40, 41, 42, 43]
    ES, KF0, NV, AI = 44, 45, 46, 47
    DA, DB = 48, 64
    OLD = [68, 70]
    OLD2 = [72, 74]
    X = [76, 80]
    P = 84
    RT = 88
    AOR = [[92, 93], [94, 95]]
    xm, xo, xa, xd = 96, 97, 98, 99
    xc, xl, xe, xt = RT, RT + 1, RT + 2, RT + 3
    MR = [[100, 102], [104, 106]]
    MP = [108 + 4 * n for n in range(5)]

    ph = dict(par=0)

    def ring(b):
        return (b + ph['par']) & 1

    def AO(b):
        return AOR[ring(b)]

    def slot(b, h):
        g, k = bmap[b % NB]
        return g, k + h
    sW, sQ, sOB, sSP, sSlow, sBase, sTab, sMD, sN, sPH, sM0 = 32, 33, 34, 35, 36, 37, 39, 40, 41, 42, 38
    sP = [44, 45, 46, 47]
    PEND, TMP, INJ, OVF, INJ1 = 's[80:81]', 's[82:83]', 's[84:85]', 's[58:59]', 's[48:49]'
    rpos = [int(x) for x in CFG['rpos'].split()]
    dpos = [int(x) for x in CFG['dpos'].split()]
    mpos = [int(x) for x in CFG['mpos'].split()]
    L1K = CFG['l1k']
    OP = 0 if L1K else 1
    assert dpos[0] >= 1 and (dpos[1] >= 1 or L1K)
    order = list(range(-1, LB))
    gs = {b: [b + 1] for b in range(-1, LB - 2)}
    gs[LB - 2] = [LB - 1, LB]
    b1_step = LB - 1

    def blk(p):
        return 4 * (p & 3) + (p >> 2)

    def dblk(p):
        return ((blk(p + 1) - blk(p)) * 81920) & 0xffffffff

    def head1():
        a('s_cmp_ge_u32 s2, 256')
        a('s_cbranch_scc1 L2_end')
        G.tl_start(a)
        if CFG['pprio']:
            a('s_setprio 3')
        a('s_load_dwordx2 s[30:31], s[0:1], 104')
        a('s_load_dwordx2 s[28:29], s[0:1], 0')
        a('s_load_dwordx2 s[6:7], s[0:1], 40')
        a('v_lshrrev_b32 v16, 6, v0')
        a('v_and_b32 v17, 63, v0')
        a(f'v_readfirstlane_b32 s{sW}, v16')
        a(f's_bfe_u32 s{sQ}, s2, 0x20001')
        a(f's_and_b32 s{sOB}, s2, 1')
        a(f's_lshl_b32 s{sOB}, s{sOB}, 5')
        a('s_lshr_b32 s4, s2, 3')
        a(f's_add_u32 s{sOB}, s{sOB}, s4')
        a('v_and_b32 v22, 3, v0')
        a('v_mul_u32_u24 v19, 80, v16' if not CFG['cmap'] else 'v_lshlrev_b32 v19, 6, v16')
        if CFG['dq']:
            a('v_lshrrev_b32 v18, 2, v17')
            a('v_lshl_add_u32 v18, v22, 4, v18')
            a('v_add_u32 v18, v18, v19')
        else:
            a('v_lshrrev_b32 v18, 4, v17')
            a('v_and_b32 v19, 15, v17')
            a('v_lshl_add_u32 v18, v18, 8, v19')
            a('v_lshl_add_u32 v18, v16, 4, v18')
        a(f'v_mul_u32_u24 v{CBA}, {G.BLK}, v18')
        a('v_lshrrev_b32 v18, 2, v17')
        if CFG['cmap']:
            a('v_lshl_add_u32 v18, v16, 4, v18')
            a('v_add_u32 v18, 0x400, v18')
        else:
            a('v_add3_u32 v18, v18, v19, 64')
        a(f'v_mul_u32_u24 v{CBB}, {G.BLK}, v18')
        a(f'v_lshl_add_u32 v20, v22, 4, v{CBB}')
        a('v_and_b32 v18, 3, v18')
        a('v_lshl_add_u32 v20, v18, 5, v20')
        a(f'v_lshl_add_u32 v25, v22, 5, v{CBA}')
        a(f's_mul_i32 s{sTab}, s{sQ}, 2080')
        a(f's_lshl_b32 s3, s{sOB}, 5')
        a(f's_add_u32 s{sTab}, s{sTab}, s3')
        a(f's_mul_i32 s{sMD}, s{sQ}, {16 * 81920}')
        a(f's_mul_i32 s3, s{sW}, 5120')
        a(f'v_lshl_add_u32 v{FA}, v17, 4, s3')
        a(f's_lshl_b32 s{sM0}, s{sW}, 11')
        a(f's_mul_i32 s100, s{sW}, 3072')
        a('s_waitcnt lgkmcnt(0)')
        G.srd(a, 12, 30, G.TAB_OFF, G.TAB_SZ)
        for k in (0, 2, 1, 3) if not CFG['dq'] else range(4):
            if CFG['dq']:
                a(f'v_subrev_u32 v25, {(64 - 16 * k) * G.BLK:#x}, v20')
                a(f'buffer_load_dwordx4 {vr(DA + 4 * k, 4)}, v25, s[12:15], s{sTab} offen', tag='D')
            else:
                a(f'buffer_load_dwordx4 {vr(DA + 4 * k, 4)}, v25, s[12:15], s{sTab} offen offset:{16 * k}', tag='D')
        a(f'buffer_load_dwordx4 {vr(DB, 4)}, v20, s[12:15], s{sTab} offen', tag='D')
        G.srd(a, 16, 30, G.MD_OFF, G.MD_SZ)
        G.srd(a, 24, 30, G.WT_OFF, G.WT_SZ)
        a('v_lshlrev_b32 v21, 6, v22')
        a(f'buffer_load_dwordx2 {vr(WD, 2)}, v21, s[24:27], 0 offen offset:40', tag='D')

    st = dict(inloop=False)

    def load_m(n):
        if CFG['ab_nom'] and st['inloop']:
            return
        if n == 4:
            a(f's_add_u32 s3, s{sMD}, 4096')
            a(f'buffer_load_dwordx4 {vr(MP[n], 4)}, v{FA}, s[16:19], s3 offen{CFG["m_pol"]}', tag=('M', n))
        else:
            a(f'buffer_load_dwordx4 {vr(MP[n], 4)}, v{FA}, s[16:19], s{sMD} offen offset:{n * 1024}{CFG["m_pol"]}', tag=('M', n))

    def load_m_raw(n, p, l16):
        a(f's_mul_i32 s3, s{sQ}, {16 * 80000}')
        a(f's_add_u32 s3, s3, s{sM0 if n < 2 else 100}')
        a(f's_add_u32 s3, s3, {blk(p) * 80000 + (0 if n < 2 else 32768)}')
        a(f'buffer_load_dwordx4 {vr(MP[n], 4)}, v{l16}, s[24:27], s3 offen offset:{1024 * (n if n < 2 else n - 2)}', tag=('M', n))

    def fill(n):
        a.wait_vm([('M', n)])
        if ('rawn', n) in st:
            a(f's_waitcnt vmcnt({a.nvm - st.pop(("rawn", n))})')
        if st.get('raw'):
            a(f'v_subrev_u32 v{RT}, s{100 if n < 2 else sM0}, v{FA}')
            a(f'ds_write_b128 v{RT}, {vr(MP[n], 4)} offset:{n * 1024 if n < 2 else 32768 + (n - 2) * 1024}', tag='F')
            return
        m0 = sM0 if n < 2 else 100
        if st.get('m0') != m0:
            a(f's_mov_b32 m0, s{m0}')
            st['m0'] = m0
        for jd in range(4):
            if CFG['ab'] & 8 and st['inloop']:
                continue
            a(f'ds_write_addtid_b32 v{MP[n] + jd} offset:{(n * 1024 if n < 2 else 32768 + (n - 2) * 1024) + 256 * jd}', tag='F')

    def next_m(p):
        a(f's_add_u32 s{sMD}, s{sMD}, {dblk(p):#x}')

    def head2():
        if CFG['pprio']:
            a('s_setprio 2')
        for n in (4, 2, 3, 0, 1):
            load_m(n)
        next_m(0)
        if CFG['pprio']:
            a('s_setprio 1')
        a(f'v_mad_u32_u24 v{CBB}, v22, 20, v{CBB}')
        a(f'v_or_b32 v{CBB}, 0xf0000000, v{CBB}')
        a(f'v_or_b32 v{CBA}, 0xf0000000, v{CBA}')
        a('v_lshlrev_b32 v23, 2, v22')
        a(f'v_sub_u32 v{SHL}, 28, v23')
        G.ident(a, ID, 18, 0)
        G.ident(a, NID, 18, 0, neg=True)
        a('v_lshlrev_b32 v24, 4, v0')
        a(f'v_lshl_add_u32 v{LA}, v17, 2, s{sM0}')
        a(f'v_mov_b32 v{KF0}, 0xf0000000')
        a(f'v_mov_b32 v{KAD}, 0x1fff8')
        a(f'v_mov_b32 v{KCM}, 0x07ff0000')
        for k in range(4):
            a(f's_mov_b32 s{sP[k]}, {0x04000c0c | (k << 16):#x}')
        a(f's_mov_b32 s{sSlow}, 0')
        a(f's_mov_b32 s{sXo}, 0')
        a(f's_mov_b32 s{sPH}, 0')
        a(f's_mov_b64 {PEND}, 0')
        a(f's_mov_b64 {INJ}, 0')
        a(f's_mov_b64 {INJ1}, 0')
        if CFG['fuse']:
            a('s_load_dwordx4 s[96:99], s[6:7], 0')
            a('s_load_dwordx2 s[4:5], s[0:1], 24')
            a('s_waitcnt lgkmcnt(0)')
        G.srd(a, 8, 30, G.REC_OFF, G.REC_SZ)

    if not P1:
        head1()
        head2()
    ool = []
    uid = [0]

    XAND = 0x6A
    sOv = 101

    def x_pre(j):
        uid[0] += 1
        u = uid[0]
        rs, re_ = DA + 2 * j, DA + 8 + 2 * j
        a.wait_vm('D')
        a(f'v_sub_u16 v{xc}, v{re_}, v{rs}')
        a(f'v_and_b32 v{xl}, 3, v{rs}')
        a(f'v_add3_u32 v{xd}, v{xc}, v{xl}, 3')
        a(f'v_and_b32 v{xd}, -4, v{xd}')
        a(f'v_max_u32 v{xd}, 4, v{xd}')
        fill = [f'v_and_b32 v{xo}, 0xfffc, v{rs}',
                f'v_bfm_b32 v{xm}, v{xc}, v{xl}',
                f'v_mad_u32_u24 v{xo}, v{xo}, 5, v{CBA}',
                f'v_cmp_lt_u32 vcc, 16, v{xd}',
                f'v_sub_u32 v{xa}, s{sM0}, v{xd}',
                f'v_lshrrev_b64 {vr(rs, 2)}, 16, {vr(rs, 2)}',
                f'v_lshrrev_b64 {vr(re_, 2)}, 16, {vr(re_, 2)}',
                f's_mov_b32 s{sOv}, 0']
        a(fill.pop(0))
        a(fill.pop(0))
        a(f'v_add_u32_dpp v{xt}, v{xd}, v{xd} row_shr:1 row_mask:0xf bank_mask:0xf bound_ctrl:1')
        for m in ('row_shr:2 row_mask:0xf bank_mask:0xf bound_ctrl:1', 'row_shr:4 row_mask:0xf bank_mask:0xf bound_ctrl:1',
                  'row_shr:8 row_mask:0xf bank_mask:0xf bound_ctrl:1', 'row_bcast:15 row_mask:0xa bank_mask:0xf',
                  'row_bcast:31 row_mask:0xc bank_mask:0xf'):
            for _ in range(2):
                if fill:
                    a(fill.pop(0))
            a(f'v_add_u32_dpp v{xt}, v{xt}, v{xt} {m}')
        a(f'v_add_u32 v{xa}, v{xa}, v{xt}')
        a(f'v_readlane_b32 s{sBase}, v{xt}, 63')
        a(f's_cbranch_vccnz L2_xo{u}')
        a.label(f'L2_xp{u}')
        ool.append([f'L2_xo{u}:',
                    f'v_cmp_lt_u32 vcc, 20, v{xd}',
                    f's_mov_b32 s{sOv}, 1',
                    f's_cbranch_vccz L2_xp{u}',
                    f'v_cmp_lt_u32 vcc, 32, v{xd}',
                    f'v_cmp_lt_u32 {OVF}, 31, v{xc}',
                    f's_mov_b32 s{sOv}, 2',
                    f's_or_b64 vcc, vcc, {OVF}',
                    f's_cbranch_scc0 L2_xp{u}',
                    f's_mov_b32 s{sBase}, 0x10000',
                    f's_branch L2_xp{u}'])

    def x_ent(f, t):
        f(f'v_lshlrev_b32 v{xl}, {28 - 4 * t}, v{xm}')
        if t:
            f(f'v_add_u32 v{xe}, {20 * t}, v{xo}')
        f(f'v_bitop3_b32 v{xe}, v{xl}, v{KF0}, v{xe if t else xo} bitop3:{XAND:#x}')
        f(f'ds_write_b32 v{xa}, v{xe} offset:{4 * t}')

    def x_quad(f, u):
        f(f'v_and_b32 v{xl}, v{KF0}, v{xl}')
        f(f'v_cmp_ne_u32 vcc, 0, v{xl}')
        f(f'v_xor_b32 v{xe}, v{xo}, v{xl}')
        f(f's_add_u32 s3, s{sBase}, s{sM0}')
        f(f'v_mbcnt_lo_u32_b32 v{xa}, vcc_lo, 0')
        f(f'v_mbcnt_hi_u32_b32 v{xa}, vcc_hi, v{xa}')
        f(f's_bcnt1_i32_b64 s{sN}, vcc')
        f(f'v_lshl_add_u32 v{xa}, v{xa}, 2, s3')
        f(f's_lshl2_add_u32 s{sBase}, s{sN}, s{sBase}')
        if L1K:
            f(f's_cmp_gt_u32 s{sBase}, 1020')
            f(f's_cbranch_scc1 L2_xs{u}')
        f('s_mov_b64 exec, vcc')
        f(f'ds_write_b32 v{xa}, v{xe}')
        f('s_mov_b64 exec, -1')

    def x_list(j, E, pbit):
        uid[0] += 1
        u = uid[0]
        a(f'v_mov_b32 v{ES}, v{E[3]}')
        a(f's_cmp_gt_u32 s{sBase}, {992 if L1K else 1024}')
        a(f's_cbranch_scc1 L2_xs{u}')
        a(f's_cmp_lg_u32 s{sOv}, 0')
        a(f's_cbranch_scc1 L2_xa{u}')
        a.label(f'L2_xb{u}')
        bl = [f'L2_xa{u}:', f's_cmp_eq_u32 s{sOv}, 1', f's_cbranch_scc1 L2_xc{u}']
        x_ent(bl.append, 7)
        x_ent(bl.append, 6)
        x_ent(bl.append, 5)
        bl.append(f'L2_xc{u}:')
        x_ent(bl.append, 4)
        bl.append(f's_branch L2_xb{u}')
        ool.append(bl)
        for t in (3, 2, 1, 0):
            x_ent(a, t)
        r = DB + 2 * (j & 1)
        ls, le = j >> 1, 2 + (j >> 1)
        a(f'v_mov_b32_dpp v{xt}, v{r} quad_perm:[{ls},{ls},{ls},{ls}] row_mask:0xf bank_mask:0xf')
        a(f'v_and_b32 v{xl}, 3, v{xt}')
        a(f'v_and_b32 v{xo}, 0xfffc, v{xt}')
        a(f'v_sub_u16_dpp v{xc}, v{r}, v{xt} quad_perm:[{le},{le},{le},{le}] row_mask:0xf bank_mask:0xf')
        a(f'v_mad_u32_u24 v{xo}, v{xo}, 5, v{CBB}')
        a(f'v_add_u32 v{xd}, v{xc}, v{xl}')
        a(f'v_bfm_b32 v{xm}, v{xc}, v{xl}')
        a(f'v_cmp_lt_u32 {OVF}, 16, v{xd}')
        a(f'v_lshlrev_b32 v{xl}, v{SHL}, v{xm}')
        x_quad(a, u)
        a(f's_cmp_lg_u64 {OVF}, 0')
        a(f's_cbranch_scc1 L2_xe{u}')
        a.label(f'L2_xr{u}')
        bl = [f'L2_xe{u}:',
              f'v_cmp_lt_u32 vcc, 32, v{xd}',
              f'v_cmp_lt_u32 {OVF}, 31, v{xc}',
              f'v_lshrrev_b32 v{xl}, 16, v{xm}',
              f'v_add_u32 v{xo}, 80, v{xo}',
              f's_or_b64 vcc, vcc, {OVF}',
              f's_cbranch_scc1 L2_xs{u}',
              f'v_lshlrev_b32 v{xl}, v{SHL}, v{xl}']
        x_quad(bl.append, u)
        bl.append(f's_branch L2_xr{u}')
        ool.append(bl)
        a(f'v_add_u32 v{xa}, s{sBase}, v{LA}')
        a(f'v_mov_b32 v{xe}, -1')
        if CFG['mpf'] and st['inloop']:
            a(f's_add_u32 s3, s{sMD}, s74')
            a(f's_add_u32 s3, s3, {(dblk(j) + dblk(j + 1)) & 0xffffffff:#x}')
            a('s_mov_b64 exec, s[72:73]')
            a(f'v_lshl_add_u32 v{xe}, v{LA}, 5, s3')
            a('s_mov_b64 exec, -1')
        if L1K:
            a(f's_max_u32 s3, s{sBase}, 768')
            a('s_lshr_b32 s3, s3, 2')
            a('s_lshr_b64 exec, -1, s3')
        a(f'ds_write_b32 v{xa}, v{xe}')
        if L1K:
            a('s_mov_b64 exec, -1')
        go = [int(x) for x in CFG['gord'].split()]
        if FOLD:
            go = [0, 1, 2]
            go.insert(FG_, 3)
            a(f'v_add_u32 v{xa}, s{sM0}, v{LA}')
            pr = 0 if FG_ >= 2 else 2
            a(f'ds_read2st64_b32 {vr(E[pr], 2)}, v{LA} offset0:{go[pr]} offset1:{go[pr + 1]}', tag='L')
            a(f'ds_read_b32 v{E[FG_ ^ 1]}, v{LA} offset:{256 * go[FG_ ^ 1]}', tag='L')
            a(f'v_lshrrev_b32 v{xa}, 1, v{xa}')
            a(f'v_and_b32 v{xa}, -4, v{xa}')
            a(f'ds_read_b32 v{E[FG_]}, v{xa} offset:768', tag='L')
        else:
            a(f'ds_read2st64_b32 {vr(E[0], 2)}, v{LA} offset0:{go[0]} offset1:{go[1]}', tag='L')
            a(f'ds_read2st64_b32 {vr(E[2], 2)}, v{LA} offset0:{go[2]} offset1:{go[3]}', tag='L')
        E = [E[go.index(g)] for g in range(4)]
        a(f's_sub_u32 s3, s{sBase}, 768')
        a(f's_cmp_gt_u32 s3, {128 if FOLD else 256}')
        a(f's_cbranch_scc1 L2_xf{u}')
        a.label(f'L2_xg{u}')
        bl = [f'L2_xf{u}:',
              's_waitcnt lgkmcnt(0)',
              f's_cmp_gt_u32 s{sBase}, 1024',
              f's_cbranch_scc1 L2_xs{u}']
        if FOLD:
            bl += [f's_cmp_lt_u32 s{sBase}, 768',
                   f's_cbranch_scc1 L2_xl{u}',
                   f'ds_read_b32 v{XN[j & 1]}, v{xa} offset:896',
                   f's_add_u32 s3, s{sPH}, {pbit}',
                   f's_bitset1_b32 s{sXo}, s3',
                   f's_branch L2_xg{u}',
                   f'L2_xl{u}:']
        bl += [f'v_mov_b32 v{E[3]}, -1',
              f's_cmp_ge_u32 s{sBase}, 512',
              f's_cbranch_scc1 L2_xg{u}',
              f'v_mov_b32 v{E[2]}, -1',
              f's_cmp_ge_u32 s{sBase}, 256',
              f's_cbranch_scc1 L2_xg{u}',
              f'v_mov_b32 v{E[1]}, -1',
              f's_branch L2_xg{u}',
              f'L2_xs{u}:',
              's_waitcnt lgkmcnt(0)']
        bl += [f'v_mov_b32 v{E[g]}, -1' for g in range(4)]
        bl += [f's_add_u32 s3, s{sPH}, {pbit}',
               f's_bitset1_b32 s{sSlow}, s3',
               f's_branch L2_xg{u}']
        ool.append(bl)
        if j == 3:
            for h in range(2):
                a(f'v_lshrrev_b64 {vr(DB + 2 * h, 2)}, 16, {vr(DB + 2 * h, 2)}')

    def load_rec(g, AI=AI):
        AI = st.get('ai') or AI
        E = EN[:3] + [ES]
        a(f'v_and_b32 v{AI}, 0x0fffffff, v{E[g]}')
        if CFG['ab_norec'] and st['inloop']:
            a(f'v_mov_b32 v{AI}, v{E[g]}')
            return
        a(f'v_mov_b32 v{EC[g]}, v{E[g]}')
        issue_rec(g, AI)

    def issue_fold(f, w, bb, e, AI):
        f(f'buffer_load_dword v{bb}, v{AI}, s[8:11], 0 offen offset:16')
        f(f's_mov_b64 exec, {ODD}')
        f(f'v_add_u32 v{AI}, 8, v{AI}')
        f(f'v_lshrrev_b32 v{e}, 2, v{e}')
        f('s_mov_b64 exec, -1')
        f(f'buffer_load_dwordx2 {vr(w, 2)}, v{AI}, s[8:11], 0 offen')

    def ovf_load(xn, d):
        uid[0] += 1
        u = uid[0]
        a(f's_bitcmp1_b32 s{sXo}, s{sPH}')
        a(f's_cbranch_scc1 L2_oa{u}')
        a.label(f'L2_ob{u}')
        bl = [f'L2_oa{u}:', f'v_and_b32 v{AI}, 0x0fffffff, v{xn}']
        issue_fold(bl.append, d, d + 2, xn, AI)
        ool.append(bl + [f's_branch L2_ob{u}'])
        st['ovn'] = a.nvm

    def ovf_run(xn, d):
        uid[0] += 1
        u = uid[0]
        a(f's_bitcmp1_b32 s{sXo}, s{sPH}')
        a(f's_cbranch_scc1 L2_oa{u}')
        a.label(f'L2_ob{u}')
        bl = [f'L2_oa{u}:', f's_waitcnt vmcnt({a.nvm - st["ovn"]})',
              f's_mov_b64 exec, {ODD}', f'v_lshrrev_b32 v{d + 2}, 16, v{d + 2}', 's_mov_b64 exec, -1']
        for h in range(2):
            w = d + h
            bl += [f'v_and_b32 v{NV}, {1 << (28 + h):#x}, v{xn}',
                   f'v_cmpx_eq_u32 vcc, 0, v{NV}',
                   f'v_lshrrev_b32 v{AI}, 14, v{w}',
                   f'v_and_b32 v{AI}, v{KAD}, v{AI}',
                   f'ds_read_b64 {vr(xm, 2)}, v{AI}',
                   f'v_perm_b32 v{xa}, v{w}, v{d + 2}, s{sP[h]}',
                   f'v_bitop3_b32 v{xd}, v{w}, 0.5, -0.5 bitop3:{ORAND:#x}',
                   f'v_bitop3_b32 v{xa}, v{KCM}, v{xa}, v{xd} bitop3:{SEL:#x}',
                   f'v_and_b32 v{AI}, v{KAD}, v{w}',
                   's_waitcnt lgkmcnt(0)',
                   f'{MF} {vr(RT, 4)}, {vr(WD, 2)}, {vr(xm, 2)}, 0']
            bl += [f'v_mul_f32 v{RT + n}, v{xa}, v{RT + n}' for n in range(4)]
            bl += [f'v_cvt_pk_bf16_f32 v{RT}, v{RT}, v{RT + 1}',
                   f'v_cvt_pk_bf16_f32 v{RT + 1}, v{RT + 2}, v{RT + 3}',
                   f'ds_pk_add_bf16 v{AI}, v{RT} offset:{G.A_OFFS}',
                   f'ds_pk_add_bf16 v{AI}, v{RT + 1} offset:{G.A_OFFS + 4}',
                   's_mov_b64 exec, -1']
        ool.append(bl + [f's_branch L2_ob{u}'])

    def issue_rec(g, AI=AI):
        if FOLD and g == FG_:
            issue_fold(lambda t: a(t, tag=('R', g)), W[g], B[g], EC[g], AI)
            return
        if CFG['ab'] & 256 and st['inloop']:
            a(f'buffer_load_dwordx4 {vr(W[g], 4)}, v{AI}, s[8:11], 0 offen', tag=('R', g))
            return
        if CFG['x3'] == 4:
            a(f'buffer_load_dwordx3 {vr(W[g] + 2, 3)}, v{AI}, s[8:11], 0 offen offset:8', tag=('R', g))
            a(f'buffer_load_dwordx2 {vr(W[g], 2)}, v{AI}, s[8:11], 0 offen', tag=('R', g))
            return
        if CFG['x3'] == 2:
            a(f'buffer_load_dwordx2 {vr(W[g], 2)}, v{AI}, s[8:11], 0 offen', tag=('R', g))
        elif CFG['x3'] == 3:
            a(f'buffer_load_dwordx3 {vr(W[g], 3)}, v{AI}, s[8:11], 0 offen', tag=('R', g))
        else:
            a(f'buffer_load_dwordx4 {vr(W[g], 4)}, v{AI}, s[8:11], 0 offen', tag=('R', g))
        if CFG['x3']:
            a(f'buffer_load_dwordx3 {vr(W[g] + 2, 3)}, v{AI}, s[8:11], 0 offen offset:8', tag=('R', g))
        else:
            a(f'buffer_load_dword v{B[g]}, v{AI}, s[8:11], 0 offen offset:16', tag=('R', g))

    ao_done = set()

    def gather(x, b, NV=NV, AI=AI, noao=False, NV0=None):
        NV1 = NV
        g = slot(x, 0)[0]
        a.wait_vm([('R', g)])
        if FOLD and g == FG_:
            a(f's_mov_b64 exec, {ODD}')
            a(f'v_lshrrev_b32 v{B[g]}, 16, v{B[g]}')
            a('s_mov_b64 exec, -1')
        now = x - b < NA and not noao
        for h in (1, 0):
            k = slot(x, h)[1]
            w = W[g] + k
            NV = NV1 if h or NV0 is None else NV0
            a(f'v_and_b32 v{NV}, {1 << (28 + k):#x}, v{EC[g]}')
            a(f'v_lshrrev_b32 v{AI}, 14, v{w}')
            a(f'v_bitop3_b32 v{AI}, v{AI}, v{KAD}, v{NV} bitop3:{ANDOR:#x}')
            a(f'ds_read_b64 {vr(MR[ring(x)][h], 2)}, v{AI}', tag=('m', x))
            if now:
                a(f'v_bitop3_b32 v{AO(x)[h]}, v{w}, v{KAD}, v{NV} bitop3:{ANDOR:#x}')
        if now:
            ao_done.add(x)

    def dec_ao(b):
        if b in ao_done:
            ao_done.discard(b)
            return
        for h in range(2):
            g, k = slot(b, h)
            a(f'v_and_b32 v{NV}, {1 << (28 + k):#x}, v{EC[g]}')
            a(f'v_bitop3_b32 v{AO(b)[h]}, v{W[g] + k}, v{KAD}, v{NV} bitop3:{ANDOR:#x}')

    def dec_c1(b):
        for h in (1, 0):
            g, k = slot(b, h)
            w = W[g] + k
            a(f'v_perm_b32 v{C[h]}, v{w}, v{B[g]}, s{sP[k]}')
            a(f'v_bitop3_b32 v{(AI, NV)[h]}, v{w}, 0.5, -0.5 bitop3:{ORAND:#x}')

    def dec_c2(b):
        for h in (1, 0):
            a(f'v_bitop3_b32 v{C[h]}, v{KCM}, v{C[h]}, v{(AI, NV)[h]} bitop3:{SEL:#x}')

    def flush_pend(mask):
        return [f's_mov_b64 exec, {mask}',
                's_nop 1',
                f'{MF} {vr(RT, 4)}, {vr(NID, 2)}, {vr(P, 2)}, 0',
                's_nop 1',
                f'{MF} {vr(RT, 4)}, {vr(ID, 2)}, {vr(P + 2, 2)}, {vr(RT, 4)}',
                's_nop 4',
                f'v_cvt_pk_bf16_f32 v{RT}, v{RT}, v{RT + 1}',
                f'v_cvt_pk_bf16_f32 v{RT + 1}, v{RT + 2}, v{RT + 3}',
                f'ds_pk_add_bf16 v{PA}, v{RT} offset:{G.A_OFFS}',
                f'ds_pk_add_bf16 v{PA}, v{RT + 1} offset:{G.A_OFFS + 4}']

    def check(b, h):
        if CFG['ab_nofix'] == 1:
            return
        uid[0] += 1
        u = uid[0]
        a(f'v_cmpx_ne_u64 vcc, {vr(OLD2[h], 2)}, {vr(OLD[h], 2)}')
        if CFG['cnt']:
            a('s_bcnt1_i32_b64 s72, vcc')
            a('s_add_u32 s63, s63, s72')
        skip = CFG['zskip'] == 1 or (CFG['zskip'] == 2 and (b & 7) >= 6)
        if skip:
            a(f's_cbranch_execz L2_z{u}')
        a(f's_and_b64 {TMP}, vcc, {PEND}')
        a(f's_cbranch_scc1 L2_c{u}')
        a.label(f'L2_d{u}')
        if CFG['mov64']:
            a(f'v_mov_b64 {vr(P, 2)}, {vr(OLD[h], 2)}')
            a(f'v_mov_b32 v{PA}, v{AO(b)[h]}')
            a(f'v_mov_b64 {vr(P + 2, 2)}, {vr(OLD2[h], 2)}')
        else:
            for n in range(2):
                a(f'v_mov_b32 v{P + n}, v{OLD[h] + n}')
                a(f'v_mov_b32 v{P + 2 + n}, v{OLD2[h] + n}')
            a(f'v_mov_b32 v{PA}, v{AO(b)[h]}')
        if skip:
            a(f's_or_b64 {PEND}, {PEND}, vcc')
            a.label(f'L2_z{u}')
            a('s_mov_b64 exec, -1')
            if h == 0 and inj_on((b + 1) & 7, 0):
                a('s_nop 0')
        else:
            a('s_mov_b64 exec, -1')
            a(f's_or_b64 {PEND}, {PEND}, vcc')
        cnt = [f's_bcnt1_i32_b64 s72, {TMP}', 's_add_u32 s67, s67, s72', 's_add_u32 s67, s67, 0x10000'] if CFG['cnt'] else []
        if not CFG['nbr']:
            ool.append([f'L2_c{u}:'] + cnt + flush_pend(TMP) + ['s_mov_b64 exec, vcc', f's_branch L2_d{u}'])
            return
        CF, TG = 's[50:51]', 's[52:53]'
        bl = [f'L2_c{u}:',
              f's_mov_b64 {CF}, vcc',
              f's_lshl_b64 {TG}, {TMP}, 1',
              f's_andn2_b64 {TG}, {TG}, {PEND}',
              f's_andn2_b64 {TG}, {TG}, {CF}',
              f's_or_b64 {PEND}, {PEND}, {TG}',
              f's_not_b64 vcc, {TG}',
              's_mov_b64 exec, -1']
        for n, r in enumerate((P, P + 1, P + 2, P + 3, PA)):
            bl.append(f'v_cndmask_b32_dpp v{r}, v{r}, v{r}, vcc wave_shr:1 row_mask:0xf bank_mask:0xf')
            if n == 1:
                bl.append(f's_lshr_b64 {TG}, {TG}, 1')
            if n == 3:
                bl.append(f's_andn2_b64 {TMP}, {TMP}, {TG}')
        bl += [f's_mov_b64 vcc, {CF}',
               f's_mov_b64 exec, {CF}',
               f's_cbranch_scc0 L2_d{u}'] + cnt + flush_pend(TMP) + ['s_mov_b64 exec, vcc', f's_branch L2_d{u}']
        ool.append(bl)

    def check2(b, between=None):
        if CFG['ab_nofix'] == 1:
            return
        CM, TG = ['s[50:51]', 's[54:55]'], 's[52:53]'
        a(f'v_cmp_ne_u64 {CM[0]}, {vr(OLD2[0], 2)}, {vr(OLD[0], 2)}')
        a(f'v_cmpx_ne_u64 {CM[1]}, {vr(OLD2[1], 2)}, {vr(OLD[1], 2)}')
        for h in (1, 0):
            uid[0] += 1
            u = uid[0]
            if h == 0:
                if between:
                    a('s_mov_b64 exec, -1')
                    between()
                a(f's_mov_b64 exec, {CM[0]}')
            if CFG['ab_nofix'] != 2:
                a(f's_and_b64 {TMP}, {CM[h]}, {PEND}')
                a(f's_cbranch_scc1 L2_c{u}')
            a.label(f'L2_d{u}')
            a(f'v_mov_b64 {vr(P, 2)}, {vr(OLD[h], 2)}')
            a(f'v_mov_b32 v{PA}, v{AO(b)[h]}')
            a(f'v_mov_b64 {vr(P + 2, 2)}, {vr(OLD2[h], 2)}')
            if h == 0:
                a('s_mov_b64 exec, -1')
            a(f's_or_b64 {PEND}, {PEND}, {CM[h]}')
            bl = [f'L2_c{u}:',
                  f's_lshl_b64 {TG}, {TMP}, 1',
                  f's_andn2_b64 {TG}, {TG}, {PEND}',
                  f's_andn2_b64 {TG}, {TG}, {CM[h]}',
                  f's_or_b64 {PEND}, {PEND}, {TG}',
                  f's_not_b64 vcc, {TG}',
                  's_mov_b64 exec, -1']
            for n, r in enumerate((P, P + 1, P + 2, P + 3, PA)):
                bl.append(f'v_cndmask_b32_dpp v{r}, v{r}, v{r}, vcc wave_shr:1 row_mask:0xf bank_mask:0xf')
                if n == 1:
                    bl.append(f's_lshr_b64 {TG}, {TG}, 1')
                if n == 3:
                    bl.append(f's_andn2_b64 {TMP}, {TMP}, {TG}')
            bl += [f's_mov_b64 exec, {CM[h]}',
                   f's_cbranch_scc0 L2_d{u}'] + flush_pend(TMP) + [f's_mov_b64 exec, {CM[h]}', f's_branch L2_d{u}']
            ool.append(bl)

    def inj_on(b, h):
        if CFG['ab_nofix'] == 1:
            return False
        if st.get('last') and b >= CFG['injl']:
            return True
        if CFG['injm']:
            return CFG['injm'][2 * (b % NB) + h] == '1'
        return (2 * (b % NB) + h) % CFG['injs'] == 0

    def inject(b, h):
        m = INJ1 if h else INJ
        a(f's_and_b64 exec, {m}, {PEND}')
        a(f'{MF} {vr(X[h], 4)}, {vr(NID, 2)}, {vr(P, 2)}, 0')
        a(f'v_mov_b32 v{AO(b)[h]}, v{PA}')
        a(f's_andn2_b64 {PEND}, {PEND}, {m}')
        a(f'{MF} {vr(X[h], 4)}, {vr(ID, 2)}, {vr(P + 2, 2)}, {vr(X[h], 4)}')
        a('s_mov_b64 exec, -1')

    def step_a(b):
        a.wait_lg(('m', b))
        for h in (1, 0):
            a(f'{MF} {vr(X[h], 4)}, {vr(WD, 2)}, {vr(MR[ring(b)][h], 2)}, 0')
        if not CFG['cpos']:
            dec_c2(b)
        if CFG['gearly'] == 4:
            for x in reversed(gs.get(b, [])):
                gather(x, b, noao=True, NV0=xd)
        for h in (1, 0):
            if inj_on(b, h):
                a(f'v_cmp_lt_u32 {INJ1 if h else INJ}, v{KAD}, v{AO(b)[h]}')
        for h in (1, 0):
            if CFG['pkmul']:
                for n in (0, 2):
                    a(f'v_pk_mul_f32 {vr(X[h] + n, 2)}, {vr(X[h] + n, 2)}, {vr(C[0], 2)} op_sel:[0,{h}] op_sel_hi:[1,{h}]')
            else:
                for n in range(4):
                    a(f'v_mul_f32 v{X[h] + n}, v{C[h]}, v{X[h] + n}')

    SB = CFG['sbar']
    sT0, sT1 = 56, 57

    def sb_arrive(c):
        a('s_mov_b64 exec, 1')
        a(f'ds_inc_u32 v{KAD}, v{KF0} offset:{161920 - 0x1fff8 + 8 * c}')
        a('s_mov_b64 exec, -1')

    def sb_look(c):
        a(f'ds_read_b32 v{RT}, v{KAD} offset:{161920 - 0x1fff8 + 8 * c}', tag='sb')

    def sb_wait(c):
        uid[0] += 1
        u = uid[0]
        a(f's_lshl_b32 s3, s{sPH}, 4')
        if c:
            a('s_add_u32 s3, s3, 16')
        a.wait_lg('sb')
        a.label(f'L2_w{u}')
        a(f'v_cmp_gt_u32 vcc, s3, v{RT}')
        a(f's_cbranch_vccnz L2_v{u}')
        ool.append([f'L2_v{u}:', f'ds_read_b32 v{RT}, v{KAD} offset:{161920 - 0x1fff8 + 8 * c}', 's_waitcnt lgkmcnt(0)', f's_branch L2_w{u}'])

    def step_b(b, final=False, mid=None, nogather=False):
        GE = CFG['gearly'] and not final and not nogather
        keep = GE and CFG['gearly'] >= 3 and gs.get(b)
        if GE and not (CFG['gearly'] == 4 and b >= 0):
            for x in reversed(gs.get(b, [])) if keep else gs.get(b, []):
                gather(x, b, noao=True, NV0=xd if keep else NV)
        a.wait_lg('x')

        def rd(h):
            if CFG['injearly'] == 2 and h == 1:
                for k in (1, 0):
                    if inj_on(b, k):
                        inject(b, k)
            if not CFG['injearly'] and inj_on(b, h):
                inject(b, h)
            a(f'ds_read_b64 {vr(OLD[h], 2)}, v{AO(b)[h]} offset:{G.A_OFFS}', tag=('o', h))
        if CFG['chk'] == 1:
            check2(b - 1)
        elif CFG['chk'] == 2:
            check2(b - 1, lambda: rd(1))
        else:
            for h in (1, 0):
                check(b - 1, h)
                if CFG['injearly'] and inj_on(b, h):
                    inject(b, h)
                if CFG['chk'] == 3 and h == 1:
                    rd(1)
        if CFG['chk'] < 2:
            rd(1)
        rd(0)
        if not final:
            if nogather:
                a.wait_vm([('R', 0)])
            elif not GE:
                for x in gs.get(b, []):
                    gather(x, b)
            elif keep:
                for h in range(2):
                    g, k = slot(b + 1, h)
                    a(f'v_bitop3_b32 v{AO(b + 1)[h]}, v{W[g] + k}, v{KAD}, v{(xd, NV)[h]} bitop3:{ANDOR:#x}')
                ao_done.add(b + 1)
            elif CFG['gearly'] >= 2:
                dec_ao(b + 1)
                ao_done.add(b + 1)
            if CFG['cpos'] == 1:
                dec_c1(b + 1)
                dec_c2(b + 1)
            elif CFG['cpos'] == 2:
                dec_c1(b + 1)
            mid()
        if CFG['wprio']:
            a('s_setprio 3')
        if not CFG['osep']:
            a.wait_lg(('o', 0), ('o', 1))
        for h in (1, 0):
            a.wait_lg(('o', h))
            a(f'{MF} {vr(X[h], 4)}, {vr(ID, 2)}, {vr(OLD[h], 2)}, {vr(X[h], 4)}')
        if not final:
            dec_ao(b + 1)
            if not CFG['cpos']:
                dec_c1(b + 1)
            elif CFG['cpos'] == 2:
                dec_c2(b + 1)
        for h in (1, 0):
            a(f'v_cvt_pk_bf16_f32 v{X[h]}, v{X[h]}, v{X[h] + 1}')
            a(f'v_cvt_pk_bf16_f32 v{X[h] + 1}, v{X[h] + 2}, v{X[h] + 3}')
            a(f'ds_wrxchg_rtn_b64 {vr(OLD2[h], 2)}, v{AO(b)[h]}, {vr(X[h], 2)} offset:{G.A_OFFS}', tag='x')

    def stamp(i):
        if not CFG['stamp']:
            return
        a('s_memtime s[70:71]')
        a('s_waitcnt lgkmcnt(0)')
        a('s_sub_u32 s72, s70, s73')
        a('s_mov_b32 s73, s70')
        a(f's_add_u32 s{60 + i}, s{60 + i}, s72')

    ipos = [int(x) for x in CFG['ipos'].split()]
    fpos = [int(x) for x in CFG['fpos'].split()]
    fmpos = [int(x) for x in CFG['fmpos'].split()]

    ipos2 = [int(x) for x in CFG['ipos2'].split()]
    fpos2 = [int(x) for x in CFG['fpos2'].split()]

    def load_own(g):
        if g == 0:
            a('s_mov_b32 s6, 0xaaaaaaaa')
            a('s_mov_b32 s7, 0xaaaaaaaa')
        ai = st.get('ai') or AI
        a(f'v_and_b32 v{ai}, 0x0fffffff, v{EC[g]}')
        issue_rec(g, ai)
    def poll(level, lab):
        if level == 2:
            a(f's_mov_b32 exec_lo, s56')
            a('s_mov_b32 exec_hi, 0')
        else:
            a('s_mov_b64 exec, 0xffff')
        a.label(lab)
        a(f'buffer_load_dword v{RT}, v{PA}, s[60:63], 0 offen sc1')
        a('s_waitcnt vmcnt(0)')
        a(f'v_cmpx_gt_u32 vcc, {level}, v{RT}')
        a(f's_cbranch_vccnz {lab}s')
        ool.append([f'{lab}s:', f's_sleep {CFG["slp%d" % level]}', f's_branch {lab}'])
        a('s_mov_b64 exec, -1')

    def signal(level, tmp, adr):
        uid[0] += 1
        a(f's_cmp_lg_u32 s{sW}, 0')
        a(f's_cbranch_scc1 L2_sg{uid[0]}')
        vm, nvm = list(a.vm), a.nvm
        a('s_mov_b32 exec_hi, 0')
        a(f'v_mov_b32 v{tmp}, {level}')
        a(f'buffer_store_dword v{tmp}, v{adr}, s[60:63], s57 offen sc1')
        a('s_mov_b64 exec, -1')
        a.vm, a.nvm = vm, nvm
        a.label(f'L2_sg{uid[0]}')

    if P1:
        T16, sE = 0, 56
        a(f'v_lshlrev_b32 v3, 3, v{T16}')
        a('v_and_b32 v3, 0x80, v3')
        a(f's_cmp_lg_u32 s{sW}, {99 if CFG["ab"] & 16 else 15}')
        a('s_cbranch_scc1 L2_k0')
        vm, nvm = list(a.vm), a.nvm
        a('s_mov_b64 exec, 3')
        a('buffer_load_dword v3, v3, s[68:71], 0 offen sc1')
        a('s_mov_b64 exec, -1')
        a.vm, a.nvm = vm, nvm
        a.label('L2_k0')
        yield
        a('v_and_b32_dpp v3, v3, v3 quad_perm:[1,0,3,2] row_mask:0xf bank_mask:0xf')
        yield
        a(f'v_readlane_b32 s{sE}, v10, 15')
        a(f's_xor_b32 s{sE}, s{sE}, 0x80')
        yield
        a('s_load_dwordx2 s[28:29], s[0:1], 0')
        a('s_load_dwordx2 s[50:51], s[0:1], 40')
        a('s_load_dwordx2 s[52:53], s[0:1], 24')
        yield
        a('s_load_dwordx4 s[96:99], s[50:51], 0')
        a('s_mov_b64 s[4:5], s[52:53]')
        a(f's_bfe_u32 s{sQ}, s2, 0x20001')
        a(f's_and_b32 s{sOB}, s2, 1')
        a(f's_lshl_b32 s{sOB}, s{sOB}, 5')
        a('s_lshr_b32 s3, s2, 3')
        a(f's_add_u32 s{sOB}, s{sOB}, s3')
        a(f's_mul_i32 s{sTab}, s{sQ}, 2080')
        a(f's_lshl_b32 s3, s{sOB}, 5')
        a(f's_add_u32 s{sTab}, s{sTab}, s3')
        a(f's_mul_i32 s{sMD}, s{sQ}, {16 * 81920}')
        next_m(0)
        a(f's_lshl_b32 s{sM0}, s{sW}, 11')
        a(f's_mul_i32 s100, s{sW}, 3072')
        G.srd(a, 8, 30, G.REC_OFF, G.REC_SZ)
        G.srd(a, 12, 30, G.TAB_OFF, G.TAB_SZ)
        G.srd(a, 16, 64, 0, 32)
        G.srd(a, 24, 28, 0, G.E * 8)
        yield
        a(f'v_and_b32 v13, 0x3f0, v{T16}')
        a('v_and_b32 v14, 0x300, v13')
        a('v_bfe_u32 v15, v13, 4, 4')
        a(f's_lshl_b32 s3, s{sW}, 4')
        a('v_add3_u32 v14, v14, v15, s3')
        a(f'v_mul_u32_u24 v{CBA}, {G.BLK}, v14')
        a('v_lshrrev_b32 v14, 6, v13')
        a('s_add_u32 s3, s3, 0x400')
        a('v_add_u32 v14, s3, v14')
        a(f'v_mul_u32_u24 v{CBB}, {G.BLK}, v14')
        a('v_and_b32 v14, 3, v14')
        a('v_and_b32 v15, 0x30, v13')
        a('v_lshl_add_u32 v14, v14, 5, v15')
        a(f'v_add_u32 v6, v14, v{CBB}')
        a(f'v_lshl_add_u32 v5, v15, 1, v{CBA}')
        a('v_lshrrev_b32 v14, 3, v15')
        wb = P1['take'](100)
        for k in range(4):
            if not CFG['ab'] & 128:
                a(f'buffer_load_ushort v{wb + k}, v14, s[16:19], 0 offen offset:{k * 8}', tag='wd')
        a(f's_mul_i32 s3, s{sW}, 5120')
        a(f'v_add_u32 v{FA}, s3, v13')
        a('v_lshrrev_b32 v14, 2, v13')
        a(f'v_add_u32 v14, s{sM0}, v14')
        mo = [4, 2, 3, 0, 1]
        for _ in range(5):
            yield
            if 5 - len(mo) < CFG['m0s']:
                n = mo.pop(0)
                P1['take'](MP[n])
                load_m_raw(n, 0, 13)
        yield
        if not CFG['ab'] & 32:
            signal(1, 11, 14)
        store = P1['store']
        FS = CFG['fs']
        if FS:
            for n in range(10):
                a(f's_waitcnt lgkmcnt({9 - n})')
                store()
                if n == 6:
                    P1['mhook'](30)
            store = lambda: None
            G.tl_mark(a, 76, 21, 1, RT + 2)
        yield
        st['raw'] = True
        a('s_setprio 3')
        a(f'v_mov_b32 v92, v{T16}')
        a('v_mov_b32 v93, v6')
        a('v_mov_b32 v94, v13')
        a('v_mov_b32 v95, v5')
        P1['t16'](92)
        store()
        store()
        a(f'v_mov_b32 v{LA}, v14')
        a(f'v_lshl_add_u32 v{PA}, v13, 3, s{sM0}')
        a('v_lshrrev_b32 v16, 2, v15')
        a(f'v_mad_u32_u24 v{CBB}, v16, 5, v{CBB}')
        a(f'v_or_b32 v{CBB}, 0xf0000000, v{CBB}')
        a(f'v_or_b32 v{CBA}, 0xf0000000, v{CBA}')
        a(f'v_sub_u32 v{SHL}, 28, v16')
        a('v_lshrrev_b32 v17, 2, v16')
        G.ident(a, ID, 18, 17)
        G.ident(a, NID, 18, 17, neg=True)
        a(f'v_mov_b32 v{KF0}, 0xf0000000')
        a(f'v_mov_b32 v{KAD}, 0x1fff8')
        a(f'v_mov_b32 v{KCM}, 0x07ff0000')
        for n in range(4):
            a(f'v_mov_b32 v{16 + n}, 0')
        a(f'v_add_u32 v20, {G.A_BASE}, v92')
        a(f'v_add_u32 v21, 0x10000, v20')
        def zero():
            for n in range(5):
                store()
                if n == 2 and FS < 2:
                    a('s_setprio 2')
                a(f'ds_write_b128 v20, v[16:19] offset:{n * 16384}' if n < 4 else 'ds_write_b128 v21, v[16:19]')
        if FS < 2:
            zero()
        a('s_setprio 1')
        for n in range(3):
            store()
        if not FS:
            G.tl_mark(a, 76, 21, 1, RT + 2)
        a(f's_setprio {2 if min(ipos) < 0 else 0}')
        for k in range(4):
            a(f's_mov_b32 s{sP[k]}, {0x04000c0c | (k << 16):#x}')
        a(f's_mov_b32 s{sSlow}, 0')
        a(f's_mov_b32 s{sXo}, 0')
        a(f's_mov_b32 s{sPH}, 0')
        a(f's_mov_b64 {PEND}, 0')
        a(f's_mov_b64 {INJ1}, 0')
        G.srd(a, 16, 30, G.MD_OFF, G.MD_SZ)
        for n in range(8):
            a(f'v_mov_b32 v{OLD[0] + n}, 0')
        a('s_waitcnt vmcnt(0)')
        a(f'v_lshl_or_b32 v{WD}, v{wb + 1}, 16, v{wb}')
        a(f'v_lshl_or_b32 v{WD + 1}, v{wb + 3}, 16, v{wb + 2}')
        G.tl_end(a, mid=True)
        if CFG['ab'] & 64:
            a('s_endpgm')
        a('s_barrier')
        signal(2, RT, LA)
        if CFG['diag'] == 2:
            a('s_memrealtime s[94:95]')
        a(f's_mov_b64 {INJ}, 0')
        for _ in range(min(CFG['m0e'], len(mo))):
            load_m_raw(mo.pop(0), 0, 94)
        if FS == 2:
            zero()
        a(f's_cmp_eq_u32 s{sE}, 0')
        a('s_cbranch_scc1 L2_e3')
        a('v_lshlrev_b32 v16, 3, v94')
        a('v_and_b32 v16, 0x80, v16')
        a.label('L2_e4')
        a(f'buffer_load_dword v{RT}, v16, s[68:71], 0 offen sc1')
        a('s_waitcnt vmcnt(0)')
        a(f'v_cmp_gt_u32 vcc, 0x80, v{RT}')
        a('s_cbranch_vccnz L2_e4')
        a.label('L2_e3')
        poll(1, 'L2_p1')
        a(f'v_cmp_gt_u32 vcc, 2, v{RT}')
        a(f's_and_b32 s{sE}, vcc_lo, 0xffff')
        for k in (0, 2, 1, 3):
            a(f'buffer_load_dwordx4 {vr(DA + 4 * k, 4)}, v95, s[12:15], s{sTab} offen offset:{16 * k}', tag='D')
        a(f'buffer_load_dwordx4 {vr(DB, 4)}, v93, s[12:15], s{sTab} offen', tag='D')
        while mo:
            load_m_raw(mo.pop(0), 0, 94)
        G.tl_mark(a, 76, 22, 1, RT)
        x_pre(0)
        x_list(0, EN, 0)
        x_pre(1)
        a.wait_lg('L')
        for g in range(4):
            a(f'v_mov_b32 v{EC[g]}, v{EN[g]}')
        x_list(1, EN, 1)
        for n in (4, 2, 3, 0, 1):
            fill(n)
        G.tl_mark(a, 76, 23, 1, RT)
        if CFG['r0pre']:
            a(f's_cmp_eq_u32 s{sE}, 0')
            a('s_cbranch_scc1 L2_e2')
        assert CFG['r0pre']
        a(f's_mov_b32 exec_lo, s{sE}')
        a('s_mov_b32 exec_hi, 0')
        a(f'buffer_load_dword v{RT}, v{PA}, s[60:63], 0 offen sc1')
        a('s_mov_b64 exec, -1')
        a('s_waitcnt vmcnt(0)')
        a(f'v_cmp_gt_u32 vcc, 2, v{RT}')
        a(f's_and_b32 s{sE}, vcc_lo, s{sE}')
        a('s_cbranch_scc0 L2_e2')
        for n in (4, 2, 3, 0, 1):
            load_m_raw(n, 1, 94)
        poll(2, 'L2_p2')
        a.label('L2_e2')
        G.tl_start(a, mid=True)
        load_own(0)
        for g in range(1, 4):
            if ipos[g - 1] < 0:
                a(f's_setprio {max(0, 2 - g)}')
                load_own(g)
        if CFG['r0pre']:
            a('s_waitcnt lgkmcnt(0)')
            a('s_barrier')
            G.tl_mark(a, 76, 24, 1, RT + 2)
    else:
        if CFG['stamp']:
            for i in range(8):
                a(f's_mov_b32 s{60 + i}, 0')
            a('s_mov_b32 s73, 0')
            stamp(7)
            a('s_mov_b32 s67, 0')

        for n in range(8):
            a(f'v_mov_b32 v{OLD[0] + n}, 0')
        a(f'v_add_u32 v24, {G.A_BASE}, v24')
        for n in range(4):
            a(f'ds_write_b128 v24, {vr(OLD[0], 4)} offset:{n * 16384}')
        a(f'v_add_u32 v{AI}, 0x10000, v24')
        a(f'ds_write_b128 v{AI}, {vr(OLD[0], 4)}')
        G.tl_mark(a, 76, 21, 1, RT)
        a.wait_vm('D')
        G.tl_mark(a, 76, 22, 1, RT)
        if CFG['dq']:
            Z = 26
            for src, dst, bit, qp, ev in ((DA, Z, 1, '[1,0,3,2]', 0x55555555), (Z, DA, 2, '[2,3,0,1]', 0x33333333)):
                for par in range(2):
                    m = ev if par == 0 else ev ^ 0xffffffff
                    a(f's_mov_b32 vcc_lo, {m:#x}')
                    a(f's_mov_b32 vcc_hi, {m:#x}')
                    n = 0
                    for k in range(4):
                        if bool(k & bit) != bool(par):
                            continue
                        for r in range(4):
                            a(f'v_cndmask_b32_dpp v{dst + 4 * k + r}, v{src + 4 * (k ^ bit) + r}, v{src + 4 * k + r}, vcc quad_perm:{qp} row_mask:0xf bank_mask:0xf')
                            n += 1
                            if CFG['dq'] == 2 and n % 2 == 0:
                                a(f'v_mov_b32 v{RT}, 0')
                                a(f'v_mov_b32 v{RT + 1}, 0')
        x_pre(0)
        x_list(0, EN, 0)
        x_pre(1)
        a.wait_lg('L')
        G.tl_mark(a, 76, 23, 1, RT)
        for g in range(4):
            a(f'v_mov_b32 v{EC[g]}, v{EN[g]}')
        if CFG['pprio'] < 2:
            load_own(0)
        for g in range(1, 4):
            fill((4, 2, 3)[g - 1])
            if ipos[g - 1] < 0 or CFG['ab_norec']:
                load_own(g)
        x_list(1, EN, 1)
        fill(0)
        fill(1)
        if CFG['pprio'] == 2:
            load_own(0)
        a('s_waitcnt lgkmcnt(0)')
        G.tl_mark(a, 76, 24, 1, RT)
        if CFG['ab_norec']:
            a('s_waitcnt vmcnt(0)')
        stamp(0)
    st['inloop'] = True
    if CFG['mpf']:
        a(f's_cmp_lt_u32 s{sW}, 10')
        a('s_cselect_b64 s[72:73], 3, 0')
        a('s_lshr_b32 s3, s2, 3')
        a('s_mul_i32 s74, s3, 2560')
        a(f's_mul_i32 s3, s{sW}, {256 - 65536}')
        a('s_add_u32 s74, s74, s3')
        a(f's_add_u32 s74, s74, {0xf0000000 + G.MD_OFF - G.REC_OFF:#x}')
        a(f's_mov_b32 s10, {G.REC_SZ + G.MD_SZ:#x}')
    prio1 = [int(x) for x in CFG['pr'].split()]
    sites = []
    FW, FM, FD, FL, FG = 48, [108, 112], [116, 117], [118, 119], [120, 121]

    def fin_preload():
        a(f's_lshl_b32 s3, s{sW}, 12')
        a(f'v_subrev_u32 v122, s3, v{FA}')
        a(f's_mul_i32 s3, s{sQ}, 20000')
        a(f'v_add_u32 v{FL[0]}, s3, v122')
        a(f'v_add_u32 v{FL[1]}, 0x4000, v{FL[0]}')
        a(f's_lshl_b32 s3, s{sOB}, 7')
        for r in range(2):
            a(f'v_lshrrev_b32 v123, 7, v{FL[r]}')
            a(f'v_and_b32 v{FG[r]}, 0x70, v{FL[r]}')
            a(f'v_lshl_add_u32 v{FG[r]}, v123, 13, v{FG[r]}')
            a(f'v_add_u32 v{FG[r]}, s3, v{FG[r]}')
        a(f'v_cmp_le_u32 vcc, {20000 - 16384}, v122')
        a('s_mov_b64 exec, vcc')
        a(f'v_mov_b32 v{FL[1]}, 2.0')
        a(f'v_mov_b32 v{FG[1]}, 2.0')
        a('s_mov_b64 exec, -1')
        a('v_and_b32 v123, 0x30, v122')
        a('v_lshlrev_b32 v123, 2, v123')
        a(f'buffer_load_dwordx4 {vr(FW, 4)}, v123, s[24:27], 0 offen', tag='fin')
        a(f'buffer_load_dwordx4 {vr(FW + 4, 4)}, v123, s[24:27], 0 offen offset:16', tag='fin')
        a(f'buffer_load_dwordx2 {vr(FW + 8, 2)}, v123, s[24:27], 0 offen offset:32', tag='fin')
        G.srd(a, 12, 4, 0, G.E * 2)
        G.srd(a, 16, 28, 0, G.E * 8)
        for r in range(2):
            a(f'v_lshrrev_b32 v123, 2, v{FG[r]}')
            a(f'buffer_load_dword v{FD[r]}, v123, s[12:15], 0 offen', tag='fin')
            a(f'buffer_load_dwordx4 {vr(FM[r], 4)}, v{FG[r]}, s[16:19], 0 offen', tag='fin')

    def phase(jj, kind):
        first, more1, more2 = kind == 'first', kind != 'last', kind in ('first', 'second', 'mid')
        second = kind == 'second'
        ph['par'] = (jj * NB) & 1
        st['last'] = kind == 'last'
        a.c(f'==== phase jj={jj} {kind}')
        site = len(sites)
        sites.append(site)

        def slow_site():
            stamp(5)
            G.tl_mark(a, 76, f's{sPH}', 1, RT)
            a(f's_bitcmp1_b32 s{sSlow}, s{sPH}')
            a('s_cbranch_scc1 L2_slow')
            a.label(f'L2_ret{site}')
        if first or not SB:
            if not (first and P1) and (first or not CFG['ab'] & 1):
                a('s_barrier')
            slow_site()
        hs = [None]
        st['m0'] = None

        def dhook():
            if hs[0] is None:
                return
            if CFG['sprio']:
                a(f's_setprio {3 - hs[0]}')
            for n in (4, 2, 3, 0, 1):
                if dpos[n] == hs[0]:
                    fill(n)
                if mpos[n] < 0 and more2 and max(dpos[n], -1 - mpos[n]) == hs[0]:
                    load_m(n)
            hs[0] += 1

        def rhook(pos):
            if FOLD and not CFG['ab'] & 512:
                if pos == 7:
                    ovf_load(XN[jj & 1], X[0] if first else MP[OP])
                if pos == (7 if first else mpos[OP]):
                    ovf_run(XN[jj & 1], X[0] if first else MP[OP])
            if first and not CFG['ab_norec']:
                if pos == 7 and CFG['pprio'] == 3:
                    load_own(0)
                for g in range(1, 4):
                    if ipos[g - 1] == pos:
                        load_own(g)
            elif second:
                for g in range(1, 3):
                    if fpos[g] == 9 and ipos2[g - 1] == pos:
                        load_own(g)
                if ipos2[2] == pos:
                    load_rec(3)
            elif rpos[3] in (pos, pos + 8) and rpos[3] < 10:
                load_rec(3)
            if not more1:
                if pos == CFG['finp'] and CFG['fuse']:
                    fin_preload()
                return
            for n in (4, 2, 3, 0, 1):
                if (fmpos if first else mpos)[n] == pos and not (first and P1):
                    load_m(n)
                elif first and P1 and fmpos[n] == pos:
                    uid[0] += 1
                    a(f'v_and_b32 v{AI}, 0x3f0, v{FA}')
                    a('s_cmp_lg_u32 s56, 0')
                    a(f's_cbranch_scc1 L2_m{uid[0]}')
                    vm, nvm = list(a.vm), a.nvm
                    load_m_raw(n, 1, AI)
                    a.vm, a.nvm = vm, nvm
                    st[('rawn', n)] = a.nvm
                    a.label(f'L2_m{uid[0]}')
            if pos == b1_step - 1:
                next_m(jj + 1)
            for g in range(3):
                if (fpos if first else fpos2 if second else rpos)[g] == pos:
                    load_rec(g)
                if first and fpos[g] == 9 and pos == b1_step:
                    a(f'v_mov_b32 v{EC[g]}, v{EN[g]}')

        for i, b in enumerate(order if SB else []):
            if i == 0 or prio1[i] != prio1[i - 1]:
                a(f's_setprio {prio1[i]}')
            if b >= 0:
                step_a(b)
            if b == CFG['xpre'] and more2:
                x_pre((jj + 2) & 3)
            if b >= 0 or first:
                rhook(b & 7)
            if first and b < 0:
                gather(0, -1)
                dec_ao(0)
                dec_c1(0)
            elif b < 0:
                step_b(b, mid=lambda: sb_look(0), nogather=True)
                sb_wait(0)
                slow_site()
                gather(0, -1, RT, RT + 1, True)
                st['ai'] = RT
                rhook(7)
                st['ai'] = None
            elif b == b1_step - 1 and more1:
                step_b(b, mid=lambda: sb_arrive(1))
            elif b == b1_step and more1:
                step_b(b, mid=lambda: sb_look(1))
            else:
                step_b(b, mid=lambda: None)
            if more1 and not first:
                for g in range(3 if second else 0, 4):
                    if rpos[g] == 10 + b and b < b1_step:
                        load_rec(g, RT)
            if b == b1_step and more1:
                if SB == 2:
                    step_a(LB)
                sb_wait(1)
                hs[0] = 0
                dhook()
                if more2:
                    x_list((jj + 2) & 3, EN, 2)
                else:
                    a(f'v_mov_b32 v{ES}, v{EN[3]}')
                for _ in range(3):
                    dhook()
                sb_arrive(0)
                a(f's_add_u32 s{sPH}, s{sPH}, 1')
                if rpos[3] == 10 + b and not first:
                    a.wait_lg('L')
                    load_rec(3, RT)
        if SB:
            if SB == 1 or not more1:
                step_a(LB)
            return
        for i, b in enumerate(order):
            if b == b1_step and more1:
                a.wait_lg(('m', LB), ('m', LB - 1))
                stamp(1)
                if not CFG['ab'] & 2:
                    a('s_barrier')
                stamp(2)
                hs[0] = 0
                dhook()
            if (i == 0 or prio1[i] != prio1[i - 1] or CFG['wprio']) and not (CFG['sprio'] and b == b1_step):
                a(f's_setprio {prio1[i]}')
            hf = CFG['gearly'] == 4 and b != b1_step
            if b >= 0 and not hf:
                step_a(b)
            if FOLD:
                assert CFG['xpre'] >= mpos[OP] >= 0 and CFG['finp'] >= mpos[OP]
                rhook(b & 7)
            if b == CFG['xpre'] and more2 and not CFG['ab'] & 4:
                x_pre((jj + 2) & 3)
            if not FOLD:
                rhook(b & 7)
            if b >= 0 and hf:
                assert CFG['cpos']
                step_a(b)
            if b == b1_step and more2 and not CFG['ab'] & 4:
                x_list((jj + 2) & 3, EN, 2)
            elif b == b1_step and more1:
                a(f'v_mov_b32 v{ES}, v{EN[3]}')
            dhook()
            if first and b < 0:
                gather(0, -1)
                dec_ao(0)
                dec_c1(0)
                if CFG['cpos']:
                    dec_c2(0)
            else:
                step_b(b, mid=dhook)
            if more1 and not first:
                for g in range(3 if second else 0, 4):
                    if rpos[g] == 10 + b:
                        load_rec(g, RT)
            dhook()
        step_a(LB)
        if more1:
            assert hs[0] > max(dpos)
            a(f's_add_u32 s{sPH}, s{sPH}, 1')
            a.wait_lg('F')
            stamp(4)

    phase(0, 'first')
    st['raw'] = False
    if P1:
        G.srd(a, 24, 30, G.WT_OFF, G.WT_SZ)
    phase(1, 'second')
    a.vm = merge_vm(a.vm, G.MEMO.get('back', []))
    head_vm, head_lg = list(a.vm), list(a.lg)
    a.label('L2_loop')
    for jj in (2, 3, 0, 1):
        phase(jj, 'mid')
    assert 'back' not in G.MEMO or merge_vm(head_vm, a.vm) == head_vm, (a.vm, head_vm)
    G.MEMO['back'] = list(a.vm)
    assert a.lg == head_lg
    a(f's_cmp_lg_u32 s{sPH}, 14')
    a('s_cbranch_scc1 L2_loop')
    phase(2, 'penult')
    phase(3, 'last')
    step_b(LB, final=True)
    a.wait_lg('x')
    check(LB, 1)
    check(LB, 0)
    if CFG['drain']:
        a(f's_mov_b64 exec, {PEND}')
        a(f'ds_read_b64 {vr(OLD[0], 2)}, v{PA} offset:{G.A_OFFS}')
        a(f'{MF} {vr(X[0], 4)}, {vr(NID, 2)}, {vr(P, 2)}, 0')
        a(f'{MF} {vr(X[0], 4)}, {vr(ID, 2)}, {vr(P + 2, 2)}, {vr(X[0], 4)}')
        a('s_waitcnt lgkmcnt(0)')
        a(f'{MF} {vr(X[0], 4)}, {vr(ID, 2)}, {vr(OLD[0], 2)}, {vr(X[0], 4)}')
        a(f'v_mov_b64 {vr(P, 2)}, {vr(OLD[0], 2)}')
        a(f'v_cvt_pk_bf16_f32 v{X[0]}, v{X[0]}, v{X[0] + 1}')
        a(f'v_cvt_pk_bf16_f32 v{X[0] + 1}, v{X[0] + 2}, v{X[0] + 3}')
        a(f'ds_wrxchg_rtn_b64 {vr(P + 2, 2)}, v{PA}, {vr(X[0], 2)} offset:{G.A_OFFS}')
        a('s_waitcnt lgkmcnt(0)')
        a(f'v_cmp_ne_u64 {PEND}, {vr(P + 2, 2)}, {vr(P, 2)}')
    for ln in flush_pend(PEND):
        a(ln)
    a('s_mov_b64 exec, -1')
    if True:
        a('s_load_dwordx2 s[4:5], s[0:1], 88')
        a('v_add_u32 v123, 0x4000, v122')
        for n in range(4):
            a(f's_lshl_b32 s{50 + 2 * n}, s{96 + n}, 16')
            a(f's_and_b32 s{51 + 2 * n}, s{96 + n}, 0xffff0000')
        a('s_waitcnt vmcnt(0) lgkmcnt(0)')
        a('s_barrier')
        G.tl_mark(a, 76, 16, 1, 106)
        GH = [80, 16]
        PL = [32, 60]
        WX = CFG['wavex']
        G.srd(a, 8, 30, G.FLAG_OFF, G.FLAG_SZ)
        G.srd(a, 12, 4, 0, G.E * 8)
        G.srd(a, 20, 30, G.PART_OFF, G.PART_SZ)
        a(f's_lshl2_add_u32 s4, s{sOB}, s{sQ}')
        a('s_mul_i32 s4, s4, 81920')
        for k in range(1, 4):
            a(f's_add_u32 s3, s{sQ}, {k}')
            a('s_and_b32 s3, s3, 3')
            a(f's_mul_i32 s{35 + k}, s3, 20000')
            a(f's_add_u32 s{35 + k}, s{35 + k}, {G.A_BASE}')
            a(f's_mul_i32 s{39 + k}, s3, 20480')
            a(f's_add_u32 s{39 + k}, s{39 + k}, s4')
            a(f's_lshl2_add_u32 s3, s{sOB}, s3')
            a('s_mul_i32 s3, s3, 81920')
            a(f's_mul_i32 s{43 + k}, s{sQ}, 20480')
            a(f's_add_u32 s{43 + k}, s{43 + k}, s3')
        SB_ = [[16, 20, 24], [36, 40, 44]]
        for r in range(2):
            if r:
                a(f's_cmp_ge_u32 s{sW}, 4')
                a('s_cbranch_scc1 L2_g0')
            for k in range(1, 4):
                a(f'v_add_u32 v104, s{35 + k}, v{122 + r}')
                a(f'ds_read_b128 {vr(SB_[r][k - 1], 4)}, v104')
            for k in range(1, 4):
                a(f's_waitcnt lgkmcnt({3 - k})')
                a(f'buffer_store_dwordx4 {vr(SB_[r][k - 1], 4)}, v{122 + r}, s[20:23], s{39 + k} offen sc1')
        a.label('L2_g0')
        if WX != 2:
            G.fin_gates(a, FD[0], 50, FW, GH[0], 60)
        a(f's_lshl_b32 s3, s{sOB}, 9')
        if WX:
            a(f's_lshl2_add_u32 s3, s{sW}, s3')
        a(f's_lshl_b32 s4, s{sQ}, 7')
        a('s_add_u32 s4, s4, s3')
        a('v_mov_b32 v104, 1')
        a('v_and_b32 v105, 0x3f0, v122')
        a('v_lshlrev_b32 v105, 3, v105')
        if WX != 2:
            for r in range(2):
                a(f'v_add_u32 v106, {G.A_BASE}, v{FL[r]}')
                a(f'ds_read_b128 {vr(PL[r], 4)}, v106')
        a('s_waitcnt vmcnt(0)')
        if not WX:
            a('s_barrier')
        G.tl_mark(a, 76, 18, 1, 106)
        if not WX:
            a(f's_cmp_lg_u32 s{sW}, 0')
            a('s_cbranch_scc1 L2_f2')
        a('s_mov_b64 exec, 1')
        a('buffer_store_dword v104, off, s[8:11], s4 sc1')
        if WX == 2:
            a('s_mov_b64 exec, -1')
            G.fin_gates(a, FD[0], 50, FW, GH[0], 60)
            for r in range(2):
                a(f'v_add_u32 v106, {G.A_BASE}, v{FL[r]}')
                a(f'ds_read_b128 {vr(PL[r], 4)}, v106')
        a('s_mov_b64 exec, 15')
        a(f's_bitset0_b64 exec, s{sQ}')
        a.label('L2_f3')
        a('buffer_load_dword v104, v105, s[8:11], s3 offen sc1')
        a('s_waitcnt vmcnt(0)')
        a('v_cmp_ne_u32 vcc, 1, v104')
        a('s_cbranch_vccnz L2_f3s')
        ool.append(['L2_f3s:'] + ([f's_sleep {CFG["slp3"]}'] if CFG['slp3'] else []) + ['s_branch L2_f3'])
        a('s_mov_b64 exec, -1')
        if not WX:
            a.label('L2_f2')
            a('s_barrier')
        G.tl_mark(a, 76, 19, 1, 106)
        for r in range(2):
            if r:
                a(f's_cmp_ge_u32 s{sW}, 4')
                a('s_cbranch_scc1 L2_f5')
            for k in range(1, 4):
                a(f'buffer_load_dwordx4 {vr(PL[r] + 4 * k, 4)}, v{122 + r}, s[20:23], s{43 + k} offen sc1')
        if CFG['g1late']:
            G.fin_gates(a, FD[1], 50, FW, GH[1], (96, 0, [104, 76]))
        a.label('L2_f5')
        a('s_waitcnt vmcnt(0) lgkmcnt(0)')
        G.tl_mark(a, 76, 20, 1, 106)
        for r in range(2):
            if r:
                a(f's_cmp_ge_u32 s{sW}, 4')
                a('s_cbranch_scc1 L2_f6')
            G.fin_out(a, PL[r], GH[r], FW, ID, FM[r], 96)
            a(f'buffer_store_dwordx4 {vr(PL[r] + 4, 4)}, v{FG[r]}, s[12:15], 0 offen{CFG["out_pol"]}')
        a.label('L2_f6')
    if CFG['diag']:
        a('s_waitcnt vmcnt(0)')
        a('s_memrealtime s[76:77]')
        a('s_waitcnt lgkmcnt(0)')
        a(f's_sub_u32 s78, s{76 if CFG["diag"] == 1 else 94}, s88')
        a('s_min_u32 s78, s78, 100000')
        a.label('L2_dg')
        a('s_memrealtime s[86:87]')
        a('s_waitcnt lgkmcnt(0)')
        a('s_sub_u32 s79, s86, s76')
        a('s_cmp_lt_u32 s79, s78')
        a('s_cbranch_scc1 L2_dg')
    G.tl_end(a)
    if CFG['stamp']:
        a('s_waitcnt vmcnt(0)')
        stamp(6)
        a('s_load_dwordx2 s[74:75], s[0:1], 96')
        a('s_waitcnt lgkmcnt(0)')
        G.srd(a, 76, 74, 0, 256)
        a(f's_cmp_lg_u32 s2, {CFG["stamp"]}')
        a('s_cbranch_scc1 L2_end')
        a(f's_and_b32 s3, s{sW}, 3')
        a('s_cmp_lg_u32 s3, 0')
        a('s_cbranch_scc1 L2_end')
        a(f's_lshl_b32 s3, s{sW}, 3')
        a('v_mov_b32 v20, 0')
        for i in range(8):
            a(f'v_mov_b32 v21, s{60 + i}')
            a(f'buffer_store_dword v21, v20, s[76:79], s3 offen offset:{4 * i}')
    a.label('L2_end')
    a('s_endpgm')

    a.label('L2_slow')
    a.reset()
    sC, sS, sE, sO = 50, 51, 52, 53
    pp, t_, wa, ba, w_, b_, ao, c_, ai_ = 102, 103, 104, 105, 106, 107, 96, 97, 98
    m_ = MR[0][0]
    a(f's_lshr_b32 s{sSP}, s{sPH}, 2')
    a(f's_lshl_b32 s{sC}, s{sW}, 4')
    a(f's_and_b32 s3, s{sPH}, 3')
    a(f's_lshl_b32 s{sO}, s3, 3')
    a(f's_add_u32 s{sO}, s{sO}, s{sTab}')
    a(f's_and_b32 s3, s{sSP}, 2')
    a('s_lshl_b32 s3, s3, 1')
    a(f's_add_u32 s{sO}, s{sO}, s3')
    a(f's_and_b32 s54, s{sSP}, 1')
    a('s_lshl_b32 s54, s54, 4')
    a.label('L2_sl_seg')
    a(f's_mul_i32 s55, s{sC}, {G.BLK}')
    a(f's_and_b32 s3, s{sC}, 3')
    a('s_lshl_b32 s3, s3, 5')
    a('s_add_u32 s3, s3, s55')
    a(f's_add_u32 s3, s3, s{sO}')
    a(f'buffer_load_dword v{wa}, off, s[12:15], s3 sc1')
    a(f'buffer_load_dword v{ba}, off, s[12:15], s3 offset:32 sc1')
    a('s_waitcnt vmcnt(0)')
    a(f'v_readfirstlane_b32 s{sS}, v{wa}')
    a(f'v_readfirstlane_b32 s{sE}, v{ba}')
    a(f's_lshr_b32 s{sS}, s{sS}, s54')
    a(f's_and_b32 s{sS}, s{sS}, 0xffff')
    a(f's_lshr_b32 s{sE}, s{sE}, s54')
    a(f's_and_b32 s{sE}, s{sE}, 0xffff')
    a.label('L2_sl_rec')
    a(f's_cmp_ge_u32 s{sS}, s{sE}')
    a('s_cbranch_scc1 L2_sl_next')
    a(f'v_mbcnt_lo_u32_b32 v{pp}, -1, 0')
    a(f'v_mbcnt_hi_u32_b32 v{pp}, -1, v{pp}')
    a(f'v_add_u32 v{pp}, s{sS}, v{pp}')
    a(f'v_and_b32 v{t_}, -4, v{pp}')
    a(f'v_lshl_add_u32 v{wa}, v{pp}, 2, v{t_}')
    a(f'v_lshl_add_u32 v{ba}, v{t_}, 2, v{pp}')
    a(f'v_cmp_gt_u32 vcc, s{sE}, v{pp}')
    a('s_mov_b64 exec, vcc')
    a(f'buffer_load_dword v{w_}, v{wa}, s[8:11], s55 offen')
    a(f'buffer_load_ubyte v{b_}, v{ba}, s[8:11], s55 offen offset:16')
    a('s_waitcnt vmcnt(0)')
    a(f'v_lshrrev_b32 v{ai_}, 14, v{w_}')
    a(f'v_and_b32 v{ai_}, v{KAD}, v{ai_}')
    a(f'ds_read_b64 {vr(m_, 2)}, v{ai_}')
    a(f'v_perm_b32 v{c_}, v{w_}, v{b_}, s{sP[0]}')
    a(f'v_and_b32 v{ao}, v{KAD}, v{w_}')
    a(f'v_bitop3_b32 v{t_}, v{w_}, 0.5, -0.5 bitop3:{ORAND:#x}')
    a(f'v_bitop3_b32 v{c_}, v{KCM}, v{c_}, v{t_} bitop3:{SEL:#x}')
    a('s_waitcnt lgkmcnt(0)')
    a(f'{MF} {vr(RT, 4)}, {vr(WD, 2)}, {vr(m_, 2)}, 0')
    for n in range(4):
        a(f'v_mul_f32 v{RT + n}, v{c_}, v{RT + n}')
    a(f'v_cvt_pk_bf16_f32 v{RT}, v{RT}, v{RT + 1}')
    a(f'v_cvt_pk_bf16_f32 v{RT + 1}, v{RT + 2}, v{RT + 3}')
    a(f'ds_pk_add_bf16 v{ao}, v{RT} offset:{G.A_OFFS}')
    a(f'ds_pk_add_bf16 v{ao}, v{RT + 1} offset:{G.A_OFFS + 4}')
    a('s_mov_b64 exec, -1')
    a(f's_add_u32 s{sS}, s{sS}, 64')
    a('s_branch L2_sl_rec')
    a.label('L2_sl_next')
    a(f's_add_u32 s{sC}, s{sC}, 1')
    a(f's_and_b32 s3, s{sC}, 15')
    a('s_cbranch_scc1 L2_sl_seg')
    a(f's_add_u32 s{sC}, s{sC}, 240')
    a(f's_cmp_lt_u32 s{sC}, {G.NCH}')
    a('s_cbranch_scc1 L2_sl_seg')
    a('s_waitcnt lgkmcnt(0)')
    for ph, k in ((0, 0), (1, 1), (14, 6), (15, 7)):
        a(f's_cmp_eq_u32 s{sPH}, {ph}')
        a(f's_cbranch_scc1 L2_ret{k}')
    a(f's_and_b32 s3, s{sPH}, 3')
    for ph, k in ((2, 2), (3, 3), (0, 4)):
        a(f's_cmp_eq_u32 s3, {ph}')
        a(f's_cbranch_scc1 L2_ret{k}')
    a('s_branch L2_ret5')
    for bl in ool:
        for ln in bl:
            if ln.endswith(':'):
                a.label(ln[:-1])
                a.reset()
            else:
                a(ln)
    yield name
```

```python
from asmlib import vr, sr

MF = 'v_mfma_f32_4x4x4_16b_bf16'


def gen_p1(a, G, gen_p2=None):
    name = G.NAME + '_kernel' if gen_p2 else 'gs_sort_kernel'
    CFG = G.CFG
    SEL, ANDOR = G.SEL, G.ANDOR
    srd, tl_mark = G.srd, G.tl_mark
    T, E, CH, BLK = G.T, G.E, G.CH, G.BLK
    NW, NK = 256, 5
    G.kernel_head(a, name)
    a('s_cmp_ge_u32 s2, 256')
    a('s_cbranch_scc0 L1_go')
    a('s_endpgm')
    a.label('L1_go')
    G.tl_start(a)
    if CFG['diag']:
        a('s_memrealtime s[88:89]')
    if CFG['wgx']:
        a(f's_xor_b32 s2, s2, {CFG["wgx"]}')
    a('s_load_dwordx4 s[4:7], s[0:1], 8')
    a('s_load_dwordx2 s[28:29], s[0:1], 32')
    a('s_load_dwordx2 s[30:31], s[0:1], 104')
    a('s_load_dwordx2 s[56:57], s[0:1], 96')
    a('s_load_dwordx2 s[86:87], s[0:1], 0')
    a('s_load_dwordx4 s[60:63], s[0:1], 56')
    a('s_load_dwordx4 s[64:67], s[0:1], 72')
    T16, T8, ONE, K1F, K87, KFC, K78 = 0, 1, 2, 3, 4, 5, 6
    t = list(range(7, 16))
    sW, sI, sA, sR, sT, sTmp, sI4, sA4 = 32, 33, 34, 35, 36, 37, 38, 39
    sKB, sP1, sP3, sNQ, sM10, sI5, sA5, sTK = 40, 41, 42, 43, 55, 58, 59, 84
    a('v_lshrrev_b32 v7, 6, v0')
    a(f'v_lshlrev_b32 v{T8}, 3, v0')
    a(f'v_readfirstlane_b32 s{sW}, v7')
    a(f'v_lshlrev_b32 v{T16}, 4, v0')
    IL = CFG['il']
    sX = [sI4, sA4, sI5]
    CUT = [int(x) for x in CFG['cut'].split()]
    assert sum(CUT) == 528
    C2 = len(CUT) == 6
    assert (sorted(CUT[:3]) == CUT[:3] and sorted(CUT[3:]) == CUT[3:] and max(CUT) <= (128 if C2 else 256))

    def qoff(k, j):
        if not IL:
            return ((2, j) if j >= 5 else (1, j)) if k == NK - 1 else (0, k * NW * 8 + j)
        if k == NK - 1 and j >= 5 and C2:
            return j - 2, 0
        if k == NK - 1 and j >= 5:
            return 2, 9472 + sum(CUT[::-1][:j - 5])
        return 0, (k * 8 + j) * NW
    ILW = CFG['ilw'] and IL == 1
    if ILW:
        a(f'v_and_b32 v{T8}, 0x1f8, v{T8}')
        a(f'v_lshlrev_b32 v15, 1, v{T8}')
        for v in range(4):
            if CFG['ilw'] == 1:
                a(f's_xor_b32 s3, s{sW}, {(v & 1) << 3}')
            elif CFG['ilw'] == 2:
                a(f's_lshr_b32 s3, s{sW}, 1')
                a(f's_and_b32 s44, s{sW}, 1')
                a('s_lshl_b32 s44, s44, 3')
                a('s_or_b32 s3, s3, s44')
            elif CFG['ilw'] == 3:
                a(f's_lshr_b32 s3, s{sW}, 1')
                a(f's_and_b32 s44, s{sW}, 1')
                a('s_lshl_b32 s44, s44, 3')
                a('s_or_b32 s3, s3, s44')
                a(f's_xor_b32 s3, s3, {(v & 1) << 3}')
            else:
                a(f's_xor_b32 s3, s{sW}, {(v & 2) << 2}')
            a('s_lshl_b32 s3, s3, 10')
            a(f's_lshl_b32 s{96 + v}, s2, 14')
            a(f's_add_u32 s{96 + v}, s{96 + v}, s3')
    elif IL >= 2:
        for v in range(4):
            a(f's_xor_b32 s44, s2, {v << 3 if CFG["ilx"] else 0}')
            a(f's_lshr_b32 s3, s44, {IL}')
            a(f's_lshl_b32 s{96 + v}, s3, {14 + IL}')
            a(f's_and_b32 s3, s44, {(1 << IL) - 1}')
            a('s_lshl_b32 s3, s3, 10')
            a(f's_add_u32 s{96 + v}, s{96 + v}, s3')
            a(f's_mul_i32 s3, s{sW}, {1024 * ((1 << IL) - 1)}')
            a(f's_add_u32 s{96 + v}, s{96 + v}, s3')
    else:
        a(f's_mul_i32 s{sI}, s2, {16384 if IL else CH * 4}')
        a(f's_mul_i32 s{sA}, s2, {8192 if IL else CH * 2}')
    a('s_waitcnt lgkmcnt(0)')
    srd(a, 8, 4, 0, T * 4)
    srd(a, 12, 6, 0, T * 4)
    srd(a, 16, 28, 0, T * 2)

    ren = G.MEMO.get('ren', {})
    pool = [ren.get(16 + 4 * i, 16 + 4 * i) for i in range(28)]
    items = []
    for k in range(NK):
        for o in range(4):
            items += [(k, 'I', 2 * o), (k, 'O', 2 * o), (k, 'A', o), (k, 'I', 2 * o + 1), (k, 'O', 2 * o + 1)]
    where = {}
    st = dict(next=0, tmp=0)

    def soff(base, off):
        r = 44 + st['tmp'] % 4
        st['tmp'] += 1
        a(f's_add_u32 s{r}, s{base}, {off:#x}')
        return r

    def gate(j, word):
        a(f's_cmp_le_u32 s{sNQ}, {j}')
        a(f's_cselect_b32 s{word}, 0, s{word}')

    def issue(n, limit):
        while n > 0 and st['next'] < min(limit, len(items)) and pool:
            it = items[st['next']]
            st['next'] += 1
            n -= 1
            b = pool.pop(0)
            where[it] = b
            k, kind, j = it
            lastk = k == NK - 1
            if kind == 'A':
                for h in range(2):
                    if lastk and 2 * j + h >= 5:
                        assert st.get('assigned') or not CFG['dyn']
                        gate(2 * j + h, 18)
                    bs, qo = qoff(k, 2 * j + h)
                    if bs > 2:
                        r = soff(sX[bs - 3], 0)
                        a(f's_lshr_b32 s{r}, s{r}, 1')
                    elif (IL >= 2 or ILW) and bs == 0:
                        r = soff(96 + ((2 * j + h) & 3), qo * 16384)
                        a(f's_lshr_b32 s{r}, s{r}, 1')
                    else:
                        r = soff((sA, sA4, sA5)[bs], qo * 8192)
                    a(f'buffer_load_dwordx2 {vr(b + 2 * h, 2)}, v{T8}, s[16:19], s{r} offen{CFG["ld_pol"]}', tag=it)
            else:
                s = 8 if kind == 'I' else 12
                if lastk and j >= 5:
                    gate(j, s + 2)
                bs, qo = qoff(k, j)
                r = soff((96 + (j & 3) if IL >= 2 or ILW else sI, sI4, sI5, sX[0], sX[1], sX[2])[bs], qo * 16384)
                if ILW:
                    a(f'v_lshlrev_b32 v{b}, 1, v{T8}')
                a(f'buffer_load_dwordx4 {vr(b, 4)}, v{b if ILW else T16}, s[{s}:{s+3}], s{r} offen{CFG["ld_pol"]}', tag=it)

    if not gen_p2:
        issue(CFG['p1_first'], 20)
    srd(a, 68, 62, 0, 64)
    srd(a, 72, 60, 0, 64)
    srd(a, 20, 66, 0, 32)
    srd(a, 80, 64, 0, 32)
    srd(a, 24, 30, G.WT_OFF, G.WT_SZ)
    a(f'v_lshrrev_b32 v2, 3, v{T16}')
    a('v_and_b32 v2, 6, v2')
    a(f'v_lshlrev_b32 v3, 2, v{T16}')
    a(f's_lshl_b32 s3, s{sW}, 8')
    a('s_add_u32 s3, s3, s2')
    a('s_cmp_lg_u32 s3, 254')
    a('s_cbranch_scc1 L1_wt')
    vm = list(a.vm)
    assert min(pool) <= 96 and all(b in pool for b in range(96, 128, 4))

    def load_wt(dst, s, k0):
        for k in range(4):
            a(f'buffer_load_ushort v{(dst + (k >> 1)) + 12 * (k & 1)}, v2, s[{s}:{s+3}], 0 offen offset:{(k0 + k) * 8}', tag='w')
    load_wt(96, 68, 0)
    load_wt(98, 68, 4)
    load_wt(100, 72, 0)
    load_wt(102, 72, 4)
    load_wt(104, 20, 0)
    load_wt(106, 80, 0)
    a.wait_vm('w')
    for i in range(96, 108):
        a(f'v_lshl_or_b32 v{i}, v{i + 12}, 16, v{i}')
    for n in range(3):
        a(f'buffer_store_dwordx4 {vr(96 + 4 * n, 4)}, v3, s[24:27], 0 offen offset:{16 * n} sc1', tag='st')
    a.vm = vm
    a.label('L1_wt')
    if gen_p2:
        a('s_nop 1')
        issue(CFG['p1_first'], 20)
    srd(a, 20, 30, G.REC_OFF - 16384, G.REC_SZ + 16384)
    srd(a, 24, 30, G.TAB_OFF, G.TAB_SZ)
    if CFG['tlbw']:
        a(f's_cmp_lg_u32 s{sW}, {CFG["tlbw"] - 1}')
        a(f'v_and_b32 v12, 0x30, v{T16}')
        a('s_cbranch_scc1 L1_tw')
        vm, nvm = list(a.vm), a.nvm
        a('s_lshr_b32 s3, s2, 3')
        a('v_lshl_add_u32 v12, v12, 1, s3')
        a('v_lshlrev_b32 v13, 21, v12')
        a(f's_mov_b32 s3, {12 * BLK}')
        a('v_mul_lo_u32 v12, v12, s3')
        a(f's_mov_b32 s3, {16384 + BLK - 128}')
        a('s_mov_b64 exec, 15')
        for sr_ in (8, 12, 16):
            a(f'buffer_load_dword v3, v13, s[{sr_}:{sr_ + 3}], 0 offen nt')
        a('buffer_load_dword v3, v12, s[20:23], s3 offen nt')
        a('s_mov_b64 exec, -1')
        a.vm, a.nvm = vm, nvm
        a.label('L1_tw')
    sKO = [72, 73, 85, 91, 93]
    if CFG['stp']:
        for j in range(5):
            a(f's_add_u32 s3, s{sW}, {16 * j}')
            a('s_mul_i32 s4, s3, 205')
            a('s_lshr_b32 s4, s4, 10')
            a('s_mul_i32 s5, s4, 5')
            a('s_sub_u32 s5, s3, s5')
            a('s_lshl_b32 s5, s5, 5')
            a('s_add_u32 s4, s4, s5')
            a(f's_sub_u32 s4, s4, s{sW}')
            a(f's_lshl_b32 s{sKO[j]}, s4, 10')
    srd(a, 80, 86, 0, E * 8)
    mc = {}

    MCN = CFG['mcn']
    MCP = -(-5120 // MCN)
    MCH = (MCP + 15) // 16
    sMC = sTK if MCN < 256 else 2

    def mcopy_load():
        if CFG['mc1'] == 30 and p2:
            mc['b'] = [take(108 + 4 * h) for h in range(MCH)]
            if CFG['mc0'] >= 20:
                a(f's_waitcnt vmcnt({st["nrec"] - st["tabr"]})')
                st['tabok'] = True
        else:
            mc['b'] = [pool.pop(0) for _ in range(MCH)]
        mt = 15 if CFG['mc0'] < 10 else 11
        a(f'v_lshrrev_b32 v{mt}, 2, v{T16}')
        a(f'v_and_b32 v{mt}, 0xfc, v{mt}')
        a(f's_cmp_ge_u32 s{sMC}, {MCN}')
        a('s_cselect_b32 s82, 0, s82')
        for h in range(MCH):
            a(f's_mul_i32 s3, s{sMC}, {MCP}')
            a(f's_add_u32 s3, s3, s{sW}')
            if h:
                a(f's_add_u32 s3, s3, {16 * h}')
            a('s_mul_i32 s76, s3, 52429')
            a('s_lshr_b32 s76, s76, 22')
            a('s_mul_i32 s74, s76, 80')
            a('s_sub_u32 s3, s3, s74')
            if 16 * h + 16 > MCP:
                a(f's_cmp_ge_u32 s{sW}, {MCP - 16 * h}')
                a('s_cselect_b32 s82, 0, s82')
            a('s_mul_i32 s74, s3, 205')
            a('s_lshr_b32 s74, s74, 10')
            a('s_mul_i32 s75, s74, 5')
            a('s_sub_u32 s75, s3, s75')
            if CFG['mside']:
                a('s_bfe_u32 s74, s3, 0x10004')
                a('s_lshl_b32 s74, s74, 3')
                a('s_and_b32 s48, s3, 7')
                a('s_or_b32 s74, s74, s48')
                a('s_bfe_u32 s75, s3, 0x10005')
                a('s_bfe_u32 s48, s3, 0x10003')
                a('s_lshl1_add_u32 s75, s75, s48')
                a('s_and_b32 s48, s3, 15')
                a('s_cmp_ge_u32 s3, 64')
                a('s_cselect_b32 s74, s48, s74')
                a('s_cselect_b32 s75, 4, s75')
            a('s_lshl_b32 s48, s74, 1')
            a('s_add_u32 s48, s48, s75')
            a('s_add_u32 s49, s48, s74')
            a('s_add_u32 s49, s49, 30')
            a('s_cmp_lt_u32 s75, 2')
            a('s_cselect_b32 s48, s48, s49')
            a('s_lshl_b32 s48, s48, 10')
            a('s_mul_i32 s49, s76, 80000')
            a('s_add_u32 s48, s48, s49')
            for jd in range(4):
                a(f'buffer_load_dword v{mc["b"][h] + jd}, v{mt}, s[80:83], s48 offen offset:{256 * jd}', tag='mc')

    def mhook(pos):
        if pos == CFG['mc0']:
            mcopy_load()
        if pos == CFG['mc1']:
            mcopy_store()

    def mcopy_store():
        srd(a, 80, 30, G.MD_OFF, MCP * 1024)
        a(f's_min_u32 s3, s{sMC}, {MCN - 1}')
        a(f's_mul_i32 s3, s3, {MCP * 1024}')
        a('s_add_u32 s80, s80, s3')
        a('s_addc_u32 s81, s81, 0')
        a(f's_cmp_ge_u32 s{sMC}, {MCN}')
        a('s_cselect_b32 s82, 0, s82')
        a.wait_vm('mc')
        if CFG['mc0'] > 20 and len(a.vm) <= st['nrec'] - st['tabr']:
            st['tabok'] = True
        for h in range(MCH):
            a(f'v_add_u32 v11, {h * 16384}, v{T16}')
            a(f'buffer_store_dwordx4 {vr(mc["b"][h], 4)}, v11, s[80:83], 0 offen sc1', tag='mst')
        pool.extend(mc['b'])
    a(f's_mul_i32 s{sR}, s2, {BLK}')
    a(f's_and_b32 s{sTmp}, s{sW}, 3')
    a(f's_lshl_b32 s{sTmp}, s{sTmp}, 3')
    a(f's_mov_b32 s{sT}, s{sTmp}' if CFG['tabx'] else f's_add_u32 s{sT}, s{sR}, s{sTmp}')
    a(f's_lshr_b32 s{sTmp}, s{sW}, 2')
    a(f's_mul_i32 s{sTmp}, s{sTmp}, 2080')
    a(f's_add_u32 s{sT}, s{sT}, s{sTmp}')
    a(f's_and_b32 s{sTmp}, s2, 3')
    a(f's_lshl_b32 s{sTmp}, s{sTmp}, 5')
    a(f's_add_u32 s{sT}, s{sT}, s{sTmp}')
    a('s_mul_i32 s4, s2, 5')
    a('s_add_u32 s4, s4, 8192')
    a(f's_lshl_b32 s{sI4}, s4, 14')
    a(f's_lshl_b32 s{sA4}, s4, 13')

    def assign():
        if C2:
            assert ILW and CFG['dyn'] == 2
            a(f's_and_b32 s4, s{sTK}, 127')
            a(f's_lshl_b32 s6, s{sW}, 10')
            a(f's_mov_b32 s{sNQ}, 5')
            base = 9472
            for x in range(3):
                ne, no = CUT[2 - x], CUT[5 - x]
                a('s_bitcmp1_b32 s2, 0')
                a(f's_cselect_b32 s5, {ne}, 0')
                a(f's_mov_b32 s7, {ne}')
                a(f's_cselect_b32 s7, {no}, s7')
                a('s_add_u32 s5, s5, s4')
                a(f's_add_u32 s5, s5, {base}')
                a('s_lshl_b32 s5, s5, 14')
                a(f's_add_u32 s{sX[x]}, s5, s6')
                a('s_cmp_lt_u32 s4, s7')
                a(f's_addc_u32 s{sNQ}, s{sNQ}, 0')
                base += ne + no
            return
        n3, n2, n1 = CUT
        a(f's_min_u32 s4, s{sTK}, {n3}')
        a(f's_min_u32 s5, s{sTK}, {n2}')
        a(f's_min_u32 s6, s{sTK}, {n1}')
        a('s_add_u32 s4, s4, s5')
        a('s_add_u32 s4, s4, s6')
        a(f's_add_u32 s4, s4, {8192 + 1280 - 5}')
        if IL:
            a(f's_mov_b32 s4, s{sTK}')
        a(f's_lshl_b32 s{sI5}, s4, 14')
        if ILW:
            a(f's_lshl_b32 s5, s{sW}, 10')
            a(f's_add_u32 s{sI5}, s{sI5}, s5')
        a(f's_lshr_b32 s{sA5}, s{sI5}, 1')
        a(f's_mov_b32 s{sNQ}, 5')
        for n in CUT:
            a(f's_cmp_lt_u32 s{sTK}, {n}')
            a(f's_addc_u32 s{sNQ}, s{sNQ}, 0')
    if not CFG['dyn']:
        a('s_lshr_b32 s3, s2, 1')
        a('s_and_b32 s4, s2, 1')
        a('s_lshl_b32 s4, s4, 7')
        a(f's_add_u32 s{sTK}, s3, s4')
        assign()
    a(f'v_mov_b32 v{ONE}, 1')
    a(f'v_mov_b32 v{K87}, 0x80000007')
    a(f'v_mov_b32 v{KFC}, 0xfc')
    a(f'v_mov_b32 v{K78}, 0x78')
    a(f's_mov_b32 s{sKB}, {G.KBIAS << 3}')
    a(f's_mov_b32 s{sM10}, -10000')
    a(f's_mov_b32 s{sP1}, 0x010c0c01')
    a(f's_mov_b32 s{sP3}, 0x030c0c03')
    for i in range(4):
        a(f'v_mov_b32 v{8 + i}, 0')
    a(f'ds_write_b128 v{T16}, v[8:11]')
    if gen_p2:
        srd(a, 60, 30, G.PROG_OFF, 32768)
        a('s_mov_b64 s[66:67], s[56:57]')
        a('s_lshl_b32 s57, s2, 7')
    srd(a, 68, 30, G.FLAG_OFF, 128)
    a('s_lshl_b32 s3, s2, 7')
    a('s_add_u32 s68, s68, s3')
    a('s_addc_u32 s69, s69, 0')
    a(f's_cmp_lg_u32 s{sW}, 0')
    a('s_cbranch_scc1 L1_fl')
    vm = list(a.vm)
    a(f'buffer_store_dwordx4 v[8:11], v{T16}, s[68:71], 0 offen sc1')
    if gen_p2:
        a('s_mov_b64 exec, 0xff')
        a(f'buffer_store_dwordx4 v[8:11], v{T16}, s[60:63], s57 offen sc1')
        a('s_mov_b64 exec, -1')
        if CFG['inv']:
            a('buffer_inv sc1')
    a.vm = vm
    a.label('L1_fl')
    a('s_waitcnt lgkmcnt(0)')
    a('s_barrier')

    pend_st = []
    uid = [0]

    def store(n):
        while n > 0 and pend_st:
            b, off, ko = pend_st.pop(0)
            n -= 1
            r = soff(sR, off + 16384)
            if ko:
                a(f's_add_u32 s{r}, s{r}, s{ko}')
            a(f'buffer_store_dwordx4 {vr(b, 4)}, v{st.get("t16", T16)}, s[20:23], s{r} offen{CFG["st_pol"]}', tag='st')
            pool.append(b)
            st['nrec'] = st.get('nrec', 0) + 1

    taken = []

    def take(want):
        b = pool.pop(0)
        taken.append((b, want))
        assert not ren or b == want
        return want

    def last_store():
        j = 10 - len(pend_st)
        if j < 7:
            store(1)
            return
        uid[0] += 1
        a(f's_cmp_le_u32 s{sNQ}, {j - 2}')
        a(f's_cbranch_scc1 L1_q{uid[0]}')
        vm, nvm = list(a.vm), a.nvm
        store(1)
        a.vm, a.nvm = vm, nvm
        a.label(f'L1_q{uid[0]}')
    p2 = gen_p2(a, G, dict(take=take, store=last_store, mhook=mhook, t16=lambda r: st.update(t16=r))) if gen_p2 else None

    class skip_quad:
        def __init__(self, on, j):
            self.on, self.j = on and j >= 5, j

        def __enter__(self):
            if self.on:
                uid[0] += 1
                self.l = f'L1_s{uid[0]}'
                a(f's_cmp_le_u32 s{sNQ}, {self.j}')
                a(f's_cbranch_scc1 {self.l}')

        def __exit__(self, *x):
            if self.on:
                a.label(self.l)

    for k in range(NK):
        tl_mark(a, 76, k * 6 + 4, 0, 8)
        a.c(f'==== chunk {k}: pass A')
        lim = (k + 1) * 20 + 18
        last = k == NK - 1

        def mix(n):
            for _ in range(n):
                store(1)
                issue(1, lim)
        sa = [int(x) for x in CFG['sa']]
        sb = [int(x) for x in CFG['sb']]
        la = [int(x) for x in CFG['la']]
        lb = [int(x) for x in CFG['lb']]
        if last:
            if p2:
                assert CFG['dyn'] == 2
                next(p2)
            mix(2)
        for j in range(8):
            if CFG['p1prio']:
                if j & 1 == 0:
                    a(f's_setprio {3 - j // 2}')
            if k == 0:
                if CFG['mc0'] < 0 and j == 0:
                    a('s_lshr_b32 s3, s2, 1')
                    a('s_and_b32 s4, s2, 1')
                    a('s_lshl_b32 s4, s4, 7')
                    a(f's_add_u32 s{sTK}, s3, s4')
                mhook(j - 10)
                issue(3 if j & 1 else 2, 24)
            elif not last:
                mix(sa[j])
            else:
                store(la[j])
                mhook(j)
            if CFG['dyn'] and k == NK - 2 and j == CFG['tkpos']:
                srd(a, 68, 66 if gen_p2 else 56, 0, 256)
                a('v_mov_b32 v3, 1')
                a(f's_cmp_lg_u32 s{sW}, {CFG["tkwave"]}')
                a('s_cbranch_scc1 L1_tk')
                vm = list(a.vm)
                a('s_mov_b64 exec, 1')
                if CFG['dyn'] == 2:
                    a('s_and_b32 s3, s2, 1')
                    a('s_lshl_b32 s3, s3, 7')
                    a('buffer_atomic_add v3, off, s[68:71], s3 sc0')
                else:
                    a('buffer_atomic_add v3, off, s[68:71], 0 sc0')
                a('s_mov_b64 exec, -1')
                a.vm = vm
                st['tkn'] = a.nld
                a.label('L1_tk')
            I, O, A = where[(k, 'I', j)], where[(k, 'O', j)], where[(k, 'A', j // 2)] + 2 * (j & 1)
            a.wait_vm([(k, 'I', j), (k, 'O', j), (k, 'A', j // 2)])
            with skip_quad(last, j):
                for p in range(2):
                    a(f'v_lshlrev_b32 v{t[2*p]}, 16, v{A+p}')
                    a(f'v_and_b32 v{t[2*p+1]}, 0xffff0000, v{A+p}')
                for p in range(4):
                    a(f'v_mul_f32 v{t[p]}, 0.15915494, v{t[p]}')
                for r in range(4):
                    u, x, y, ib = t[4], t[5], t[6], t[7]
                    a(f'v_mul_hi_u32_u24 v{ib}, 429497, v{I+r}')
                    a(f'v_lshrrev_b32 v{x}, 3, v{O+r}')
                    a(f'v_cos_f32 v{t[r]}, v{t[r]}')
                    a(f'v_lshlrev_b16 v{y}, 3, v{O+r}')
                    a(f'v_mad_i32_i24 v{u}, v{ib}, s{sM10}, v{I+r}')
                    a(f'v_bitop3_b32 v{x}, v{K78}, v{y}, v{x} bitop3:{SEL:#x}')
                    a(f'v_lshl_add_u32 v{u}, v{u}, 17, s{sKB}')
                    a(f'v_lshlrev_b16 v{ib}, 8, v{ib}')
                    a(f'v_lshrrev_b32 v{y}, 2, v{O+r}')
                    a(f'v_add_u32 v{I+r}, v{x}, v{u}')
                    a(f'v_bitop3_b32 v{O+r}, v{KFC}, v{y}, v{ib} bitop3:{ANDOR:#x}')
                    a(f'ds_add_u32 v{O+r}, v{ONE}')
                    if r & 1:
                        p = r >> 1
                        a(f'v_cvt_pk_bf16_f32 v{A+p}, v{t[2*p]}, v{t[2*p+1]}')
                        a(f'v_perm_b32 v{x}, v{A+p}, v{A+p}, s{sP1}')
                        a(f'v_bitop3_b32 v{I+r-1}, v{K87}, v{x}, v{I+r-1} bitop3:{SEL:#x}')
                        a(f'v_perm_b32 v{y}, v{A+p}, v{A+p}, s{sP3}')
                        a(f'v_bitop3_b32 v{I+r}, v{K87}, v{y}, v{I+r} bitop3:{SEL:#x}')
        tl_mark(a, 76, k * 6 + 0, 0, 8)
        a.c('scan')
        a(f'v_lshrrev_b32 v8, 2, v{T16}')
        a(f'v_and_b32 v7, 0x3c00, v{T16}')
        a(f'v_bitop3_b32 v7, v{KFC}, v8, v7 bitop3:{ANDOR:#x}')
        a('s_waitcnt lgkmcnt(0)')
        a('s_barrier')
        a('ds_read2st64_b32 v[8:9], v7 offset0:0 offset1:1')
        a('ds_read2st64_b32 v[10:11], v7 offset0:2 offset1:3')
        mix((lb if last else sb)[0])
        a('s_waitcnt lgkmcnt(0)')
        a('v_lshl_or_b32 v12, v9, 16, v8')
        a('v_lshl_or_b32 v13, v11, 16, v10')
        a('v_mov_b32 v14, v12')
        a('v_mov_b32 v15, v13')
        G.wave_scan(a, [14, 15])
        a('v_readlane_b32 s48, v14, 63')
        a('v_readlane_b32 s49, v15, 63')
        a(f's_lshl_b32 s54, s{sW}, 2')
        a('v_mov_b32 v8, s54')
        a('s_and_b32 s50, s48, 0xffff')
        a('s_lshr_b32 s51, s48, 16')
        a('s_and_b32 s52, s49, 0xffff')
        a('s_lshr_b32 s53, s49, 16')
        a('s_add_u32 s51, s51, s50')
        a('s_add_u32 s52, s52, s51')
        a('s_add_u32 s53, s53, s52')
        a('v_mov_b32 v9, s53')
        if last and p2:
            next(p2)
        a('s_mov_b64 exec, 1')
        a('ds_write_b32 v8, v9 offset:16384')
        if CFG['dyn'] and k == NK - 2:
            a(f's_cmp_lg_u32 s{sW}, {CFG["tkwave"]}')
            a('s_cbranch_scc1 L1_tk2')
            vm = list(a.vm)
            a(f's_waitcnt vmcnt({a.nld - st["tkn"]})')
            a.vm = vm
            a.label('L1_tk2')
            a('ds_write_b32 v8, v3 offset:16448')
        if last and p2:
            a('ds_write_b32 v8, v3 offset:16448')
        a('s_mov_b64 exec, -1')
        a('v_and_b32 v8, 60, v7')
        a('s_waitcnt lgkmcnt(0)')
        a('s_barrier')
        a('ds_read_b32 v9, v8 offset:16384')
        if (CFG['dyn'] and k == NK - 2) or (last and p2):
            a('ds_read_b32 v10, v8 offset:16448')
        mix((lb if last else sb)[1])
        a('s_waitcnt lgkmcnt(0)')
        if last and p2:
            next(p2)
        if CFG['dyn'] and k == NK - 2:
            a(f'v_readlane_b32 s{sTK}, v10, {CFG["tkwave"]}')
            if CFG['dyn'] == 2:
                a('s_and_b32 s3, s2, 1')
                a('s_lshl_b32 s3, s3, 7')
                a(f's_add_u32 s{sTK}, s{sTK}, s3')
            assign()
            st['assigned'] = True
        for sh in (1, 2, 4, 8):
            a(f'v_add_u32_dpp v9, v9, v9 row_shr:{sh} row_mask:0xf bank_mask:0xf bound_ctrl:1')
        a(f'v_readlane_b32 s54, v9, s{sW}')
        a('s_sub_u32 s54, s54, s53')
        a('s_add_u32 s50, s50, s54')
        a('s_add_u32 s51, s51, s54')
        a('s_add_u32 s52, s52, s54')
        a('s_pack_ll_b32_b16 s48, s54, s50')
        a('s_pack_ll_b32_b16 s49, s51, s52')
        a('v_add_u32 v14, s48, v14')
        a('v_add_u32 v15, s49, v15')
        a('v_sub_u32 v12, v14, v12')
        a('v_sub_u32 v13, v15, v13')
        a('v_and_b32 v8, 0xffff, v12')
        a('v_lshrrev_b32 v9, 16, v12')
        a('v_and_b32 v10, 0xffff, v13')
        a('v_lshrrev_b32 v11, 16, v13')
        a('ds_write2st64_b32 v7, v8, v9 offset0:0 offset1:1')
        a('ds_write2st64_b32 v7, v10, v11 offset0:2 offset1:3')
        if CFG['tabx']:
            a(f'v_and_b32 v8, 0x3f0, v{T16}')
            a(f'v_lshl_add_u32 v8, v8, 1, s{sT}')
            a('ds_write_b64 v8, v[12:13] offset:20480')
            a('s_bitset0_b64 exec, 63')
            a('s_not_b64 exec, exec')
            a('ds_write_b64 v8, v[14:15] offset:20512')
            a('s_mov_b64 exec, -1')
        a('s_waitcnt lgkmcnt(0)')
        a('s_barrier')
        tl_mark(a, 76, k * 6 + 1, 0, 8)
        a.c('pass B')
        for j in range(8):
            if CFG['p1prio'] and j & 1 == 0:
                a(f's_setprio {3 - j // 2}')
            O = where[(k, 'O', j)]
            with skip_quad(last, j):
                for r in range(4):
                    a(f'ds_add_rtn_u32 v{O+r}, v{O+r}, v{ONE}')
            if CFG['tabx']:
                if j == 0:
                    a(f'ds_read_b128 v[12:15], v{T16} offset:20480', tag='tab')
                    a(f'v_cmp_gt_u32 vcc, {G.TAB_CH + 128}, v{T16}')
                if j == 2:
                    uid[0] += 1
                    a.wait_lg('tab')
                    a(f's_cbranch_vccz L1_p{uid[0]}')
                    vm, nvm = list(a.vm), a.nvm
                    r = soff(sR, k * NW * BLK)
                    a('s_mov_b64 exec, vcc')
                    a(f'buffer_store_dwordx4 v[12:15], v{T16}, s[24:27], s{r} offen{CFG["st_pol"]}')
                    a('s_mov_b64 exec, -1')
                    a.vm, a.nvm = vm, nvm
                    st['tabn'] = a.nvm
                    st['tabr'] = st.get('nrec', 0)
                    a.label(f'L1_p{uid[0]}')
                if j == 3 and last and p2:
                    next(p2)
            elif j == 0:
                r = soff(sT, k * NW * BLK)
                a(f'v_and_b32 v11, 0x3f0, v{T16}')
                a('v_add_u32 v11, v11, v11')
                a(f'buffer_store_dwordx2 v[12:13], v11, s[24:27], s{r} offen', tag='tab')
                a('s_bitset0_b64 exec, 63')
                a('s_not_b64 exec, exec')
                a(f'buffer_store_dwordx2 v[14:15], v11, s[24:27], s{r} offen offset:32', tag='tab')
                a('s_mov_b64 exec, -1')
                uid[0] += 1
                a(f'v_cmp_le_u32 vcc, s{sTmp}, v{T16}')
                a(f'v_add_u32 v10, {G.TAB_CH}, v{T16}')
                a(f's_cmp_lg_u32 s{sW}, 0')
                a(f'v_cndmask_b32 v10, v{T16}, v10, vcc')
                a(f's_cbranch_scc1 L1_p{uid[0]}')
                vm, nvm = list(a.vm), a.nvm
                r = soff(sR, k * NW * BLK)
                a('s_mov_b64 exec, 0xff')
                a(f'buffer_store_dwordx4 v[12:15], v10, s[24:27], s{r} offen')
                a('s_mov_b64 exec, -1')
                a.vm, a.nvm = vm, nvm
                a.label(f'L1_p{uid[0]}')
            mix((lb if last else sb)[2 + j])
            if last:
                mhook(10 + j)
        a('s_waitcnt lgkmcnt(0)')
        a('s_barrier')
        if last and p2:
            next(p2)
        tl_mark(a, 76, k * 6 + 2, 0, 8)
        a.c('scatter')
        n0 = st['next']
        ns0 = len(pend_st)
        for j in range(8):
            if CFG['p1prio'] and j & 1 == 0:
                a(f's_setprio {3 - j // 2}')
            I, O, A = where[(k, 'I', j)], where[(k, 'O', j)], where[(k, 'A', j // 2)] + 2 * (j & 1)
            with skip_quad(last, j):
                for r in range(4):
                    x, y = t[(2 * r) % 4], t[(2 * r + 1) % 4]
                    a(f'v_and_b32 v{x}, -4, v{O+r}')
                    a(f'v_lshl_add_u32 v{y}, v{O+r}, 2, v{x}')
                    a(f'ds_write_b32 v{y}, v{I+r}')
                    a(f'v_lshl_add_u32 v{x}, v{x}, 2, v{O+r}')
                    a(f'ds_write_b8{"_d16_hi" if r & 1 else ""} v{x}, v{A + (r >> 1)} offset:16')
            pool.append(I)
            pool.append(O)
            if j & 1:
                pool.append(where[(k, 'A', j // 2)])
            nd = CFG['scd']
            store(len(pend_st) - (ns0 - (ns0 * min(j + 1, nd) + nd - 1) // nd))
            want = n0 + ((lim - n0) * min(j + 1, nd) + nd - 1) // nd
            issue(want - st['next'], lim)
            if last:
                mhook(20 + j)
            if last and p2 and j < 6:
                next(p2)
        if last and p2 and not st.get('tabok'):
            a(f's_waitcnt vmcnt({min(ns0, a.nvm - st["tabn"])})')
        stp = CFG['stp'] and not last
        fa = [7, 12, 13, 14, 15]
        if stp:
            for j in range(5):
                a(f'v_add_u32 v{fa[j]}, s{sKO[j]}, v{T16}')
            a(f's_min_i32 s3, s{sKO[0]}, s{sKO[1]}')
            for j in range(2, 5):
                a(f's_min_i32 s3, s3, s{sKO[j]}')
            a(f'v_add_u32 v3, s3, v{T16}')
        else:
            a(f'v_add_u32 v7, 0x10000, v{T16}')
            a(f'v_add_u32 v12, 0x20000, v{T16}')
        if not last:
            for i in range(4):
                a(f'v_mov_b32 v{8 + i}, 0')
        a('s_waitcnt lgkmcnt(0)')
        a('s_barrier')
        tl_mark(a, 76, k * 6 + 3, 0, 8 if last else pool[0])
        assert not pend_st
        a.c('flush')
        if last and p2 and ren:
            pool[:] = [24, 28, 32, 36, 76, 80, 84, 104, 68, 72]
        for j in range(10):
            b = pool.pop(0)
            if stp:
                a(f'ds_read_b128 {vr(b, 4)}, v{fa[j % 5]} offset:{(j // 5) * 16384}')
                if j == 4:
                    a('ds_write_b128 v3, v[8:11]')
                pend_st.append((b, k * NW * BLK + (j // 5) * 16384, sKO[j % 5]))
                continue
            base = (T16, 7, 12)[j // 4]
            a(f'ds_read_b128 {vr(b, 4)}, v{base} offset:{(j % 4) * 16384}')
            if j == 0 and not last:
                a(f'ds_write_b128 v{T16}, v[8:11]')
            pend_st.append((b, k * NW * BLK + j * 16384, None))
        if not last:
            a('s_waitcnt lgkmcnt(0)')
            a('s_barrier')
        elif p2:
            next(p2)
            a('s_waitcnt lgkmcnt(0)')
            if CFG['fs'] < 2:
                a('s_barrier')
            if not ren:
                m = dict(taken)
                rest_s = [b for b in range(16, 128, 4) if b not in m]
                rest_d = [b for b in range(16, 128, 4) if b not in m.values()]
                m.update(zip(rest_s, rest_d))
                G.MEMO['ren'] = m
            for _ in p2:
                pass
            return name
        else:
            for j in range(10):
                if j >= 7:
                    a(f's_cmp_le_u32 s{sNQ}, {j - 2}')
                    a('s_cbranch_scc1 L1_fin')
                a(f's_waitcnt lgkmcnt({9 - j})')
                store(1)
                if j == 6:
                    mhook(30)
    a.label('L1_fin')
    a.reset()
    G.tl_end(a)
    a.label('L1_end')
    a('s_endpgm')
    return name
```

```python
from asmlib import vr, sr, merge_vm

MF = 'v_mfma_f32_4x4x4_16b_bf16'


def gen_p2(a, G, P1=None):
    name = 'gs_acc_kernel'
    CFG = G.CFG
    SEL, ANDOR = G.SEL, G.ANDOR
    ORAND = 0xA8
    if not P1:
        G.kernel_head(a, name)
    DS = 1
    NR = DS + 1
    NA = 2
    LA, SHL, CBA, FA, CBB, KAD, KCM, PA = 0, 1, 2, 3, 4, 5, 6, 7
    WD, ID, NID = 8, 10, 12
    C = [14, 15]
    W = [16, 22, 28, 34]
    B = [w + 4 for w in W]
    EC = [w + 5 for w in W]
    FOLD = CFG['fold']
    NB = 7 if FOLD else 8
    LB = NB - 1
    FG_ = FOLD - 1
    if FOLD:
        B[FG_], EC[FG_] = W[FG_] + 2, W[FG_] + 3
    XN = [W[FG_] + 4, W[FG_] + 5]
    bmap = [(g, k) for g in range(4) for k in ((0,) if FOLD and g == FG_ else (0, 2))]
    ODD, sXo = 's[6:7]', 43
    EN = [40, 41, 42, 43]
    ES, KF0, NV, AI = 44, 45, 46, 47
    DA, DB = 48, 64
    OLD = [68, 70]
    OLD2 = [72, 74]
    X = [76, 80]
    P = 84
    RT = 88
    AOR = [[92, 93], [94, 95]]
    xm, xo, xa, xd = 96, 97, 98, 99
    xc, xl, xe, xt = RT, RT + 1, RT + 2, RT + 3
    MR = [[100, 102], [104, 106]]
    MP = [108 + 4 * n for n in range(5)]

    ph = dict(par=0, p=0)
    PP = CFG['pp']
    LF = ES

    def cur(g):
        return (EC, EN)[ph['p'] & 1][g] if PP else EC[g]

    def ring(b):
        return (b + ph['par']) & 1

    def AO(b):
        return AOR[ring(b)]

    def slot(b, h):
        g, k = bmap[b % NB]
        return g, k + h
    sW, sQ, sOB, sSP, sSlow, sBase, sTab, sMD, sN, sPH, sM0 = 32, 33, 34, 35, 36, 37, 39, 40, 41, 42, 38
    sP = [44, 45, 46, 47]
    PEND, TMP, INJ, OVF, INJ1 = 's[80:81]', 's[82:83]', 's[84:85]', 's[58:59]', 's[48:49]'
    rpos = [int(x) for x in CFG['rpos'].split()]
    dpos = [int(x) for x in CFG['dpos'].split()]
    mpos = [int(x) for x in CFG['mpos'].split()]
    L1K = CFG['l1k']
    OP = 0 if L1K else 1
    assert dpos[0] >= 1 and (dpos[1] >= 1 or L1K)
    order = list(range(-1, LB))
    gs = {b: [b + 1] for b in range(-1, LB - 2)}
    gs[LB - 2] = [LB - 1, LB]
    b1_step = LB - 1

    def blk(p):
        return 4 * (p & 3) + (p >> 2)

    def dblk(p):
        return ((blk(p + 1) - blk(p)) * 81920) & 0xffffffff

    def head1():
        a('s_cmp_ge_u32 s2, 256')
        a('s_cbranch_scc1 L2_end')
        G.tl_start(a)
        if CFG['pprio']:
            a('s_setprio 3')
        a('s_load_dwordx2 s[30:31], s[0:1], 104')
        a('s_load_dwordx2 s[28:29], s[0:1], 0')
        a('s_load_dwordx2 s[6:7], s[0:1], 40')
        a('v_lshrrev_b32 v16, 6, v0')
        a('v_and_b32 v17, 63, v0')
        a(f'v_readfirstlane_b32 s{sW}, v16')
        a(f's_bfe_u32 s{sQ}, s2, 0x20001')
        a(f's_and_b32 s{sOB}, s2, 1')
        a(f's_lshl_b32 s{sOB}, s{sOB}, 5')
        a('s_lshr_b32 s4, s2, 3')
        a(f's_add_u32 s{sOB}, s{sOB}, s4')
        a('v_and_b32 v22, 3, v0')
        a('v_mul_u32_u24 v19, 80, v16' if not CFG['cmap'] else 'v_lshlrev_b32 v19, 6, v16')
        if CFG['dq']:
            a('v_lshrrev_b32 v18, 2, v17')
            a('v_lshl_add_u32 v18, v22, 4, v18')
            a('v_add_u32 v18, v18, v19')
        else:
            a('v_lshrrev_b32 v18, 4, v17')
            a('v_and_b32 v19, 15, v17')
            a('v_lshl_add_u32 v18, v18, 8, v19')
            a('v_lshl_add_u32 v18, v16, 4, v18')
        a(f'v_mul_u32_u24 v{CBA}, {G.BLK}, v18')
        a('v_lshrrev_b32 v18, 2, v17')
        if CFG['cmap']:
            a('v_lshl_add_u32 v18, v16, 4, v18')
            a('v_add_u32 v18, 0x400, v18')
        else:
            a('v_add3_u32 v18, v18, v19, 64')
        a(f'v_mul_u32_u24 v{CBB}, {G.BLK}, v18')
        a(f'v_lshl_add_u32 v20, v22, 4, v{CBB}')
        a('v_and_b32 v18, 3, v18')
        a('v_lshl_add_u32 v20, v18, 5, v20')
        a(f'v_lshl_add_u32 v25, v22, 5, v{CBA}')
        a(f's_mul_i32 s{sTab}, s{sQ}, 2080')
        a(f's_lshl_b32 s3, s{sOB}, 5')
        a(f's_add_u32 s{sTab}, s{sTab}, s3')
        a(f's_mul_i32 s{sMD}, s{sQ}, {16 * 81920}')
        a(f's_mul_i32 s3, s{sW}, 5120')
        a(f'v_lshl_add_u32 v{FA}, v17, 4, s3')
        a(f's_lshl_b32 s{sM0}, s{sW}, 11')
        a(f's_mul_i32 s100, s{sW}, 3072')
        a('s_waitcnt lgkmcnt(0)')
        G.srd(a, 12, 30, G.TAB_OFF, G.TAB_SZ)
        for k in (0, 2, 1, 3) if not CFG['dq'] else range(4):
            if CFG['dq']:
                a(f'v_subrev_u32 v25, {(64 - 16 * k) * G.BLK:#x}, v20')
                a(f'buffer_load_dwordx4 {vr(DA + 4 * k, 4)}, v25, s[12:15], s{sTab} offen', tag='D')
            else:
                a(f'buffer_load_dwordx4 {vr(DA + 4 * k, 4)}, v25, s[12:15], s{sTab} offen offset:{16 * k}', tag='D')
        a(f'buffer_load_dwordx4 {vr(DB, 4)}, v20, s[12:15], s{sTab} offen', tag='D')
        if CFG['mside']:
            G.srd(a, 16, 30, G.MD_OFF - 81920, G.MD_SZ + 81920)
            a(f's_lshr_b32 s3, s{sW}, 3')
            a('s_lshl_b32 s3, s3, 13')
            a('s_sub_u32 s72, 65536, s3')
            a(f's_add_u32 s{sMD}, s{sMD}, s3')
            a(f's_lshl_b32 s3, s{sW}, 12')
            a(f's_sub_u32 s{sMD}, s{sMD}, s3')
            a(f's_add_u32 s{sMD}, s{sMD}, 81920')
        else:
            G.srd(a, 16, 30, G.MD_OFF, G.MD_SZ)
        G.srd(a, 24, 30, G.WT_OFF, G.WT_SZ)
        a('v_lshlrev_b32 v21, 6, v22')
        a(f'buffer_load_dwordx2 {vr(WD, 2)}, v21, s[24:27], 0 offen offset:40', tag='D')

    st = dict(inloop=False)

    def load_m(n):
        if CFG['ab_nom'] and st['inloop']:
            return
        if CFG['mside']:
            if n:
                a(f's_add_u32 s3, s{sMD}, {"s72" if n == 4 else (n >> 1) * 32768 + (n & 1) * 8192}')
            a(f'buffer_load_dwordx4 {vr(MP[n], 4)}, v{FA}, s[16:19], s{3 if n else sMD} offen{CFG["m_pol"]}', tag=('M', n))
        elif n == 4:
            a(f's_add_u32 s3, s{sMD}, 4096')
            a(f'buffer_load_dwordx4 {vr(MP[n], 4)}, v{FA}, s[16:19], s3 offen{CFG["m_pol"]}', tag=('M', n))
        else:
            a(f'buffer_load_dwordx4 {vr(MP[n], 4)}, v{FA}, s[16:19], s{sMD} offen offset:{n * 1024}{CFG["m_pol"]}', tag=('M', n))

    def load_m_raw(n, p, l16):
        a(f's_mul_i32 s3, s{sQ}, {16 * 80000}')
        a(f's_add_u32 s3, s3, s{sM0 if n < 2 else 100}')
        a(f's_add_u32 s3, s3, {blk(p) * 80000 + (0 if n < 2 else 32768)}')
        a(f'buffer_load_dwordx4 {vr(MP[n], 4)}, v{l16}, s[24:27], s3 offen offset:{1024 * (n if n < 2 else n - 2)}', tag=('M', n))

    def fill(n):
        a.wait_vm([('M', n)])
        if ('rawn', n) in st:
            a(f's_waitcnt vmcnt({a.nvm - st.pop(("rawn", n))})')
        if st.get('raw'):
            a(f'v_subrev_u32 v{RT}, s{100 if n < 2 else sM0}, v{FA}')
            a(f'ds_write_b128 v{RT}, {vr(MP[n], 4)} offset:{n * 1024 if n < 2 else 32768 + (n - 2) * 1024}', tag='F')
            return
        m0 = sM0 if n < 2 else 100
        if st.get('m0') != m0:
            a(f's_mov_b32 m0, s{m0}')
            st['m0'] = m0
        for jd in range(4):
            if CFG['ab'] & 8 and st['inloop']:
                continue
            a(f'ds_write_addtid_b32 v{MP[n] + jd} offset:{(n * 1024 if n < 2 else 32768 + (n - 2) * 1024) + 256 * jd}', tag='F')

    def next_m(p):
        a(f's_add_u32 s{sMD}, s{sMD}, {dblk(p):#x}')

    def head2():
        if CFG['pprio']:
            a('s_setprio 2')
        for n in (4, 2, 3, 0, 1):
            load_m(n)
        next_m(0)
        if CFG['pprio']:
            a('s_setprio 1')
        a(f'v_mad_u32_u24 v{CBB}, v22, 20, v{CBB}')
        a(f'v_or_b32 v{CBB}, 0xf0000000, v{CBB}')
        a(f'v_or_b32 v{CBA}, 0xf0000000, v{CBA}')
        a('v_lshlrev_b32 v23, 2, v22')
        a(f'v_sub_u32 v{SHL}, 28, v23')
        G.ident(a, ID, 18, 0)
        G.ident(a, NID, 18, 0, neg=True)
        a('v_lshlrev_b32 v24, 4, v0')
        a(f'v_lshl_add_u32 v{LA}, v17, 2, s{sM0}')
        a(f'v_mov_b32 v{KF0}, 0xf0000000')
        if PP:
            a(f'v_add_u32 v{LF}, s{sM0}, v{LA}')
            a(f'v_lshrrev_b32 v{LF}, 1, v{LF}')
            a(f'v_and_b32 v{LF}, -4, v{LF}')
        a(f'v_mov_b32 v{KAD}, 0x1fff8')
        a(f'v_mov_b32 v{KCM}, 0x07ff0000')
        for k in range(4):
            a(f's_mov_b32 s{sP[k]}, {0x04000c0c | (k << 16):#x}')
        a(f's_mov_b32 s{sSlow}, 0')
        a(f's_mov_b32 s{sXo}, 0')
        a(f's_mov_b32 s{sPH}, 0')
        a(f's_mov_b64 {PEND}, 0')
        a(f's_mov_b64 {INJ}, 0')
        a(f's_mov_b64 {INJ1}, 0')
        if CFG['fuse']:
            a('s_load_dwordx4 s[96:99], s[6:7], 0')
            a('s_load_dwordx2 s[4:5], s[0:1], 24')
            a('s_waitcnt lgkmcnt(0)')
        G.srd(a, 8, 30, G.REC_OFF, G.REC_SZ)

    if not P1:
        head1()
        head2()
    ool = []
    uid = [0]

    XAND = 0x6A
    sOv = 101

    def x_pre(j):
        uid[0] += 1
        u = uid[0]
        rs, re_ = DA + 2 * j, DA + 8 + 2 * j
        a.wait_vm('D')
        a(f'v_sub_u16 v{xc}, v{re_}, v{rs}')
        a(f'v_and_b32 v{xl}, 3, v{rs}')
        a(f'v_add3_u32 v{xd}, v{xc}, v{xl}, 3')
        a(f'v_and_b32 v{xd}, -4, v{xd}')
        a(f'v_max_u32 v{xd}, 4, v{xd}')
        fill = [f'v_and_b32 v{xo}, 0xfffc, v{rs}',
                f'v_bfm_b32 v{xm}, v{xc}, v{xl}',
                f'v_mad_u32_u24 v{xo}, v{xo}, 5, v{CBA}',
                f'v_cmp_lt_u32 vcc, 16, v{xd}',
                f'v_sub_u32 v{xa}, s{sM0}, v{xd}',
                f'v_lshrrev_b64 {vr(rs, 2)}, 16, {vr(rs, 2)}',
                f'v_lshrrev_b64 {vr(re_, 2)}, 16, {vr(re_, 2)}',
                f's_mov_b32 s{sOv}, 0']
        a(fill.pop(0))
        a(fill.pop(0))
        a(f'v_add_u32_dpp v{xt}, v{xd}, v{xd} row_shr:1 row_mask:0xf bank_mask:0xf bound_ctrl:1')
        for m in ('row_shr:2 row_mask:0xf bank_mask:0xf bound_ctrl:1', 'row_shr:4 row_mask:0xf bank_mask:0xf bound_ctrl:1',
                  'row_shr:8 row_mask:0xf bank_mask:0xf bound_ctrl:1', 'row_bcast:15 row_mask:0xa bank_mask:0xf',
                  'row_bcast:31 row_mask:0xc bank_mask:0xf'):
            for _ in range(2):
                if fill:
                    a(fill.pop(0))
            a(f'v_add_u32_dpp v{xt}, v{xt}, v{xt} {m}')
        a(f'v_add_u32 v{xa}, v{xa}, v{xt}')
        a(f'v_readlane_b32 s{sBase}, v{xt}, 63')
        a(f's_cbranch_vccnz L2_xo{u}')
        a.label(f'L2_xp{u}')
        ool.append([f'L2_xo{u}:',
                    f'v_cmp_lt_u32 vcc, 20, v{xd}',
                    f's_mov_b32 s{sOv}, 1',
                    f's_cbranch_vccz L2_xp{u}',
                    f'v_cmp_lt_u32 vcc, 32, v{xd}',
                    f'v_cmp_lt_u32 {OVF}, 31, v{xc}',
                    f's_mov_b32 s{sOv}, 2',
                    f's_or_b64 vcc, vcc, {OVF}',
                    f's_cbranch_scc0 L2_xp{u}',
                    f's_mov_b32 s{sBase}, 0x10000',
                    f's_branch L2_xp{u}'])

    def x_ent(f, t):
        f(f'v_lshlrev_b32 v{xl}, {28 - 4 * t}, v{xm}')
        if t:
            f(f'v_add_u32 v{xe}, {20 * t}, v{xo}')
        f(f'v_bitop3_b32 v{xe}, v{xl}, v{KF0}, v{xe if t else xo} bitop3:{XAND:#x}')
        f(f'ds_write_b32 v{xa}, v{xe} offset:{4 * t}')

    def x_quad(f, u):
        f(f'v_and_b32 v{xl}, v{KF0}, v{xl}')
        f(f'v_cmp_ne_u32 vcc, 0, v{xl}')
        f(f'v_xor_b32 v{xe}, v{xo}, v{xl}')
        f(f's_add_u32 s3, s{sBase}, s{sM0}')
        f(f'v_mbcnt_lo_u32_b32 v{xa}, vcc_lo, 0')
        f(f'v_mbcnt_hi_u32_b32 v{xa}, vcc_hi, v{xa}')
        f(f's_bcnt1_i32_b64 s{sN}, vcc')
        f(f'v_lshl_add_u32 v{xa}, v{xa}, 2, s3')
        f(f's_lshl2_add_u32 s{sBase}, s{sN}, s{sBase}')
        if L1K:
            f(f's_cmp_gt_u32 s{sBase}, 1020')
            f(f's_cbranch_scc1 L2_xs{u}')
        f('s_mov_b64 exec, vcc')
        f(f'ds_write_b32 v{xa}, v{xe}')
        f('s_mov_b64 exec, -1')

    def x_list(j, E, pbit, split=False):
        uid[0] += 1
        u = uid[0]
        if PP:
            E = (EC, EN)[j & 1]
        else:
            a(f'v_mov_b32 v{ES}, v{E[3]}')
        a(f's_cmp_gt_u32 s{sBase}, {992 if L1K else 1024}')
        a(f's_cbranch_scc1 L2_xs{u}')
        a(f's_cmp_lg_u32 s{sOv}, 0')
        a(f's_cbranch_scc1 L2_xa{u}')
        a.label(f'L2_xb{u}')
        bl = [f'L2_xa{u}:', f's_cmp_eq_u32 s{sOv}, 1', f's_cbranch_scc1 L2_xc{u}']
        x_ent(bl.append, 7)
        x_ent(bl.append, 6)
        x_ent(bl.append, 5)
        bl.append(f'L2_xc{u}:')
        x_ent(bl.append, 4)
        bl.append(f's_branch L2_xb{u}')
        ool.append(bl)
        for t in (3, 2, 1, 0):
            x_ent(a, t)
        r = DB + 2 * (j & 1)
        ls, le = j >> 1, 2 + (j >> 1)
        a(f'v_mov_b32_dpp v{xt}, v{r} quad_perm:[{ls},{ls},{ls},{ls}] row_mask:0xf bank_mask:0xf')
        a(f'v_and_b32 v{xl}, 3, v{xt}')
        a(f'v_and_b32 v{xo}, 0xfffc, v{xt}')
        a(f'v_sub_u16_dpp v{xc}, v{r}, v{xt} quad_perm:[{le},{le},{le},{le}] row_mask:0xf bank_mask:0xf')
        a(f'v_mad_u32_u24 v{xo}, v{xo}, 5, v{CBB}')
        a(f'v_add_u32 v{xd}, v{xc}, v{xl}')
        a(f'v_bfm_b32 v{xm}, v{xc}, v{xl}')
        a(f'v_cmp_lt_u32 {OVF}, 16, v{xd}')
        a(f'v_lshlrev_b32 v{xl}, v{SHL}, v{xm}')
        x_quad(a, u)
        a(f's_cmp_lg_u64 {OVF}, 0')
        a(f's_cbranch_scc1 L2_xe{u}')
        a.label(f'L2_xr{u}')
        bl = [f'L2_xe{u}:',
              f'v_cmp_lt_u32 vcc, 32, v{xd}',
              f'v_cmp_lt_u32 {OVF}, 31, v{xc}',
              f'v_lshrrev_b32 v{xl}, 16, v{xm}',
              f'v_add_u32 v{xo}, 80, v{xo}',
              f's_or_b64 vcc, vcc, {OVF}',
              f's_cbranch_scc1 L2_xs{u}',
              f'v_lshlrev_b32 v{xl}, v{SHL}, v{xl}']
        x_quad(bl.append, u)
        bl.append(f's_branch L2_xr{u}')
        ool.append(bl)
        a(f'v_add_u32 v{xa}, s{sBase}, v{LA}')
        a(f'v_mov_b32 v{xe}, -1')
        if CFG['mpf'] and st['inloop']:
            a(f's_add_u32 s3, s{sMD}, s74')
            a(f's_add_u32 s3, s3, {(dblk(j) + dblk(j + 1)) & 0xffffffff:#x}')
            a('s_mov_b64 exec, s[72:73]')
            a(f'v_lshl_add_u32 v{xe}, v{LA}, 5, s3')
            a('s_mov_b64 exec, -1')
        if L1K:
            a(f's_max_u32 s3, s{sBase}, 768')
            a('s_lshr_b32 s3, s3, 2')
            a('s_lshr_b64 exec, -1, s3')
        a(f'ds_write_b32 v{xa}, v{xe}')
        if L1K:
            a('s_mov_b64 exec, -1')
        a.label(f'L2_xw{u}')
        ool.append([f'L2_xs{u}:', 's_waitcnt lgkmcnt(0)', f's_mov_b32 s{sBase}, 0x10000', f's_branch L2_xw{u}'])

        def back(E=E):
            go = [int(x) for x in CFG['gord'].split()]
            if FOLD:
                go = [0, 1, 2]
                go.insert(FG_, 3)
                if PP:
                    for g in range(4):
                        a(f'ds_read_b32 v{E[g]}, v{LF if g == FG_ else LA} offset:{256 * go[g]}', tag='L')
                else:
                    a(f'v_add_u32 v{xa}, s{sM0}, v{LA}')
                    pr = 0 if FG_ >= 2 else 2
                    a(f'ds_read2st64_b32 {vr(E[pr], 2)}, v{LA} offset0:{go[pr]} offset1:{go[pr + 1]}', tag='L')
                    a(f'ds_read_b32 v{E[FG_ ^ 1]}, v{LA} offset:{256 * go[FG_ ^ 1]}', tag='L')
                    a(f'v_lshrrev_b32 v{xa}, 1, v{xa}')
                    a(f'v_and_b32 v{xa}, -4, v{xa}')
                    a(f'ds_read_b32 v{E[FG_]}, v{xa} offset:768', tag='L')
            else:
                a(f'ds_read2st64_b32 {vr(E[0], 2)}, v{LA} offset0:{go[0]} offset1:{go[1]}', tag='L')
                a(f'ds_read2st64_b32 {vr(E[2], 2)}, v{LA} offset0:{go[2]} offset1:{go[3]}', tag='L')
            E = [E[go.index(g)] for g in range(4)]
            a(f's_sub_u32 s3, s{sBase}, 768')
            a(f's_cmp_gt_u32 s3, {128 if FOLD else 256}')
            a(f's_cbranch_scc1 L2_xf{u}')
            a.label(f'L2_xg{u}')
            bl = [f'L2_xf{u}:',
                  f's_cmp_gt_u32 s{sBase}, 1024',
                  f's_cbranch_scc1 L2_xt{u}']
            if FOLD:
                bl += [f's_cmp_lt_u32 s{sBase}, 768',
                       f's_cbranch_scc1 L2_xl{u}',
                       f'ds_read_b32 v{XN[j & 1]}, v{LF if PP else xa} offset:896',
                       f's_add_u32 s3, s{sPH}, {pbit}',
                       f's_bitset1_b32 s{sXo}, s3',
                       f's_branch L2_xg{u}',
                       f'L2_xl{u}:']
            bl += ['s_waitcnt lgkmcnt(0)',
                   f'v_mov_b32 v{E[3]}, -1',
                  f's_cmp_ge_u32 s{sBase}, 512',
                  f's_cbranch_scc1 L2_xg{u}',
                  f'v_mov_b32 v{E[2]}, -1',
                  f's_cmp_ge_u32 s{sBase}, 256',
                  f's_cbranch_scc1 L2_xg{u}',
                  f'v_mov_b32 v{E[1]}, -1',
                  f's_branch L2_xg{u}',
                  f'L2_xt{u}:',
                  's_waitcnt lgkmcnt(0)']
            bl += [f'v_mov_b32 v{E[g]}, -1' for g in range(4)]
            bl += [f's_add_u32 s3, s{sPH}, {pbit}',
                   f's_bitset1_b32 s{sSlow}, s3',
                   f's_branch L2_xg{u}']
            ool.append(bl)
            if j == 3:
                for h in range(2):
                    a(f'v_lshrrev_b64 {vr(DB + 2 * h, 2)}, 16, {vr(DB + 2 * h, 2)}')

        if split:
            return back
        back()

    def load_rec(g, AI=AI):
        AI = st.get('ai') or AI
        if PP:
            e = (EC, EN)[(ph['p'] + 1) & 1][g]
            a(f'v_and_b32 v{AI}, 0x0fffffff, v{e}')
            issue_rec(g, AI, e)
            return
        E = EN[:3] + [ES]
        a(f'v_and_b32 v{AI}, 0x0fffffff, v{E[g]}')
        if CFG['ab_norec'] and st['inloop']:
            a(f'v_mov_b32 v{AI}, v{E[g]}')
            return
        a(f'v_mov_b32 v{EC[g]}, v{E[g]}')
        issue_rec(g, AI)

    def issue_fold(f, w, bb, e, AI):
        f(f'buffer_load_dword v{bb}, v{AI}, s[8:11], 0 offen offset:16')
        f(f's_mov_b64 exec, {ODD}')
        f(f'v_add_u32 v{AI}, 8, v{AI}')
        f(f'v_lshrrev_b32 v{e}, 2, v{e}')
        f('s_mov_b64 exec, -1')
        f(f'buffer_load_dwordx2 {vr(w, 2)}, v{AI}, s[8:11], 0 offen')

    def ovf_load(xn, d):
        uid[0] += 1
        u = uid[0]
        a(f's_bitcmp1_b32 s{sXo}, s{sPH}')
        a(f's_cbranch_scc1 L2_oa{u}')
        a.label(f'L2_ob{u}')
        bl = [f'L2_oa{u}:', f'v_and_b32 v{AI}, 0x0fffffff, v{xn}']
        issue_fold(bl.append, d, d + 2, xn, AI)
        ool.append(bl + [f's_branch L2_ob{u}'])
        st['ovn'] = a.nvm

    def ovf_run(xn, d):
        uid[0] += 1
        u = uid[0]
        a(f's_bitcmp1_b32 s{sXo}, s{sPH}')
        a(f's_cbranch_scc1 L2_oa{u}')
        a.label(f'L2_ob{u}')
        bl = [f'L2_oa{u}:', f's_waitcnt vmcnt({a.nvm - st["ovn"]})',
              f's_mov_b64 exec, {ODD}', f'v_lshrrev_b32 v{d + 2}, 16, v{d + 2}', 's_mov_b64 exec, -1']
        for h in range(2):
            w = d + h
            bl += [f'v_and_b32 v{NV}, {1 << (28 + h):#x}, v{xn}',
                   f'v_cmpx_eq_u32 vcc, 0, v{NV}',
                   f'v_lshrrev_b32 v{AI}, 14, v{w}',
                   f'v_and_b32 v{AI}, v{KAD}, v{AI}',
                   f'ds_read_b64 {vr(xm, 2)}, v{AI}',
                   f'v_perm_b32 v{xa}, v{w}, v{d + 2}, s{sP[h]}',
                   f'v_bitop3_b32 v{xd}, v{w}, 0.5, -0.5 bitop3:{ORAND:#x}',
                   f'v_bitop3_b32 v{xa}, v{KCM}, v{xa}, v{xd} bitop3:{SEL:#x}',
                   f'v_and_b32 v{AI}, v{KAD}, v{w}',
                   's_waitcnt lgkmcnt(0)',
                   f'{MF} {vr(RT, 4)}, {vr(WD, 2)}, {vr(xm, 2)}, 0']
            bl += [f'v_mul_f32 v{RT + n}, v{xa}, v{RT + n}' for n in range(4)]
            bl += [f'v_cvt_pk_bf16_f32 v{RT}, v{RT}, v{RT + 1}',
                   f'v_cvt_pk_bf16_f32 v{RT + 1}, v{RT + 2}, v{RT + 3}',
                   f'ds_pk_add_bf16 v{AI}, v{RT} offset:{G.A_OFFS}',
                   f'ds_pk_add_bf16 v{AI}, v{RT + 1} offset:{G.A_OFFS + 4}',
                   's_mov_b64 exec, -1']
        ool.append(bl + [f's_branch L2_ob{u}'])

    def issue_rec(g, AI=AI, e=None):
        if FOLD and g == FG_:
            issue_fold(lambda t: a(t, tag=('R', g)), W[g], B[g], e or EC[g], AI)
            return
        if CFG['ab'] & 256 and st['inloop']:
            a(f'buffer_load_dwordx4 {vr(W[g], 4)}, v{AI}, s[8:11], 0 offen', tag=('R', g))
            return
        if CFG['x3'] == 4:
            a(f'buffer_load_dwordx3 {vr(W[g] + 2, 3)}, v{AI}, s[8:11], 0 offen offset:8', tag=('R', g))
            a(f'buffer_load_dwordx2 {vr(W[g], 2)}, v{AI}, s[8:11], 0 offen', tag=('R', g))
            return
        if CFG['x3'] == 2:
            a(f'buffer_load_dwordx2 {vr(W[g], 2)}, v{AI}, s[8:11], 0 offen', tag=('R', g))
        elif CFG['x3'] == 3:
            a(f'buffer_load_dwordx3 {vr(W[g], 3)}, v{AI}, s[8:11], 0 offen', tag=('R', g))
        else:
            a(f'buffer_load_dwordx4 {vr(W[g], 4)}, v{AI}, s[8:11], 0 offen', tag=('R', g))
        if CFG['x3']:
            a(f'buffer_load_dwordx3 {vr(W[g] + 2, 3)}, v{AI}, s[8:11], 0 offen offset:8', tag=('R', g))
        else:
            a(f'buffer_load_dword v{B[g]}, v{AI}, s[8:11], 0 offen offset:16', tag=('R', g))

    ao_done = set()

    def gather(x, b, NV=NV, AI=AI, noao=False, NV0=None):
        NV1 = NV
        g = slot(x, 0)[0]
        a.wait_vm([('R', g)])
        if FOLD and g == FG_:
            a(f's_mov_b64 exec, {ODD}')
            a(f'v_lshrrev_b32 v{B[g]}, 16, v{B[g]}')
            a('s_mov_b64 exec, -1')
        now = x - b < NA and not noao
        for h in (1, 0):
            k = slot(x, h)[1]
            w = W[g] + k
            NV = NV1 if h or NV0 is None else NV0
            a(f'v_and_b32 v{NV}, {1 << (28 + k):#x}, v{cur(g)}')
            a(f'v_lshrrev_b32 v{AI}, 14, v{w}')
            a(f'v_bitop3_b32 v{AI}, v{AI}, v{KAD}, v{NV} bitop3:{ANDOR:#x}')
            a(f'ds_read_b64 {vr(MR[ring(x)][h], 2)}, v{AI}', tag=('m', x))
            if now:
                a(f'v_bitop3_b32 v{AO(x)[h]}, v{w}, v{KAD}, v{NV} bitop3:{ANDOR:#x}')
        if now:
            ao_done.add(x)

    def dec_ao(b):
        if b in ao_done:
            ao_done.discard(b)
            return
        for h in range(2):
            g, k = slot(b, h)
            a(f'v_and_b32 v{NV}, {1 << (28 + k):#x}, v{cur(g)}')
            a(f'v_bitop3_b32 v{AO(b)[h]}, v{W[g] + k}, v{KAD}, v{NV} bitop3:{ANDOR:#x}')

    def dec_c1(b):
        for h in (1, 0):
            g, k = slot(b, h)
            w = W[g] + k
            a(f'v_perm_b32 v{C[h]}, v{w}, v{B[g]}, s{sP[k]}')
            a(f'v_bitop3_b32 v{(AI, NV)[h]}, v{w}, 0.5, -0.5 bitop3:{ORAND:#x}')

    def dec_c2(b):
        for h in (1, 0):
            a(f'v_bitop3_b32 v{C[h]}, v{KCM}, v{C[h]}, v{(AI, NV)[h]} bitop3:{SEL:#x}')

    def flush_pend(mask):
        return [f's_mov_b64 exec, {mask}',
                's_nop 1',
                f'{MF} {vr(RT, 4)}, {vr(NID, 2)}, {vr(P, 2)}, 0',
                's_nop 1',
                f'{MF} {vr(RT, 4)}, {vr(ID, 2)}, {vr(P + 2, 2)}, {vr(RT, 4)}',
                's_nop 4',
                f'v_cvt_pk_bf16_f32 v{RT}, v{RT}, v{RT + 1}',
                f'v_cvt_pk_bf16_f32 v{RT + 1}, v{RT + 2}, v{RT + 3}',
                f'ds_pk_add_bf16 v{PA}, v{RT} offset:{G.A_OFFS}',
                f'ds_pk_add_bf16 v{PA}, v{RT + 1} offset:{G.A_OFFS + 4}']

    def check(b, h):
        if CFG['ab_nofix'] == 1:
            return
        uid[0] += 1
        u = uid[0]
        a(f'v_cmpx_ne_u64 vcc, {vr(OLD2[h], 2)}, {vr(OLD[h], 2)}')
        if CFG['cnt']:
            a('s_bcnt1_i32_b64 s72, vcc')
            a('s_add_u32 s63, s63, s72')
        skip = CFG['zskip'] == 1 or (CFG['zskip'] == 2 and (b & 7) >= 6)
        if skip:
            a(f's_cbranch_execz L2_z{u}')
        a(f's_and_b64 {TMP}, vcc, {PEND}')
        a(f's_cbranch_scc1 L2_c{u}')
        a.label(f'L2_d{u}')
        if CFG['mov64']:
            a(f'v_mov_b64 {vr(P, 2)}, {vr(OLD[h], 2)}')
            a(f'v_mov_b32 v{PA}, v{AO(b)[h]}')
            a(f'v_mov_b64 {vr(P + 2, 2)}, {vr(OLD2[h], 2)}')
        else:
            for n in range(2):
                a(f'v_mov_b32 v{P + n}, v{OLD[h] + n}')
                a(f'v_mov_b32 v{P + 2 + n}, v{OLD2[h] + n}')
            a(f'v_mov_b32 v{PA}, v{AO(b)[h]}')
        if skip:
            a(f's_or_b64 {PEND}, {PEND}, vcc')
            a.label(f'L2_z{u}')
            a('s_mov_b64 exec, -1')
            if h == 0 and inj_on((b + 1) & 7, 0):
                a('s_nop 0')
        else:
            a('s_mov_b64 exec, -1')
            a(f's_or_b64 {PEND}, {PEND}, vcc')
        cnt = [f's_bcnt1_i32_b64 s72, {TMP}', 's_add_u32 s67, s67, s72', 's_add_u32 s67, s67, 0x10000'] if CFG['cnt'] else []
        if not CFG['nbr']:
            ool.append([f'L2_c{u}:'] + cnt + flush_pend(TMP) + ['s_mov_b64 exec, vcc', f's_branch L2_d{u}'])
            return
        CF, TG = 's[50:51]', 's[52:53]'
        bl = [f'L2_c{u}:',
              f's_mov_b64 {CF}, vcc',
              f's_lshl_b64 {TG}, {TMP}, 1',
              f's_andn2_b64 {TG}, {TG}, {PEND}',
              f's_andn2_b64 {TG}, {TG}, {CF}',
              f's_or_b64 {PEND}, {PEND}, {TG}',
              f's_not_b64 vcc, {TG}',
              's_mov_b64 exec, -1']
        for n, r in enumerate((P, P + 1, P + 2, P + 3, PA)):
            bl.append(f'v_cndmask_b32_dpp v{r}, v{r}, v{r}, vcc wave_shr:1 row_mask:0xf bank_mask:0xf')
            if n == 1:
                bl.append(f's_lshr_b64 {TG}, {TG}, 1')
            if n == 3:
                bl.append(f's_andn2_b64 {TMP}, {TMP}, {TG}')
        bl += [f's_mov_b64 vcc, {CF}',
               f's_mov_b64 exec, {CF}',
               f's_cbranch_scc0 L2_d{u}'] + cnt + flush_pend(TMP) + ['s_mov_b64 exec, vcc', f's_branch L2_d{u}']
        ool.append(bl)

    def check2(b, between=None):
        if CFG['ab_nofix'] == 1:
            return
        CM, TG = ['s[50:51]', 's[54:55]'], 's[52:53]'
        a(f'v_cmp_ne_u64 {CM[0]}, {vr(OLD2[0], 2)}, {vr(OLD[0], 2)}')
        a(f'v_cmpx_ne_u64 {CM[1]}, {vr(OLD2[1], 2)}, {vr(OLD[1], 2)}')
        for h in (1, 0):
            uid[0] += 1
            u = uid[0]
            if h == 0:
                if between:
                    a('s_mov_b64 exec, -1')
                    between()
                a(f's_mov_b64 exec, {CM[0]}')
            if CFG['ab_nofix'] != 2:
                a(f's_and_b64 {TMP}, {CM[h]}, {PEND}')
                a(f's_cbranch_scc1 L2_c{u}')
            a.label(f'L2_d{u}')
            a(f'v_mov_b64 {vr(P, 2)}, {vr(OLD[h], 2)}')
            a(f'v_mov_b32 v{PA}, v{AO(b)[h]}')
            a(f'v_mov_b64 {vr(P + 2, 2)}, {vr(OLD2[h], 2)}')
            if h == 0:
                a('s_mov_b64 exec, -1')
            a(f's_or_b64 {PEND}, {PEND}, {CM[h]}')
            bl = [f'L2_c{u}:',
                  f's_lshl_b64 {TG}, {TMP}, 1',
                  f's_andn2_b64 {TG}, {TG}, {PEND}',
                  f's_andn2_b64 {TG}, {TG}, {CM[h]}',
                  f's_or_b64 {PEND}, {PEND}, {TG}',
                  f's_not_b64 vcc, {TG}',
                  's_mov_b64 exec, -1']
            for n, r in enumerate((P, P + 1, P + 2, P + 3, PA)):
                bl.append(f'v_cndmask_b32_dpp v{r}, v{r}, v{r}, vcc wave_shr:1 row_mask:0xf bank_mask:0xf')
                if n == 1:
                    bl.append(f's_lshr_b64 {TG}, {TG}, 1')
                if n == 3:
                    bl.append(f's_andn2_b64 {TMP}, {TMP}, {TG}')
            bl += [f's_mov_b64 exec, {CM[h]}',
                   f's_cbranch_scc0 L2_d{u}'] + flush_pend(TMP) + [f's_mov_b64 exec, {CM[h]}', f's_branch L2_d{u}']
            ool.append(bl)

    def inj_on(b, h):
        if CFG['ab_nofix'] == 1:
            return False
        if st.get('last') and b >= CFG['injl']:
            return True
        if CFG['injm']:
            return CFG['injm'][2 * (b % NB) + h] == '1'
        return (2 * (b % NB) + h) % CFG['injs'] == 0

    def inject(b, h):
        m = INJ1 if h else INJ
        a(f's_and_b64 exec, {m}, {PEND}')
        a(f'{MF} {vr(X[h], 4)}, {vr(NID, 2)}, {vr(P, 2)}, 0')
        a(f'v_mov_b32 v{AO(b)[h]}, v{PA}')
        a(f's_andn2_b64 {PEND}, {PEND}, {m}')
        a(f'{MF} {vr(X[h], 4)}, {vr(ID, 2)}, {vr(P + 2, 2)}, {vr(X[h], 4)}')
        a('s_mov_b64 exec, -1')

    def step_a(b):
        a.wait_lg(('m', b))
        for h in (1, 0):
            a(f'{MF} {vr(X[h], 4)}, {vr(WD, 2)}, {vr(MR[ring(b)][h], 2)}, 0')
        if not CFG['cpos']:
            dec_c2(b)
        if CFG['gearly'] == 4:
            for x in reversed(gs.get(b, [])):
                gather(x, b, noao=True, NV0=xd)
        for h in (1, 0):
            if inj_on(b, h):
                a(f'v_cmp_lt_u32 {INJ1 if h else INJ}, v{KAD}, v{AO(b)[h]}')
        for h in (1, 0):
            if CFG['pkmul']:
                for n in (0, 2):
                    a(f'v_pk_mul_f32 {vr(X[h] + n, 2)}, {vr(X[h] + n, 2)}, {vr(C[0], 2)} op_sel:[0,{h}] op_sel_hi:[1,{h}]')
            else:
                for n in range(4):
                    a(f'v_mul_f32 v{X[h] + n}, v{C[h]}, v{X[h] + n}')

    SB = CFG['sbar']
    sT0, sT1 = 56, 57

    def sb_arrive(c):
        a('s_mov_b64 exec, 1')
        a(f'ds_inc_u32 v{KAD}, v{KF0} offset:{161920 - 0x1fff8 + 8 * c}')
        a('s_mov_b64 exec, -1')

    def sb_look(c):
        a(f'ds_read_b32 v{RT}, v{KAD} offset:{161920 - 0x1fff8 + 8 * c}', tag='sb')

    def sb_wait(c):
        uid[0] += 1
        u = uid[0]
        a(f's_lshl_b32 s3, s{sPH}, 4')
        if c:
            a('s_add_u32 s3, s3, 16')
        a.wait_lg('sb')
        a.label(f'L2_w{u}')
        a(f'v_cmp_gt_u32 vcc, s3, v{RT}')
        a(f's_cbranch_vccnz L2_v{u}')
        ool.append([f'L2_v{u}:', f'ds_read_b32 v{RT}, v{KAD} offset:{161920 - 0x1fff8 + 8 * c}', 's_waitcnt lgkmcnt(0)', f's_branch L2_w{u}'])

    def step_b(b, final=False, mid=None, nogather=False):
        GE = CFG['gearly'] and not final and not nogather
        keep = GE and CFG['gearly'] >= 3 and gs.get(b)
        if GE and not (CFG['gearly'] == 4 and b >= 0):
            for x in reversed(gs.get(b, [])) if keep else gs.get(b, []):
                gather(x, b, noao=True, NV0=xd if keep else NV)
        a.wait_lg('x')

        def rd(h):
            if CFG['injearly'] == 2 and h == 1:
                for k in (1, 0):
                    if inj_on(b, k):
                        inject(b, k)
            if not CFG['injearly'] and inj_on(b, h):
                inject(b, h)
            a(f'ds_read_b64 {vr(OLD[h], 2)}, v{AO(b)[h]} offset:{G.A_OFFS}', tag=('o', h))
        if CFG['chk'] == 1:
            check2(b - 1)
        elif CFG['chk'] == 2:
            check2(b - 1, lambda: rd(1))
        else:
            for h in (1, 0):
                check(b - 1, h)
                if CFG['injearly'] and inj_on(b, h):
                    inject(b, h)
                if CFG['chk'] == 3 and h == 1:
                    rd(1)
        if CFG['chk'] < 2:
            rd(1)
        rd(0)
        if not final:
            if nogather:
                a.wait_vm([('R', 0)])
            elif not GE:
                for x in gs.get(b, []):
                    gather(x, b)
            elif keep:
                for h in range(2):
                    g, k = slot(b + 1, h)
                    a(f'v_bitop3_b32 v{AO(b + 1)[h]}, v{W[g] + k}, v{KAD}, v{(xd, NV)[h]} bitop3:{ANDOR:#x}')
                ao_done.add(b + 1)
            elif CFG['gearly'] >= 2:
                dec_ao(b + 1)
                ao_done.add(b + 1)
            if CFG['cpos'] == 1:
                dec_c1(b + 1)
                dec_c2(b + 1)
            elif CFG['cpos'] == 2:
                dec_c1(b + 1)
            mid()
        if CFG['wprio']:
            a('s_setprio 3')
        if not CFG['osep']:
            a.wait_lg(('o', 0), ('o', 1))
        for h in (1, 0):
            a.wait_lg(('o', h))
            a(f'{MF} {vr(X[h], 4)}, {vr(ID, 2)}, {vr(OLD[h], 2)}, {vr(X[h], 4)}')
        if not final:
            dec_ao(b + 1)
            if not CFG['cpos']:
                dec_c1(b + 1)
            elif CFG['cpos'] == 2:
                dec_c2(b + 1)
        for h in (1, 0):
            a(f'v_cvt_pk_bf16_f32 v{X[h]}, v{X[h]}, v{X[h] + 1}')
            a(f'v_cvt_pk_bf16_f32 v{X[h] + 1}, v{X[h] + 2}, v{X[h] + 3}')
            a(f'ds_wrxchg_rtn_b64 {vr(OLD2[h], 2)}, v{AO(b)[h]}, {vr(X[h], 2)} offset:{G.A_OFFS}', tag='x')

    def stamp(i):
        if not CFG['stamp']:
            return
        a('s_memtime s[70:71]')
        a('s_waitcnt lgkmcnt(0)')
        a('s_sub_u32 s72, s70, s73')
        a('s_mov_b32 s73, s70')
        a(f's_add_u32 s{60 + i}, s{60 + i}, s72')

    ipos = [int(x) for x in CFG['ipos'].split()]
    fpos = [int(x) for x in CFG['fpos'].split()]
    fmpos = [int(x) for x in CFG['fmpos'].split()]

    ipos2 = [int(x) for x in CFG['ipos2'].split()]
    fpos2 = [int(x) for x in CFG['fpos2'].split()]

    def load_own(g):
        if g == 0:
            a('s_mov_b32 s6, 0xaaaaaaaa')
            a('s_mov_b32 s7, 0xaaaaaaaa')
        ai = st.get('ai') or AI
        a(f'v_and_b32 v{ai}, 0x0fffffff, v{EC[g]}')
        issue_rec(g, ai)
    def poll(level, lab):
        if level == 2:
            a(f's_mov_b32 exec_lo, s56')
            a('s_mov_b32 exec_hi, 0')
        else:
            a('s_mov_b64 exec, 0xffff')
        a.label(lab)
        a(f'buffer_load_dword v{RT}, v{PA}, s[60:63], 0 offen sc1')
        a('s_waitcnt vmcnt(0)')
        a(f'v_cmpx_gt_u32 vcc, {level}, v{RT}')
        if CFG['slp%d' % level]:
            a(f's_cbranch_vccnz {lab}s')
            ool.append([f'{lab}s:', f's_sleep {CFG["slp%d" % level]}', f's_branch {lab}'])
        else:
            a(f's_cbranch_vccnz {lab}')
        a('s_mov_b64 exec, -1')

    def signal(level, tmp, adr):
        uid[0] += 1
        a(f's_cmp_lg_u32 s{sW}, 0')
        a(f's_cbranch_scc1 L2_sg{uid[0]}')
        vm, nvm = list(a.vm), a.nvm
        a('s_mov_b32 exec_hi, 0')
        a(f'v_mov_b32 v{tmp}, {level}')
        a(f'buffer_store_dword v{tmp}, v{adr}, s[60:63], s57 offen sc1')
        a('s_mov_b64 exec, -1')
        a.vm, a.nvm = vm, nvm
        a.label(f'L2_sg{uid[0]}')

    if P1:
        T16, sE = 0, 56
        a(f'v_lshlrev_b32 v3, 3, v{T16}')
        a('v_and_b32 v3, 0x80, v3')
        a(f's_cmp_lg_u32 s{sW}, {99 if CFG["ab"] & 16 else 15}')
        a('s_cbranch_scc1 L2_k0')
        vm, nvm = list(a.vm), a.nvm
        a('s_mov_b64 exec, 3')
        a('buffer_load_dword v3, v3, s[68:71], 0 offen sc1')
        a('s_mov_b64 exec, -1')
        a.vm, a.nvm = vm, nvm
        a.label('L2_k0')
        yield
        a('v_and_b32_dpp v3, v3, v3 quad_perm:[1,0,3,2] row_mask:0xf bank_mask:0xf')
        yield
        a(f'v_readlane_b32 s{sE}, v10, 15')
        a(f's_xor_b32 s{sE}, s{sE}, 0x80')
        yield
        a('s_load_dwordx2 s[28:29], s[0:1], 0')
        a('s_load_dwordx2 s[50:51], s[0:1], 40')
        a('s_load_dwordx2 s[52:53], s[0:1], 24')
        yield
        a('s_load_dwordx4 s[96:99], s[50:51], 0')
        a('s_mov_b64 s[4:5], s[52:53]')
        a(f's_bfe_u32 s{sQ}, s2, 0x20001')
        a(f's_and_b32 s{sOB}, s2, 1')
        a(f's_lshl_b32 s{sOB}, s{sOB}, 5')
        a('s_lshr_b32 s3, s2, 3')
        a(f's_add_u32 s{sOB}, s{sOB}, s3')
        a(f's_mul_i32 s{sTab}, s{sQ}, 2080')
        a(f's_lshl_b32 s3, s{sOB}, 5')
        a(f's_add_u32 s{sTab}, s{sTab}, s3')
        a(f's_mul_i32 s{sMD}, s{sQ}, {16 * 81920}')
        next_m(0)
        a(f's_lshl_b32 s{sM0}, s{sW}, 11')
        a(f's_mul_i32 s100, s{sW}, 3072')
        G.srd(a, 8, 30, G.REC_OFF, G.REC_SZ)
        G.srd(a, 12, 30, G.TAB_OFF, G.TAB_SZ)
        G.srd(a, 16, 64, 0, 32)
        G.srd(a, 24, 28, 0, G.E * 8)
        yield
        a(f'v_and_b32 v13, 0x3f0, v{T16}')
        a('v_and_b32 v14, 0x300, v13')
        a('v_bfe_u32 v15, v13, 4, 4')
        a(f's_lshl_b32 s3, s{sW}, 4')
        a('v_add3_u32 v14, v14, v15, s3')
        a(f'v_mul_u32_u24 v{CBA}, {G.BLK}, v14')
        a('v_lshrrev_b32 v14, 6, v13')
        a('s_add_u32 s3, s3, 0x400')
        a('v_add_u32 v14, s3, v14')
        a(f'v_mul_u32_u24 v{CBB}, {G.BLK}, v14')
        a('v_and_b32 v14, 3, v14')
        a('v_and_b32 v15, 0x30, v13')
        a('v_lshl_add_u32 v14, v14, 5, v15')
        a(f'v_add_u32 v6, v14, v{CBB}')
        a(f'v_lshl_add_u32 v5, v15, 1, v{CBA}')
        a('v_lshrrev_b32 v14, 3, v15')
        wb = P1['take'](100)
        for k in range(4):
            if not CFG['ab'] & 128:
                a(f'buffer_load_ushort v{wb + k}, v14, s[16:19], 0 offen offset:{k * 8}', tag='wd')
        a(f's_mul_i32 s3, s{sW}, 5120')
        a(f'v_add_u32 v{FA}, s3, v13')
        a('v_lshrrev_b32 v14, 2, v13')
        a(f'v_add_u32 v14, s{sM0}, v14')
        mo = [4, 2, 3, 0, 1]
        for _ in range(5):
            yield
            if 5 - len(mo) < CFG['m0s']:
                n = mo.pop(0)
                P1['take'](MP[n])
                load_m_raw(n, 0, 13)
        yield
        if not CFG['ab'] & 32:
            signal(1, 11, 14)
        store = P1['store']
        FS = CFG['fs']
        if FS:
            for n in range(10):
                a(f's_waitcnt lgkmcnt({9 - n})')
                store()
                if n == 6:
                    P1['mhook'](30)
            store = lambda: None
            G.tl_mark(a, 76, 21, 1, RT + 2)
        yield
        st['raw'] = True
        a('s_setprio 3')
        a(f'v_mov_b32 v92, v{T16}')
        a('v_mov_b32 v93, v6')
        a('v_mov_b32 v94, v13')
        a('v_mov_b32 v95, v5')
        P1['t16'](92)
        store()
        store()
        a(f'v_mov_b32 v{LA}, v14')
        a(f'v_lshl_add_u32 v{PA}, v13, 3, s{sM0}')
        a('v_lshrrev_b32 v16, 2, v15')
        a(f'v_mad_u32_u24 v{CBB}, v16, 5, v{CBB}')
        a(f'v_or_b32 v{CBB}, 0xf0000000, v{CBB}')
        a(f'v_or_b32 v{CBA}, 0xf0000000, v{CBA}')
        a(f'v_sub_u32 v{SHL}, 28, v16')
        a('v_lshrrev_b32 v17, 2, v16')
        G.ident(a, ID, 18, 17)
        G.ident(a, NID, 18, 17, neg=True)
        a(f'v_mov_b32 v{KF0}, 0xf0000000')
        if PP:
            a(f'v_add_u32 v{LF}, s{sM0}, v{LA}')
            a(f'v_lshrrev_b32 v{LF}, 1, v{LF}')
            a(f'v_and_b32 v{LF}, -4, v{LF}')
        a(f'v_mov_b32 v{KAD}, 0x1fff8')
        a(f'v_mov_b32 v{KCM}, 0x07ff0000')
        for n in range(4):
            a(f'v_mov_b32 v{16 + n}, 0')
        a(f'v_add_u32 v20, {G.A_BASE}, v92')
        a(f'v_add_u32 v21, 0x10000, v20')
        def zero():
            for n in range(5):
                store()
                if n == 2 and FS < 2:
                    a('s_setprio 2')
                a(f'ds_write_b128 v20, v[16:19] offset:{n * 16384}' if n < 4 else 'ds_write_b128 v21, v[16:19]')
        if FS < 2:
            zero()
        a('s_setprio 1')
        for n in range(3):
            store()
        if not FS:
            G.tl_mark(a, 76, 21, 1, RT + 2)
        a(f's_setprio {2 if min(ipos) < 0 else 0}')
        for k in range(4):
            a(f's_mov_b32 s{sP[k]}, {0x04000c0c | (k << 16):#x}')
        a(f's_mov_b32 s{sSlow}, 0')
        a(f's_mov_b32 s{sXo}, 0')
        a(f's_mov_b32 s{sPH}, 0')
        a(f's_mov_b64 {PEND}, 0')
        a(f's_mov_b64 {INJ1}, 0')
        if CFG['mside']:
            G.srd(a, 16, 30, G.MD_OFF - 81920, G.MD_SZ + 81920)
            a(f's_lshr_b32 s3, s{sW}, 3')
            a('s_lshl_b32 s3, s3, 13')
            a('s_sub_u32 s72, 65536, s3')
            a(f's_add_u32 s{sMD}, s{sMD}, s3')
            a(f's_lshl_b32 s3, s{sW}, 12')
            a(f's_sub_u32 s{sMD}, s{sMD}, s3')
            a(f's_add_u32 s{sMD}, s{sMD}, 81920')
        else:
            G.srd(a, 16, 30, G.MD_OFF, G.MD_SZ)
        for n in range(8):
            a(f'v_mov_b32 v{OLD[0] + n}, 0')
        a('s_waitcnt vmcnt(0)')
        a(f'v_lshl_or_b32 v{WD}, v{wb + 1}, 16, v{wb}')
        a(f'v_lshl_or_b32 v{WD + 1}, v{wb + 3}, 16, v{wb + 2}')
        G.tl_end(a, mid=True)
        if CFG['ab'] & 64:
            a('s_endpgm')
        a('s_barrier')
        signal(2, RT, LA)
        if CFG['diag'] == 2:
            a('s_memrealtime s[94:95]')
        a(f's_mov_b64 {INJ}, 0')
        for _ in range(min(CFG['m0e'], len(mo))):
            load_m_raw(mo.pop(0), 0, 94)
        if FS == 2:
            zero()
        a(f's_cmp_eq_u32 s{sE}, 0')
        a('s_cbranch_scc1 L2_e3')
        a('v_lshlrev_b32 v16, 3, v94')
        a('v_and_b32 v16, 0x80, v16')
        a.label('L2_e4')
        a(f'buffer_load_dword v{RT}, v16, s[68:71], 0 offen sc1')
        a('s_waitcnt vmcnt(0)')
        a(f'v_cmp_gt_u32 vcc, 0x80, v{RT}')
        a('s_cbranch_vccnz L2_e4')
        a.label('L2_e3')
        poll(1, 'L2_p1')
        a(f'v_cmp_gt_u32 vcc, 2, v{RT}')
        a(f's_and_b32 s{sE}, vcc_lo, 0xffff')
        for k in (0, 2, 1, 3):
            a(f'buffer_load_dwordx4 {vr(DA + 4 * k, 4)}, v95, s[12:15], s{sTab} offen offset:{16 * k}', tag='D')
        a(f'buffer_load_dwordx4 {vr(DB, 4)}, v93, s[12:15], s{sTab} offen', tag='D')
        while mo:
            load_m_raw(mo.pop(0), 0, 94)
        G.tl_mark(a, 76, 22, 1, RT)
        x_pre(0)
        x_list(0, EN, 0)
        x_pre(1)
        a.wait_lg('L')
        for g in range(4):
            if not PP:
                a(f'v_mov_b32 v{EC[g]}, v{EN[g]}')
        x_list(1, EN, 1)
        for n in (4, 2, 3, 0, 1):
            fill(n)
        G.tl_mark(a, 76, 23, 1, RT)
        if CFG['r0pre']:
            a(f's_cmp_eq_u32 s{sE}, 0')
            a('s_cbranch_scc1 L2_e2')
        assert CFG['r0pre']
        a(f's_mov_b32 exec_lo, s{sE}')
        a('s_mov_b32 exec_hi, 0')
        a(f'buffer_load_dword v{RT}, v{PA}, s[60:63], 0 offen sc1')
        a('s_mov_b64 exec, -1')
        a('s_waitcnt vmcnt(0)')
        a(f'v_cmp_gt_u32 vcc, 2, v{RT}')
        a(f's_and_b32 s{sE}, vcc_lo, s{sE}')
        a('s_cbranch_scc0 L2_e2')
        for n in (4, 2, 3, 0, 1):
            load_m_raw(n, 1, 94)
        poll(2, 'L2_p2')
        a.label('L2_e2')
        G.tl_start(a, mid=True)
        load_own(0)
        for g in range(1, 4):
            if ipos[g - 1] < 0:
                a(f's_setprio {max(0, 2 - g)}')
                load_own(g)
        if CFG['r0pre']:
            a('s_waitcnt lgkmcnt(0)')
            a('s_barrier')
            G.tl_mark(a, 76, 24, 1, RT + 2)
    else:
        if CFG['stamp']:
            for i in range(8):
                a(f's_mov_b32 s{60 + i}, 0')
            a('s_mov_b32 s73, 0')
            stamp(7)
            a('s_mov_b32 s67, 0')

        for n in range(8):
            a(f'v_mov_b32 v{OLD[0] + n}, 0')
        a(f'v_add_u32 v24, {G.A_BASE}, v24')
        for n in range(4):
            a(f'ds_write_b128 v24, {vr(OLD[0], 4)} offset:{n * 16384}')
        a(f'v_add_u32 v{AI}, 0x10000, v24')
        a(f'ds_write_b128 v{AI}, {vr(OLD[0], 4)}')
        G.tl_mark(a, 76, 21, 1, RT)
        a.wait_vm('D')
        G.tl_mark(a, 76, 22, 1, RT)
        if CFG['dq']:
            Z = 26
            for src, dst, bit, qp, ev in ((DA, Z, 1, '[1,0,3,2]', 0x55555555), (Z, DA, 2, '[2,3,0,1]', 0x33333333)):
                for par in range(2):
                    m = ev if par == 0 else ev ^ 0xffffffff
                    a(f's_mov_b32 vcc_lo, {m:#x}')
                    a(f's_mov_b32 vcc_hi, {m:#x}')
                    n = 0
                    for k in range(4):
                        if bool(k & bit) != bool(par):
                            continue
                        for r in range(4):
                            a(f'v_cndmask_b32_dpp v{dst + 4 * k + r}, v{src + 4 * (k ^ bit) + r}, v{src + 4 * k + r}, vcc quad_perm:{qp} row_mask:0xf bank_mask:0xf')
                            n += 1
                            if CFG['dq'] == 2 and n % 2 == 0:
                                a(f'v_mov_b32 v{RT}, 0')
                                a(f'v_mov_b32 v{RT + 1}, 0')
        x_pre(0)
        x_list(0, EN, 0)
        x_pre(1)
        a.wait_lg('L')
        G.tl_mark(a, 76, 23, 1, RT)
        for g in range(4):
            if not PP:
                a(f'v_mov_b32 v{EC[g]}, v{EN[g]}')
        if CFG['pprio'] < 2:
            load_own(0)
        for g in range(1, 4):
            fill((4, 2, 3)[g - 1])
            if ipos[g - 1] < 0 or CFG['ab_norec']:
                load_own(g)
        x_list(1, EN, 1)
        fill(0)
        fill(1)
        if CFG['pprio'] == 2:
            load_own(0)
        a('s_waitcnt lgkmcnt(0)')
        G.tl_mark(a, 76, 24, 1, RT)
        if CFG['ab_norec']:
            a('s_waitcnt vmcnt(0)')
        stamp(0)
    st['inloop'] = True
    if CFG['mpf']:
        a(f's_cmp_lt_u32 s{sW}, 10')
        a('s_cselect_b64 s[72:73], 3, 0')
        a('s_lshr_b32 s3, s2, 3')
        a('s_mul_i32 s74, s3, 2560')
        a(f's_mul_i32 s3, s{sW}, {256 - 65536}')
        a('s_add_u32 s74, s74, s3')
        a(f's_add_u32 s74, s74, {0xf0000000 + G.MD_OFF - G.REC_OFF:#x}')
        a(f's_mov_b32 s10, {G.REC_SZ + G.MD_SZ:#x}')
    prio1 = [int(x) for x in CFG['pr'].split()]
    sites = []
    FW, FM, FD, FL, FG = 48, [108, 112], [116, 117], [118, 119], [120, 121]

    def fin_preload():
        a(f's_lshl_b32 s3, s{sW}, 12')
        a(f'v_subrev_u32 v122, s3, v{FA}')
        a(f's_mul_i32 s3, s{sQ}, 20000')
        a(f'v_add_u32 v{FL[0]}, s3, v122')
        a(f'v_add_u32 v{FL[1]}, 0x4000, v{FL[0]}')
        a(f's_lshl_b32 s3, s{sOB}, 7')
        for r in range(2):
            a(f'v_lshrrev_b32 v123, 7, v{FL[r]}')
            a(f'v_and_b32 v{FG[r]}, 0x70, v{FL[r]}')
            a(f'v_lshl_add_u32 v{FG[r]}, v123, 13, v{FG[r]}')
            a(f'v_add_u32 v{FG[r]}, s3, v{FG[r]}')
        a(f'v_cmp_le_u32 vcc, {20000 - 16384}, v122')
        a('s_mov_b64 exec, vcc')
        a(f'v_mov_b32 v{FL[1]}, 2.0')
        a(f'v_mov_b32 v{FG[1]}, 2.0')
        a('s_mov_b64 exec, -1')
        a('v_and_b32 v123, 0x30, v122')
        a('v_lshlrev_b32 v123, 2, v123')
        a(f'buffer_load_dwordx4 {vr(FW, 4)}, v123, s[24:27], 0 offen', tag='fin')
        a(f'buffer_load_dwordx4 {vr(FW + 4, 4)}, v123, s[24:27], 0 offen offset:16', tag='fin')
        a(f'buffer_load_dwordx2 {vr(FW + 8, 2)}, v123, s[24:27], 0 offen offset:32', tag='fin')
        G.srd(a, 12, 4, 0, G.E * 2)
        G.srd(a, 16, 28, 0, G.E * 8)
        for r in range(2):
            a(f'v_lshrrev_b32 v123, 2, v{FG[r]}')
            a(f'buffer_load_dword v{FD[r]}, v123, s[12:15], 0 offen', tag='fin')
            a(f'buffer_load_dwordx4 {vr(FM[r], 4)}, v{FG[r]}, s[16:19], 0 offen', tag='fin')

    def phase(jj, kind):
        first, more1, more2 = kind == 'first', kind != 'last', kind in ('first', 'second', 'mid')
        second = kind == 'second'
        ph['par'] = (jj * NB) & 1
        ph['p'] = jj
        assert not PP or (FOLD and rpos[3] >= 10 and CFG['secmid'] and min(dpos[:2]) == 3 and not SB and 9 not in fpos)
        st['last'] = kind == 'last'
        a.c(f'==== phase jj={jj} {kind}')
        site = len(sites)
        sites.append(site)

        def slow_site():
            stamp(5)
            G.tl_mark(a, 76, f's{sPH}', 1, RT)
            a(f's_bitcmp1_b32 s{sSlow}, s{sPH}')
            a('s_cbranch_scc1 L2_slow')
            a.label(f'L2_ret{site}')
        if first or not SB:
            if not (first and P1) and (first or not CFG['ab'] & 1):
                a('s_barrier')
            slow_site()
        hs = [None]
        st['m0'] = None

        def dhook():
            if hs[0] is None:
                return
            if CFG['sprio']:
                a(f's_setprio {3 - hs[0]}')
            for n in (4, 2, 3, 0, 1):
                if dpos[n] == hs[0]:
                    fill(n)
                if mpos[n] < 0 and more2 and max(dpos[n], -1 - mpos[n]) == hs[0]:
                    load_m(n)
            hs[0] += 1

        def rhook(pos):
            if FOLD and not CFG['ab'] & 512:
                if pos == 7:
                    ovf_load(XN[jj & 1], X[0] if first else MP[OP])
                if pos == (7 if first else mpos[OP]):
                    ovf_run(XN[jj & 1], X[0] if first else MP[OP])
            if first and not CFG['ab_norec']:
                if pos == 7 and CFG['pprio'] == 3:
                    load_own(0)
                for g in range(1, 4):
                    if ipos[g - 1] == pos:
                        load_own(g)
            elif second:
                for g in range(1, 3):
                    if fpos[g] == 9 and ipos2[g - 1] == pos:
                        load_own(g)
                if ipos2[2] == pos:
                    load_rec(3)
            elif rpos[3] in (pos, pos + 8) and rpos[3] < 10:
                load_rec(3)
            if not more1:
                if pos == CFG['finp'] and CFG['fuse']:
                    fin_preload()
                return
            for n in (4, 2, 3, 0, 1):
                if (fmpos if first else mpos)[n] == pos and not (first and P1):
                    load_m(n)
                elif first and P1 and fmpos[n] == pos:
                    uid[0] += 1
                    a(f'v_and_b32 v{AI}, 0x3f0, v{FA}')
                    a('s_cmp_lg_u32 s56, 0')
                    a(f's_cbranch_scc1 L2_m{uid[0]}')
                    vm, nvm = list(a.vm), a.nvm
                    load_m_raw(n, 1, AI)
                    a.vm, a.nvm = vm, nvm
                    st[('rawn', n)] = a.nvm
                    a.label(f'L2_m{uid[0]}')
            if pos == b1_step - 1:
                next_m(jj + 1)
            for g in range(3):
                if (fpos if first else fpos2 if second else rpos)[g] == pos:
                    load_rec(g)
                if first and fpos[g] == 9 and pos == b1_step:
                    a(f'v_mov_b32 v{EC[g]}, v{EN[g]}')

        for i, b in enumerate(order if SB else []):
            if i == 0 or prio1[i] != prio1[i - 1]:
                a(f's_setprio {prio1[i]}')
            if b >= 0:
                step_a(b)
            if b == CFG['xpre'] and more2:
                x_pre((jj + 2) & 3)
            if b >= 0 or first:
                rhook(b & 7)
            if first and b < 0:
                gather(0, -1)
                dec_ao(0)
                dec_c1(0)
            elif b < 0:
                step_b(b, mid=lambda: sb_look(0), nogather=True)
                sb_wait(0)
                slow_site()
                gather(0, -1, RT, RT + 1, True)
                st['ai'] = RT
                rhook(7)
                st['ai'] = None
            elif b == b1_step - 1 and more1:
                step_b(b, mid=lambda: sb_arrive(1))
            elif b == b1_step and more1:
                step_b(b, mid=lambda: sb_look(1))
            else:
                step_b(b, mid=lambda: None)
            if more1 and not first:
                for g in range(3 if second else 0, 4):
                    if rpos[g] == 10 + b and b < b1_step:
                        load_rec(g, RT)
            if b == b1_step and more1:
                if SB == 2:
                    step_a(LB)
                sb_wait(1)
                hs[0] = 0
                dhook()
                if more2:
                    x_list((jj + 2) & 3, EN, 2)
                else:
                    a(f'v_mov_b32 v{ES}, v{EN[3]}')
                for _ in range(3):
                    dhook()
                sb_arrive(0)
                a(f's_add_u32 s{sPH}, s{sPH}, 1')
                if rpos[3] == 10 + b and not first:
                    a.wait_lg('L')
                    load_rec(3, RT)
        if SB:
            if SB == 1 or not more1:
                step_a(LB)
            return
        for i, b in enumerate(order):
            if b == b1_step and more1:
                a.wait_lg(('m', LB), ('m', LB - 1))
                stamp(1)
                if not CFG['ab'] & 2:
                    a('s_barrier')
                stamp(2)
                hs[0] = 0
                dhook()
            if (i == 0 or prio1[i] != prio1[i - 1] or CFG['wprio']) and not (CFG['sprio'] and b == b1_step):
                a(f's_setprio {prio1[i]}')
            hf = CFG['gearly'] == 4 and b != b1_step
            if b >= 0 and not hf:
                step_a(b)
            if FOLD:
                assert CFG['xpre'] >= mpos[OP] >= 0 and CFG['finp'] >= mpos[OP]
                rhook(b & 7)
            if b == CFG['xpre'] and more2 and not CFG['ab'] & 4:
                x_pre((jj + 2) & 3)
            if not FOLD:
                rhook(b & 7)
            if b >= 0 and hf:
                assert CFG['cpos']
                step_a(b)
            back = None
            if b == b1_step and more2 and not CFG['ab'] & 4:
                back = x_list((jj + 2) & 3, EN, 2, split=PP)
            elif b == b1_step and more1 and not PP:
                a(f'v_mov_b32 v{ES}, v{EN[3]}')
            dhook()
            if first and b < 0:
                gather(0, -1)
                dec_ao(0)
                dec_c1(0)
                if CFG['cpos']:
                    dec_c2(0)
            else:
                step_b(b, mid=dhook)
            if back:
                back()
            if more1 and (not first or CFG['secmid']):
                for g in range(3 if second or first else 0, 4):
                    if rpos[g] == 10 + b:
                        load_rec(g, RT)
            if first:
                for g in range(3):
                    if fpos[g] == 10 + b:
                        load_rec(g, RT)
            dhook()
        step_a(LB)
        if more1:
            assert hs[0] > max(dpos)
            a(f's_add_u32 s{sPH}, s{sPH}, 1')
            a.wait_lg('F')
            stamp(4)

    phase(0, 'first')
    st['raw'] = False
    if P1:
        G.srd(a, 24, 30, G.WT_OFF, G.WT_SZ)
    phase(1, 'mid' if CFG['secmid'] else 'second')
    a.vm = merge_vm(a.vm, G.MEMO.get('back', []))
    head_vm, head_lg = list(a.vm), list(a.lg)
    a.label('L2_loop')
    for jj in (2, 3, 0, 1):
        phase(jj, 'mid')
    assert 'back' not in G.MEMO or merge_vm(head_vm, a.vm) == head_vm, (a.vm, head_vm)
    G.MEMO['back'] = list(a.vm)
    assert a.lg == head_lg
    a(f's_cmp_lg_u32 s{sPH}, 14')
    a('s_cbranch_scc1 L2_loop')
    phase(2, 'penult')
    phase(3, 'last')
    step_b(LB, final=True)
    a.wait_lg('x')
    check(LB, 1)
    check(LB, 0)
    if CFG['drain']:
        a(f's_mov_b64 exec, {PEND}')
        a(f'ds_read_b64 {vr(OLD[0], 2)}, v{PA} offset:{G.A_OFFS}')
        a(f'{MF} {vr(X[0], 4)}, {vr(NID, 2)}, {vr(P, 2)}, 0')
        a(f'{MF} {vr(X[0], 4)}, {vr(ID, 2)}, {vr(P + 2, 2)}, {vr(X[0], 4)}')
        a('s_waitcnt lgkmcnt(0)')
        a(f'{MF} {vr(X[0], 4)}, {vr(ID, 2)}, {vr(OLD[0], 2)}, {vr(X[0], 4)}')
        a(f'v_mov_b64 {vr(P, 2)}, {vr(OLD[0], 2)}')
        a(f'v_cvt_pk_bf16_f32 v{X[0]}, v{X[0]}, v{X[0] + 1}')
        a(f'v_cvt_pk_bf16_f32 v{X[0] + 1}, v{X[0] + 2}, v{X[0] + 3}')
        a(f'ds_wrxchg_rtn_b64 {vr(P + 2, 2)}, v{PA}, {vr(X[0], 2)} offset:{G.A_OFFS}')
        a('s_waitcnt lgkmcnt(0)')
        a(f'v_cmp_ne_u64 {PEND}, {vr(P + 2, 2)}, {vr(P, 2)}')
    for ln in flush_pend(PEND):
        a(ln)
    a('s_mov_b64 exec, -1')
    if True:
        a('s_load_dwordx2 s[4:5], s[0:1], 88')
        a('v_add_u32 v123, 0x4000, v122')
        for n in range(4):
            a(f's_lshl_b32 s{50 + 2 * n}, s{96 + n}, 16')
            a(f's_and_b32 s{51 + 2 * n}, s{96 + n}, 0xffff0000')
        a('s_waitcnt vmcnt(0) lgkmcnt(0)')
        a('s_barrier')
        G.tl_mark(a, 76, 16, 1, 106)
        GH = [80, 16]
        PL = [32, 60]
        WX = CFG['wavex']
        G.srd(a, 8, 30, G.FLAG_OFF, G.FLAG_SZ)
        G.srd(a, 12, 4, 0, G.E * 8)
        G.srd(a, 20, 30, G.PART_OFF, G.PART_SZ)
        a(f's_lshl2_add_u32 s4, s{sOB}, s{sQ}')
        a('s_mul_i32 s4, s4, 81920')
        for k in range(1, 4):
            a(f's_add_u32 s3, s{sQ}, {k}')
            a('s_and_b32 s3, s3, 3')
            a(f's_mul_i32 s{35 + k}, s3, 20000')
            a(f's_add_u32 s{35 + k}, s{35 + k}, {G.A_BASE}')
            a(f's_mul_i32 s{39 + k}, s3, 20480')
            a(f's_add_u32 s{39 + k}, s{39 + k}, s4')
            a(f's_lshl2_add_u32 s3, s{sOB}, s3')
            a('s_mul_i32 s3, s3, 81920')
            a(f's_mul_i32 s{43 + k}, s{sQ}, 20480')
            a(f's_add_u32 s{43 + k}, s{43 + k}, s3')
        SB_ = [[16, 20, 24], [36, 40, 44]]
        for r in range(2):
            if r:
                a(f's_cmp_ge_u32 s{sW}, 4')
                a('s_cbranch_scc1 L2_g0')
            for k in range(1, 4):
                a(f'v_add_u32 v104, s{35 + k}, v{122 + r}')
                a(f'ds_read_b128 {vr(SB_[r][k - 1], 4)}, v104')
            for k in range(1, 4):
                a(f's_waitcnt lgkmcnt({3 - k})')
                a(f'buffer_store_dwordx4 {vr(SB_[r][k - 1], 4)}, v{122 + r}, s[20:23], s{39 + k} offen sc1')
        a.label('L2_g0')
        if WX != 2:
            G.fin_gates(a, FD[0], 50, FW, GH[0], 60, ((0, 1), (0,), (0,), ())[CFG['gsp']])
        a(f's_lshl_b32 s3, s{sOB}, 9')
        if WX:
            a(f's_lshl2_add_u32 s3, s{sW}, s3')
        a(f's_lshl_b32 s4, s{sQ}, 7')
        a('s_add_u32 s4, s4, s3')
        a('v_mov_b32 v104, 1')
        a('v_and_b32 v105, 0x3f0, v122')
        a('v_lshlrev_b32 v105, 3, v105')
        if WX != 2:
            for r in range(2):
                a(f'v_add_u32 v106, {G.A_BASE}, v{FL[r]}')
                a(f'ds_read_b128 {vr(PL[r], 4)}, v106')
        a('s_waitcnt vmcnt(0)')
        if not WX:
            a('s_barrier')
        G.tl_mark(a, 76, 18, 1, 106)
        if not WX:
            a(f's_cmp_lg_u32 s{sW}, 0')
            a('s_cbranch_scc1 L2_f2')
        a('s_mov_b64 exec, 1')
        a('buffer_store_dword v104, off, s[8:11], s4 sc1')
        if WX == 2:
            a('s_mov_b64 exec, -1')
            G.fin_gates(a, FD[0], 50, FW, GH[0], 60)
            for r in range(2):
                a(f'v_add_u32 v106, {G.A_BASE}, v{FL[r]}')
                a(f'ds_read_b128 {vr(PL[r], 4)}, v106')
        a('s_mov_b64 exec, 15')
        a(f's_bitset0_b64 exec, s{sQ}')
        a.label('L2_f3')
        a('buffer_load_dword v104, v105, s[8:11], s3 offen sc1')
        a('s_waitcnt vmcnt(0)')
        a('v_cmp_ne_u32 vcc, 1, v104')
        a('s_cbranch_vccnz L2_f3s')
        ool.append(['L2_f3s:'] + ([f's_sleep {CFG["slp3"]}'] if CFG['slp3'] else []) + ['s_branch L2_f3'])
        a('s_mov_b64 exec, -1')
        if not WX:
            a.label('L2_f2')
            if CFG['gsp'] == 2:
                G.fin_gates(a, FD[0], 50, FW, GH[0], (96, 0, [76, 76]), (1,))
            a('s_barrier')
        G.tl_mark(a, 76, 19, 1, 106)
        for r in range(2):
            if r:
                a(f's_cmp_ge_u32 s{sW}, 4')
                a('s_cbranch_scc1 L2_f5')
            for k in range(1, 4):
                a(f'buffer_load_dwordx4 {vr(PL[r] + 4 * k, 4)}, v{122 + r}, s[20:23], s{43 + k} offen sc1')
        if CFG['g1late']:
            G.fin_gates(a, FD[1], 50, FW, GH[1], (96, 0, [104, 76]))
        a.label('L2_f5')
        if CFG['gsp'] in (1, 3):
            a.fence(5)
            G.fin_gates(a, FD[0], 50, FW, GH[0], (96, 0, [104, 76]), (1,) if CFG['gsp'] == 1 else (0, 1))
        a('s_waitcnt vmcnt(0) lgkmcnt(0)')
        G.tl_mark(a, 76, 20, 1, 106)
        for r in range(2):
            if r:
                a(f's_cmp_ge_u32 s{sW}, 4')
                a('s_cbranch_scc1 L2_f6')
            G.fin_out(a, PL[r], GH[r], FW, ID, FM[r], 96)
            a(f'buffer_store_dwordx4 {vr(PL[r] + 4, 4)}, v{FG[r]}, s[12:15], 0 offen{CFG["out_pol"]}')
        a.label('L2_f6')
    if CFG['diag']:
        a('s_waitcnt vmcnt(0)')
        a('s_memrealtime s[76:77]')
        a('s_waitcnt lgkmcnt(0)')
        a(f's_sub_u32 s78, s{76 if CFG["diag"] == 1 else 94}, s88')
        a('s_min_u32 s78, s78, 100000')
        a.label('L2_dg')
        a('s_memrealtime s[86:87]')
        a('s_waitcnt lgkmcnt(0)')
        a('s_sub_u32 s79, s86, s76')
        a('s_cmp_lt_u32 s79, s78')
        a('s_cbranch_scc1 L2_dg')
    G.tl_end(a)
    if CFG['stamp']:
        a('s_waitcnt vmcnt(0)')
        stamp(6)
        a('s_load_dwordx2 s[74:75], s[0:1], 96')
        a('s_waitcnt lgkmcnt(0)')
        G.srd(a, 76, 74, 0, 256)
        a(f's_cmp_lg_u32 s2, {CFG["stamp"]}')
        a('s_cbranch_scc1 L2_end')
        a(f's_and_b32 s3, s{sW}, 3')
        a('s_cmp_lg_u32 s3, 0')
        a('s_cbranch_scc1 L2_end')
        a(f's_lshl_b32 s3, s{sW}, 3')
        a('v_mov_b32 v20, 0')
        for i in range(8):
            a(f'v_mov_b32 v21, s{60 + i}')
            a(f'buffer_store_dword v21, v20, s[76:79], s3 offen offset:{4 * i}')
    a.label('L2_end')
    a('s_endpgm')

    a.label('L2_slow')
    a.reset()
    sC, sS, sE, sO = 50, 51, 52, 53
    pp, t_, wa, ba, w_, b_, ao, c_, ai_ = 102, 103, 104, 105, 106, 107, 96, 97, 98
    m_ = MR[0][0]
    a(f's_lshr_b32 s{sSP}, s{sPH}, 2')
    a(f's_lshl_b32 s{sC}, s{sW}, 4')
    a(f's_and_b32 s3, s{sPH}, 3')
    a(f's_lshl_b32 s{sO}, s3, 3')
    a(f's_add_u32 s{sO}, s{sO}, s{sTab}')
    a(f's_and_b32 s3, s{sSP}, 2')
    a('s_lshl_b32 s3, s3, 1')
    a(f's_add_u32 s{sO}, s{sO}, s3')
    a(f's_and_b32 s54, s{sSP}, 1')
    a('s_lshl_b32 s54, s54, 4')
    a.label('L2_sl_seg')
    a(f's_mul_i32 s55, s{sC}, {G.BLK}')
    a(f's_and_b32 s3, s{sC}, 3')
    a('s_lshl_b32 s3, s3, 5')
    a('s_add_u32 s3, s3, s55')
    a(f's_add_u32 s3, s3, s{sO}')
    a(f'buffer_load_dword v{wa}, off, s[12:15], s3 sc1')
    a(f'buffer_load_dword v{ba}, off, s[12:15], s3 offset:32 sc1')
    a('s_waitcnt vmcnt(0)')
    a(f'v_readfirstlane_b32 s{sS}, v{wa}')
    a(f'v_readfirstlane_b32 s{sE}, v{ba}')
    a(f's_lshr_b32 s{sS}, s{sS}, s54')
    a(f's_and_b32 s{sS}, s{sS}, 0xffff')
    a(f's_lshr_b32 s{sE}, s{sE}, s54')
    a(f's_and_b32 s{sE}, s{sE}, 0xffff')
    a.label('L2_sl_rec')
    a(f's_cmp_ge_u32 s{sS}, s{sE}')
    a('s_cbranch_scc1 L2_sl_next')
    a(f'v_mbcnt_lo_u32_b32 v{pp}, -1, 0')
    a(f'v_mbcnt_hi_u32_b32 v{pp}, -1, v{pp}')
    a(f'v_add_u32 v{pp}, s{sS}, v{pp}')
    a(f'v_and_b32 v{t_}, -4, v{pp}')
    a(f'v_lshl_add_u32 v{wa}, v{pp}, 2, v{t_}')
    a(f'v_lshl_add_u32 v{ba}, v{t_}, 2, v{pp}')
    a(f'v_cmp_gt_u32 vcc, s{sE}, v{pp}')
    a('s_mov_b64 exec, vcc')
    a(f'buffer_load_dword v{w_}, v{wa}, s[8:11], s55 offen')
    a(f'buffer_load_ubyte v{b_}, v{ba}, s[8:11], s55 offen offset:16')
    a('s_waitcnt vmcnt(0)')
    a(f'v_lshrrev_b32 v{ai_}, 14, v{w_}')
    a(f'v_and_b32 v{ai_}, v{KAD}, v{ai_}')
    a(f'ds_read_b64 {vr(m_, 2)}, v{ai_}')
    a(f'v_perm_b32 v{c_}, v{w_}, v{b_}, s{sP[0]}')
    a(f'v_and_b32 v{ao}, v{KAD}, v{w_}')
    a(f'v_bitop3_b32 v{t_}, v{w_}, 0.5, -0.5 bitop3:{ORAND:#x}')
    a(f'v_bitop3_b32 v{c_}, v{KCM}, v{c_}, v{t_} bitop3:{SEL:#x}')
    a('s_waitcnt lgkmcnt(0)')
    a(f'{MF} {vr(RT, 4)}, {vr(WD, 2)}, {vr(m_, 2)}, 0')
    for n in range(4):
        a(f'v_mul_f32 v{RT + n}, v{c_}, v{RT + n}')
    a(f'v_cvt_pk_bf16_f32 v{RT}, v{RT}, v{RT + 1}')
    a(f'v_cvt_pk_bf16_f32 v{RT + 1}, v{RT + 2}, v{RT + 3}')
    a(f'ds_pk_add_bf16 v{ao}, v{RT} offset:{G.A_OFFS}')
    a(f'ds_pk_add_bf16 v{ao}, v{RT + 1} offset:{G.A_OFFS + 4}')
    a('s_mov_b64 exec, -1')
    a(f's_add_u32 s{sS}, s{sS}, 64')
    a('s_branch L2_sl_rec')
    a.label('L2_sl_next')
    a(f's_add_u32 s{sC}, s{sC}, 1')
    a(f's_and_b32 s3, s{sC}, 15')
    a('s_cbranch_scc1 L2_sl_seg')
    a(f's_add_u32 s{sC}, s{sC}, 240')
    a(f's_cmp_lt_u32 s{sC}, {G.NCH}')
    a('s_cbranch_scc1 L2_sl_seg')
    a('s_waitcnt lgkmcnt(0)')
    for ph, k in ((0, 0), (1, 1), (14, 6), (15, 7)):
        a(f's_cmp_eq_u32 s{sPH}, {ph}')
        a(f's_cbranch_scc1 L2_ret{k}')
    a(f's_and_b32 s3, s{sPH}, 3')
    for ph, k in ((2, 2), (3, 3), (0, 4)):
        a(f's_cmp_eq_u32 s3, {ph}')
        a(f's_cbranch_scc1 L2_ret{k}')
    a('s_branch L2_ret5')
    for bl in ool:
        for ln in bl:
            if ln.endswith(':'):
                a.label(ln[:-1])
                a.reset()
            else:
                a(ln)
    yield name
```

```python
import os
import sys
from asmlib import Asm, vr, sr

NAME = 'gather_scatter__molecular_angular_gemnet__graph'
CFG = dict(
    ld_pol=' nt',
    st_pol=' sc1',
    pad=9216, one=1, p1_first=8, mcn=128, pre='123567', prek=0, tlbw=0, mc0=22, mc1=27, tabx=1, ab_p1=0, il=1, ilx=1, ilw=2, sa='20001000', sb='1010100100', la='00100100', lb='0010100100', scd=8, p1prio=1, warm=2, dyn=2, cut='64 112 128 0 100 124', slp1=0, slp2=0, inv=0, m0s=0, m0e=5, fs=2, r0pre=1, tkpos=5, tkwave=15, wgx=0,
    ab=0, ab_nofix=0, ab_norec=0, ab_nom=0, stamp=0, tl=0, tlw=0, diag=0, dup2=0, dup1=0, wsoff=16384, stp=1, nulls=0, dup3=0, cnt=0,
    x3=2, rpos='0 11 13 15', dpos='3 3 0 0 0', mpos='1 3 -1 -1 -1', ipos='-1 -1 -1', fpos='0 11 13', fmpos='3 3 1 2 1', ipos2='7 0 7', fpos2='1 3 5', pprio=0, dq=0, nbr=1, stag=0, stagd=0, stagi=0, yb=0, ybw=8, mside=0, pp=1, secmid=1, gsp=0, m_pol=' sc1', mpf=0, injm='', l1k=0, osep=1, cpos=1, injl=9, finp=1, finw=0, drain=1, wavex=0, slp3=0, gearly=3, wprio=0, sbar=0, fold=1, chk=1, zskip=0, cmap=1, gord='0 1 2 3', sprio=1, xpre=3, pkmul=1, mov64=1, injs=3, injearly=2, pr='3 3 3 2 1 0 0 0', part_pol=' sc1', fuse=1, out_pol=' nt', mimic=1, g1late=1,
)
for arg in sys.argv[2:]:
    k, v = arg.split('=', 1)
    CFG[k] = type(CFG[k])(v.replace('_', ' ')) if isinstance(CFG.get(k), str) else int(v)

E = 640000
T = 40960000
CH = 32768
NCH = 1280
REC_CH = CH * 5
TAB_CH = 16 * 65 * 8
BLK = REC_CH + CFG['pad']
REC_OFF = CFG['wsoff']
REC_SZ = NCH * BLK
TAB_OFF = REC_OFF + REC_CH
TAB_SZ = NCH * BLK - REC_CH
MD_OFF = REC_OFF + REC_SZ
MD_SZ = 64 * 81920
PART_OFF = MD_OFF + MD_SZ + 65536
PART_SZ = 256 * 81920
WT_OFF = PART_OFF + PART_SZ
WT_SZ = 256
FLAG_OFF = WT_OFF + 4096
FLAG_SZ = 256 * 128
PROG_OFF = FLAG_OFF + FLAG_SZ
KBIAS = 2064
A_BASE = 81920
A_OFFS = A_BASE - KBIAS * 8

MEMO = {}
SEL = 0xCA
ANDOR = 0xEA
XANDN = 0x9A


def srd(a, d, base, off, size):
    if off:
        a(f's_add_u32 s{d}, s{base}, {off:#x}')
        a(f's_addc_u32 s{d+1}, s{base+1}, 0')
    else:
        a(f's_mov_b32 s{d}, s{base}')
        a(f's_mov_b32 s{d+1}, s{base+1}')
    a(f's_mov_b32 s{d+2}, {size:#x}')
    a(f's_mov_b32 s{d+3}, 0x20000')


def kernel_head(a, name):
    a.raw('.text')
    a.raw(f'.globl {name}')
    a.raw('.p2align 8')
    a.raw(f'.type {name},@function')
    a.label(name)
    a.reset()


def kernel_desc(a, name, vgpr, sgpr=96):
    a.raw('.p2align 6')
    a.raw(f'.amdhsa_kernel {name}')
    a.raw(f'  .amdhsa_next_free_vgpr {vgpr}')
    a.raw(f'  .amdhsa_next_free_sgpr {sgpr}')
    a.raw(f'  .amdhsa_accum_offset {(vgpr + 3) // 4 * 4}')
    a.raw('  .amdhsa_group_segment_fixed_size 0')
    a.raw('  .amdhsa_kernarg_size 112')
    a.raw('  .amdhsa_user_sgpr_count 2')
    a.raw('  .amdhsa_user_sgpr_kernarg_segment_ptr 1')
    a.raw('  .amdhsa_system_sgpr_workgroup_id_x 1')
    a.raw('  .amdhsa_float_denorm_mode_32 3')
    a.raw('.end_amdhsa_kernel')


TL_OFF = 600000000
tl_idx = [0]


def tl_start(a, mid=False):
    if not CFG['tl']:
        return
    a('s_memrealtime s[90:91]')
    a('s_memtime s[92:93]')
    if not mid:
        a('v_readfirstlane_b32 s94, v0')
    a('s_waitcnt lgkmcnt(0)')


def tl_end(a, mid=False):
    if not CFG['tl']:
        return
    vb, va = (88, 47) if mid else (4, 0)
    vm, nvm = list(a.vm), a.nvm
    if not mid:
        a('s_waitcnt vmcnt(0) lgkmcnt(0)')
    a('s_memrealtime s[86:87]')
    a('s_memtime s[88:89]')
    a('s_load_dwordx2 s[74:75], s[0:1], 104')
    a('s_waitcnt lgkmcnt(0)')
    srd(a, 76, 74, TL_OFF + tl_idx[0] * 0x100000, 0x100000)
    tl_idx[0] += 1
    a('s_mov_b64 exec, 1')
    a('s_lshr_b32 s91, s94, 2')
    a('s_lshl_b32 s95, s2, 8')
    a('s_add_u32 s95, s91, s95')
    a('s_sub_u32 s88, s88, s92')
    a('s_getreg_b32 s89, hwreg(HW_REG_XCC_ID)')
    a('s_and_b32 s89, s89, 15')
    a('s_lshl_b32 s87, s84, 8')
    a('s_or_b32 s89, s89, s87')
    a(f'v_mov_b32 v{va}, s95')
    for i, r in enumerate((90, 86, 88, 89)):
        a(f'v_mov_b32 v{vb + i}, s{r}')
    a(f'buffer_store_dwordx4 v[{vb}:{vb + 3}], v{va}, s[76:79], 0 offen')
    a('s_mov_b64 exec, -1')
    a('s_nop 1')
    a.vm, a.nvm = vm, nvm


def tl_mark(a, srdreg, slot_sgpr_or_int, kidx, vtmp):
    if CFG['tl'] < 2:
        return
    a('s_memrealtime s[86:87]')
    a('s_memtime s[88:89]')
    a('s_load_dwordx2 s[74:75], s[0:1], 104')
    a('s_waitcnt lgkmcnt(0)')
    srd(a, 76, 74, TL_OFF + (4 + kidx) * 0x100000, 0x100000)
    a(f's_cmp_eq_u32 s94, {CFG["tlw"] * 64}')
    a('s_cselect_b64 exec, 1, 0')
    a('s_lshl_b32 s95, s2, 9')
    if isinstance(slot_sgpr_or_int, int):
        a(f's_add_u32 s95, s95, {slot_sgpr_or_int * 8}')
    else:
        a(f's_lshl_b32 s87, {slot_sgpr_or_int}, 3')
        a('s_add_u32 s95, s95, s87')
    a(f'v_mov_b32 v{vtmp}, s86')
    a(f'v_mov_b32 v{vtmp + 1}, s88')
    vm, nvm = list(a.vm), a.nvm
    a(f'buffer_store_dwordx2 v[{vtmp}:{vtmp + 1}], off, s[76:79], s95')
    a.vm, a.nvm = vm, nvm
    a('s_mov_b64 exec, -1')


def wave_scan(a, regs):
    for sh in (1, 2, 4, 8):
        for x in regs:
            a(f'v_add_u32_dpp v{x}, v{x}, v{x} row_shr:{sh} row_mask:0xf bank_mask:0xf bound_ctrl:1')
    for x in regs:
        a(f'v_add_u32_dpp v{x}, v{x}, v{x} row_bcast:15 row_mask:0xa bank_mask:0xf')
    for x in regs:
        a(f'v_add_u32_dpp v{x}, v{x}, v{x} row_bcast:31 row_mask:0xc bank_mask:0xf')


def ident(a, d, tmp, lane, neg=False):
    one = 0xbf80 if neg else 0x3f80
    a(f'v_and_b32 v{tmp}, 3, v{lane}')
    a(f'v_lshlrev_b32 v{tmp}, 4, v{tmp}')
    a(f'v_mov_b32 v{d}, {one:#x}')
    a(f'v_mov_b32 v{d+1}, 0')
    a(f'v_lshlrev_b64 {vr(d, 2)}, v{tmp}, {vr(d, 2)}')


MF = 'v_mfma_f32_4x4x4_16b_bf16'


def fin_gates(a, dist, sc, wt, gh, tmp, rows=(0, 1)):
    X, Y, RB, d = (tmp, tmp + 8, [tmp + 12, tmp + 16], gh) if isinstance(tmp, int) else tmp + (gh,)
    for r in rows:
        d = gh + 4 * r
        if r == 0:
            a(f'v_lshlrev_b32 v{d}, 16, v{dist}')
        else:
            a(f'v_and_b32 v{d}, 0xffff0000, v{dist}')

        def rnd():
            if not CFG['mimic']:
                return
            for n in range(4):
                a(f'v_cvt_pk_bf16_f32 v{Y + n}, v{X + 2 * n}, v{X + 2 * n + 1}')
            for n in range(4):
                a(f'v_lshlrev_b32 v{X + 2 * n}, 16, v{Y + n}')
                a(f'v_and_b32 v{X + 2 * n + 1}, 0xffff0000, v{Y + n}')
        for n in range(8):
            a(f'v_subrev_f32 v{X + n}, s{sc + n}, v{d}')
        rnd()
        for n in range(8):
            a(f'v_mul_f32 v{X + n}, v{X + n}, v{X + n}')
        rnd()
        if CFG['mimic']:
            for n in range(8):
                a(f'v_mul_f32 v{X + n}, 0xc1200000, v{X + n}')
            rnd()
        for n in range(8):
            a(f'v_mul_f32 v{X + n}, {"0x3fb8aa3b" if CFG["mimic"] else "0xc166d4ca"}, v{X + n}')
        for n in range(8):
            a(f'v_exp_f32 v{X + n}, v{X + n}')
        for n in range(4):
            a(f'v_cvt_pk_bf16_f32 v{RB[r] + n}, v{X + 2 * n}, v{X + 2 * n + 1}')
    for k in range(2):
        for r in rows:
            for w in range(2):
                o = gh + 8 * w + 4 * r
                a(f'{MF} {vr(o, 4)}, {vr(wt + 4 * w + 2 * k, 2)}, {vr(RB[r] + 2 * k, 2)}, {vr(o, 4) if k else 0}')


def fin_out(a, pl, gh, wt, ident_, m, S):
    S = [S, S + 4]
    G_, H_ = [gh, gh + 4], [gh + 8, gh + 12]
    for q in range(4):
        for r in range(2):
            a(f'{MF} {vr(S[r], 4)}, {vr(ident_, 2)}, {vr(pl + 4 * q + 2 * r, 2)}, {vr(S[r], 4) if q else 0}')
    for r in range(2):
        for n in range(4):
            a(f'v_mul_f32 v{S[r] + n}, v{S[r] + n}, v{G_[r] + n}')
        a(f'v_cvt_pk_bf16_f32 v{pl + 2 * r}, v{S[r]}, v{S[r] + 1}')
        a(f'v_cvt_pk_bf16_f32 v{pl + 1 + 2 * r}, v{S[r] + 2}, v{S[r] + 3}')
    for r in range(2):
        a(f'{MF} {vr(G_[r], 4)}, {vr(wt + 8, 2)}, {vr(pl + 2 * r, 2)}, 0')
    for r in range(2):
        for n in range(4):
            a(f'v_mul_f32 v{G_[r] + n}, v{G_[r] + n}, v{H_[r] + n}')
    for r in range(2):
        a(f'{MF} {vr(S[r], 4)}, {vr(ident_, 2)}, {vr(m + 2 * r, 2)}, {vr(G_[r], 4)}')
    for r in range(2):
        a(f'v_cvt_pk_bf16_f32 v{pl + 4 + 2 * r}, v{S[r]}, v{S[r] + 1}')
        a(f'v_cvt_pk_bf16_f32 v{pl + 5 + 2 * r}, v{S[r] + 2}, v{S[r] + 3}')


def gen_p3(a):
    name = 'gs_final_kernel'
    kernel_head(a, name)
    a('s_cmp_ge_u32 s2, 1250')
    a('s_cbranch_scc1 L3_end')
    tl_start(a)
    a('s_load_dwordx2 s[4:5], s[0:1], 0')
    a('s_load_dwordx2 s[6:7], s[0:1], 24')
    a('s_load_dwordx2 s[28:29], s[0:1], 40')
    a('s_load_dwordx2 s[30:31], s[0:1], 88')
    a('s_load_dwordx2 s[32:33], s[0:1], 104')
    a('s_lshl_b32 s3, s2, 8')
    a('v_add_u32 v1, s3, v0')
    a('v_lshlrev_b32 v2, 4, v1')
    a('v_lshlrev_b32 v3, 2, v1')
    a('v_bfe_u32 v4, v1, 3, 6')
    a('s_mov_b32 s3, 80000')
    a('v_mul_lo_u32 v4, v4, s3')
    a('v_lshrrev_b32 v5, 9, v1')
    a('v_lshl_add_u32 v4, v5, 7, v4')
    a('v_and_b32 v5, 7, v1')
    a('v_lshl_add_u32 v4, v5, 4, v4')
    a('v_and_b32 v5, 3, v0')
    a('v_lshlrev_b32 v5, 6, v5')
    a('s_waitcnt lgkmcnt(0)')
    a('s_load_dwordx4 s[36:39], s[28:29], 0')
    srd(a, 8, 4, 0, E * 8)
    srd(a, 12, 6, 0, E * 2)
    srd(a, 16, 30, 0, E * 8)
    srd(a, 20, 32, PART_OFF, PART_SZ)
    srd(a, 24, 32, WT_OFF, WT_SZ)
    a('buffer_load_dword v6, v3, s[12:15], 0 offen', tag='d')
    a('buffer_load_dwordx4 v[8:11], v5, s[24:27], 0 offen', tag='w')
    a('buffer_load_dwordx4 v[12:15], v5, s[24:27], 0 offen offset:16', tag='w')
    a('buffer_load_dwordx2 v[16:17], v5, s[24:27], 0 offen offset:32', tag='w')
    for q in range(4):
        a(f's_mov_b32 s{40+q}, {q * E * 8}')
        a(f'buffer_load_dwordx4 {vr(20 + 4 * q, 4)}, v4, s[20:23], s{40+q} offen', tag='p')
    a('buffer_load_dwordx4 v[36:39], v2, s[8:11], 0 offen', tag='m')
    ident(a, 18, 7, 0)
    a('s_waitcnt lgkmcnt(0)')
    for n in range(4):
        a(f's_lshl_b32 s{44 + 2 * n}, s{36 + n}, 16')
        a(f's_and_b32 s{45 + 2 * n}, s{36 + n}, 0xffff0000')
    a.wait_vm('d')
    RB = [40, 44]
    for r in range(2):
        if r == 0:
            a('v_lshlrev_b32 v7, 16, v6')
        else:
            a('v_and_b32 v7, 0xffff0000, v6')
        X = 48

        def rnd():
            for n in range(4):
                a(f'v_cvt_pk_bf16_f32 v{56 + n}, v{X + 2 * n}, v{X + 2 * n + 1}')
            for n in range(4):
                a(f'v_lshlrev_b32 v{X + 2 * n}, 16, v{56 + n}')
                a(f'v_and_b32 v{X + 2 * n + 1}, 0xffff0000, v{56 + n}')
        for n in range(8):
            a(f'v_subrev_f32 v{X + n}, s{44 + n}, v7')
        rnd()
        for n in range(8):
            a(f'v_mul_f32 v{X + n}, v{X + n}, v{X + n}')
        rnd()
        for n in range(8):
            a(f'v_mul_f32 v{X + n}, 0xc1200000, v{X + n}')
        rnd()
        for n in range(8):
            a(f'v_mul_f32 v{X + n}, 0x3fb8aa3b, v{X + n}')
        for n in range(8):
            a(f'v_exp_f32 v{X + n}, v{X + n}')
        for n in range(4):
            a(f'v_cvt_pk_bf16_f32 v{RB[r] + n}, v{X + 2 * n}, v{X + 2 * n + 1}')
    a.wait_vm('w')
    G = [48, 52]
    H = [56, 60]
    S = [64, 68]
    mf = 'v_mfma_f32_4x4x4_16b_bf16'
    for r in range(2):
        a(f'{mf} {vr(G[r], 4)}, v[8:9], {vr(RB[r], 2)}, 0')
        a(f'{mf} {vr(H[r], 4)}, v[12:13], {vr(RB[r], 2)}, 0')
    for r in range(2):
        a(f'{mf} {vr(G[r], 4)}, v[10:11], {vr(RB[r] + 2, 2)}, {vr(G[r], 4)}')
        a(f'{mf} {vr(H[r], 4)}, v[14:15], {vr(RB[r] + 2, 2)}, {vr(H[r], 4)}')
    a.wait_vm('p')
    for q in range(4):
        for r in range(2):
            a(f'{mf} {vr(S[r], 4)}, v[18:19], {vr(20 + 4 * q + 2 * r, 2)}, {vr(S[r], 4) if q else 0}')
    for r in range(2):
        for n in range(4):
            a(f'v_mul_f32 v{S[r] + n}, v{S[r] + n}, v{G[r] + n}')
        a(f'v_cvt_pk_bf16_f32 v{20 + 2 * r}, v{S[r]}, v{S[r] + 1}')
        a(f'v_cvt_pk_bf16_f32 v{21 + 2 * r}, v{S[r] + 2}, v{S[r] + 3}')
    for r in range(2):
        a(f'{mf} {vr(G[r], 4)}, v[16:17], {vr(20 + 2 * r, 2)}, 0')
    for r in range(2):
        for n in range(4):
            a(f'v_mul_f32 v{G[r] + n}, v{G[r] + n}, v{H[r] + n}')
    a.wait_vm('m')
    for r in range(2):
        a(f'{mf} {vr(S[r], 4)}, v[18:19], {vr(36 + 2 * r, 2)}, {vr(G[r], 4)}')
    for r in range(2):
        a(f'v_cvt_pk_bf16_f32 v{24 + 2 * r}, v{S[r]}, v{S[r] + 1}')
        a(f'v_cvt_pk_bf16_f32 v{25 + 2 * r}, v{S[r] + 2}, v{S[r] + 3}')
    a('buffer_store_dwordx4 v[24:27], v2, s[16:19], 0 offen', tag='st')
    tl_end(a)
    a.label('L3_end')
    a('s_endpgm')
    return name


from p1 import gen_p1
from p2 import gen_p2


def main():
    a = Asm()
    root = os.path.dirname(os.path.dirname(os.path.abspath(__file__))) + '/'
    ref = open(root + NAME + '.s.ref').read().splitlines()
    for ln in ref:
        if ln.startswith('; Override') or not ln.startswith(';'):
            break
        a.raw(ln)
    if CFG['one']:
        a.raw('; Generated by gen/gen.py (hand-written generator).  One persistent launch: sort, accumulate, final.')
        if CFG['one'] == 2:
            a.raw(f'; @launch kernel={NAME}_kernel grid=(256,1,1) block=(1024,1,1) lds=163840')
        else:
            a.raw('; @launch grid=(256,1,1) block=(1024,1,1) lds=163840')
        a.raw('.amdgcn_target "amdgcn-amd-amdhsa--gfx950"')
        gen_p1(Asm(), sys.modules[__name__], gen_p2)
        tl_idx[0] = 0
        k1 = gen_p1(a, sys.modules[__name__], gen_p2)
        a.raw('.section .rodata,"a"')
        kernel_desc(a, k1, 128, 102)
    else:
        a.raw('; Generated by gen/gen.py (hand-written generator).  Launches: sort, accumulate (+ final).')
        a.raw('; @launch kernel=gs_sort_kernel grid=(256,1,1) block=(1024,1,1) lds=163840')
        if CFG['dup1']:
            a.raw('; @launch kernel=gs_sort_kernel grid=(256,1,1) block=(1024,1,1) lds=163840')
        a.raw('; @launch kernel=gs_acc_kernel grid=(256,1,1) block=(1024,1,1) lds=163840')
        if CFG['dup2']:
            a.raw('; @launch kernel=gs_acc_kernel grid=(256,1,1) block=(1024,1,1) lds=163840')
        if not CFG['fuse']:
            a.raw('; @launch kernel=gs_final_kernel grid=(1250,1,1) block=(256,1,1) lds=0')
        for _ in range(CFG['dup3']):
            a.raw('; @launch kernel=gs_final_kernel grid=(1250,1,1) block=(256,1,1) lds=0')
        for _ in range(CFG['nulls']):
            a.raw('; @launch kernel=gs_null_kernel grid=(256,1,1) block=(64,1,1) lds=0')
        a.raw('.amdgcn_target "amdgcn-amd-amdhsa--gfx950"')
        k1 = gen_p1(a, sys.modules[__name__])
        t = tl_idx[0]
        list(gen_p2(Asm(), sys.modules[__name__]))
        tl_idx[0] = t
        k2 = list(gen_p2(a, sys.modules[__name__]))[-1]
        k3 = None if CFG['fuse'] else gen_p3(a)
        if CFG['nulls']:
            kernel_head(a, 'gs_null_kernel')
            a('s_endpgm')
        a.raw('.section .rodata,"a"')
        if CFG['nulls']:
            kernel_desc(a, 'gs_null_kernel', 8, 16)
        kernel_desc(a, k1, 128, 102)
        kernel_desc(a, k2, 128, 102)
        if k3:
            kernel_desc(a, k3, 72, 96 if CFG['tl'] else 64)
    out = sys.argv[1] if len(sys.argv) > 1 else root + NAME + '.s'
    txt = a.text()
    if CFG['ab_p1']:
        o = []
        on = False
        for ln in txt.split('\n'):
            if 'chunk 0: pass A' in ln:
                on = True
            if ln.startswith('L1_fin'):
                on = False
            t = ln.strip()
            if on:
                if t.startswith('ds_') and (CFG['ab_p1'] & 1):
                    continue
                if t.startswith('v_') and (CFG['ab_p1'] & 2) and not t.startswith(('v_add_u32', 'v_and_b32 v11', 'v_mov', 'v_readlane')):
                    continue
                if t.startswith('s_barrier') and (CFG['ab_p1'] & 4):
                    continue
                if t.startswith('buffer_store_dwordx2') and (CFG['ab_p1'] & 8):
                    ln = ln.replace('offen', 'offen').replace('s[24:27]', 's[96:99]')
                if t.startswith('buffer_store_dwordx4') and (CFG['ab_p1'] & 16):
                    ln = ln.replace('s[20:23]', 's[96:99]')
            o.append(ln)
            if 'chunk 0: pass A' in ln:
                o.append('    s_mov_b32 s96, s20\n    s_mov_b32 s97, s21\n    s_mov_b32 s98, 0\n    s_mov_b32 s99, 0x20000')
        txt = '\n'.join(o).replace('next_free_sgpr 96', 'next_free_sgpr 100')
        txt = '\n'.join(l for l in txt.split('\n') if not ('@launch' in l and 'sort' not in l))
    open(out, 'w').write(txt)


if __name__ == '__main__':
    main()
```

```python
from asmlib import vr, sr

MF = 'v_mfma_f32_4x4x4_16b_bf16'


def gen_p1(a, G, gen_p2=None):
    name = G.NAME + '_kernel' if gen_p2 else 'gs_sort_kernel'
    CFG = G.CFG
    SEL, ANDOR = G.SEL, G.ANDOR
    srd, tl_mark = G.srd, G.tl_mark
    T, E, CH, BLK = G.T, G.E, G.CH, G.BLK
    NW, NK = 256, 5
    G.kernel_head(a, name)
    a('s_cmp_ge_u32 s2, 256')
    a('s_cbranch_scc0 L1_go')
    a('s_endpgm')
    a.label('L1_go')
    G.tl_start(a)
    if CFG['diag']:
        a('s_memrealtime s[88:89]')
    if CFG['wgx']:
        a(f's_xor_b32 s2, s2, {CFG["wgx"]}')
    a('s_load_dwordx4 s[4:7], s[0:1], 8')
    a('s_load_dwordx2 s[28:29], s[0:1], 32')
    a('s_load_dwordx2 s[30:31], s[0:1], 104')
    a('s_load_dwordx2 s[56:57], s[0:1], 96')
    a('s_load_dwordx2 s[86:87], s[0:1], 0')
    a('s_load_dwordx4 s[60:63], s[0:1], 56')
    a('s_load_dwordx4 s[64:67], s[0:1], 72')
    T16, T8, ONE, K1F, K87, KFC, K78 = 0, 1, 2, 3, 4, 5, 6
    t = list(range(7, 16))
    sW, sI, sA, sR, sT, sTmp, sI4, sA4 = 32, 33, 34, 35, 36, 37, 38, 39
    sKB, sP1, sP3, sNQ, sM10, sI5, sA5, sTK = 40, 41, 42, 43, 55, 58, 59, 84
    a('v_lshrrev_b32 v7, 6, v0')
    a(f'v_lshlrev_b32 v{T8}, 3, v0')
    a(f'v_readfirstlane_b32 s{sW}, v7')
    a(f'v_lshlrev_b32 v{T16}, 4, v0')
    IL = CFG['il']
    sX = [sI4, sA4, sI5]
    CUT = [int(x) for x in CFG['cut'].split()]
    assert sum(CUT) == 528
    C2 = len(CUT) == 6
    assert (sorted(CUT[:3]) == CUT[:3] and sorted(CUT[3:]) == CUT[3:] and max(CUT) <= (128 if C2 else 256))

    def qoff(k, j):
        if not IL:
            return ((2, j) if j >= 5 else (1, j)) if k == NK - 1 else (0, k * NW * 8 + j)
        if k == NK - 1 and j >= 5 and C2:
            return j - 2, 0
        if k == NK - 1 and j >= 5:
            return 2, 9472 + sum(CUT[::-1][:j - 5])
        return 0, (k * 8 + j) * NW
    ILW = CFG['ilw'] and IL == 1
    if ILW:
        a(f'v_and_b32 v{T8}, 0x1f8, v{T8}')
        a(f'v_lshlrev_b32 v15, 1, v{T8}')
        for v in range(4):
            if CFG['ilw'] == 1:
                a(f's_xor_b32 s3, s{sW}, {(v & 1) << 3}')
            elif CFG['ilw'] == 2:
                a(f's_lshr_b32 s3, s{sW}, 1')
                a(f's_and_b32 s44, s{sW}, 1')
                a('s_lshl_b32 s44, s44, 3')
                a('s_or_b32 s3, s3, s44')
            elif CFG['ilw'] == 3:
                a(f's_lshr_b32 s3, s{sW}, 1')
                a(f's_and_b32 s44, s{sW}, 1')
                a('s_lshl_b32 s44, s44, 3')
                a('s_or_b32 s3, s3, s44')
                a(f's_xor_b32 s3, s3, {(v & 1) << 3}')
            else:
                a(f's_xor_b32 s3, s{sW}, {(v & 2) << 2}')
            a('s_lshl_b32 s3, s3, 10')
            a(f's_lshl_b32 s{96 + v}, s2, 14')
            a(f's_add_u32 s{96 + v}, s{96 + v}, s3')
    elif IL >= 2:
        for v in range(4):
            a(f's_xor_b32 s44, s2, {v << 3 if CFG["ilx"] else 0}')
            a(f's_lshr_b32 s3, s44, {IL}')
            a(f's_lshl_b32 s{96 + v}, s3, {14 + IL}')
            a(f's_and_b32 s3, s44, {(1 << IL) - 1}')
            a('s_lshl_b32 s3, s3, 10')
            a(f's_add_u32 s{96 + v}, s{96 + v}, s3')
            a(f's_mul_i32 s3, s{sW}, {1024 * ((1 << IL) - 1)}')
            a(f's_add_u32 s{96 + v}, s{96 + v}, s3')
    else:
        a(f's_mul_i32 s{sI}, s2, {16384 if IL else CH * 4}')
        a(f's_mul_i32 s{sA}, s2, {8192 if IL else CH * 2}')
    a('s_waitcnt lgkmcnt(0)')
    srd(a, 8, 4, 0, T * 4)
    srd(a, 12, 6, 0, T * 4)
    srd(a, 16, 28, 0, T * 2)

    ren = G.MEMO.get('ren', {})
    pool = [ren.get(16 + 4 * i, 16 + 4 * i) for i in range(28)]
    items = []
    for k in range(NK):
        for o in range(4):
            items += [(k, 'I', 2 * o), (k, 'O', 2 * o), (k, 'A', o), (k, 'I', 2 * o + 1), (k, 'O', 2 * o + 1)]
    where = {}
    st = dict(next=0, tmp=0)

    def soff(base, off):
        r = 44 + st['tmp'] % 4
        st['tmp'] += 1
        a(f's_add_u32 s{r}, s{base}, {off:#x}')
        return r

    def gate(j, word):
        a(f's_cmp_le_u32 s{sNQ}, {j}')
        a(f's_cselect_b32 s{word}, 0, s{word}')

    def issue(n, limit):
        while n > 0 and st['next'] < min(limit, len(items)) and pool:
            it = items[st['next']]
            st['next'] += 1
            n -= 1
            b = pool.pop(0)
            where[it] = b
            k, kind, j = it
            lastk = k == NK - 1
            if kind == 'A':
                for h in range(2):
                    if lastk and 2 * j + h >= 5:
                        assert st.get('assigned') or not CFG['dyn']
                        gate(2 * j + h, 18)
                    bs, qo = qoff(k, 2 * j + h)
                    if bs > 2:
                        r = soff(sX[bs - 3], 0)
                        a(f's_lshr_b32 s{r}, s{r}, 1')
                    elif (IL >= 2 or ILW) and bs == 0:
                        r = soff(96 + ((2 * j + h) & 3), qo * 16384)
                        a(f's_lshr_b32 s{r}, s{r}, 1')
                    else:
                        r = soff((sA, sA4, sA5)[bs], qo * 8192)
                    a(f'buffer_load_dwordx2 {vr(b + 2 * h, 2)}, v{T8}, s[16:19], s{r} offen{CFG["ld_pol"]}', tag=it)
            else:
                s = 8 if kind == 'I' else 12
                if lastk and j >= 5:
                    gate(j, s + 2)
                bs, qo = qoff(k, j)
                r = soff((96 + (j & 3) if IL >= 2 or ILW else sI, sI4, sI5, sX[0], sX[1], sX[2])[bs], qo * 16384)
                if ILW:
                    a(f'v_lshlrev_b32 v{b}, 1, v{T8}')
                a(f'buffer_load_dwordx4 {vr(b, 4)}, v{b if ILW else T16}, s[{s}:{s+3}], s{r} offen{CFG["ld_pol"]}', tag=it)

    if not gen_p2:
        issue(CFG['p1_first'], 20)
    srd(a, 68, 62, 0, 64)
    srd(a, 72, 60, 0, 64)
    srd(a, 20, 66, 0, 32)
    srd(a, 80, 64, 0, 32)
    srd(a, 24, 30, G.WT_OFF, G.WT_SZ)
    a(f'v_lshrrev_b32 v2, 3, v{T16}')
    a('v_and_b32 v2, 6, v2')
    a(f'v_lshlrev_b32 v3, 2, v{T16}')
    a(f's_lshl_b32 s3, s{sW}, 8')
    a('s_add_u32 s3, s3, s2')
    a('s_cmp_lg_u32 s3, 254')
    a('s_cbranch_scc1 L1_wt')
    vm = list(a.vm)
    assert min(pool) <= 96 and all(b in pool for b in range(96, 128, 4))

    def load_wt(dst, s, k0):
        for k in range(4):
            a(f'buffer_load_ushort v{(dst + (k >> 1)) + 12 * (k & 1)}, v2, s[{s}:{s+3}], 0 offen offset:{(k0 + k) * 8}', tag='w')
    load_wt(96, 68, 0)
    load_wt(98, 68, 4)
    load_wt(100, 72, 0)
    load_wt(102, 72, 4)
    load_wt(104, 20, 0)
    load_wt(106, 80, 0)
    a.wait_vm('w')
    for i in range(96, 108):
        a(f'v_lshl_or_b32 v{i}, v{i + 12}, 16, v{i}')
    for n in range(3):
        a(f'buffer_store_dwordx4 {vr(96 + 4 * n, 4)}, v3, s[24:27], 0 offen offset:{16 * n} sc1', tag='st')
    a.vm = vm
    a.label('L1_wt')
    if gen_p2:
        a('s_nop 1')
        issue(CFG['p1_first'], 20)
    srd(a, 20, 30, G.REC_OFF - 16384, G.REC_SZ + 16384)
    srd(a, 24, 30, G.TAB_OFF, G.TAB_SZ)
    if CFG['tlbw']:
        a(f's_cmp_lg_u32 s{sW}, {CFG["tlbw"] - 1}')
        a(f'v_and_b32 v12, 0x30, v{T16}')
        a('s_cbranch_scc1 L1_tw')
        vm, nvm = list(a.vm), a.nvm
        a('s_lshr_b32 s3, s2, 3')
        a('v_lshl_add_u32 v12, v12, 1, s3')
        a('v_lshlrev_b32 v13, 21, v12')
        a(f's_mov_b32 s3, {12 * BLK}')
        a('v_mul_lo_u32 v12, v12, s3')
        a(f's_mov_b32 s3, {16384 + BLK - 128}')
        a('s_mov_b64 exec, 15')
        for sr_ in (8, 12, 16):
            a(f'buffer_load_dword v3, v13, s[{sr_}:{sr_ + 3}], 0 offen nt')
        a('buffer_load_dword v3, v12, s[20:23], s3 offen nt')
        a('s_mov_b64 exec, -1')
        a.vm, a.nvm = vm, nvm
        a.label('L1_tw')
    sKO = [72, 73, 85, 91, 93]
    if CFG['stp']:
        for j in range(5):
            a(f's_add_u32 s3, s{sW}, {16 * j}')
            a('s_mul_i32 s4, s3, 205')
            a('s_lshr_b32 s4, s4, 10')
            a('s_mul_i32 s5, s4, 5')
            a('s_sub_u32 s5, s3, s5')
            a('s_lshl_b32 s5, s5, 5')
            a('s_add_u32 s4, s4, s5')
            a(f's_sub_u32 s4, s4, s{sW}')
            a(f's_lshl_b32 s{sKO[j]}, s4, 10')
    srd(a, 80, 86, 0, E * 8)
    mc = {}

    MCN = CFG['mcn']
    MCP = -(-5120 // MCN)
    MCH = (MCP + 15) // 16
    sMC = sTK if MCN < 256 else 2

    def mcopy_load():
        if CFG['mc1'] == 30 and p2:
            mc['b'] = [take(108 + 4 * h) for h in range(MCH)]
            if CFG['mc0'] >= 20:
                a(f's_waitcnt vmcnt({st["nrec"] - st["tabr"]})')
                st['tabok'] = True
        else:
            mc['b'] = [pool.pop(0) for _ in range(MCH)]
        mt = 15 if CFG['mc0'] < 10 else 11
        a(f'v_lshrrev_b32 v{mt}, 2, v{T16}')
        a(f'v_and_b32 v{mt}, 0xfc, v{mt}')
        a(f's_cmp_ge_u32 s{sMC}, {MCN}')
        a('s_cselect_b32 s82, 0, s82')
        for h in range(MCH):
            a(f's_mul_i32 s3, s{sMC}, {MCP}')
            a(f's_add_u32 s3, s3, s{sW}')
            if h:
                a(f's_add_u32 s3, s3, {16 * h}')
            a('s_mul_i32 s76, s3, 52429')
            a('s_lshr_b32 s76, s76, 22')
            a('s_mul_i32 s74, s76, 80')
            a('s_sub_u32 s3, s3, s74')
            if 16 * h + 16 > MCP:
                a(f's_cmp_ge_u32 s{sW}, {MCP - 16 * h}')
                a('s_cselect_b32 s82, 0, s82')
            a('s_mul_i32 s74, s3, 205')
            a('s_lshr_b32 s74, s74, 10')
            a('s_mul_i32 s75, s74, 5')
            a('s_sub_u32 s75, s3, s75')
            if CFG['mside']:
                a('s_bfe_u32 s74, s3, 0x10004')
                a('s_lshl_b32 s74, s74, 3')
                a('s_and_b32 s48, s3, 7')
                a('s_or_b32 s74, s74, s48')
                a('s_bfe_u32 s75, s3, 0x10005')
                a('s_bfe_u32 s48, s3, 0x10003')
                a('s_lshl1_add_u32 s75, s75, s48')
                a('s_and_b32 s48, s3, 15')
                a('s_cmp_ge_u32 s3, 64')
                a('s_cselect_b32 s74, s48, s74')
                a('s_cselect_b32 s75, 4, s75')
            a('s_lshl_b32 s48, s74, 1')
            a('s_add_u32 s48, s48, s75')
            a('s_add_u32 s49, s48, s74')
            a('s_add_u32 s49, s49, 30')
            a('s_cmp_lt_u32 s75, 2')
            a('s_cselect_b32 s48, s48, s49')
            a('s_lshl_b32 s48, s48, 10')
            a('s_mul_i32 s49, s76, 80000')
            a('s_add_u32 s48, s48, s49')
            for jd in range(4):
                a(f'buffer_load_dword v{mc["b"][h] + jd}, v{mt}, s[80:83], s48 offen offset:{256 * jd}', tag='mc')

    def mhook(pos):
        if pos == CFG['mc0']:
            mcopy_load()
        if pos == CFG['mc1']:
            mcopy_store()

    def mcopy_store():
        srd(a, 80, 30, G.MD_OFF, MCP * 1024)
        a(f's_min_u32 s3, s{sMC}, {MCN - 1}')
        a(f's_mul_i32 s3, s3, {MCP * 1024}')
        a('s_add_u32 s80, s80, s3')
        a('s_addc_u32 s81, s81, 0')
        a(f's_cmp_ge_u32 s{sMC}, {MCN}')
        a('s_cselect_b32 s82, 0, s82')
        a.wait_vm('mc')
        if CFG['mc0'] > 20 and len(a.vm) <= st['nrec'] - st['tabr']:
            st['tabok'] = True
        for h in range(MCH):
            a(f'v_add_u32 v11, {h * 16384}, v{T16}')
            a(f'buffer_store_dwordx4 {vr(mc["b"][h], 4)}, v11, s[80:83], 0 offen sc1', tag='mst')
        pool.extend(mc['b'])
    a(f's_mul_i32 s{sR}, s2, {BLK}')
    a(f's_and_b32 s{sTmp}, s{sW}, 3')
    a(f's_lshl_b32 s{sTmp}, s{sTmp}, 3')
    a(f's_mov_b32 s{sT}, s{sTmp}' if CFG['tabx'] else f's_add_u32 s{sT}, s{sR}, s{sTmp}')
    a(f's_lshr_b32 s{sTmp}, s{sW}, 2')
    a(f's_mul_i32 s{sTmp}, s{sTmp}, 2080')
    a(f's_add_u32 s{sT}, s{sT}, s{sTmp}')
    a(f's_and_b32 s{sTmp}, s2, 3')
    a(f's_lshl_b32 s{sTmp}, s{sTmp}, 5')
    a(f's_add_u32 s{sT}, s{sT}, s{sTmp}')
    a('s_mul_i32 s4, s2, 5')
    a('s_add_u32 s4, s4, 8192')
    a(f's_lshl_b32 s{sI4}, s4, 14')
    a(f's_lshl_b32 s{sA4}, s4, 13')

    def assign():
        if C2:
            assert ILW and CFG['dyn'] == 2
            a(f's_and_b32 s4, s{sTK}, 127')
            a(f's_lshl_b32 s6, s{sW}, 10')
            a(f's_mov_b32 s{sNQ}, 5')
            base = 9472
            for x in range(3):
                ne, no = CUT[2 - x], CUT[5 - x]
                a('s_bitcmp1_b32 s2, 0')
                a(f's_cselect_b32 s5, {ne}, 0')
                a(f's_mov_b32 s7, {ne}')
                a(f's_cselect_b32 s7, {no}, s7')
                a('s_add_u32 s5, s5, s4')
                a(f's_add_u32 s5, s5, {base}')
                a('s_lshl_b32 s5, s5, 14')
                a(f's_add_u32 s{sX[x]}, s5, s6')
                a('s_cmp_lt_u32 s4, s7')
                a(f's_addc_u32 s{sNQ}, s{sNQ}, 0')
                base += ne + no
            return
        n3, n2, n1 = CUT
        a(f's_min_u32 s4, s{sTK}, {n3}')
        a(f's_min_u32 s5, s{sTK}, {n2}')
        a(f's_min_u32 s6, s{sTK}, {n1}')
        a('s_add_u32 s4, s4, s5')
        a('s_add_u32 s4, s4, s6')
        a(f's_add_u32 s4, s4, {8192 + 1280 - 5}')
        if IL:
            a(f's_mov_b32 s4, s{sTK}')
        a(f's_lshl_b32 s{sI5}, s4, 14')
        if ILW:
            a(f's_lshl_b32 s5, s{sW}, 10')
            a(f's_add_u32 s{sI5}, s{sI5}, s5')
        a(f's_lshr_b32 s{sA5}, s{sI5}, 1')
        a(f's_mov_b32 s{sNQ}, 5')
        for n in CUT:
            a(f's_cmp_lt_u32 s{sTK}, {n}')
            a(f's_addc_u32 s{sNQ}, s{sNQ}, 0')
    if not CFG['dyn']:
        a('s_lshr_b32 s3, s2, 1')
        a('s_and_b32 s4, s2, 1')
        a('s_lshl_b32 s4, s4, 7')
        a(f's_add_u32 s{sTK}, s3, s4')
        assign()
    a(f'v_mov_b32 v{ONE}, 1')
    a(f'v_mov_b32 v{K87}, 0x80000007')
    a(f'v_mov_b32 v{KFC}, 0xfc')
    a(f'v_mov_b32 v{K78}, 0x78')
    a(f's_mov_b32 s{sKB}, {G.KBIAS << 3}')
    a(f's_mov_b32 s{sM10}, -10000')
    a(f's_mov_b32 s{sP1}, 0x010c0c01')
    a(f's_mov_b32 s{sP3}, 0x030c0c03')
    for i in range(4):
        a(f'v_mov_b32 v{8 + i}, 0')
    a(f'ds_write_b128 v{T16}, v[8:11]')
    if gen_p2:
        srd(a, 60, 30, G.PROG_OFF, 32768)
        a('s_mov_b64 s[66:67], s[56:57]')
        a('s_lshl_b32 s57, s2, 7')
    srd(a, 68, 30, G.FLAG_OFF, 128)
    a('s_lshl_b32 s3, s2, 7')
    a('s_add_u32 s68, s68, s3')
    a('s_addc_u32 s69, s69, 0')
    a(f's_cmp_lg_u32 s{sW}, 0')
    a('s_cbranch_scc1 L1_fl')
    vm = list(a.vm)
    a(f'buffer_store_dwordx4 v[8:11], v{T16}, s[68:71], 0 offen sc1')
    if gen_p2:
        a('s_mov_b64 exec, 0xff')
        a(f'buffer_store_dwordx4 v[8:11], v{T16}, s[60:63], s57 offen sc1')
        a('s_mov_b64 exec, -1')
        if CFG['inv']:
            a('buffer_inv sc1')
    a.vm = vm
    a.label('L1_fl')
    a('s_waitcnt lgkmcnt(0)')
    a('s_barrier')

    pend_st = []
    uid = [0]

    def store(n):
        while n > 0 and pend_st:
            b, off, ko = pend_st.pop(0)
            n -= 1
            r = soff(sR, off + 16384)
            if ko:
                a(f's_add_u32 s{r}, s{r}, s{ko}')
            a(f'buffer_store_dwordx4 {vr(b, 4)}, v{st.get("t16", T16)}, s[20:23], s{r} offen{CFG["st_pol"]}', tag='st')
            pool.append(b)
            st['nrec'] = st.get('nrec', 0) + 1

    taken = []

    def take(want):
        b = pool.pop(0)
        taken.append((b, want))
        assert not ren or b == want
        return want

    def last_store():
        j = 10 - len(pend_st)
        if j < 7:
            store(1)
            return
        uid[0] += 1
        a(f's_cmp_le_u32 s{sNQ}, {j - 2}')
        a(f's_cbranch_scc1 L1_q{uid[0]}')
        vm, nvm = list(a.vm), a.nvm
        store(1)
        a.vm, a.nvm = vm, nvm
        a.label(f'L1_q{uid[0]}')
    p2 = gen_p2(a, G, dict(take=take, store=last_store, mhook=mhook, t16=lambda r: st.update(t16=r))) if gen_p2 else None

    class skip_quad:
        def __init__(self, on, j):
            self.on, self.j = on and j >= 5, j

        def __enter__(self):
            if self.on:
                uid[0] += 1
                self.l = f'L1_s{uid[0]}'
                a(f's_cmp_le_u32 s{sNQ}, {self.j}')
                a(f's_cbranch_scc1 {self.l}')

        def __exit__(self, *x):
            if self.on:
                a.label(self.l)

    done = set()

    def encode(k, j, count=True):
        I, O, A = where[(k, 'I', j)], where[(k, 'O', j)], where[(k, 'A', j // 2)] + 2 * (j & 1)
        a.wait_vm([(k, 'I', j), (k, 'O', j), (k, 'A', j // 2)])
        with skip_quad(k == NK - 1, j):
            for p in range(2):
                a(f'v_lshlrev_b32 v{t[2*p]}, 16, v{A+p}')
                a(f'v_and_b32 v{t[2*p+1]}, 0xffff0000, v{A+p}')
            for p in range(4):
                a(f'v_mul_f32 v{t[p]}, 0.15915494, v{t[p]}')
            for r in range(4):
                u, x, y, ib = t[4], t[5], t[6], t[7]
                a(f'v_mul_hi_u32_u24 v{ib}, 429497, v{I+r}')
                a(f'v_lshrrev_b32 v{x}, 3, v{O+r}')
                a(f'v_cos_f32 v{t[r]}, v{t[r]}')
                a(f'v_lshlrev_b16 v{y}, 3, v{O+r}')
                a(f'v_mad_i32_i24 v{u}, v{ib}, s{sM10}, v{I+r}')
                a(f'v_bitop3_b32 v{x}, v{K78}, v{y}, v{x} bitop3:{SEL:#x}')
                a(f'v_lshl_add_u32 v{u}, v{u}, 17, s{sKB}')
                a(f'v_lshlrev_b16 v{ib}, 8, v{ib}')
                a(f'v_lshrrev_b32 v{y}, 2, v{O+r}')
                a(f'v_add_u32 v{I+r}, v{x}, v{u}')
                a(f'v_bitop3_b32 v{O+r}, v{KFC}, v{y}, v{ib} bitop3:{ANDOR:#x}')
                if count:
                    a(f'ds_add_u32 v{O+r}, v{ONE}')
                if r & 1:
                    p = r >> 1
                    a(f'v_cvt_pk_bf16_f32 v{A+p}, v{t[2*p]}, v{t[2*p+1]}')
                    a(f'v_perm_b32 v{x}, v{A+p}, v{A+p}, s{sP1}')
                    a(f'v_bitop3_b32 v{I+r-1}, v{K87}, v{x}, v{I+r-1} bitop3:{SEL:#x}')
                    a(f'v_perm_b32 v{y}, v{A+p}, v{A+p}, s{sP3}')
                    a(f'v_bitop3_b32 v{I+r}, v{K87}, v{y}, v{I+r} bitop3:{SEL:#x}')
        done.add((k, j))

    for k in range(NK):
        tl_mark(a, 76, k * 6 + 4, 0, 8)
        a.c(f'==== chunk {k}: pass A')
        lim = (k + 1) * 20 + 18
        last = k == NK - 1

        def mix(n):
            for _ in range(n):
                store(1)
                issue(1, lim)
        sa = [int(x) for x in CFG['sa']]
        sb = [int(x) for x in CFG['sb']]
        la = [int(x) for x in CFG['la']]
        lb = [int(x) for x in CFG['lb']]
        if last:
            if p2:
                assert CFG['dyn'] == 2
                next(p2)
            mix(2)
        for j in range(8):
            if CFG['p1prio']:
                if j & 1 == 0:
                    a(f's_setprio {3 - j // 2}')
            if k == 0:
                if CFG['mc0'] < 0 and j == 0:
                    a('s_lshr_b32 s3, s2, 1')
                    a('s_and_b32 s4, s2, 1')
                    a('s_lshl_b32 s4, s4, 7')
                    a(f's_add_u32 s{sTK}, s3, s4')
                mhook(j - 10)
                issue(3 if j & 1 else 2, 24)
            elif not last:
                mix(sa[j])
            else:
                store(la[j])
                mhook(j)
            if CFG['dyn'] and k == NK - 2 and j == CFG['tkpos']:
                srd(a, 68, 66 if gen_p2 else 56, 0, 256)
                a('v_mov_b32 v3, 1')
                a(f's_cmp_lg_u32 s{sW}, {CFG["tkwave"]}')
                a('s_cbranch_scc1 L1_tk')
                vm = list(a.vm)
                a('s_mov_b64 exec, 1')
                if CFG['dyn'] == 2:
                    a('s_and_b32 s3, s2, 1')
                    a('s_lshl_b32 s3, s3, 7')
                    a('buffer_atomic_add v3, off, s[68:71], s3 sc0')
                else:
                    a('buffer_atomic_add v3, off, s[68:71], 0 sc0')
                a('s_mov_b64 exec, -1')
                a.vm = vm
                st['tkn'] = a.nld
                a.label('L1_tk')
            if (k, j) in done:
                with skip_quad(last, j):
                    for r in range(4):
                        a(f'ds_add_u32 v{where[(k, "O", j)] + r}, v{ONE}')
            else:
                encode(k, j)
        tl_mark(a, 76, k * 6 + 0, 0, 8)
        a.c('scan')
        a(f'v_lshrrev_b32 v8, 2, v{T16}')
        a(f'v_and_b32 v7, 0x3c00, v{T16}')
        a(f'v_bitop3_b32 v7, v{KFC}, v8, v7 bitop3:{ANDOR:#x}')
        a('s_waitcnt lgkmcnt(0)')
        a('s_barrier')
        a('ds_read2st64_b32 v[8:9], v7 offset0:0 offset1:1')
        a('ds_read2st64_b32 v[10:11], v7 offset0:2 offset1:3')
        mix((lb if last else sb)[0])
        a('s_waitcnt lgkmcnt(0)')
        a('v_lshl_or_b32 v12, v9, 16, v8')
        a('v_lshl_or_b32 v13, v11, 16, v10')
        a('v_mov_b32 v14, v12')
        a('v_mov_b32 v15, v13')
        G.wave_scan(a, [14, 15])
        a('v_readlane_b32 s48, v14, 63')
        a('v_readlane_b32 s49, v15, 63')
        a(f's_lshl_b32 s54, s{sW}, 2')
        a('v_mov_b32 v8, s54')
        a('s_and_b32 s50, s48, 0xffff')
        a('s_lshr_b32 s51, s48, 16')
        a('s_and_b32 s52, s49, 0xffff')
        a('s_lshr_b32 s53, s49, 16')
        a('s_add_u32 s51, s51, s50')
        a('s_add_u32 s52, s52, s51')
        a('s_add_u32 s53, s53, s52')
        a('v_mov_b32 v9, s53')
        if last and p2:
            next(p2)
        a('s_mov_b64 exec, 1')
        a('ds_write_b32 v8, v9 offset:16384')
        if CFG['dyn'] and k == NK - 2:
            a(f's_cmp_lg_u32 s{sW}, {CFG["tkwave"]}')
            a('s_cbranch_scc1 L1_tk2')
            vm = list(a.vm)
            a(f's_waitcnt vmcnt({a.nld - st["tkn"]})')
            a.vm = vm
            a.label('L1_tk2')
            a('ds_write_b32 v8, v3 offset:16448')
        if last and p2:
            a('ds_write_b32 v8, v3 offset:16448')
        a('s_mov_b64 exec, -1')
        a('v_and_b32 v8, 60, v7')
        a('s_waitcnt lgkmcnt(0)')
        a('s_barrier')
        a('ds_read_b32 v9, v8 offset:16384')
        if (CFG['dyn'] and k == NK - 2) or (last and p2):
            a('ds_read_b32 v10, v8 offset:16448')
        mix((lb if last else sb)[1])
        a('s_waitcnt lgkmcnt(0)')
        if last and p2:
            next(p2)
        if CFG['dyn'] and k == NK - 2:
            a(f'v_readlane_b32 s{sTK}, v10, {CFG["tkwave"]}')
            if CFG['dyn'] == 2:
                a('s_and_b32 s3, s2, 1')
                a('s_lshl_b32 s3, s3, 7')
                a(f's_add_u32 s{sTK}, s{sTK}, s3')
            assign()
            st['assigned'] = True
        for sh in (1, 2, 4, 8):
            a(f'v_add_u32_dpp v9, v9, v9 row_shr:{sh} row_mask:0xf bank_mask:0xf bound_ctrl:1')
        a(f'v_readlane_b32 s54, v9, s{sW}')
        a('s_sub_u32 s54, s54, s53')
        a('s_add_u32 s50, s50, s54')
        a('s_add_u32 s51, s51, s54')
        a('s_add_u32 s52, s52, s54')
        a('s_pack_ll_b32_b16 s48, s54, s50')
        a('s_pack_ll_b32_b16 s49, s51, s52')
        a('v_add_u32 v14, s48, v14')
        a('v_add_u32 v15, s49, v15')
        a('v_sub_u32 v12, v14, v12')
        a('v_sub_u32 v13, v15, v13')
        a('v_and_b32 v8, 0xffff, v12')
        a('v_lshrrev_b32 v9, 16, v12')
        a('v_and_b32 v10, 0xffff, v13')
        a('v_lshrrev_b32 v11, 16, v13')
        a('ds_write2st64_b32 v7, v8, v9 offset0:0 offset1:1')
        a('ds_write2st64_b32 v7, v10, v11 offset0:2 offset1:3')
        if CFG['tabx']:
            a(f'v_and_b32 v8, 0x3f0, v{T16}')
            a(f'v_lshl_add_u32 v8, v8, 1, s{sT}')
            a('ds_write_b64 v8, v[12:13] offset:20480')
            a('s_bitset0_b64 exec, 63')
            a('s_not_b64 exec, exec')
            a('ds_write_b64 v8, v[14:15] offset:20512')
            a('s_mov_b64 exec, -1')
        a('s_waitcnt lgkmcnt(0)')
        a('s_barrier')
        tl_mark(a, 76, k * 6 + 1, 0, 8)
        a.c('pass B')
        for j in range(8):
            if CFG['p1prio'] and j & 1 == 0:
                a(f's_setprio {3 - j // 2}')
            O = where[(k, 'O', j)]
            with skip_quad(last, j):
                for r in range(4):
                    a(f'ds_add_rtn_u32 v{O+r}, v{O+r}, v{ONE}')
            if CFG['tabx']:
                if j == 0:
                    a(f'ds_read_b128 v[12:15], v{T16} offset:20480', tag='tab')
                    a(f'v_cmp_gt_u32 vcc, {G.TAB_CH + 128}, v{T16}')
                if j == 2:
                    uid[0] += 1
                    a.wait_lg('tab')
                    a(f's_cbranch_vccz L1_p{uid[0]}')
                    vm, nvm = list(a.vm), a.nvm
                    r = soff(sR, k * NW * BLK)
                    a('s_mov_b64 exec, vcc')
                    a(f'buffer_store_dwordx4 v[12:15], v{T16}, s[24:27], s{r} offen{CFG["st_pol"]}')
                    a('s_mov_b64 exec, -1')
                    a.vm, a.nvm = vm, nvm
                    st['tabn'] = a.nvm
                    st['tabr'] = st.get('nrec', 0)
                    a.label(f'L1_p{uid[0]}')
                if j == 3 and last and p2:
                    next(p2)
            elif j == 0:
                r = soff(sT, k * NW * BLK)
                a(f'v_and_b32 v11, 0x3f0, v{T16}')
                a('v_add_u32 v11, v11, v11')
                a(f'buffer_store_dwordx2 v[12:13], v11, s[24:27], s{r} offen', tag='tab')
                a('s_bitset0_b64 exec, 63')
                a('s_not_b64 exec, exec')
                a(f'buffer_store_dwordx2 v[14:15], v11, s[24:27], s{r} offen offset:32', tag='tab')
                a('s_mov_b64 exec, -1')
                uid[0] += 1
                a(f'v_cmp_le_u32 vcc, s{sTmp}, v{T16}')
                a(f'v_add_u32 v10, {G.TAB_CH}, v{T16}')
                a(f's_cmp_lg_u32 s{sW}, 0')
                a(f'v_cndmask_b32 v10, v{T16}, v10, vcc')
                a(f's_cbranch_scc1 L1_p{uid[0]}')
                vm, nvm = list(a.vm), a.nvm
                r = soff(sR, k * NW * BLK)
                a('s_mov_b64 exec, 0xff')
                a(f'buffer_store_dwordx4 v[12:15], v10, s[24:27], s{r} offen')
                a('s_mov_b64 exec, -1')
                a.vm, a.nvm = vm, nvm
                a.label(f'L1_p{uid[0]}')
            mix((lb if last else sb)[2 + j])
            if last:
                mhook(10 + j)
        a('s_waitcnt lgkmcnt(0)')
        a('s_barrier')
        if last and p2:
            next(p2)
        tl_mark(a, 76, k * 6 + 2, 0, 8)
        a.c('scatter')
        n0 = st['next']
        ns0 = len(pend_st)
        for j in range(8):
            if CFG['p1prio'] and j & 1 == 0:
                a(f's_setprio {3 - j // 2}')
            I, O, A = where[(k, 'I', j)], where[(k, 'O', j)], where[(k, 'A', j // 2)] + 2 * (j & 1)
            with skip_quad(last, j):
                for r in range(4):
                    x, y = t[(2 * r) % 4], t[(2 * r + 1) % 4]
                    a(f'v_and_b32 v{x}, -4, v{O+r}')
                    a(f'v_lshl_add_u32 v{y}, v{O+r}, 2, v{x}')
                    a(f'ds_write_b32 v{y}, v{I+r}')
                    a(f'v_lshl_add_u32 v{x}, v{x}, 2, v{O+r}')
                    a(f'ds_write_b8{"_d16_hi" if r & 1 else ""} v{x}, v{A + (r >> 1)} offset:16')
            pool.append(I)
            pool.append(O)
            if j & 1:
                pool.append(where[(k, 'A', j // 2)])
            nd = CFG['scd']
            store(len(pend_st) - (ns0 - (ns0 * min(j + 1, nd) + nd - 1) // nd))
            want = n0 + ((lim - n0) * min(j + 1, nd) + nd - 1) // nd
            issue(want - st['next'], lim)
            if k >= CFG['prek'] and not last:
                for q, c in enumerate(CFG['pre']):
                    if int(c) == j:
                        encode(k + 1, q, False)
            if last:
                mhook(20 + j)
            if last and p2 and j < 6:
                next(p2)
        if last and p2 and not st.get('tabok'):
            a(f's_waitcnt vmcnt({min(ns0, a.nvm - st["tabn"])})')
        stp = CFG['stp'] and not last
        fa = [7, 12, 13, 14, 15]
        if stp:
            for j in range(5):
                a(f'v_add_u32 v{fa[j]}, s{sKO[j]}, v{T16}')
            a(f's_min_i32 s3, s{sKO[0]}, s{sKO[1]}')
            for j in range(2, 5):
                a(f's_min_i32 s3, s3, s{sKO[j]}')
            a(f'v_add_u32 v3, s3, v{T16}')
        else:
            a(f'v_add_u32 v7, 0x10000, v{T16}')
            a(f'v_add_u32 v12, 0x20000, v{T16}')
        if not last:
            for i in range(4):
                a(f'v_mov_b32 v{8 + i}, 0')
        a('s_waitcnt lgkmcnt(0)')
        a('s_barrier')
        tl_mark(a, 76, k * 6 + 3, 0, 8 if last else pool[0])
        assert not pend_st
        a.c('flush')
        if last and p2 and ren:
            pool[:] = [24, 28, 32, 36, 76, 80, 84, 104, 68, 72]
        for j in range(10):
            b = pool.pop(0)
            if stp:
                a(f'ds_read_b128 {vr(b, 4)}, v{fa[j % 5]} offset:{(j // 5) * 16384}')
                if j == 4:
                    a('ds_write_b128 v3, v[8:11]')
                pend_st.append((b, k * NW * BLK + (j // 5) * 16384, sKO[j % 5]))
                continue
            base = (T16, 7, 12)[j // 4]
            a(f'ds_read_b128 {vr(b, 4)}, v{base} offset:{(j % 4) * 16384}')
            if j == 0 and not last:
                a(f'ds_write_b128 v{T16}, v[8:11]')
            pend_st.append((b, k * NW * BLK + j * 16384, None))
        if not last:
            a('s_waitcnt lgkmcnt(0)')
            a('s_barrier')
        elif p2:
            next(p2)
            a('s_waitcnt lgkmcnt(0)')
            if CFG['fs'] < 2:
                a('s_barrier')
            if not ren:
                m = dict(taken)
                rest_s = [b for b in range(16, 128, 4) if b not in m]
                rest_d = [b for b in range(16, 128, 4) if b not in m.values()]
                m.update(zip(rest_s, rest_d))
                G.MEMO['ren'] = m
            for _ in p2:
                pass
            return name
        else:
            for j in range(10):
                if j >= 7:
                    a(f's_cmp_le_u32 s{sNQ}, {j - 2}')
                    a('s_cbranch_scc1 L1_fin')
                a(f's_waitcnt lgkmcnt({9 - j})')
                store(1)
                if j == 6:
                    mhook(30)
    a.label('L1_fin')
    a.reset()
    G.tl_end(a)
    a.label('L1_end')
    a('s_endpgm')
    return name
```

```python
from asmlib import vr, sr

MF = 'v_mfma_f32_4x4x4_16b_bf16'


def gen_p1(a, G, gen_p2=None):
    name = G.NAME + '_kernel' if gen_p2 else 'gs_sort_kernel'
    CFG = G.CFG
    SEL, ANDOR = G.SEL, G.ANDOR
    srd, tl_mark = G.srd, G.tl_mark
    T, E, CH, BLK = G.T, G.E, G.CH, G.BLK
    NW, NK = 256, 5
    G.kernel_head(a, name)
    a('s_cmp_ge_u32 s2, 256')
    a('s_cbranch_scc0 L1_go')
    a('s_endpgm')
    a.label('L1_go')
    G.tl_start(a)
    if CFG['diag']:
        a('s_memrealtime s[88:89]')
    if CFG['wgx']:
        a(f's_xor_b32 s2, s2, {CFG["wgx"]}')
    a('s_load_dwordx2 s[8:9], s[0:1], 8')
    a('s_load_dwordx2 s[12:13], s[0:1], 16')
    a('s_load_dwordx2 s[16:17], s[0:1], 32')
    a('s_load_dwordx2 s[30:31], s[0:1], 104')
    a('s_load_dwordx2 s[56:57], s[0:1], 96')
    a('s_load_dwordx2 s[86:87], s[0:1], 0')
    a('s_load_dwordx4 s[60:63], s[0:1], 56')
    a('s_load_dwordx4 s[64:67], s[0:1], 72')
    T16, T8, ONE, K1F, K87, KFC, K78 = 0, 1, 2, 3, 4, 5, 6
    t = list(range(7, 16))
    sW, sI, sA, sR, sT, sTmp, sI4, sA4 = 32, 33, 34, 35, 36, 37, 38, 39
    sKB, sP1, sP3, sNQ, sM10, sI5, sA5, sTK = 40, 41, 42, 43, 55, 58, 59, 84
    a('v_lshrrev_b32 v7, 6, v0')
    a(f'v_lshlrev_b32 v{T8}, 3, v0')
    a(f'v_readfirstlane_b32 s{sW}, v7')
    a(f'v_lshlrev_b32 v{T16}, 4, v0')
    IL = CFG['il']
    sX = [sI4, sA4, sI5]
    CUT = [int(x) for x in CFG['cut'].split()]
    assert sum(CUT) == 528
    C2 = len(CUT) == 6
    assert (sorted(CUT[:3]) == CUT[:3] and sorted(CUT[3:]) == CUT[3:] and max(CUT) <= (128 if C2 else 256))

    def qoff(k, j):
        if not IL:
            return ((2, j) if j >= 5 else (1, j)) if k == NK - 1 else (0, k * NW * 8 + j)
        if k == NK - 1 and j >= 5 and C2:
            return j - 2, 0
        if k == NK - 1 and j >= 5:
            return 2, 9472 + sum(CUT[::-1][:j - 5])
        return 0, (k * 8 + j) * NW
    ILW = CFG['ilw'] and IL == 1
    QM = 0 if ILW and CFG['ilw'] == 2 else 3
    if ILW:
        a(f'v_and_b32 v{T8}, 0x1f8, v{T8}')
        for v in range(1 if CFG['ilw'] == 2 else 4):
            if CFG['ilw'] == 1:
                a(f's_xor_b32 s3, s{sW}, {(v & 1) << 3}')
            elif CFG['ilw'] == 2:
                a(f's_lshr_b32 s3, s{sW}, 1')
                a(f's_and_b32 s44, s{sW}, 1')
                a('s_lshl_b32 s44, s44, 3')
                a('s_or_b32 s3, s3, s44')
            elif CFG['ilw'] == 3:
                a(f's_lshr_b32 s3, s{sW}, 1')
                a(f's_and_b32 s44, s{sW}, 1')
                a('s_lshl_b32 s44, s44, 3')
                a('s_or_b32 s3, s3, s44')
                a(f's_xor_b32 s3, s3, {(v & 1) << 3}')
            else:
                a(f's_xor_b32 s3, s{sW}, {(v & 2) << 2}')
            a('s_lshl_b32 s3, s3, 10')
            a(f's_lshl_b32 s{96 + v}, s2, 14')
            a(f's_add_u32 s{96 + v}, s{96 + v}, s3')
    elif IL >= 2:
        for v in range(4):
            a(f's_xor_b32 s44, s2, {v << 3 if CFG["ilx"] else 0}')
            a(f's_lshr_b32 s3, s44, {IL}')
            a(f's_lshl_b32 s{96 + v}, s3, {14 + IL}')
            a(f's_and_b32 s3, s44, {(1 << IL) - 1}')
            a('s_lshl_b32 s3, s3, 10')
            a(f's_add_u32 s{96 + v}, s{96 + v}, s3')
            a(f's_mul_i32 s3, s{sW}, {1024 * ((1 << IL) - 1)}')
            a(f's_add_u32 s{96 + v}, s{96 + v}, s3')
    else:
        a(f's_mul_i32 s{sI}, s2, {16384 if IL else CH * 4}')
        a(f's_mul_i32 s{sA}, s2, {8192 if IL else CH * 2}')
    for d, n in ((8, T * 4), (12, T * 4), (16, T * 2)):
        a(f's_mov_b32 s{d + 2}, {n:#x}')
        a(f's_mov_b32 s{d + 3}, 0x20000')
    a('s_waitcnt lgkmcnt(0)')

    ren = G.MEMO.get('ren', {})
    pool = [ren.get(16 + 4 * i, 16 + 4 * i) for i in range(28)]
    items = []
    for k in range(NK):
        for o in range(4):
            items += [(k, 'I', 2 * o), (k, 'O', 2 * o), (k, 'A', o), (k, 'I', 2 * o + 1), (k, 'O', 2 * o + 1)]
    where = {}
    st = dict(next=0, tmp=0)

    def soff(base, off):
        r = 44 + st['tmp'] % 4
        st['tmp'] += 1
        a(f's_add_u32 s{r}, s{base}, {off:#x}')
        return r

    def gate(j, word):
        a(f's_cmp_le_u32 s{sNQ}, {j}')
        a(f's_cselect_b32 s{word}, 0, s{word}')

    def issue(n, limit):
        while n > 0 and st['next'] < min(limit, len(items)) and pool:
            it = items[st['next']]
            st['next'] += 1
            n -= 1
            b = pool.pop(0)
            where[it] = b
            k, kind, j = it
            lastk = k == NK - 1
            if kind == 'A':
                for h in range(2):
                    if lastk and 2 * j + h >= 5:
                        assert st.get('assigned') or not CFG['dyn']
                        gate(2 * j + h, 18)
                    bs, qo = qoff(k, 2 * j + h)
                    if bs > 2:
                        r = soff(sX[bs - 3], 0)
                        a(f's_lshr_b32 s{r}, s{r}, 1')
                    elif (IL >= 2 or ILW) and bs == 0:
                        r = soff(96 + ((2 * j + h) & QM), qo * 16384)
                        a(f's_lshr_b32 s{r}, s{r}, 1')
                    else:
                        r = soff((sA, sA4, sA5)[bs], qo * 8192)
                    a(f'buffer_load_dwordx2 {vr(b + 2 * h, 2)}, v{T8}, s[16:19], s{r} offen{CFG["ld_pol"]}', tag=it)
            else:
                s = 8 if kind == 'I' else 12
                if lastk and j >= 5:
                    gate(j, s + 2)
                bs, qo = qoff(k, j)
                r = soff((96 + (j & QM) if IL >= 2 or ILW else sI, sI4, sI5, sX[0], sX[1], sX[2])[bs], qo * 16384)
                if ILW:
                    a(f'v_lshlrev_b32 v{b}, 1, v{T8}')
                a(f'buffer_load_dwordx4 {vr(b, 4)}, v{b if ILW else T16}, s[{s}:{s+3}], s{r} offen{CFG["ld_pol"]}', tag=it)

    issue(CFG['p1_first'], 20)
    srd(a, 68, 62, 0, 64)
    srd(a, 72, 60, 0, 64)
    srd(a, 20, 66, 0, 32)
    srd(a, 80, 64, 0, 32)
    srd(a, 24, 30, G.WT_OFF, G.WT_SZ)
    a(f'v_lshrrev_b32 v2, 3, v{T16}')
    a('v_and_b32 v2, 6, v2')
    a(f'v_lshlrev_b32 v3, 2, v{T16}')
    a(f's_lshl_b32 s3, s{sW}, 8')
    a('s_add_u32 s3, s3, s2')
    a('s_cmp_lg_u32 s3, 254')
    a('s_cbranch_scc1 L1_wt')
    vm = list(a.vm)
    wlo = [b + i for b in pool[-3:] for i in range(4)]
    whi = [b + i for b in pool[-6:-3] for i in range(4)]

    def load_wt(dst, s, k0):
        for k in range(4):
            a(f'buffer_load_ushort v{(whi if k & 1 else wlo)[dst + (k >> 1)]}, v2, s[{s}:{s+3}], 0 offen offset:{(k0 + k) * 8}', tag='w')
    load_wt(0, 68, 0)
    load_wt(2, 68, 4)
    load_wt(4, 72, 0)
    load_wt(6, 72, 4)
    load_wt(8, 20, 0)
    load_wt(10, 80, 0)
    a.wait_vm('w')
    for i in range(12):
        a(f'v_lshl_or_b32 v{wlo[i]}, v{whi[i]}, 16, v{wlo[i]}')
    for n in range(3):
        a(f'buffer_store_dwordx4 {vr(wlo[4 * n], 4)}, v3, s[24:27], 0 offen offset:{16 * n} sc1', tag='st')
    a.vm = vm
    a.label('L1_wt')
    srd(a, 20, 30, G.REC_OFF - 16384, G.REC_SZ + 16384)
    srd(a, 24, 30, G.TAB_OFF, G.TAB_SZ)
    if CFG['tlbw']:
        a(f's_cmp_lg_u32 s{sW}, {CFG["tlbw"] - 1}')
        a(f'v_and_b32 v12, 0x30, v{T16}')
        a('s_cbranch_scc1 L1_tw')
        vm, nvm = list(a.vm), a.nvm
        a('s_lshr_b32 s3, s2, 3')
        a('v_lshl_add_u32 v12, v12, 1, s3')
        a('v_lshlrev_b32 v13, 21, v12')
        a(f's_mov_b32 s3, {12 * BLK}')
        a('v_mul_lo_u32 v12, v12, s3')
        a(f's_mov_b32 s3, {16384 + BLK - 128}')
        a('s_mov_b64 exec, 15')
        for sr_ in (8, 12, 16):
            a(f'buffer_load_dword v3, v13, s[{sr_}:{sr_ + 3}], 0 offen nt')
        a('buffer_load_dword v3, v12, s[20:23], s3 offen nt')
        a('s_mov_b64 exec, -1')
        a.vm, a.nvm = vm, nvm
        a.label('L1_tw')
    sKO = [72, 73, 85, 91, 93]
    if CFG['stp']:
        for j in range(5):
            a(f's_add_u32 s3, s{sW}, {16 * j}')
            a('s_mul_i32 s4, s3, 205')
            a('s_lshr_b32 s4, s4, 10')
            a('s_mul_i32 s5, s4, 5')
            a('s_sub_u32 s5, s3, s5')
            a('s_lshl_b32 s5, s5, 5')
            a('s_add_u32 s4, s4, s5')
            a(f's_sub_u32 s4, s4, s{sW}')
            a(f's_lshl_b32 s{sKO[j]}, s4, 10')
    srd(a, 80, 86, 0, E * 8)
    mc = {}

    MCN = CFG['mcn']
    MCP = -(-5120 // MCN)
    MCH = (MCP + 15) // 16
    sMC = sTK if MCN < 256 else 2

    def mcopy_load():
        if CFG['mc1'] == 30 and p2:
            mc['b'] = [take(108 + 4 * h) for h in range(MCH)]
            if CFG['mc0'] >= 20:
                a(f's_waitcnt vmcnt({st["nrec"] - st["tabr"]})')
                st['tabok'] = True
        else:
            mc['b'] = [pool.pop(0) for _ in range(MCH)]
        mt = 15 if CFG['mc0'] < 10 else 11
        a(f'v_lshrrev_b32 v{mt}, 2, v{T16}')
        a(f'v_and_b32 v{mt}, 0xfc, v{mt}')
        a(f's_cmp_ge_u32 s{sMC}, {MCN}')
        a('s_cselect_b32 s82, 0, s82')
        for h in range(MCH):
            a(f's_mul_i32 s3, s{sMC}, {MCP}')
            a(f's_add_u32 s3, s3, s{sW}')
            if h:
                a(f's_add_u32 s3, s3, {16 * h}')
            a('s_mul_i32 s76, s3, 52429')
            a('s_lshr_b32 s76, s76, 22')
            a('s_mul_i32 s74, s76, 80')
            a('s_sub_u32 s3, s3, s74')
            if 16 * h + 16 > MCP:
                a(f's_cmp_ge_u32 s{sW}, {MCP - 16 * h}')
                a('s_cselect_b32 s82, 0, s82')
            a('s_mul_i32 s74, s3, 205')
            a('s_lshr_b32 s74, s74, 10')
            a('s_mul_i32 s75, s74, 5')
            a('s_sub_u32 s75, s3, s75')
            if CFG['mside']:
                a('s_bfe_u32 s74, s3, 0x10004')
                a('s_lshl_b32 s74, s74, 3')
                a('s_and_b32 s48, s3, 7')
                a('s_or_b32 s74, s74, s48')
                a('s_bfe_u32 s75, s3, 0x10005')
                a('s_bfe_u32 s48, s3, 0x10003')
                a('s_lshl1_add_u32 s75, s75, s48')
                a('s_and_b32 s48, s3, 15')
                a('s_cmp_ge_u32 s3, 64')
                a('s_cselect_b32 s74, s48, s74')
                a('s_cselect_b32 s75, 4, s75')
            a('s_lshl_b32 s48, s74, 1')
            a('s_add_u32 s48, s48, s75')
            a('s_add_u32 s49, s48, s74')
            a('s_add_u32 s49, s49, 30')
            a('s_cmp_lt_u32 s75, 2')
            a('s_cselect_b32 s48, s48, s49')
            a('s_lshl_b32 s48, s48, 10')
            a('s_mul_i32 s49, s76, 80000')
            a('s_add_u32 s48, s48, s49')
            for jd in range(4):
                a(f'buffer_load_dword v{mc["b"][h] + jd}, v{mt}, s[80:83], s48 offen offset:{256 * jd}', tag='mc')

    def mhook(pos):
        if pos == CFG['mc0']:
            mcopy_load()
        if pos == CFG['mc1']:
            mcopy_store()

    def mcopy_store():
        srd(a, 80, 30, G.MD_OFF, MCP * 1024)
        a(f's_min_u32 s3, s{sMC}, {MCN - 1}')
        a(f's_mul_i32 s3, s3, {MCP * 1024}')
        a('s_add_u32 s80, s80, s3')
        a('s_addc_u32 s81, s81, 0')
        a(f's_cmp_ge_u32 s{sMC}, {MCN}')
        a('s_cselect_b32 s82, 0, s82')
        a.wait_vm('mc')
        if CFG['mc0'] > 20 and len(a.vm) <= st['nrec'] - st['tabr']:
            st['tabok'] = True
        for h in range(MCH):
            a(f'v_add_u32 v11, {h * 16384}, v{T16}')
            a(f'buffer_store_dwordx4 {vr(mc["b"][h], 4)}, v11, s[80:83], 0 offen sc1', tag='mst')
        pool.extend(mc['b'])
    a(f's_mul_i32 s{sR}, s2, {BLK}')
    a(f's_and_b32 s{sTmp}, s{sW}, 3')
    a(f's_lshl_b32 s{sTmp}, s{sTmp}, 3')
    a(f's_mov_b32 s{sT}, s{sTmp}' if CFG['tabx'] else f's_add_u32 s{sT}, s{sR}, s{sTmp}')
    a(f's_lshr_b32 s{sTmp}, s{sW}, 2')
    a(f's_mul_i32 s{sTmp}, s{sTmp}, 2080')
    a(f's_add_u32 s{sT}, s{sT}, s{sTmp}')
    a(f's_and_b32 s{sTmp}, s2, 3')
    a(f's_lshl_b32 s{sTmp}, s{sTmp}, 5')
    a(f's_add_u32 s{sT}, s{sT}, s{sTmp}')
    a('s_mul_i32 s4, s2, 5')
    a('s_add_u32 s4, s4, 8192')
    a(f's_lshl_b32 s{sI4}, s4, 14')
    a(f's_lshl_b32 s{sA4}, s4, 13')

    def assign():
        if C2:
            assert ILW and CFG['dyn'] == 2
            a(f's_and_b32 s4, s{sTK}, 127')
            a(f's_lshl_b32 s6, s{sW}, 10')
            a(f's_mov_b32 s{sNQ}, 5')
            base = 9472
            for x in range(3):
                ne, no = CUT[2 - x], CUT[5 - x]
                a('s_bitcmp1_b32 s2, 0')
                a(f's_cselect_b32 s5, {ne}, 0')
                a(f's_mov_b32 s7, {ne}')
                a(f's_cselect_b32 s7, {no}, s7')
                a('s_add_u32 s5, s5, s4')
                a(f's_add_u32 s5, s5, {base}')
                a('s_lshl_b32 s5, s5, 14')
                a(f's_add_u32 s{sX[x]}, s5, s6')
                a('s_cmp_lt_u32 s4, s7')
                a(f's_addc_u32 s{sNQ}, s{sNQ}, 0')
                base += ne + no
            return
        n3, n2, n1 = CUT
        a(f's_min_u32 s4, s{sTK}, {n3}')
        a(f's_min_u32 s5, s{sTK}, {n2}')
        a(f's_min_u32 s6, s{sTK}, {n1}')
        a('s_add_u32 s4, s4, s5')
        a('s_add_u32 s4, s4, s6')
        a(f's_add_u32 s4, s4, {8192 + 1280 - 5}')
        if IL:
            a(f's_mov_b32 s4, s{sTK}')
        a(f's_lshl_b32 s{sI5}, s4, 14')
        if ILW:
            a(f's_lshl_b32 s5, s{sW}, 10')
            a(f's_add_u32 s{sI5}, s{sI5}, s5')
        a(f's_lshr_b32 s{sA5}, s{sI5}, 1')
        a(f's_mov_b32 s{sNQ}, 5')
        for n in CUT:
            a(f's_cmp_lt_u32 s{sTK}, {n}')
            a(f's_addc_u32 s{sNQ}, s{sNQ}, 0')
    if not CFG['dyn']:
        a('s_lshr_b32 s3, s2, 1')
        a('s_and_b32 s4, s2, 1')
        a('s_lshl_b32 s4, s4, 7')
        a(f's_add_u32 s{sTK}, s3, s4')
        assign()
    a(f'v_mov_b32 v{ONE}, 1')
    a(f'v_mov_b32 v{K87}, 0x80000007')
    a(f'v_mov_b32 v{KFC}, 0xfc')
    a(f'v_mov_b32 v{K78}, 0x78')
    a(f's_mov_b32 s{sKB}, {G.KBIAS << 3}')
    a(f's_mov_b32 s{sM10}, -10000')
    a(f's_mov_b32 s{sP1}, 0x010c0c01')
    a(f's_mov_b32 s{sP3}, 0x030c0c03')
    for i in range(4):
        a(f'v_mov_b32 v{8 + i}, 0')
    a(f'ds_write_b128 v{T16}, v[8:11]')
    if gen_p2:
        srd(a, 60, 30, G.PROG_OFF, 32768)
        a('s_mov_b64 s[66:67], s[56:57]')
        a('s_lshl_b32 s57, s2, 7')
    srd(a, 68, 30, G.FLAG_OFF, 128)
    a('s_lshl_b32 s3, s2, 7')
    a('s_add_u32 s68, s68, s3')
    a('s_addc_u32 s69, s69, 0')
    a(f's_cmp_lg_u32 s{sW}, 0')
    a('s_cbranch_scc1 L1_fl')
    vm = list(a.vm)
    a(f'buffer_store_dwordx4 v[8:11], v{T16}, s[68:71], 0 offen sc1')
    if gen_p2:
        a('s_mov_b64 exec, 0xff')
        a(f'buffer_store_dwordx4 v[8:11], v{T16}, s[60:63], s57 offen sc1')
        a('s_mov_b64 exec, -1')
        if CFG['inv']:
            a('buffer_inv sc1')
    a.vm = vm
    a.label('L1_fl')
    a('s_waitcnt lgkmcnt(0)')
    a('s_barrier')

    pend_st = []
    uid = [0]

    def store(n):
        while n > 0 and pend_st:
            b, off, ko = pend_st.pop(0)
            n -= 1
            r = soff(sR, off + 16384)
            if ko:
                a(f's_add_u32 s{r}, s{r}, s{ko}')
            a(f'buffer_store_dwordx4 {vr(b, 4)}, v{st.get("t16", T16)}, s[20:23], s{r} offen{CFG["st_pol"]}', tag='st')
            pool.append(b)
            st['nrec'] = st.get('nrec', 0) + 1

    taken = []

    def take(want):
        b = pool.pop(0)
        taken.append((b, want))
        assert not ren or b == want
        return want

    def last_store():
        j = 10 - len(pend_st)
        if j < 7:
            store(1)
            return
        uid[0] += 1
        a(f's_cmp_le_u32 s{sNQ}, {j - 2}')
        a(f's_cbranch_scc1 L1_q{uid[0]}')
        vm, nvm = list(a.vm), a.nvm
        store(1)
        a.vm, a.nvm = vm, nvm
        a.label(f'L1_q{uid[0]}')
    p2 = gen_p2(a, G, dict(take=take, store=last_store, mhook=mhook, t16=lambda r: st.update(t16=r))) if gen_p2 else None

    class skip_quad:
        def __init__(self, on, j):
            self.on, self.j = on and j >= 5, j

        def __enter__(self):
            if self.on:
                uid[0] += 1
                self.l = f'L1_s{uid[0]}'
                a(f's_cmp_le_u32 s{sNQ}, {self.j}')
                a(f's_cbranch_scc1 {self.l}')

        def __exit__(self, *x):
            if self.on:
                a.label(self.l)

    done = set()

    def encode(k, j, count=True):
        I, O, A = where[(k, 'I', j)], where[(k, 'O', j)], where[(k, 'A', j // 2)] + 2 * (j & 1)
        a.wait_vm([(k, 'I', j), (k, 'O', j), (k, 'A', j // 2)])
        with skip_quad(k == NK - 1, j):
            for p in range(2):
                a(f'v_lshlrev_b32 v{t[2*p]}, 16, v{A+p}')
                a(f'v_and_b32 v{t[2*p+1]}, 0xffff0000, v{A+p}')
            for p in range(4):
                a(f'v_mul_f32 v{t[p]}, 0.15915494, v{t[p]}')
            for r in range(4):
                u, x, y, ib = t[4], t[5], t[6], t[7]
                a(f'v_mul_hi_u32_u24 v{ib}, 429497, v{I+r}')
                a(f'v_lshrrev_b32 v{x}, 3, v{O+r}')
                a(f'v_cos_f32 v{t[r]}, v{t[r]}')
                a(f'v_lshlrev_b16 v{y}, 3, v{O+r}')
                a(f'v_mad_i32_i24 v{u}, v{ib}, s{sM10}, v{I+r}')
                a(f'v_bitop3_b32 v{x}, v{K78}, v{y}, v{x} bitop3:{SEL:#x}')
                a(f'v_lshl_add_u32 v{u}, v{u}, 17, s{sKB}')
                a(f'v_lshlrev_b16 v{ib}, 8, v{ib}')
                a(f'v_lshrrev_b32 v{y}, 2, v{O+r}')
                a(f'v_add_u32 v{I+r}, v{x}, v{u}')
                a(f'v_bitop3_b32 v{O+r}, v{KFC}, v{y}, v{ib} bitop3:{ANDOR:#x}')
                if count:
                    a(f'ds_add_u32 v{O+r}, v{ONE}')
                if r & 1:
                    p = r >> 1
                    a(f'v_cvt_pk_bf16_f32 v{A+p}, v{t[2*p]}, v{t[2*p+1]}')
                    a(f'v_perm_b32 v{x}, v{A+p}, v{A+p}, s{sP1}')
                    a(f'v_bitop3_b32 v{I+r-1}, v{K87}, v{x}, v{I+r-1} bitop3:{SEL:#x}')
                    a(f'v_perm_b32 v{y}, v{A+p}, v{A+p}, s{sP3}')
                    a(f'v_bitop3_b32 v{I+r}, v{K87}, v{y}, v{I+r} bitop3:{SEL:#x}')
        done.add((k, j))

    for k in range(NK):
        tl_mark(a, 76, k * 6 + 4, 0, 8)
        a.c(f'==== chunk {k}: pass A')
        lim = (k + 1) * 20 + 18
        last = k == NK - 1

        def mix(n):
            for _ in range(n):
                store(1)
                issue(1, lim)
        sa = [int(x) for x in CFG['sa']]
        sb = [int(x) for x in CFG['sb']]
        la = [int(x) for x in CFG['la']]
        lb = [int(x) for x in CFG['lb']]
        if last:
            if p2:
                assert CFG['dyn'] == 2
                next(p2)
            mix(2)
        for j in range(8):
            if CFG['p1prio']:
                if j & 1 == 0:
                    a(f's_setprio {3 - j // 2}')
            if k == 0:
                if CFG['mc0'] < 0 and j == 0:
                    a('s_lshr_b32 s3, s2, 1')
                    a('s_and_b32 s4, s2, 1')
                    a('s_lshl_b32 s4, s4, 7')
                    a(f's_add_u32 s{sTK}, s3, s4')
                mhook(j - 10)
                issue(3 if j & 1 else 2, 24)
            elif not last:
                mix(sa[j])
            else:
                store(la[j])
                mhook(j)
            if CFG['dyn'] and k == NK - 2 and j == CFG['tkpos']:
                srd(a, 68, 66 if gen_p2 else 56, 0, 256)
                a('v_mov_b32 v3, 1')
                a(f's_cmp_lg_u32 s{sW}, {CFG["tkwave"]}')
                a('s_cbranch_scc1 L1_tk')
                vm = list(a.vm)
                a('s_mov_b64 exec, 1')
                if CFG['dyn'] == 2:
                    a('s_and_b32 s3, s2, 1')
                    a('s_lshl_b32 s3, s3, 7')
                    a('buffer_atomic_add v3, off, s[68:71], s3 sc0')
                else:
                    a('buffer_atomic_add v3, off, s[68:71], 0 sc0')
                a('s_mov_b64 exec, -1')
                a.vm = vm
                st['tkn'] = a.nld
                a.label('L1_tk')
            if (k, j) in done:
                with skip_quad(last, j):
                    for r in range(4):
                        a(f'ds_add_u32 v{where[(k, "O", j)] + r}, v{ONE}')
            else:
                encode(k, j)
        tl_mark(a, 76, k * 6 + 0, 0, 8)
        a.c('scan')
        a(f'v_lshrrev_b32 v8, 2, v{T16}')
        a(f'v_and_b32 v7, 0x3c00, v{T16}')
        a(f'v_bitop3_b32 v7, v{KFC}, v8, v7 bitop3:{ANDOR:#x}')
        a('s_waitcnt lgkmcnt(0)')
        a('s_barrier')
        a('ds_read2st64_b32 v[8:9], v7 offset0:0 offset1:1')
        a('ds_read2st64_b32 v[10:11], v7 offset0:2 offset1:3')
        mix((lb if last else sb)[0])
        a('s_waitcnt lgkmcnt(0)')
        a('v_lshl_or_b32 v12, v9, 16, v8')
        a('v_lshl_or_b32 v13, v11, 16, v10')
        a('v_mov_b32 v14, v12')
        a('v_mov_b32 v15, v13')
        G.wave_scan(a, [14, 15])
        a('v_readlane_b32 s48, v14, 63')
        a('v_readlane_b32 s49, v15, 63')
        a(f's_lshl_b32 s54, s{sW}, 2')
        a('v_mov_b32 v8, s54')
        a('s_and_b32 s50, s48, 0xffff')
        a('s_lshr_b32 s51, s48, 16')
        a('s_and_b32 s52, s49, 0xffff')
        a('s_lshr_b32 s53, s49, 16')
        a('s_add_u32 s51, s51, s50')
        a('s_add_u32 s52, s52, s51')
        a('s_add_u32 s53, s53, s52')
        a('v_mov_b32 v9, s53')
        if last and p2:
            next(p2)
        a('s_mov_b64 exec, 1')
        a('ds_write_b32 v8, v9 offset:16384')
        if CFG['dyn'] and k == NK - 2:
            a(f's_cmp_lg_u32 s{sW}, {CFG["tkwave"]}')
            a('s_cbranch_scc1 L1_tk2')
            vm = list(a.vm)
            a(f's_waitcnt vmcnt({a.nld - st["tkn"]})')
            a.vm = vm
            a.label('L1_tk2')
            a('ds_write_b32 v8, v3 offset:16448')
        if last and p2:
            a('ds_write_b32 v8, v3 offset:16448')
        a('s_mov_b64 exec, -1')
        a('v_and_b32 v8, 60, v7')
        a('s_waitcnt lgkmcnt(0)')
        a('s_barrier')
        a('ds_read_b32 v9, v8 offset:16384')
        if (CFG['dyn'] and k == NK - 2) or (last and p2):
            a('ds_read_b32 v10, v8 offset:16448')
        mix((lb if last else sb)[1])
        a('s_waitcnt lgkmcnt(0)')
        if last and p2:
            next(p2)
        if CFG['dyn'] and k == NK - 2:
            a(f'v_readlane_b32 s{sTK}, v10, {CFG["tkwave"]}')
            if CFG['dyn'] == 2:
                a('s_and_b32 s3, s2, 1')
                a('s_lshl_b32 s3, s3, 7')
                a(f's_add_u32 s{sTK}, s{sTK}, s3')
            assign()
            st['assigned'] = True
        for sh in (1, 2, 4, 8):
            a(f'v_add_u32_dpp v9, v9, v9 row_shr:{sh} row_mask:0xf bank_mask:0xf bound_ctrl:1')
        a(f'v_readlane_b32 s54, v9, s{sW}')
        a('s_sub_u32 s54, s54, s53')
        a('s_add_u32 s50, s50, s54')
        a('s_add_u32 s51, s51, s54')
        a('s_add_u32 s52, s52, s54')
        a('s_pack_ll_b32_b16 s48, s54, s50')
        a('s_pack_ll_b32_b16 s49, s51, s52')
        a('v_add_u32 v14, s48, v14')
        a('v_add_u32 v15, s49, v15')
        a('v_sub_u32 v12, v14, v12')
        a('v_sub_u32 v13, v15, v13')
        a('v_and_b32 v8, 0xffff, v12')
        a('v_lshrrev_b32 v9, 16, v12')
        a('v_and_b32 v10, 0xffff, v13')
        a('v_lshrrev_b32 v11, 16, v13')
        a('ds_write2st64_b32 v7, v8, v9 offset0:0 offset1:1')
        a('ds_write2st64_b32 v7, v10, v11 offset0:2 offset1:3')
        if CFG['tabx']:
            a(f'v_and_b32 v8, 0x3f0, v{T16}')
            a(f'v_lshl_add_u32 v8, v8, 1, s{sT}')
            a('ds_write_b64 v8, v[12:13] offset:20480')
            a('s_bitset0_b64 exec, 63')
            a('s_not_b64 exec, exec')
            a('ds_write_b64 v8, v[14:15] offset:20512')
            a('s_mov_b64 exec, -1')
        a('s_waitcnt lgkmcnt(0)')
        a('s_barrier')
        tl_mark(a, 76, k * 6 + 1, 0, 8)
        a.c('pass B')
        for j in range(8):
            if CFG['p1prio'] and j & 1 == 0:
                a(f's_setprio {3 - j // 2}')
            O = where[(k, 'O', j)]
            with skip_quad(last, j):
                for r in range(4):
                    a(f'ds_add_rtn_u32 v{O+r}, v{O+r}, v{ONE}')
            if CFG['tabx']:
                if j == 0:
                    a(f'ds_read_b128 v[12:15], v{T16} offset:20480', tag='tab')
                    a(f'v_cmp_gt_u32 vcc, {G.TAB_CH + 128}, v{T16}')
                if j == 2:
                    uid[0] += 1
                    a.wait_lg('tab')
                    a(f's_cbranch_vccz L1_p{uid[0]}')
                    vm, nvm = list(a.vm), a.nvm
                    r = soff(sR, k * NW * BLK)
                    a('s_mov_b64 exec, vcc')
                    a(f'buffer_store_dwordx4 v[12:15], v{T16}, s[24:27], s{r} offen{CFG["st_pol"]}')
                    a('s_mov_b64 exec, -1')
                    a.vm, a.nvm = vm, nvm
                    st['tabn'] = a.nvm
                    st['tabr'] = st.get('nrec', 0)
                    a.label(f'L1_p{uid[0]}')
                if j == 3 and last and p2:
                    next(p2)
            elif j == 0:
                r = soff(sT, k * NW * BLK)
                a(f'v_and_b32 v11, 0x3f0, v{T16}')
                a('v_add_u32 v11, v11, v11')
                a(f'buffer_store_dwordx2 v[12:13], v11, s[24:27], s{r} offen', tag='tab')
                a('s_bitset0_b64 exec, 63')
                a('s_not_b64 exec, exec')
                a(f'buffer_store_dwordx2 v[14:15], v11, s[24:27], s{r} offen offset:32', tag='tab')
                a('s_mov_b64 exec, -1')
                uid[0] += 1
                a(f'v_cmp_le_u32 vcc, s{sTmp}, v{T16}')
                a(f'v_add_u32 v10, {G.TAB_CH}, v{T16}')
                a(f's_cmp_lg_u32 s{sW}, 0')
                a(f'v_cndmask_b32 v10, v{T16}, v10, vcc')
                a(f's_cbranch_scc1 L1_p{uid[0]}')
                vm, nvm = list(a.vm), a.nvm
                r = soff(sR, k * NW * BLK)
                a('s_mov_b64 exec, 0xff')
                a(f'buffer_store_dwordx4 v[12:15], v10, s[24:27], s{r} offen')
                a('s_mov_b64 exec, -1')
                a.vm, a.nvm = vm, nvm
                a.label(f'L1_p{uid[0]}')
            mix((lb if last else sb)[2 + j])
            if last:
                mhook(10 + j)
        a('s_waitcnt lgkmcnt(0)')
        a('s_barrier')
        if last and p2:
            next(p2)
        tl_mark(a, 76, k * 6 + 2, 0, 8)
        a.c('scatter')
        n0 = st['next']
        ns0 = len(pend_st)
        for j in range(8):
            if CFG['p1prio'] and j & 1 == 0:
                a(f's_setprio {3 - j // 2}')
            I, O, A = where[(k, 'I', j)], where[(k, 'O', j)], where[(k, 'A', j // 2)] + 2 * (j & 1)
            with skip_quad(last, j):
                for r in range(4):
                    x, y = t[(2 * r) % 4], t[(2 * r + 1) % 4]
                    a(f'v_and_b32 v{x}, -4, v{O+r}')
                    a(f'v_lshl_add_u32 v{y}, v{O+r}, 2, v{x}')
                    a(f'ds_write_b32 v{y}, v{I+r}')
                    a(f'v_lshl_add_u32 v{x}, v{x}, 2, v{O+r}')
                    a(f'ds_write_b8{"_d16_hi" if r & 1 else ""} v{x}, v{A + (r >> 1)} offset:16')
            pool.append(I)
            pool.append(O)
            if j & 1:
                pool.append(where[(k, 'A', j // 2)])
            nd = CFG['scd']
            store(len(pend_st) - (ns0 - (ns0 * min(j + 1, nd) + nd - 1) // nd))
            want = n0 + ((lim - n0) * min(j + 1, nd) + nd - 1) // nd
            issue(want - st['next'], lim)
            if k >= CFG['prek'] and not last:
                for q, c in enumerate(CFG['pre']):
                    if int(c) == j:
                        encode(k + 1, q, False)
            if last:
                mhook(20 + j)
            if last and p2 and j < 6:
                next(p2)
        if last and p2 and not st.get('tabok'):
            a(f's_waitcnt vmcnt({min(ns0, a.nvm - st["tabn"])})')
        stp = CFG['stp'] and not last
        fa = [7, 12, 13, 14, 15]
        if stp:
            for j in range(5):
                a(f'v_add_u32 v{fa[j]}, s{sKO[j]}, v{T16}')
            a(f's_min_i32 s3, s{sKO[0]}, s{sKO[1]}')
            for j in range(2, 5):
                a(f's_min_i32 s3, s3, s{sKO[j]}')
            a(f'v_add_u32 v3, s3, v{T16}')
        else:
            a(f'v_add_u32 v7, 0x10000, v{T16}')
            a(f'v_add_u32 v12, 0x20000, v{T16}')
        if not last:
            for i in range(4):
                a(f'v_mov_b32 v{8 + i}, 0')
        a('s_waitcnt lgkmcnt(0)')
        a('s_barrier')
        tl_mark(a, 76, k * 6 + 3, 0, 8 if last else pool[0])
        assert not pend_st
        a.c('flush')
        if last and p2 and ren:
            pool[:] = [24, 28, 32, 36, 76, 80, 84, 104, 68, 72]
        for j in range(10):
            b = pool.pop(0)
            if stp:
                a(f'ds_read_b128 {vr(b, 4)}, v{fa[j % 5]} offset:{(j // 5) * 16384}')
                if j == 4:
                    a('ds_write_b128 v3, v[8:11]')
                pend_st.append((b, k * NW * BLK + (j // 5) * 16384, sKO[j % 5]))
                continue
            base = (T16, 7, 12)[j // 4]
            a(f'ds_read_b128 {vr(b, 4)}, v{base} offset:{(j % 4) * 16384}')
            if j == 0 and not last:
                a(f'ds_write_b128 v{T16}, v[8:11]')
            pend_st.append((b, k * NW * BLK + j * 16384, None))
        if not last:
            a('s_waitcnt lgkmcnt(0)')
            a('s_barrier')
        elif p2:
            next(p2)
            a('s_waitcnt lgkmcnt(0)')
            if CFG['fs'] < 2:
                a('s_barrier')
            if not ren:
                m = dict(taken)
                rest_s = [b for b in range(16, 128, 4) if b not in m]
                rest_d = [b for b in range(16, 128, 4) if b not in m.values()]
                m.update(zip(rest_s, rest_d))
                G.MEMO['ren'] = m
            for _ in p2:
                pass
            return name
        else:
            for j in range(10):
                if j >= 7:
                    a(f's_cmp_le_u32 s{sNQ}, {j - 2}')
                    a('s_cbranch_scc1 L1_fin')
                a(f's_waitcnt lgkmcnt({9 - j})')
                store(1)
                if j == 6:
                    mhook(30)
    a.label('L1_fin')
    a.reset()
    G.tl_end(a)
    a.label('L1_end')
    a('s_endpgm')
    return name
```

```python
from asmlib import vr, sr, merge_vm

MF = 'v_mfma_f32_4x4x4_16b_bf16'


def gen_p2(a, G, P1=None):
    name = 'gs_acc_kernel'
    CFG = G.CFG
    SEL, ANDOR = G.SEL, G.ANDOR
    ORAND = 0xA8
    if not P1:
        G.kernel_head(a, name)
    DS = 1
    NR = DS + 1
    NA = 2
    LA, SHL, CBA, FA, CBB, KAD, KCM, PA = 0, 1, 2, 3, 4, 5, 6, 7
    WD, ID, NID = 8, 10, 12
    C = [14, 15]
    W = [16, 22, 28, 34]
    B = [w + 4 for w in W]
    EC = [w + 5 for w in W]
    FOLD = CFG['fold']
    NB = 7 if FOLD else 8
    LB = NB - 1
    FG_ = FOLD - 1
    if FOLD:
        B[FG_], EC[FG_] = W[FG_] + 2, W[FG_] + 3
    XN = [W[FG_] + 4, W[FG_] + 5]
    bmap = [(g, k) for g in range(4) for k in ((0,) if FOLD and g == FG_ else (0, 2))]
    ODD, sXo = 's[6:7]', 43
    EN = [40, 41, 42, 43]
    ES, KF0, NV, AI = 44, 45, 46, 47
    DA, DB = 48, 64
    OLD = [68, 70]
    OLD2 = [72, 74]
    X = [76, 80]
    P = 84
    RT = 88
    AOR = [[92, 93], [94, 95]]
    xm, xo, xa, xd = 96, 97, 98, 99
    xc, xl, xe, xt = RT, RT + 1, RT + 2, RT + 3
    MR = [[100, 102], [104, 106]]
    MP = [108 + 4 * n for n in range(5)]

    ph = dict(par=0, p=0)
    PP = CFG['pp']
    LF = ES

    def cur(g):
        return (EC, EN)[ph['p'] & 1][g] if PP else EC[g]

    def ring(b):
        return (b + ph['par']) & 1

    def AO(b):
        return AOR[ring(b)]

    def slot(b, h):
        g, k = bmap[b % NB]
        return g, k + h
    sW, sQ, sOB, sSP, sSlow, sBase, sTab, sMD, sN, sPH, sM0 = 32, 33, 34, 35, 36, 37, 39, 40, 41, 42, 38
    sP = [44, 45, 46, 47]
    PEND, TMP, INJ, OVF, INJ1 = 's[80:81]', 's[82:83]', 's[84:85]', 's[58:59]', 's[48:49]'
    rpos = [int(x) for x in CFG['rpos'].split()]
    dpos = [int(x) for x in CFG['dpos'].split()]
    mpos = [int(x) for x in CFG['mpos'].split()]
    L1K = CFG['l1k']
    OP = 0 if L1K else 1
    assert dpos[0] >= 1 and (dpos[1] >= 1 or L1K)
    order = list(range(-1, LB))
    gs = {b: [b + 1] for b in range(-1, LB - 2)}
    gs[LB - 2] = [LB - 1, LB]
    b1_step = LB - 1

    def blk(p):
        return 4 * (p & 3) + (p >> 2)

    def dblk(p):
        return ((blk(p + 1) - blk(p)) * 81920) & 0xffffffff

    def head1():
        a('s_cmp_ge_u32 s2, 256')
        a('s_cbranch_scc1 L2_end')
        G.tl_start(a)
        if CFG['pprio']:
            a('s_setprio 3')
        a('s_load_dwordx2 s[30:31], s[0:1], 104')
        a('s_load_dwordx2 s[28:29], s[0:1], 0')
        a('s_load_dwordx2 s[6:7], s[0:1], 40')
        a('v_lshrrev_b32 v16, 6, v0')
        a('v_and_b32 v17, 63, v0')
        a(f'v_readfirstlane_b32 s{sW}, v16')
        a(f's_bfe_u32 s{sQ}, s2, 0x20001')
        a(f's_and_b32 s{sOB}, s2, 1')
        a(f's_lshl_b32 s{sOB}, s{sOB}, 5')
        a('s_lshr_b32 s4, s2, 3')
        a(f's_add_u32 s{sOB}, s{sOB}, s4')
        a('v_and_b32 v22, 3, v0')
        a('v_mul_u32_u24 v19, 80, v16' if not CFG['cmap'] else 'v_lshlrev_b32 v19, 6, v16')
        if CFG['dq']:
            a('v_lshrrev_b32 v18, 2, v17')
            a('v_lshl_add_u32 v18, v22, 4, v18')
            a('v_add_u32 v18, v18, v19')
        else:
            a('v_lshrrev_b32 v18, 4, v17')
            a('v_and_b32 v19, 15, v17')
            a('v_lshl_add_u32 v18, v18, 8, v19')
            a('v_lshl_add_u32 v18, v16, 4, v18')
        a(f'v_mul_u32_u24 v{CBA}, {G.BLK}, v18')
        a('v_lshrrev_b32 v18, 2, v17')
        if CFG['cmap']:
            a('v_lshl_add_u32 v18, v16, 4, v18')
            a('v_add_u32 v18, 0x400, v18')
        else:
            a('v_add3_u32 v18, v18, v19, 64')
        a(f'v_mul_u32_u24 v{CBB}, {G.BLK}, v18')
        a(f'v_lshl_add_u32 v20, v22, 4, v{CBB}')
        a('v_and_b32 v18, 3, v18')
        a('v_lshl_add_u32 v20, v18, 5, v20')
        a(f'v_lshl_add_u32 v25, v22, 5, v{CBA}')
        a(f's_mul_i32 s{sTab}, s{sQ}, 2080')
        a(f's_lshl_b32 s3, s{sOB}, 5')
        a(f's_add_u32 s{sTab}, s{sTab}, s3')
        a(f's_mul_i32 s{sMD}, s{sQ}, {16 * 81920}')
        a(f's_mul_i32 s3, s{sW}, 5120')
        a(f'v_lshl_add_u32 v{FA}, v17, 4, s3')
        a(f's_lshl_b32 s{sM0}, s{sW}, 11')
        a(f's_mul_i32 s100, s{sW}, 3072')
        a('s_waitcnt lgkmcnt(0)')
        G.srd(a, 12, 30, G.TAB_OFF, G.TAB_SZ)
        for k in (0, 2, 1, 3) if not CFG['dq'] else range(4):
            if CFG['dq']:
                a(f'v_subrev_u32 v25, {(64 - 16 * k) * G.BLK:#x}, v20')
                a(f'buffer_load_dwordx4 {vr(DA + 4 * k, 4)}, v25, s[12:15], s{sTab} offen', tag='D')
            else:
                a(f'buffer_load_dwordx4 {vr(DA + 4 * k, 4)}, v25, s[12:15], s{sTab} offen offset:{16 * k}', tag='D')
        a(f'buffer_load_dwordx4 {vr(DB, 4)}, v20, s[12:15], s{sTab} offen', tag='D')
        if CFG['mside']:
            G.srd(a, 16, 30, G.MD_OFF - 81920, G.MD_SZ + 81920)
            a(f's_lshr_b32 s3, s{sW}, 3')
            a('s_lshl_b32 s3, s3, 13')
            a('s_sub_u32 s72, 65536, s3')
            a(f's_add_u32 s{sMD}, s{sMD}, s3')
            a(f's_lshl_b32 s3, s{sW}, 12')
            a(f's_sub_u32 s{sMD}, s{sMD}, s3')
            a(f's_add_u32 s{sMD}, s{sMD}, 81920')
        else:
            G.srd(a, 16, 30, G.MD_OFF, G.MD_SZ)
        G.srd(a, 24, 30, G.WT_OFF, G.WT_SZ)
        a('v_lshlrev_b32 v21, 6, v22')
        a(f'buffer_load_dwordx2 {vr(WD, 2)}, v21, s[24:27], 0 offen offset:40', tag='D')

    st = dict(inloop=False)

    def load_m(n):
        if CFG['ab_nom'] and st['inloop']:
            return
        if CFG['mside']:
            if n:
                a(f's_add_u32 s3, s{sMD}, {"s72" if n == 4 else (n >> 1) * 32768 + (n & 1) * 8192}')
            a(f'buffer_load_dwordx4 {vr(MP[n], 4)}, v{FA}, s[16:19], s{3 if n else sMD} offen{CFG["m_pol"]}', tag=('M', n))
        elif n == 4:
            a(f's_add_u32 s3, s{sMD}, 4096')
            a(f'buffer_load_dwordx4 {vr(MP[n], 4)}, v{FA}, s[16:19], s3 offen{CFG["m_pol"]}', tag=('M', n))
        else:
            a(f'buffer_load_dwordx4 {vr(MP[n], 4)}, v{FA}, s[16:19], s{sMD} offen offset:{n * 1024}{CFG["m_pol"]}', tag=('M', n))

    def load_m_raw(n, p, l16):
        a(f's_mul_i32 s3, s{sQ}, {16 * 80000}')
        a(f's_add_u32 s3, s3, s{sM0 if n < 2 else 100}')
        a(f's_add_u32 s3, s3, {blk(p) * 80000 + (0 if n < 2 else 32768)}')
        a(f'buffer_load_dwordx4 {vr(MP[n], 4)}, v{l16}, s[24:27], s3 offen offset:{1024 * (n if n < 2 else n - 2)}', tag=('M', n))

    def fill(n):
        a.wait_vm([('M', n)])
        if ('rawn', n) in st:
            a(f's_waitcnt vmcnt({a.nvm - st.pop(("rawn", n))})')
        if st.get('raw'):
            a(f'v_subrev_u32 v{RT}, s{100 if n < 2 else sM0}, v{FA}')
            a(f'ds_write_b128 v{RT}, {vr(MP[n], 4)} offset:{n * 1024 if n < 2 else 32768 + (n - 2) * 1024}', tag='F')
            return
        m0 = sM0 if n < 2 else 100
        if st.get('m0') != m0:
            a(f's_mov_b32 m0, s{m0}')
            st['m0'] = m0
        for jd in range(4):
            if CFG['ab'] & 8 and st['inloop']:
                continue
            a(f'ds_write_addtid_b32 v{MP[n] + jd} offset:{(n * 1024 if n < 2 else 32768 + (n - 2) * 1024) + 256 * jd}', tag='F')

    def next_m(p):
        a(f's_add_u32 s{sMD}, s{sMD}, {dblk(p):#x}')

    def head2():
        if CFG['pprio']:
            a('s_setprio 2')
        for n in (4, 2, 3, 0, 1):
            load_m(n)
        next_m(0)
        if CFG['pprio']:
            a('s_setprio 1')
        a(f'v_mad_u32_u24 v{CBB}, v22, 20, v{CBB}')
        a(f'v_or_b32 v{CBB}, 0xf0000000, v{CBB}')
        a(f'v_or_b32 v{CBA}, 0xf0000000, v{CBA}')
        a('v_lshlrev_b32 v23, 2, v22')
        a(f'v_sub_u32 v{SHL}, 28, v23')
        G.ident(a, ID, 18, 0)
        G.ident(a, NID, 18, 0, neg=True)
        a('v_lshlrev_b32 v24, 4, v0')
        a(f'v_lshl_add_u32 v{LA}, v17, 2, s{sM0}')
        a(f'v_mov_b32 v{KF0}, 0xf0000000')
        if PP:
            a(f'v_add_u32 v{LF}, s{sM0}, v{LA}')
            a(f'v_lshrrev_b32 v{LF}, 1, v{LF}')
            a(f'v_and_b32 v{LF}, -4, v{LF}')
        a(f'v_mov_b32 v{KAD}, 0x1fff8')
        a(f'v_mov_b32 v{KCM}, 0x07ff0000')
        for k in range(4):
            a(f's_mov_b32 s{sP[k]}, {0x04000c0c | (k << 16):#x}')
        a(f's_mov_b32 s{sSlow}, 0')
        a(f's_mov_b32 s{sXo}, 0')
        a(f's_mov_b32 s{sPH}, 0')
        a(f's_mov_b64 {PEND}, 0')
        a(f's_mov_b64 {INJ}, 0')
        a(f's_mov_b64 {INJ1}, 0')
        if CFG['fuse']:
            a('s_load_dwordx4 s[96:99], s[6:7], 0')
            a('s_load_dwordx2 s[4:5], s[0:1], 24')
            a('s_waitcnt lgkmcnt(0)')
        G.srd(a, 8, 30, G.REC_OFF, G.REC_SZ)

    if not P1:
        head1()
        head2()
    ool = []
    uid = [0]

    XAND = 0x6A
    sOv = 101

    def x_pre(j):
        uid[0] += 1
        u = uid[0]
        rs, re_ = DA + 2 * j, DA + 8 + 2 * j
        a.wait_vm('D')
        a(f'v_sub_u16 v{xc}, v{re_}, v{rs}')
        a(f'v_and_b32 v{xl}, 3, v{rs}')
        a(f'v_add3_u32 v{xd}, v{xc}, v{xl}, 3')
        a(f'v_and_b32 v{xd}, -4, v{xd}')
        a(f'v_max_u32 v{xd}, 4, v{xd}')
        fill = [f'v_and_b32 v{xo}, 0xfffc, v{rs}',
                f'v_bfm_b32 v{xm}, v{xc}, v{xl}',
                f'v_mad_u32_u24 v{xo}, v{xo}, 5, v{CBA}',
                f'v_cmp_lt_u32 vcc, 16, v{xd}',
                f'v_sub_u32 v{xa}, s{sM0}, v{xd}',
                f'v_lshrrev_b64 {vr(rs, 2)}, 16, {vr(rs, 2)}',
                f'v_lshrrev_b64 {vr(re_, 2)}, 16, {vr(re_, 2)}',
                f's_mov_b32 s{sOv}, 0']
        a(fill.pop(0))
        a(fill.pop(0))
        a(f'v_add_u32_dpp v{xt}, v{xd}, v{xd} row_shr:1 row_mask:0xf bank_mask:0xf bound_ctrl:1')
        for m in ('row_shr:2 row_mask:0xf bank_mask:0xf bound_ctrl:1', 'row_shr:4 row_mask:0xf bank_mask:0xf bound_ctrl:1',
                  'row_shr:8 row_mask:0xf bank_mask:0xf bound_ctrl:1', 'row_bcast:15 row_mask:0xa bank_mask:0xf',
                  'row_bcast:31 row_mask:0xc bank_mask:0xf'):
            for _ in range(2):
                if fill:
                    a(fill.pop(0))
            a(f'v_add_u32_dpp v{xt}, v{xt}, v{xt} {m}')
        a(f'v_add_u32 v{xa}, v{xa}, v{xt}')
        a(f'v_readlane_b32 s{sBase}, v{xt}, 63')
        a(f's_cbranch_vccnz L2_xo{u}')
        a.label(f'L2_xp{u}')
        ool.append([f'L2_xo{u}:',
                    f'v_cmp_lt_u32 vcc, 20, v{xd}',
                    f's_mov_b32 s{sOv}, 1',
                    f's_cbranch_vccz L2_xp{u}',
                    f'v_cmp_lt_u32 vcc, 32, v{xd}',
                    f'v_cmp_lt_u32 {OVF}, 31, v{xc}',
                    f's_mov_b32 s{sOv}, 2',
                    f's_or_b64 vcc, vcc, {OVF}',
                    f's_cbranch_scc0 L2_xp{u}',
                    f's_mov_b32 s{sBase}, 0x10000',
                    f's_branch L2_xp{u}'])

    def x_ent(f, t):
        f(f'v_lshlrev_b32 v{xl}, {28 - 4 * t}, v{xm}')
        if t:
            f(f'v_add_u32 v{xe}, {20 * t}, v{xo}')
        f(f'v_bitop3_b32 v{xe}, v{xl}, v{KF0}, v{xe if t else xo} bitop3:{XAND:#x}')
        f(f'ds_write_b32 v{xa}, v{xe} offset:{4 * t}')

    def x_quad(f, u):
        f(f'v_and_b32 v{xl}, v{KF0}, v{xl}')
        f(f'v_cmp_ne_u32 vcc, 0, v{xl}')
        f(f'v_xor_b32 v{xe}, v{xo}, v{xl}')
        f(f's_add_u32 s3, s{sBase}, s{sM0}')
        f(f'v_mbcnt_lo_u32_b32 v{xa}, vcc_lo, 0')
        f(f'v_mbcnt_hi_u32_b32 v{xa}, vcc_hi, v{xa}')
        f(f's_bcnt1_i32_b64 s{sN}, vcc')
        f(f'v_lshl_add_u32 v{xa}, v{xa}, 2, s3')
        f(f's_lshl2_add_u32 s{sBase}, s{sN}, s{sBase}')
        if L1K:
            f(f's_cmp_gt_u32 s{sBase}, 1020')
            f(f's_cbranch_scc1 L2_xs{u}')
        f('s_mov_b64 exec, vcc')
        f(f'ds_write_b32 v{xa}, v{xe}')
        f('s_mov_b64 exec, -1')

    def x_list(j, E, pbit, split=False):
        uid[0] += 1
        u = uid[0]
        if PP:
            E = (EC, EN)[j & 1]
        else:
            a(f'v_mov_b32 v{ES}, v{E[3]}')
        a(f's_cmp_gt_u32 s{sBase}, {992 if L1K else 1024}')
        a(f's_cbranch_scc1 L2_xs{u}')
        a(f's_cmp_lg_u32 s{sOv}, 0')
        a(f's_cbranch_scc1 L2_xa{u}')
        a.label(f'L2_xb{u}')
        bl = [f'L2_xa{u}:', f's_cmp_eq_u32 s{sOv}, 1', f's_cbranch_scc1 L2_xc{u}']
        x_ent(bl.append, 7)
        x_ent(bl.append, 6)
        x_ent(bl.append, 5)
        bl.append(f'L2_xc{u}:')
        x_ent(bl.append, 4)
        bl.append(f's_branch L2_xb{u}')
        ool.append(bl)
        for t in (3, 2, 1, 0):
            x_ent(a, t)
        r = DB + 2 * (j & 1)
        ls, le = j >> 1, 2 + (j >> 1)
        a(f'v_mov_b32_dpp v{xt}, v{r} quad_perm:[{ls},{ls},{ls},{ls}] row_mask:0xf bank_mask:0xf')
        a(f'v_and_b32 v{xl}, 3, v{xt}')
        a(f'v_and_b32 v{xo}, 0xfffc, v{xt}')
        a(f'v_sub_u16_dpp v{xc}, v{r}, v{xt} quad_perm:[{le},{le},{le},{le}] row_mask:0xf bank_mask:0xf')
        a(f'v_mad_u32_u24 v{xo}, v{xo}, 5, v{CBB}')
        a(f'v_add_u32 v{xd}, v{xc}, v{xl}')
        a(f'v_bfm_b32 v{xm}, v{xc}, v{xl}')
        a(f'v_cmp_lt_u32 {OVF}, 16, v{xd}')
        a(f'v_lshlrev_b32 v{xl}, v{SHL}, v{xm}')
        x_quad(a, u)
        a(f's_cmp_lg_u64 {OVF}, 0')
        a(f's_cbranch_scc1 L2_xe{u}')
        a.label(f'L2_xr{u}')
        bl = [f'L2_xe{u}:',
              f'v_cmp_lt_u32 vcc, 32, v{xd}',
              f'v_cmp_lt_u32 {OVF}, 31, v{xc}',
              f'v_lshrrev_b32 v{xl}, 16, v{xm}',
              f'v_add_u32 v{xo}, 80, v{xo}',
              f's_or_b64 vcc, vcc, {OVF}',
              f's_cbranch_scc1 L2_xs{u}',
              f'v_lshlrev_b32 v{xl}, v{SHL}, v{xl}']
        x_quad(bl.append, u)
        bl.append(f's_branch L2_xr{u}')
        ool.append(bl)
        a(f'v_add_u32 v{xa}, s{sBase}, v{LA}')
        a(f'v_mov_b32 v{xe}, -1')
        if CFG['mpf'] and st['inloop']:
            a(f's_add_u32 s3, s{sMD}, s74')
            a(f's_add_u32 s3, s3, {(dblk(j) + dblk(j + 1)) & 0xffffffff:#x}')
            a('s_mov_b64 exec, s[72:73]')
            a(f'v_lshl_add_u32 v{xe}, v{LA}, 5, s3')
            a('s_mov_b64 exec, -1')
        if L1K:
            a(f's_max_u32 s3, s{sBase}, 768')
            a('s_lshr_b32 s3, s3, 2')
            a('s_lshr_b64 exec, -1, s3')
        a(f'ds_write_b32 v{xa}, v{xe}')
        if L1K:
            a('s_mov_b64 exec, -1')
        a.label(f'L2_xw{u}')
        ool.append([f'L2_xs{u}:', 's_waitcnt lgkmcnt(0)', f's_mov_b32 s{sBase}, 0x10000', f's_branch L2_xw{u}'])

        def back(E=E):
            go = [int(x) for x in CFG['gord'].split()]
            if FOLD:
                go = [0, 1, 2]
                go.insert(FG_, 3)
                if PP:
                    for g in range(4):
                        a(f'ds_read_b32 v{E[g]}, v{LF if g == FG_ else LA} offset:{256 * go[g]}', tag='L')
                else:
                    a(f'v_add_u32 v{xa}, s{sM0}, v{LA}')
                    pr = 0 if FG_ >= 2 else 2
                    a(f'ds_read2st64_b32 {vr(E[pr], 2)}, v{LA} offset0:{go[pr]} offset1:{go[pr + 1]}', tag='L')
                    a(f'ds_read_b32 v{E[FG_ ^ 1]}, v{LA} offset:{256 * go[FG_ ^ 1]}', tag='L')
                    a(f'v_lshrrev_b32 v{xa}, 1, v{xa}')
                    a(f'v_and_b32 v{xa}, -4, v{xa}')
                    a(f'ds_read_b32 v{E[FG_]}, v{xa} offset:768', tag='L')
            else:
                a(f'ds_read2st64_b32 {vr(E[0], 2)}, v{LA} offset0:{go[0]} offset1:{go[1]}', tag='L')
                a(f'ds_read2st64_b32 {vr(E[2], 2)}, v{LA} offset0:{go[2]} offset1:{go[3]}', tag='L')
            E = [E[go.index(g)] for g in range(4)]
            a(f's_sub_u32 s3, s{sBase}, 768')
            a(f's_cmp_gt_u32 s3, {128 if FOLD else 256}')
            a(f's_cbranch_scc1 L2_xf{u}')
            a.label(f'L2_xg{u}')
            bl = [f'L2_xf{u}:',
                  f's_cmp_gt_u32 s{sBase}, 1024',
                  f's_cbranch_scc1 L2_xt{u}']
            if FOLD:
                bl += [f's_cmp_lt_u32 s{sBase}, 768',
                       f's_cbranch_scc1 L2_xl{u}',
                       f'ds_read_b32 v{XN[j & 1]}, v{LF if PP else xa} offset:896',
                       f's_add_u32 s3, s{sPH}, {pbit}',
                       f's_bitset1_b32 s{sXo}, s3',
                       f's_branch L2_xg{u}',
                       f'L2_xl{u}:']
            bl += ['s_waitcnt lgkmcnt(0)',
                   f'v_mov_b32 v{E[3]}, -1',
                  f's_cmp_ge_u32 s{sBase}, 512',
                  f's_cbranch_scc1 L2_xg{u}',
                  f'v_mov_b32 v{E[2]}, -1',
                  f's_cmp_ge_u32 s{sBase}, 256',
                  f's_cbranch_scc1 L2_xg{u}',
                  f'v_mov_b32 v{E[1]}, -1',
                  f's_branch L2_xg{u}',
                  f'L2_xt{u}:',
                  's_waitcnt lgkmcnt(0)']
            bl += [f'v_mov_b32 v{E[g]}, -1' for g in range(4)]
            bl += [f's_add_u32 s3, s{sPH}, {pbit}',
                   f's_bitset1_b32 s{sSlow}, s3',
                   f's_branch L2_xg{u}']
            ool.append(bl)
            if j == 3:
                for h in range(2):
                    a(f'v_lshrrev_b64 {vr(DB + 2 * h, 2)}, 16, {vr(DB + 2 * h, 2)}')

        if split:
            return back
        back()

    def load_rec(g, AI=AI):
        AI = st.get('ai') or AI
        if PP:
            e = (EC, EN)[(ph['p'] + 1) & 1][g]
            a(f'v_and_b32 v{AI}, 0x0fffffff, v{e}')
            issue_rec(g, AI, e)
            return
        E = EN[:3] + [ES]
        a(f'v_and_b32 v{AI}, 0x0fffffff, v{E[g]}')
        if CFG['ab_norec'] and st['inloop']:
            a(f'v_mov_b32 v{AI}, v{E[g]}')
            return
        a(f'v_mov_b32 v{EC[g]}, v{E[g]}')
        issue_rec(g, AI)

    def issue_fold(f, w, bb, e, AI):
        f(f'buffer_load_dword v{bb}, v{AI}, s[8:11], 0 offen offset:16')
        f(f's_mov_b64 exec, {ODD}')
        f(f'v_add_u32 v{AI}, 8, v{AI}')
        f(f'v_lshrrev_b32 v{e}, 2, v{e}')
        f('s_mov_b64 exec, -1')
        f(f'buffer_load_dwordx2 {vr(w, 2)}, v{AI}, s[8:11], 0 offen')

    def ovf_load(xn, d):
        uid[0] += 1
        u = uid[0]
        a(f's_bitcmp1_b32 s{sXo}, s{sPH}')
        a(f's_cbranch_scc1 L2_oa{u}')
        a.label(f'L2_ob{u}')
        bl = [f'L2_oa{u}:', f'v_and_b32 v{AI}, 0x0fffffff, v{xn}']
        issue_fold(bl.append, d, d + 2, xn, AI)
        ool.append(bl + [f's_branch L2_ob{u}'])
        st['ovn'] = a.nvm

    def ovf_run(xn, d):
        uid[0] += 1
        u = uid[0]
        a(f's_bitcmp1_b32 s{sXo}, s{sPH}')
        a(f's_cbranch_scc1 L2_oa{u}')
        a.label(f'L2_ob{u}')
        bl = [f'L2_oa{u}:', f's_waitcnt vmcnt({a.nvm - st["ovn"]})',
              f's_mov_b64 exec, {ODD}', f'v_lshrrev_b32 v{d + 2}, 16, v{d + 2}', 's_mov_b64 exec, -1']
        for h in range(2):
            w = d + h
            bl += [f'v_and_b32 v{NV}, {1 << (28 + h):#x}, v{xn}',
                   f'v_cmpx_eq_u32 vcc, 0, v{NV}',
                   f'v_lshrrev_b32 v{AI}, 14, v{w}',
                   f'v_and_b32 v{AI}, v{KAD}, v{AI}',
                   f'ds_read_b64 {vr(xm, 2)}, v{AI}',
                   f'v_perm_b32 v{xa}, v{w}, v{d + 2}, s{sP[h]}',
                   f'v_bitop3_b32 v{xd}, v{w}, 0.5, -0.5 bitop3:{ORAND:#x}',
                   f'v_bitop3_b32 v{xa}, v{KCM}, v{xa}, v{xd} bitop3:{SEL:#x}',
                   f'v_and_b32 v{AI}, v{KAD}, v{w}',
                   's_waitcnt lgkmcnt(0)',
                   f'{MF} {vr(RT, 4)}, {vr(WD, 2)}, {vr(xm, 2)}, 0']
            bl += [f'v_mul_f32 v{RT + n}, v{xa}, v{RT + n}' for n in range(4)]
            bl += [f'v_cvt_pk_bf16_f32 v{RT}, v{RT}, v{RT + 1}',
                   f'v_cvt_pk_bf16_f32 v{RT + 1}, v{RT + 2}, v{RT + 3}',
                   f'ds_pk_add_bf16 v{AI}, v{RT} offset:{G.A_OFFS}',
                   f'ds_pk_add_bf16 v{AI}, v{RT + 1} offset:{G.A_OFFS + 4}',
                   's_mov_b64 exec, -1']
        ool.append(bl + [f's_branch L2_ob{u}'])

    def issue_rec(g, AI=AI, e=None):
        if FOLD and g == FG_:
            issue_fold(lambda t: a(t, tag=('R', g)), W[g], B[g], e or EC[g], AI)
            return
        if CFG['ab'] & 256 and st['inloop']:
            a(f'buffer_load_dwordx4 {vr(W[g], 4)}, v{AI}, s[8:11], 0 offen', tag=('R', g))
            return
        if CFG['x3'] == 4:
            a(f'buffer_load_dwordx3 {vr(W[g] + 2, 3)}, v{AI}, s[8:11], 0 offen offset:8', tag=('R', g))
            a(f'buffer_load_dwordx2 {vr(W[g], 2)}, v{AI}, s[8:11], 0 offen', tag=('R', g))
            return
        if CFG['x3'] == 2:
            a(f'buffer_load_dwordx2 {vr(W[g], 2)}, v{AI}, s[8:11], 0 offen', tag=('R', g))
        elif CFG['x3'] == 3:
            a(f'buffer_load_dwordx3 {vr(W[g], 3)}, v{AI}, s[8:11], 0 offen', tag=('R', g))
        else:
            a(f'buffer_load_dwordx4 {vr(W[g], 4)}, v{AI}, s[8:11], 0 offen', tag=('R', g))
        if CFG['x3']:
            a(f'buffer_load_dwordx3 {vr(W[g] + 2, 3)}, v{AI}, s[8:11], 0 offen offset:8', tag=('R', g))
        else:
            a(f'buffer_load_dword v{B[g]}, v{AI}, s[8:11], 0 offen offset:16', tag=('R', g))

    ao_done = set()

    def gather(x, b, NV=NV, AI=AI, noao=False, NV0=None):
        NV1 = NV
        g = slot(x, 0)[0]
        a.wait_vm([('R', g)])
        if FOLD and g == FG_:
            a(f's_mov_b64 exec, {ODD}')
            a(f'v_lshrrev_b32 v{B[g]}, 16, v{B[g]}')
            a('s_mov_b64 exec, -1')
        now = x - b < NA and not noao
        for h in (1, 0):
            k = slot(x, h)[1]
            w = W[g] + k
            NV = NV1 if h or NV0 is None else NV0
            a(f'v_and_b32 v{NV}, {1 << (28 + k):#x}, v{cur(g)}')
            a(f'v_lshrrev_b32 v{AI}, 14, v{w}')
            a(f'v_bitop3_b32 v{AI}, v{AI}, v{KAD}, v{NV} bitop3:{ANDOR:#x}')
            a(f'ds_read_b64 {vr(MR[ring(x)][h], 2)}, v{AI}', tag=('m', x))
            if now:
                a(f'v_bitop3_b32 v{AO(x)[h]}, v{w}, v{KAD}, v{NV} bitop3:{ANDOR:#x}')
        if now:
            ao_done.add(x)

    def dec_ao(b):
        if b in ao_done:
            ao_done.discard(b)
            return
        for h in range(2):
            g, k = slot(b, h)
            a(f'v_and_b32 v{NV}, {1 << (28 + k):#x}, v{cur(g)}')
            a(f'v_bitop3_b32 v{AO(b)[h]}, v{W[g] + k}, v{KAD}, v{NV} bitop3:{ANDOR:#x}')

    def dec_c1(b):
        for h in (1, 0):
            g, k = slot(b, h)
            w = W[g] + k
            a(f'v_perm_b32 v{C[h]}, v{w}, v{B[g]}, s{sP[k]}')
            a(f'v_bitop3_b32 v{(AI, NV)[h]}, v{w}, 0.5, -0.5 bitop3:{ORAND:#x}')

    def dec_c2(b):
        for h in (1, 0):
            a(f'v_bitop3_b32 v{C[h]}, v{KCM}, v{C[h]}, v{(AI, NV)[h]} bitop3:{SEL:#x}')

    def flush_pend(mask):
        return [f's_mov_b64 exec, {mask}',
                's_nop 1',
                f'{MF} {vr(RT, 4)}, {vr(NID, 2)}, {vr(P, 2)}, 0',
                's_nop 1',
                f'{MF} {vr(RT, 4)}, {vr(ID, 2)}, {vr(P + 2, 2)}, {vr(RT, 4)}',
                's_nop 4',
                f'v_cvt_pk_bf16_f32 v{RT}, v{RT}, v{RT + 1}',
                f'v_cvt_pk_bf16_f32 v{RT + 1}, v{RT + 2}, v{RT + 3}',
                f'ds_pk_add_bf16 v{PA}, v{RT} offset:{G.A_OFFS}',
                f'ds_pk_add_bf16 v{PA}, v{RT + 1} offset:{G.A_OFFS + 4}']

    def check(b, h):
        if CFG['ab_nofix'] == 1:
            return
        uid[0] += 1
        u = uid[0]
        a(f'v_cmpx_ne_u64 vcc, {vr(OLD2[h], 2)}, {vr(OLD[h], 2)}')
        if CFG['cnt']:
            a('s_bcnt1_i32_b64 s72, vcc')
            a('s_add_u32 s63, s63, s72')
        skip = CFG['zskip'] == 1 or (CFG['zskip'] == 2 and (b & 7) >= 6)
        if skip:
            a(f's_cbranch_execz L2_z{u}')
        a(f's_and_b64 {TMP}, vcc, {PEND}')
        a(f's_cbranch_scc1 L2_c{u}')
        a.label(f'L2_d{u}')
        if CFG['mov64']:
            a(f'v_mov_b64 {vr(P, 2)}, {vr(OLD[h], 2)}')
            a(f'v_mov_b32 v{PA}, v{AO(b)[h]}')
            a(f'v_mov_b64 {vr(P + 2, 2)}, {vr(OLD2[h], 2)}')
        else:
            for n in range(2):
                a(f'v_mov_b32 v{P + n}, v{OLD[h] + n}')
                a(f'v_mov_b32 v{P + 2 + n}, v{OLD2[h] + n}')
            a(f'v_mov_b32 v{PA}, v{AO(b)[h]}')
        if skip:
            a(f's_or_b64 {PEND}, {PEND}, vcc')
            a.label(f'L2_z{u}')
            a('s_mov_b64 exec, -1')
            if h == 0 and inj_on((b + 1) & 7, 0):
                a('s_nop 0')
        else:
            a('s_mov_b64 exec, -1')
            a(f's_or_b64 {PEND}, {PEND}, vcc')
        cnt = [f's_bcnt1_i32_b64 s72, {TMP}', 's_add_u32 s67, s67, s72', 's_add_u32 s67, s67, 0x10000'] if CFG['cnt'] else []
        if not CFG['nbr']:
            ool.append([f'L2_c{u}:'] + cnt + flush_pend(TMP) + ['s_mov_b64 exec, vcc', f's_branch L2_d{u}'])
            return
        CF, TG = 's[50:51]', 's[52:53]'
        bl = [f'L2_c{u}:',
              f's_mov_b64 {CF}, vcc',
              f's_lshl_b64 {TG}, {TMP}, 1',
              f's_andn2_b64 {TG}, {TG}, {PEND}',
              f's_andn2_b64 {TG}, {TG}, {CF}',
              f's_or_b64 {PEND}, {PEND}, {TG}',
              f's_not_b64 vcc, {TG}',
              's_mov_b64 exec, -1']
        for n, r in enumerate((P, P + 1, P + 2, P + 3, PA)):
            bl.append(f'v_cndmask_b32_dpp v{r}, v{r}, v{r}, vcc wave_shr:1 row_mask:0xf bank_mask:0xf')
            if n == 1:
                bl.append(f's_lshr_b64 {TG}, {TG}, 1')
            if n == 3:
                bl.append(f's_andn2_b64 {TMP}, {TMP}, {TG}')
        bl += [f's_mov_b64 vcc, {CF}',
               f's_mov_b64 exec, {CF}',
               f's_cbranch_scc0 L2_d{u}'] + cnt + flush_pend(TMP) + ['s_mov_b64 exec, vcc', f's_branch L2_d{u}']
        ool.append(bl)

    def check2(b, between=None):
        if CFG['ab_nofix'] == 1:
            return
        CM, TG = ['s[50:51]', 's[54:55]'], 's[52:53]'
        a(f'v_cmp_ne_u64 {CM[0]}, {vr(OLD2[0], 2)}, {vr(OLD[0], 2)}')
        a(f'v_cmpx_ne_u64 {CM[1]}, {vr(OLD2[1], 2)}, {vr(OLD[1], 2)}')
        for h in (1, 0):
            uid[0] += 1
            u = uid[0]
            if h == 0:
                if between:
                    a('s_mov_b64 exec, -1')
                    between()
                a(f's_mov_b64 exec, {CM[0]}')
            if CFG['ab_nofix'] != 2:
                a(f's_and_b64 {TMP}, {CM[h]}, {PEND}')
                a(f's_cbranch_scc1 L2_c{u}')
            a.label(f'L2_d{u}')
            a(f'v_mov_b64 {vr(P, 2)}, {vr(OLD[h], 2)}')
            a(f'v_mov_b32 v{PA}, v{AO(b)[h]}')
            a(f'v_mov_b64 {vr(P + 2, 2)}, {vr(OLD2[h], 2)}')
            if h == 0:
                a('s_mov_b64 exec, -1')
            a(f's_or_b64 {PEND}, {PEND}, {CM[h]}')
            bl = [f'L2_c{u}:',
                  f's_lshl_b64 {TG}, {TMP}, 1',
                  f's_andn2_b64 {TG}, {TG}, {PEND}',
                  f's_andn2_b64 {TG}, {TG}, {CM[h]}',
                  f's_or_b64 {PEND}, {PEND}, {TG}',
                  f's_not_b64 vcc, {TG}',
                  's_mov_b64 exec, -1']
            for n, r in enumerate((P, P + 1, P + 2, P + 3, PA)):
                bl.append(f'v_cndmask_b32_dpp v{r}, v{r}, v{r}, vcc wave_shr:1 row_mask:0xf bank_mask:0xf')
                if n == 1:
                    bl.append(f's_lshr_b64 {TG}, {TG}, 1')
                if n == 3:
                    bl.append(f's_andn2_b64 {TMP}, {TMP}, {TG}')
            bl += [f's_mov_b64 exec, {CM[h]}',
                   f's_cbranch_scc0 L2_d{u}'] + flush_pend(TMP) + [f's_mov_b64 exec, {CM[h]}', f's_branch L2_d{u}']
            ool.append(bl)

    def inj_on(b, h):
        if CFG['ab_nofix'] == 1:
            return False
        if st.get('last') and b >= CFG['injl']:
            return True
        if CFG['injm']:
            return CFG['injm'][2 * (b % NB) + h] == '1'
        return (2 * (b % NB) + h) % CFG['injs'] == 0

    def inject(b, h):
        m = INJ1 if h else INJ
        a(f's_and_b64 exec, {m}, {PEND}')
        a(f'{MF} {vr(X[h], 4)}, {vr(NID, 2)}, {vr(P, 2)}, 0')
        a(f'v_mov_b32 v{AO(b)[h]}, v{PA}')
        a(f's_andn2_b64 {PEND}, {PEND}, {m}')
        a(f'{MF} {vr(X[h], 4)}, {vr(ID, 2)}, {vr(P + 2, 2)}, {vr(X[h], 4)}')
        a('s_mov_b64 exec, -1')

    def step_a(b):
        a.wait_lg(('m', b))
        for h in (1, 0):
            a(f'{MF} {vr(X[h], 4)}, {vr(WD, 2)}, {vr(MR[ring(b)][h], 2)}, 0')
        if not CFG['cpos']:
            dec_c2(b)
        if CFG['gearly'] == 4:
            for x in reversed(gs.get(b, [])):
                gather(x, b, noao=True, NV0=xd)
        for h in (1, 0):
            if inj_on(b, h):
                a(f'v_cmp_lt_u32 {INJ1 if h else INJ}, v{KAD}, v{AO(b)[h]}')
        for h in (1, 0):
            if CFG['pkmul']:
                for n in (0, 2):
                    a(f'v_pk_mul_f32 {vr(X[h] + n, 2)}, {vr(X[h] + n, 2)}, {vr(C[0], 2)} op_sel:[0,{h}] op_sel_hi:[1,{h}]')
            else:
                for n in range(4):
                    a(f'v_mul_f32 v{X[h] + n}, v{C[h]}, v{X[h] + n}')

    SB = CFG['sbar']
    sT0, sT1 = 56, 57

    def sb_arrive(c):
        a('s_mov_b64 exec, 1')
        a(f'ds_inc_u32 v{KAD}, v{KF0} offset:{161920 - 0x1fff8 + 8 * c}')
        a('s_mov_b64 exec, -1')

    def sb_look(c):
        a(f'ds_read_b32 v{RT}, v{KAD} offset:{161920 - 0x1fff8 + 8 * c}', tag='sb')

    def sb_wait(c):
        uid[0] += 1
        u = uid[0]
        a(f's_lshl_b32 s3, s{sPH}, 4')
        if c:
            a('s_add_u32 s3, s3, 16')
        a.wait_lg('sb')
        a.label(f'L2_w{u}')
        a(f'v_cmp_gt_u32 vcc, s3, v{RT}')
        a(f's_cbranch_vccnz L2_v{u}')
        ool.append([f'L2_v{u}:', f'ds_read_b32 v{RT}, v{KAD} offset:{161920 - 0x1fff8 + 8 * c}', 's_waitcnt lgkmcnt(0)', f's_branch L2_w{u}'])

    def step_b(b, final=False, mid=None, nogather=False):
        GE = CFG['gearly'] and not final and not nogather
        keep = GE and CFG['gearly'] >= 3 and gs.get(b)
        if GE and not (CFG['gearly'] == 4 and b >= 0):
            for x in reversed(gs.get(b, [])) if keep else gs.get(b, []):
                gather(x, b, noao=True, NV0=xd if keep else NV)
        a.wait_lg('x')

        def rd(h):
            if CFG['injearly'] == 2 and h == 1:
                for k in (1, 0):
                    if inj_on(b, k):
                        inject(b, k)
            if not CFG['injearly'] and inj_on(b, h):
                inject(b, h)
            a(f'ds_read_b64 {vr(OLD[h], 2)}, v{AO(b)[h]} offset:{G.A_OFFS}', tag=('o', h))
        if CFG['chk'] == 1:
            check2(b - 1)
        elif CFG['chk'] == 2:
            check2(b - 1, lambda: rd(1))
        else:
            for h in (1, 0):
                check(b - 1, h)
                if CFG['injearly'] and inj_on(b, h):
                    inject(b, h)
                if CFG['chk'] == 3 and h == 1:
                    rd(1)
        if CFG['chk'] < 2:
            rd(1)
        rd(0)
        if not final:
            if nogather:
                a.wait_vm([('R', 0)])
            elif not GE:
                for x in gs.get(b, []):
                    gather(x, b)
            elif keep:
                for h in range(2):
                    g, k = slot(b + 1, h)
                    a(f'v_bitop3_b32 v{AO(b + 1)[h]}, v{W[g] + k}, v{KAD}, v{(xd, NV)[h]} bitop3:{ANDOR:#x}')
                ao_done.add(b + 1)
            elif CFG['gearly'] >= 2:
                dec_ao(b + 1)
                ao_done.add(b + 1)
            if CFG['cpos'] == 1:
                dec_c1(b + 1)
                dec_c2(b + 1)
            elif CFG['cpos'] == 2:
                dec_c1(b + 1)
            mid()
        if CFG['wprio']:
            a('s_setprio 3')
        if not CFG['osep']:
            a.wait_lg(('o', 0), ('o', 1))
        for h in (1, 0):
            a.wait_lg(('o', h))
            a(f'{MF} {vr(X[h], 4)}, {vr(ID, 2)}, {vr(OLD[h], 2)}, {vr(X[h], 4)}')
        if not final:
            dec_ao(b + 1)
            if not CFG['cpos']:
                dec_c1(b + 1)
            elif CFG['cpos'] == 2:
                dec_c2(b + 1)
        for h in (1, 0):
            a(f'v_cvt_pk_bf16_f32 v{X[h]}, v{X[h]}, v{X[h] + 1}')
            a(f'v_cvt_pk_bf16_f32 v{X[h] + 1}, v{X[h] + 2}, v{X[h] + 3}')
            a(f'ds_wrxchg_rtn_b64 {vr(OLD2[h], 2)}, v{AO(b)[h]}, {vr(X[h], 2)} offset:{G.A_OFFS}', tag='x')

    def stamp(i):
        if not CFG['stamp']:
            return
        a('s_memtime s[70:71]')
        a('s_waitcnt lgkmcnt(0)')
        a('s_sub_u32 s72, s70, s73')
        a('s_mov_b32 s73, s70')
        a(f's_add_u32 s{60 + i}, s{60 + i}, s72')

    ipos = [int(x) for x in CFG['ipos'].split()]
    fpos = [int(x) for x in CFG['fpos'].split()]
    fmpos = [int(x) for x in CFG['fmpos'].split()]

    ipos2 = [int(x) for x in CFG['ipos2'].split()]
    fpos2 = [int(x) for x in CFG['fpos2'].split()]

    def load_own(g):
        if g == 0:
            a('s_mov_b32 s6, 0xaaaaaaaa')
            a('s_mov_b32 s7, 0xaaaaaaaa')
        ai = st.get('ai') or AI
        a(f'v_and_b32 v{ai}, 0x0fffffff, v{EC[g]}')
        issue_rec(g, ai)
    def poll(level, lab):
        if level == 2:
            a(f's_mov_b32 exec_lo, s56')
            a('s_mov_b32 exec_hi, 0')
        else:
            a('s_mov_b64 exec, 0xffff')
        a.label(lab)
        a(f'buffer_load_dword v{RT}, v{PA}, s[60:63], 0 offen sc1')
        a('s_waitcnt vmcnt(0)')
        a(f'v_cmpx_gt_u32 vcc, {level}, v{RT}')
        if CFG['slp%d' % level]:
            a(f's_cbranch_vccnz {lab}s')
            ool.append([f'{lab}s:', f's_sleep {CFG["slp%d" % level]}', f's_branch {lab}'])
        else:
            a(f's_cbranch_vccnz {lab}')
        a('s_mov_b64 exec, -1')

    def signal(level, tmp, adr):
        uid[0] += 1
        a(f's_cmp_lg_u32 s{sW}, 0')
        a(f's_cbranch_scc1 L2_sg{uid[0]}')
        vm, nvm = list(a.vm), a.nvm
        a('s_mov_b32 exec_hi, 0')
        a(f'v_mov_b32 v{tmp}, {level}')
        a(f'buffer_store_dword v{tmp}, v{adr}, s[60:63], s57 offen sc1')
        a('s_mov_b64 exec, -1')
        a.vm, a.nvm = vm, nvm
        a.label(f'L2_sg{uid[0]}')

    if P1:
        T16, sE = 0, 56
        a(f'v_lshlrev_b32 v3, 3, v{T16}')
        a('v_and_b32 v3, 0x80, v3')
        a(f's_cmp_lg_u32 s{sW}, {99 if CFG["ab"] & 16 else 15}')
        a('s_cbranch_scc1 L2_k0')
        vm, nvm = list(a.vm), a.nvm
        a('s_mov_b64 exec, 3')
        a('buffer_load_dword v3, v3, s[68:71], 0 offen sc1')
        a('s_mov_b64 exec, -1')
        a.vm, a.nvm = vm, nvm
        a.label('L2_k0')
        yield
        a('v_and_b32_dpp v3, v3, v3 quad_perm:[1,0,3,2] row_mask:0xf bank_mask:0xf')
        yield
        a(f'v_readlane_b32 s{sE}, v10, 15')
        a(f's_xor_b32 s{sE}, s{sE}, 0x80')
        yield
        a('s_load_dwordx2 s[28:29], s[0:1], 0')
        a('s_load_dwordx2 s[50:51], s[0:1], 40')
        a('s_load_dwordx2 s[52:53], s[0:1], 24')
        yield
        a('s_load_dwordx4 s[96:99], s[50:51], 0')
        a('s_mov_b64 s[4:5], s[52:53]')
        a(f's_bfe_u32 s{sQ}, s2, 0x20001')
        a(f's_and_b32 s{sOB}, s2, 1')
        a(f's_lshl_b32 s{sOB}, s{sOB}, 5')
        a('s_lshr_b32 s3, s2, 3')
        a(f's_add_u32 s{sOB}, s{sOB}, s3')
        a(f's_mul_i32 s{sTab}, s{sQ}, 2080')
        a(f's_lshl_b32 s3, s{sOB}, 5')
        a(f's_add_u32 s{sTab}, s{sTab}, s3')
        a(f's_mul_i32 s{sMD}, s{sQ}, {16 * 81920}')
        next_m(0)
        a(f's_lshl_b32 s{sM0}, s{sW}, 11')
        a(f's_mul_i32 s100, s{sW}, 3072')
        G.srd(a, 8, 30, G.REC_OFF, G.REC_SZ)
        G.srd(a, 12, 30, G.TAB_OFF, G.TAB_SZ)
        G.srd(a, 16, 64, 0, 32)
        G.srd(a, 24, 28, 0, G.E * 8)
        yield
        a(f'v_and_b32 v13, 0x3f0, v{T16}')
        a('v_and_b32 v14, 0x300, v13')
        a('v_bfe_u32 v15, v13, 4, 4')
        a(f's_lshl_b32 s3, s{sW}, 4')
        a('v_add3_u32 v14, v14, v15, s3')
        a(f'v_mul_u32_u24 v{CBA}, {G.BLK}, v14')
        a('v_lshrrev_b32 v14, 6, v13')
        a('s_add_u32 s3, s3, 0x400')
        a('v_add_u32 v14, s3, v14')
        a(f'v_mul_u32_u24 v{CBB}, {G.BLK}, v14')
        a('v_and_b32 v14, 3, v14')
        a('v_and_b32 v15, 0x30, v13')
        a('v_lshl_add_u32 v14, v14, 5, v15')
        a(f'v_add_u32 v6, v14, v{CBB}')
        a(f'v_lshl_add_u32 v5, v15, 1, v{CBA}')
        a('v_lshrrev_b32 v14, 3, v15')
        wb = P1['take'](100)
        for k in range(4):
            if not CFG['ab'] & 128:
                a(f'buffer_load_ushort v{wb + k}, v14, s[16:19], 0 offen offset:{k * 8}', tag='wd')
        a(f's_mul_i32 s3, s{sW}, 5120')
        a(f'v_add_u32 v{FA}, s3, v13')
        a('v_lshrrev_b32 v14, 2, v13')
        a(f'v_add_u32 v14, s{sM0}, v14')
        mo = [4, 2, 3, 0, 1]
        for _ in range(5):
            yield
            if 5 - len(mo) < CFG['m0s']:
                n = mo.pop(0)
                P1['take'](MP[n])
                load_m_raw(n, 0, 13)
        yield
        if not CFG['ab'] & 32:
            signal(1, 11, 14)
        store = P1['store']
        FS = CFG['fs']
        if FS:
            for n in range(10):
                a(f's_waitcnt lgkmcnt({9 - n})')
                store()
                if n == 6:
                    P1['mhook'](30)
            store = lambda: None
            G.tl_mark(a, 76, 21, 1, RT + 2)
        yield
        st['raw'] = True
        a('s_setprio 3')
        a(f'v_mov_b32 v92, v{T16}')
        a('v_mov_b32 v93, v6')
        a('v_mov_b32 v94, v13')
        a('v_mov_b32 v95, v5')
        P1['t16'](92)
        store()
        store()
        a(f'v_mov_b32 v{LA}, v14')
        a(f'v_lshl_add_u32 v{PA}, v13, 3, s{sM0}')
        a('v_lshrrev_b32 v16, 2, v15')
        a(f'v_mad_u32_u24 v{CBB}, v16, 5, v{CBB}')
        a(f'v_or_b32 v{CBB}, 0xf0000000, v{CBB}')
        a(f'v_or_b32 v{CBA}, 0xf0000000, v{CBA}')
        a(f'v_sub_u32 v{SHL}, 28, v16')
        a('v_lshrrev_b32 v17, 2, v16')
        G.ident(a, ID, 18, 17)
        G.ident(a, NID, 18, 17, neg=True)
        a(f'v_mov_b32 v{KF0}, 0xf0000000')
        if PP:
            a(f'v_add_u32 v{LF}, s{sM0}, v{LA}')
            a(f'v_lshrrev_b32 v{LF}, 1, v{LF}')
            a(f'v_and_b32 v{LF}, -4, v{LF}')
        a(f'v_mov_b32 v{KAD}, 0x1fff8')
        a(f'v_mov_b32 v{KCM}, 0x07ff0000')
        for n in range(4):
            a(f'v_mov_b32 v{16 + n}, 0')
        a(f'v_add_u32 v20, {G.A_BASE}, v92')
        a(f'v_add_u32 v21, 0x10000, v20')
        def zero():
            for n in range(5):
                store()
                if n == 2 and FS < 2:
                    a('s_setprio 2')
                a(f'ds_write_b128 v20, v[16:19] offset:{n * 16384}' if n < 4 else 'ds_write_b128 v21, v[16:19]')
        if FS < 2:
            zero()
        a('s_setprio 1')
        for n in range(3):
            store()
        if not FS:
            G.tl_mark(a, 76, 21, 1, RT + 2)
        a(f's_setprio {2 if min(ipos) < 0 else 0}')
        for k in range(4):
            a(f's_mov_b32 s{sP[k]}, {0x04000c0c | (k << 16):#x}')
        a(f's_mov_b32 s{sSlow}, 0')
        a(f's_mov_b32 s{sXo}, 0')
        a(f's_mov_b32 s{sPH}, 0')
        a(f's_mov_b64 {PEND}, 0')
        a(f's_mov_b64 {INJ1}, 0')
        if CFG['mside']:
            G.srd(a, 16, 30, G.MD_OFF - 81920, G.MD_SZ + 81920)
            a(f's_lshr_b32 s3, s{sW}, 3')
            a('s_lshl_b32 s3, s3, 13')
            a('s_sub_u32 s72, 65536, s3')
            a(f's_add_u32 s{sMD}, s{sMD}, s3')
            a(f's_lshl_b32 s3, s{sW}, 12')
            a(f's_sub_u32 s{sMD}, s{sMD}, s3')
            a(f's_add_u32 s{sMD}, s{sMD}, 81920')
        else:
            G.srd(a, 16, 30, G.MD_OFF, G.MD_SZ)
        for n in range(8):
            a(f'v_mov_b32 v{OLD[0] + n}, 0')
        a('s_waitcnt vmcnt(0)')
        a(f'v_lshl_or_b32 v{WD}, v{wb + 1}, 16, v{wb}')
        a(f'v_lshl_or_b32 v{WD + 1}, v{wb + 3}, 16, v{wb + 2}')
        G.tl_end(a, mid=True)
        if CFG['ab'] & 64:
            a('s_endpgm')
        a('s_barrier')
        signal(2, RT, LA)
        if CFG['diag'] == 2:
            a('s_memrealtime s[94:95]')
        a(f's_mov_b64 {INJ}, 0')
        for _ in range(min(CFG['m0e'], len(mo))):
            load_m_raw(mo.pop(0), 0, 94)
        if FS == 2:
            zero()
        a(f's_cmp_eq_u32 s{sE}, 0')
        a('s_cbranch_scc1 L2_e3')
        a('v_lshlrev_b32 v16, 3, v94')
        a('v_and_b32 v16, 0x80, v16')
        a.label('L2_e4')
        a(f'buffer_load_dword v{RT}, v16, s[68:71], 0 offen sc1')
        a('s_waitcnt vmcnt(0)')
        a(f'v_cmp_gt_u32 vcc, 0x80, v{RT}')
        a('s_cbranch_vccnz L2_e4')
        a.label('L2_e3')
        poll(1, 'L2_p1')
        a(f'v_cmp_gt_u32 vcc, 2, v{RT}')
        a(f's_and_b32 s{sE}, vcc_lo, 0xffff')
        for k in (0, 2, 1, 3):
            a(f'buffer_load_dwordx4 {vr(DA + 4 * k, 4)}, v95, s[12:15], s{sTab} offen offset:{16 * k}', tag='D')
        a(f'buffer_load_dwordx4 {vr(DB, 4)}, v93, s[12:15], s{sTab} offen', tag='D')
        while mo:
            load_m_raw(mo.pop(0), 0, 94)
        G.tl_mark(a, 76, 22, 1, RT)
        x_pre(0)
        x_list(0, EN, 0)
        x_pre(1)
        a.wait_lg('L')
        for g in range(4):
            if not PP:
                a(f'v_mov_b32 v{EC[g]}, v{EN[g]}')
        x_list(1, EN, 1)
        for n in (4, 2, 3, 0, 1):
            fill(n)
        G.tl_mark(a, 76, 23, 1, RT)
        if CFG['r0pre']:
            a(f's_cmp_eq_u32 s{sE}, 0')
            a('s_cbranch_scc1 L2_e2')
        assert CFG['r0pre']
        a(f's_mov_b32 exec_lo, s{sE}')
        a('s_mov_b32 exec_hi, 0')
        a(f'buffer_load_dword v{RT}, v{PA}, s[60:63], 0 offen sc1')
        a('s_mov_b64 exec, -1')
        a('s_waitcnt vmcnt(0)')
        a(f'v_cmp_gt_u32 vcc, 2, v{RT}')
        a(f's_and_b32 s{sE}, vcc_lo, s{sE}')
        a('s_cbranch_scc0 L2_e2')
        for n in (4, 2, 3, 0, 1):
            load_m_raw(n, 1, 94)
        poll(2, 'L2_p2')
        a.label('L2_e2')
        G.tl_start(a, mid=True)
        load_own(0)
        for g in range(1, 4):
            if ipos[g - 1] < 0:
                a(f's_setprio {max(0, 2 - g)}')
                load_own(g)
        if CFG['r0pre']:
            a('s_waitcnt lgkmcnt(0)')
            a('s_barrier')
            G.tl_mark(a, 76, 24, 1, RT + 2)
    else:
        if CFG['stamp']:
            for i in range(8):
                a(f's_mov_b32 s{60 + i}, 0')
            a('s_mov_b32 s73, 0')
            stamp(7)
            a('s_mov_b32 s67, 0')

        for n in range(8):
            a(f'v_mov_b32 v{OLD[0] + n}, 0')
        a(f'v_add_u32 v24, {G.A_BASE}, v24')
        for n in range(4):
            a(f'ds_write_b128 v24, {vr(OLD[0], 4)} offset:{n * 16384}')
        a(f'v_add_u32 v{AI}, 0x10000, v24')
        a(f'ds_write_b128 v{AI}, {vr(OLD[0], 4)}')
        G.tl_mark(a, 76, 21, 1, RT)
        a.wait_vm('D')
        G.tl_mark(a, 76, 22, 1, RT)
        if CFG['dq']:
            Z = 26
            for src, dst, bit, qp, ev in ((DA, Z, 1, '[1,0,3,2]', 0x55555555), (Z, DA, 2, '[2,3,0,1]', 0x33333333)):
                for par in range(2):
                    m = ev if par == 0 else ev ^ 0xffffffff
                    a(f's_mov_b32 vcc_lo, {m:#x}')
                    a(f's_mov_b32 vcc_hi, {m:#x}')
                    n = 0
                    for k in range(4):
                        if bool(k & bit) != bool(par):
                            continue
                        for r in range(4):
                            a(f'v_cndmask_b32_dpp v{dst + 4 * k + r}, v{src + 4 * (k ^ bit) + r}, v{src + 4 * k + r}, vcc quad_perm:{qp} row_mask:0xf bank_mask:0xf')
                            n += 1
                            if CFG['dq'] == 2 and n % 2 == 0:
                                a(f'v_mov_b32 v{RT}, 0')
                                a(f'v_mov_b32 v{RT + 1}, 0')
        x_pre(0)
        x_list(0, EN, 0)
        x_pre(1)
        a.wait_lg('L')
        G.tl_mark(a, 76, 23, 1, RT)
        for g in range(4):
            if not PP:
                a(f'v_mov_b32 v{EC[g]}, v{EN[g]}')
        if CFG['pprio'] < 2:
            load_own(0)
        for g in range(1, 4):
            fill((4, 2, 3)[g - 1])
            if ipos[g - 1] < 0 or CFG['ab_norec']:
                load_own(g)
        x_list(1, EN, 1)
        fill(0)
        fill(1)
        if CFG['pprio'] == 2:
            load_own(0)
        a('s_waitcnt lgkmcnt(0)')
        G.tl_mark(a, 76, 24, 1, RT)
        if CFG['ab_norec']:
            a('s_waitcnt vmcnt(0)')
        stamp(0)
    st['inloop'] = True
    if CFG['mpf']:
        a(f's_cmp_lt_u32 s{sW}, 10')
        a('s_cselect_b64 s[72:73], 3, 0')
        a('s_lshr_b32 s3, s2, 3')
        a('s_mul_i32 s74, s3, 2560')
        a(f's_mul_i32 s3, s{sW}, {256 - 65536}')
        a('s_add_u32 s74, s74, s3')
        a(f's_add_u32 s74, s74, {0xf0000000 + G.MD_OFF - G.REC_OFF:#x}')
        a(f's_mov_b32 s10, {G.REC_SZ + G.MD_SZ:#x}')
    prio1 = [int(x) for x in CFG['pr'].split()]
    sites = []
    FW, FM, FD, FL, FG = 48, [MP[1 - OP], 124], [116, 117], [118, 119], [120, 121]

    def fin_preload():
        a(f's_lshl_b32 s3, s{sW}, 12')
        a(f'v_subrev_u32 v122, s3, v{FA}')
        a(f's_mul_i32 s3, s{sQ}, 20000')
        a(f'v_add_u32 v{FL[0]}, s3, v122')
        a(f'v_add_u32 v{FL[1]}, 0x4000, v{FL[0]}')
        a(f's_lshl_b32 s3, s{sOB}, 7')
        for r in range(2):
            a(f'v_lshrrev_b32 v123, 7, v{FL[r]}')
            a(f'v_and_b32 v{FG[r]}, 0x70, v{FL[r]}')
            a(f'v_lshl_add_u32 v{FG[r]}, v123, 13, v{FG[r]}')
            a(f'v_add_u32 v{FG[r]}, s3, v{FG[r]}')
        a(f'v_cmp_le_u32 vcc, {20000 - 16384}, v122')
        a('s_mov_b64 exec, vcc')
        a(f'v_mov_b32 v{FL[1]}, 2.0')
        a(f'v_mov_b32 v{FG[1]}, 2.0')
        a('s_mov_b64 exec, -1')
        a('v_and_b32 v123, 0x30, v122')
        a('v_lshlrev_b32 v123, 2, v123')
        a(f'buffer_load_dwordx4 {vr(FW, 4)}, v123, s[24:27], 0 offen', tag='fin')
        a(f'buffer_load_dwordx4 {vr(FW + 4, 4)}, v123, s[24:27], 0 offen offset:16', tag='fin')
        a(f'buffer_load_dwordx2 {vr(FW + 8, 2)}, v123, s[24:27], 0 offen offset:32', tag='fin')
        G.srd(a, 12, 4, 0, G.E * 2)
        G.srd(a, 16, 28, 0, G.E * 8)
        for r in range(2):
            a(f'v_lshrrev_b32 v123, 2, v{FG[r]}')
            a(f'buffer_load_dword v{FD[r]}, v123, s[12:15], 0 offen', tag='fin')
            a(f'buffer_load_dwordx4 {vr(FM[r], 4)}, v{FG[r]}, s[16:19], 0 offen', tag='fin')

    def phase(jj, kind):
        first, more1, more2 = kind == 'first', kind != 'last', kind in ('first', 'second', 'mid')
        second = kind == 'second'
        ph['par'] = (jj * NB) & 1
        ph['p'] = jj
        assert not PP or (FOLD and rpos[3] >= 10 and CFG['secmid'] and min(dpos[:2]) == 3 and not SB and 9 not in fpos)
        st['last'] = kind == 'last'
        a.c(f'==== phase jj={jj} {kind}')
        site = len(sites)
        sites.append(site)

        def slow_site():
            stamp(5)
            G.tl_mark(a, 76, f's{sPH}', 1, RT)
            a(f's_bitcmp1_b32 s{sSlow}, s{sPH}')
            a('s_cbranch_scc1 L2_slow')
            a.label(f'L2_ret{site}')
        if first or not SB:
            if not (first and P1) and (first or not CFG['ab'] & 1):
                a('s_barrier')
            slow_site()
        hs = [None]
        st['m0'] = None

        def dhook():
            if hs[0] is None:
                return
            if CFG['sprio']:
                a(f's_setprio {3 - hs[0]}')
            for n in (4, 2, 3, 0, 1):
                if dpos[n] == hs[0]:
                    fill(n)
                if mpos[n] < 0 and more2 and max(dpos[n], -1 - mpos[n]) == hs[0]:
                    load_m(n)
            hs[0] += 1

        def rhook(pos):
            if FOLD and not CFG['ab'] & 512:
                if pos == 7:
                    ovf_load(XN[jj & 1], X[0] if first else MP[OP])
                if pos == (7 if first else mpos[OP]):
                    ovf_run(XN[jj & 1], X[0] if first else MP[OP])
            if first and not CFG['ab_norec']:
                if pos == 7 and CFG['pprio'] == 3:
                    load_own(0)
                for g in range(1, 4):
                    if ipos[g - 1] == pos:
                        load_own(g)
            elif second:
                for g in range(1, 3):
                    if fpos[g] == 9 and ipos2[g - 1] == pos:
                        load_own(g)
                if ipos2[2] == pos:
                    load_rec(3)
            elif rpos[3] in (pos, pos + 8) and rpos[3] < 10:
                load_rec(3)
            if not more1:
                if pos == CFG['finp'] and CFG['fuse']:
                    fin_preload()
                return
            for n in (4, 2, 3, 0, 1):
                if (fmpos if first else mpos)[n] == pos and not (first and P1):
                    load_m(n)
                elif first and P1 and fmpos[n] == pos:
                    uid[0] += 1
                    a(f'v_and_b32 v{AI}, 0x3f0, v{FA}')
                    a('s_cmp_lg_u32 s56, 0')
                    a(f's_cbranch_scc1 L2_m{uid[0]}')
                    vm, nvm = list(a.vm), a.nvm
                    load_m_raw(n, 1, AI)
                    a.vm, a.nvm = vm, nvm
                    st[('rawn', n)] = a.nvm
                    a.label(f'L2_m{uid[0]}')
            if pos == b1_step - 1:
                next_m(jj + 1)
            for g in range(3):
                if (fpos if first else fpos2 if second else rpos)[g] == pos:
                    load_rec(g)
                if first and fpos[g] == 9 and pos == b1_step:
                    a(f'v_mov_b32 v{EC[g]}, v{EN[g]}')

        for i, b in enumerate(order if SB else []):
            if i == 0 or prio1[i] != prio1[i - 1]:
                a(f's_setprio {prio1[i]}')
            if b >= 0:
                step_a(b)
            if b == CFG['xpre'] and more2:
                x_pre((jj + 2) & 3)
            if b >= 0 or first:
                rhook(b & 7)
            if first and b < 0:
                gather(0, -1)
                dec_ao(0)
                dec_c1(0)
            elif b < 0:
                step_b(b, mid=lambda: sb_look(0), nogather=True)
                sb_wait(0)
                slow_site()
                gather(0, -1, RT, RT + 1, True)
                st['ai'] = RT
                rhook(7)
                st['ai'] = None
            elif b == b1_step - 1 and more1:
                step_b(b, mid=lambda: sb_arrive(1))
            elif b == b1_step and more1:
                step_b(b, mid=lambda: sb_look(1))
            else:
                step_b(b, mid=lambda: None)
            if more1 and not first:
                for g in range(3 if second else 0, 4):
                    if rpos[g] == 10 + b and b < b1_step:
                        load_rec(g, RT)
            if b == b1_step and more1:
                if SB == 2:
                    step_a(LB)
                sb_wait(1)
                hs[0] = 0
                dhook()
                if more2:
                    x_list((jj + 2) & 3, EN, 2)
                else:
                    a(f'v_mov_b32 v{ES}, v{EN[3]}')
                for _ in range(3):
                    dhook()
                sb_arrive(0)
                a(f's_add_u32 s{sPH}, s{sPH}, 1')
                if rpos[3] == 10 + b and not first:
                    a.wait_lg('L')
                    load_rec(3, RT)
        if SB:
            if SB == 1 or not more1:
                step_a(LB)
            return
        for i, b in enumerate(order):
            if b == b1_step and more1:
                a.wait_lg(('m', LB), ('m', LB - 1))
                stamp(1)
                if not CFG['ab'] & 2:
                    a('s_barrier')
                stamp(2)
                hs[0] = 0
                dhook()
            if (i == 0 or prio1[i] != prio1[i - 1] or CFG['wprio']) and not (CFG['sprio'] and b == b1_step):
                a(f's_setprio {prio1[i]}')
            hf = CFG['gearly'] == 4 and b != b1_step
            if b >= 0 and not hf:
                step_a(b)
            if FOLD:
                assert CFG['xpre'] >= mpos[OP] >= 0
                rhook(b & 7)
            if b == CFG['xpre'] and more2 and not CFG['ab'] & 4:
                x_pre((jj + 2) & 3)
            if not FOLD:
                rhook(b & 7)
            if b >= 0 and hf:
                assert CFG['cpos']
                step_a(b)
            back = None
            if b == b1_step and more2 and not CFG['ab'] & 4:
                back = x_list((jj + 2) & 3, EN, 2, split=PP)
            elif b == b1_step and more1 and not PP:
                a(f'v_mov_b32 v{ES}, v{EN[3]}')
            dhook()
            if first and b < 0:
                gather(0, -1)
                dec_ao(0)
                dec_c1(0)
                if CFG['cpos']:
                    dec_c2(0)
            else:
                step_b(b, mid=dhook)
            if back:
                back()
            if more1 and (not first or CFG['secmid']):
                for g in range(3 if second or first else 0, 4):
                    if rpos[g] == 10 + b:
                        load_rec(g, RT)
            if first:
                for g in range(3):
                    if fpos[g] == 10 + b:
                        load_rec(g, RT)
            dhook()
        step_a(LB)
        if more1:
            assert hs[0] > max(dpos)
            a(f's_add_u32 s{sPH}, s{sPH}, 1')
            a.wait_lg('F')
            stamp(4)

    phase(0, 'first')
    st['raw'] = False
    if P1:
        G.srd(a, 24, 30, G.WT_OFF, G.WT_SZ)
    phase(1, 'mid' if CFG['secmid'] else 'second')
    a.vm = merge_vm(a.vm, G.MEMO.get('back', []))
    head_vm, head_lg = list(a.vm), list(a.lg)
    a.label('L2_loop')
    for jj in (2, 3, 0, 1):
        phase(jj, 'mid')
    assert 'back' not in G.MEMO or merge_vm(head_vm, a.vm) == head_vm, (a.vm, head_vm)
    G.MEMO['back'] = list(a.vm)
    assert a.lg == head_lg
    a(f's_cmp_lg_u32 s{sPH}, 14')
    a('s_cbranch_scc1 L2_loop')
    phase(2, 'penult')
    phase(3, 'last')
    step_b(LB, final=True)
    a.wait_lg('x')
    check(LB, 1)
    check(LB, 0)
    if CFG['drain']:
        a(f's_mov_b64 exec, {PEND}')
        a(f'ds_read_b64 {vr(OLD[0], 2)}, v{PA} offset:{G.A_OFFS}')
        a(f'{MF} {vr(X[0], 4)}, {vr(NID, 2)}, {vr(P, 2)}, 0')
        a(f'{MF} {vr(X[0], 4)}, {vr(ID, 2)}, {vr(P + 2, 2)}, {vr(X[0], 4)}')
        a('s_waitcnt lgkmcnt(0)')
        a(f'{MF} {vr(X[0], 4)}, {vr(ID, 2)}, {vr(OLD[0], 2)}, {vr(X[0], 4)}')
        a(f'v_mov_b64 {vr(P, 2)}, {vr(OLD[0], 2)}')
        a(f'v_cvt_pk_bf16_f32 v{X[0]}, v{X[0]}, v{X[0] + 1}')
        a(f'v_cvt_pk_bf16_f32 v{X[0] + 1}, v{X[0] + 2}, v{X[0] + 3}')
        a(f'ds_wrxchg_rtn_b64 {vr(P + 2, 2)}, v{PA}, {vr(X[0], 2)} offset:{G.A_OFFS}')
        a('s_waitcnt lgkmcnt(0)')
        a(f'v_cmp_ne_u64 {PEND}, {vr(P + 2, 2)}, {vr(P, 2)}')
    for ln in flush_pend(PEND):
        a(ln)
    a('s_mov_b64 exec, -1')
    if True:
        a('s_load_dwordx2 s[4:5], s[0:1], 88')
        a('v_add_u32 v123, 0x4000, v122')
        for n in range(4):
            a(f's_lshl_b32 s{50 + 2 * n}, s{96 + n}, 16')
            a(f's_and_b32 s{51 + 2 * n}, s{96 + n}, 0xffff0000')
        a('s_waitcnt lgkmcnt(0)' if CFG['finw'] else 's_waitcnt vmcnt(0) lgkmcnt(0)')
        a('s_barrier')
        G.tl_mark(a, 76, 16, 1, 106)
        GH = [80, 16]
        PL = [32, 60]
        WX = CFG['wavex']
        G.srd(a, 8, 30, G.FLAG_OFF, G.FLAG_SZ)
        G.srd(a, 12, 4, 0, G.E * 8)
        G.srd(a, 20, 30, G.PART_OFF, G.PART_SZ)
        a(f's_lshl2_add_u32 s4, s{sOB}, s{sQ}')
        a('s_mul_i32 s4, s4, 81920')
        for k in range(1, 4):
            a(f's_add_u32 s3, s{sQ}, {k}')
            a('s_and_b32 s3, s3, 3')
            a(f's_mul_i32 s{35 + k}, s3, 20000')
            a(f's_add_u32 s{35 + k}, s{35 + k}, {G.A_BASE}')
            a(f's_mul_i32 s{39 + k}, s3, 20480')
            a(f's_add_u32 s{39 + k}, s{39 + k}, s4')
            a(f's_lshl2_add_u32 s3, s{sOB}, s3')
            a('s_mul_i32 s3, s3, 81920')
            a(f's_mul_i32 s{43 + k}, s{sQ}, 20480')
            a(f's_add_u32 s{43 + k}, s{43 + k}, s3')
        SB_ = [[16, 20, 24], [36, 40, 44]]
        for r in range(2):
            if r:
                a(f's_cmp_ge_u32 s{sW}, 4')
                a('s_cbranch_scc1 L2_g0')
            for k in range(1, 4):
                a(f'v_add_u32 v104, s{35 + k}, v{122 + r}')
                a(f'ds_read_b128 {vr(SB_[r][k - 1], 4)}, v104')
            for k in range(1, 4):
                a(f's_waitcnt lgkmcnt({3 - k})')
                a(f'buffer_store_dwordx4 {vr(SB_[r][k - 1], 4)}, v{122 + r}, s[20:23], s{39 + k} offen sc1')
        a.label('L2_g0')
        if CFG['finw']:
            a('s_waitcnt vmcnt(3)')
        if WX != 2:
            G.fin_gates(a, FD[0], 50, FW, GH[0], 60, ((0, 1), (0,), (0,), ())[CFG['gsp']])
        a(f's_lshl_b32 s3, s{sOB}, 9')
        if WX:
            a(f's_lshl2_add_u32 s3, s{sW}, s3')
        a(f's_lshl_b32 s4, s{sQ}, 7')
        a('s_add_u32 s4, s4, s3')
        a('v_mov_b32 v104, 1')
        a('v_and_b32 v105, 0x3f0, v122')
        a('v_lshlrev_b32 v105, 3, v105')
        if WX != 2:
            for r in range(2):
                a(f'v_add_u32 v106, {G.A_BASE}, v{FL[r]}')
                a(f'ds_read_b128 {vr(PL[r], 4)}, v106')
        a('s_waitcnt vmcnt(0)')
        if not WX:
            a('s_barrier')
        G.tl_mark(a, 76, 18, 1, 106)
        if not WX:
            a(f's_cmp_lg_u32 s{sW}, 0')
            a('s_cbranch_scc1 L2_f2')
        a('s_mov_b64 exec, 1')
        a('buffer_store_dword v104, off, s[8:11], s4 sc1')
        if WX == 2:
            a('s_mov_b64 exec, -1')
            G.fin_gates(a, FD[0], 50, FW, GH[0], 60)
            for r in range(2):
                a(f'v_add_u32 v106, {G.A_BASE}, v{FL[r]}')
                a(f'ds_read_b128 {vr(PL[r], 4)}, v106')
        a('s_mov_b64 exec, 15')
        a(f's_bitset0_b64 exec, s{sQ}')
        a.label('L2_f3')
        a('buffer_load_dword v104, v105, s[8:11], s3 offen sc1')
        a('s_waitcnt vmcnt(0)')
        a('v_cmp_ne_u32 vcc, 1, v104')
        a('s_cbranch_vccnz L2_f3s')
        ool.append(['L2_f3s:'] + ([f's_sleep {CFG["slp3"]}'] if CFG['slp3'] else []) + ['s_branch L2_f3'])
        a('s_mov_b64 exec, -1')
        if not WX:
            a.label('L2_f2')
            if CFG['gsp'] == 2:
                G.fin_gates(a, FD[0], 50, FW, GH[0], (96, 0, [76, 76]), (1,))
            a('s_barrier')
        G.tl_mark(a, 76, 19, 1, 106)
        for r in range(2):
            if r:
                a(f's_cmp_ge_u32 s{sW}, 4')
                a('s_cbranch_scc1 L2_f5')
            for k in range(1, 4):
                a(f'buffer_load_dwordx4 {vr(PL[r] + 4 * k, 4)}, v{122 + r}, s[20:23], s{43 + k} offen sc1')
        if CFG['g1late']:
            G.fin_gates(a, FD[1], 50, FW, GH[1], (96, 0, [104, 76]))
        a.label('L2_f5')
        if CFG['gsp'] in (1, 3):
            a.fence(5)
            G.fin_gates(a, FD[0], 50, FW, GH[0], (96, 0, [104, 76]), (1,) if CFG['gsp'] == 1 else (0, 1))
        a('s_waitcnt vmcnt(0) lgkmcnt(0)')
        G.tl_mark(a, 76, 20, 1, 106)
        for r in range(2):
            if r:
                a(f's_cmp_ge_u32 s{sW}, 4')
                a('s_cbranch_scc1 L2_f6')
            G.fin_out(a, PL[r], GH[r], FW, ID, FM[r], 96)
            a(f'buffer_store_dwordx4 {vr(PL[r] + 4, 4)}, v{FG[r]}, s[12:15], 0 offen{CFG["out_pol"]}')
        a.label('L2_f6')
    if CFG['diag']:
        a('s_waitcnt vmcnt(0)')
        a('s_memrealtime s[76:77]')
        a('s_waitcnt lgkmcnt(0)')
        a(f's_sub_u32 s78, s{76 if CFG["diag"] == 1 else 94}, s88')
        a('s_min_u32 s78, s78, 100000')
        a.label('L2_dg')
        a('s_memrealtime s[86:87]')
        a('s_waitcnt lgkmcnt(0)')
        a('s_sub_u32 s79, s86, s76')
        a('s_cmp_lt_u32 s79, s78')
        a('s_cbranch_scc1 L2_dg')
    G.tl_end(a)
    if CFG['stamp']:
        a('s_waitcnt vmcnt(0)')
        stamp(6)
        a('s_load_dwordx2 s[74:75], s[0:1], 96')
        a('s_waitcnt lgkmcnt(0)')
        G.srd(a, 76, 74, 0, 256)
        a(f's_cmp_lg_u32 s2, {CFG["stamp"]}')
        a('s_cbranch_scc1 L2_end')
        a(f's_and_b32 s3, s{sW}, 3')
        a('s_cmp_lg_u32 s3, 0')
        a('s_cbranch_scc1 L2_end')
        a(f's_lshl_b32 s3, s{sW}, 3')
        a('v_mov_b32 v20, 0')
        for i in range(8):
            a(f'v_mov_b32 v21, s{60 + i}')
            a(f'buffer_store_dword v21, v20, s[76:79], s3 offen offset:{4 * i}')
    a.label('L2_end')
    a('s_endpgm')

    a.label('L2_slow')
    a.reset()
    sC, sS, sE, sO = 50, 51, 52, 53
    pp, t_, wa, ba, w_, b_, ao, c_, ai_ = 102, 103, 104, 105, 106, 107, 96, 97, 98
    m_ = MR[0][0]
    a(f's_lshr_b32 s{sSP}, s{sPH}, 2')
    a(f's_lshl_b32 s{sC}, s{sW}, 4')
    a(f's_and_b32 s3, s{sPH}, 3')
    a(f's_lshl_b32 s{sO}, s3, 3')
    a(f's_add_u32 s{sO}, s{sO}, s{sTab}')
    a(f's_and_b32 s3, s{sSP}, 2')
    a('s_lshl_b32 s3, s3, 1')
    a(f's_add_u32 s{sO}, s{sO}, s3')
    a(f's_and_b32 s54, s{sSP}, 1')
    a('s_lshl_b32 s54, s54, 4')
    a.label('L2_sl_seg')
    a(f's_mul_i32 s55, s{sC}, {G.BLK}')
    a(f's_and_b32 s3, s{sC}, 3')
    a('s_lshl_b32 s3, s3, 5')
    a('s_add_u32 s3, s3, s55')
    a(f's_add_u32 s3, s3, s{sO}')
    a(f'buffer_load_dword v{wa}, off, s[12:15], s3 sc1')
    a(f'buffer_load_dword v{ba}, off, s[12:15], s3 offset:32 sc1')
    a('s_waitcnt vmcnt(0)')
    a(f'v_readfirstlane_b32 s{sS}, v{wa}')
    a(f'v_readfirstlane_b32 s{sE}, v{ba}')
    a(f's_lshr_b32 s{sS}, s{sS}, s54')
    a(f's_and_b32 s{sS}, s{sS}, 0xffff')
    a(f's_lshr_b32 s{sE}, s{sE}, s54')
    a(f's_and_b32 s{sE}, s{sE}, 0xffff')
    a.label('L2_sl_rec')
    a(f's_cmp_ge_u32 s{sS}, s{sE}')
    a('s_cbranch_scc1 L2_sl_next')
    a(f'v_mbcnt_lo_u32_b32 v{pp}, -1, 0')
    a(f'v_mbcnt_hi_u32_b32 v{pp}, -1, v{pp}')
    a(f'v_add_u32 v{pp}, s{sS}, v{pp}')
    a(f'v_and_b32 v{t_}, -4, v{pp}')
    a(f'v_lshl_add_u32 v{wa}, v{pp}, 2, v{t_}')
    a(f'v_lshl_add_u32 v{ba}, v{t_}, 2, v{pp}')
    a(f'v_cmp_gt_u32 vcc, s{sE}, v{pp}')
    a('s_mov_b64 exec, vcc')
    a(f'buffer_load_dword v{w_}, v{wa}, s[8:11], s55 offen')
    a(f'buffer_load_ubyte v{b_}, v{ba}, s[8:11], s55 offen offset:16')
    a('s_waitcnt vmcnt(0)')
    a(f'v_lshrrev_b32 v{ai_}, 14, v{w_}')
    a(f'v_and_b32 v{ai_}, v{KAD}, v{ai_}')
    a(f'ds_read_b64 {vr(m_, 2)}, v{ai_}')
    a(f'v_perm_b32 v{c_}, v{w_}, v{b_}, s{sP[0]}')
    a(f'v_and_b32 v{ao}, v{KAD}, v{w_}')
    a(f'v_bitop3_b32 v{t_}, v{w_}, 0.5, -0.5 bitop3:{ORAND:#x}')
    a(f'v_bitop3_b32 v{c_}, v{KCM}, v{c_}, v{t_} bitop3:{SEL:#x}')
    a('s_waitcnt lgkmcnt(0)')
    a(f'{MF} {vr(RT, 4)}, {vr(WD, 2)}, {vr(m_, 2)}, 0')
    for n in range(4):
        a(f'v_mul_f32 v{RT + n}, v{c_}, v{RT + n}')
    a(f'v_cvt_pk_bf16_f32 v{RT}, v{RT}, v{RT + 1}')
    a(f'v_cvt_pk_bf16_f32 v{RT + 1}, v{RT + 2}, v{RT + 3}')
    a(f'ds_pk_add_bf16 v{ao}, v{RT} offset:{G.A_OFFS}')
    a(f'ds_pk_add_bf16 v{ao}, v{RT + 1} offset:{G.A_OFFS + 4}')
    a('s_mov_b64 exec, -1')
    a(f's_add_u32 s{sS}, s{sS}, 64')
    a('s_branch L2_sl_rec')
    a.label('L2_sl_next')
    a(f's_add_u32 s{sC}, s{sC}, 1')
    a(f's_and_b32 s3, s{sC}, 15')
    a('s_cbranch_scc1 L2_sl_seg')
    a(f's_add_u32 s{sC}, s{sC}, 240')
    a(f's_cmp_lt_u32 s{sC}, {G.NCH}')
    a('s_cbranch_scc1 L2_sl_seg')
    a('s_waitcnt lgkmcnt(0)')
    for ph, k in ((0, 0), (1, 1), (14, 6), (15, 7)):
        a(f's_cmp_eq_u32 s{sPH}, {ph}')
        a(f's_cbranch_scc1 L2_ret{k}')
    a(f's_and_b32 s3, s{sPH}, 3')
    for ph, k in ((2, 2), (3, 3), (0, 4)):
        a(f's_cmp_eq_u32 s3, {ph}')
        a(f's_cbranch_scc1 L2_ret{k}')
    a('s_branch L2_ret5')
    for bl in ool:
        for ln in bl:
            if ln.endswith(':'):
                a.label(ln[:-1])
                a.reset()
            else:
                a(ln)
    yield name
```

```python
from asmlib import vr, sr, merge_vm

MF = 'v_mfma_f32_4x4x4_16b_bf16'


def gen_p2(a, G, P1=None):
    name = 'gs_acc_kernel'
    CFG = G.CFG
    SEL, ANDOR = G.SEL, G.ANDOR
    ORAND = 0xA8
    if not P1:
        G.kernel_head(a, name)
    DS = 1
    NR = DS + 1
    NA = 2
    LA, SHL, CBA, FA, CBB, KAD, KCM, PA = 0, 1, 2, 3, 4, 5, 6, 7
    WD, ID, NID = 8, 10, 12
    C = [14, 15]
    W = [16, 22, 28, 34]
    B = [w + 4 for w in W]
    EC = [w + 5 for w in W]
    FOLD = CFG['fold']
    NB = 7 if FOLD else 8
    LB = NB - 1
    FG_ = FOLD - 1
    if FOLD:
        B[FG_], EC[FG_] = W[FG_] + 2, W[FG_] + 3
    XN = [W[FG_] + 4, W[FG_] + 5]
    bmap = [(g, k) for g in range(4) for k in ((0,) if FOLD and g == FG_ else (0, 2))]
    ODD, sXo = 's[6:7]', 43
    EN = [40, 41, 42, 43]
    ES, KF0, NV, AI = 44, 45, 46, 47
    DA, DB = 48, 64
    OLD = [68, 70]
    OLD2 = [72, 74]
    X = [76, 80]
    P = 84
    RT = 88
    AOR = [[92, 93], [94, 95]]
    xm, xo, xa, xd = 96, 97, 98, 99
    xc, xl, xe, xt = RT, RT + 1, RT + 2, RT + 3
    MR = [[100, 102], [104, 106]]
    MP = [108 + 4 * n for n in range(5)]

    ph = dict(par=0, p=0)
    PP = CFG['pp']
    LF = ES

    def cur(g):
        return (EC, EN)[ph['p'] & 1][g] if PP else EC[g]

    def ring(b):
        return (b + ph['par']) & 1

    def AO(b):
        return AOR[ring(b)]

    def slot(b, h):
        g, k = bmap[b % NB]
        return g, k + h
    sW, sQ, sOB, sSP, sSlow, sBase, sTab, sMD, sN, sPH, sM0 = 32, 33, 34, 35, 36, 37, 39, 40, 41, 42, 38
    sP = [44, 45, 46, 47]
    PEND, TMP, INJ, OVF, INJ1 = 's[80:81]', 's[82:83]', 's[84:85]', 's[58:59]', 's[48:49]'
    rpos = [int(x) for x in CFG['rpos'].split()]
    dpos = [int(x) for x in CFG['dpos'].split()]
    mpos = [int(x) for x in CFG['mpos'].split()]
    L1K = CFG['l1k']
    OP = 0 if L1K else 1
    assert dpos[0] >= 1 and (dpos[1] >= 1 or L1K)
    order = list(range(-1, LB))
    gs = {b: [b + 1] for b in range(-1, LB - 2)}
    gs[LB - 2] = [LB - 1, LB]
    b1_step = LB - 1

    def blk(p):
        return 4 * (p & 3) + (p >> 2)

    def dblk(p):
        return ((blk(p + 1) - blk(p)) * 81920) & 0xffffffff

    def head1():
        a('s_cmp_ge_u32 s2, 256')
        a('s_cbranch_scc1 L2_end')
        G.tl_start(a)
        if CFG['pprio']:
            a('s_setprio 3')
        a('s_load_dwordx2 s[30:31], s[0:1], 104')
        a('s_load_dwordx2 s[28:29], s[0:1], 0')
        a('s_load_dwordx2 s[6:7], s[0:1], 40')
        a('v_lshrrev_b32 v16, 6, v0')
        a('v_and_b32 v17, 63, v0')
        a(f'v_readfirstlane_b32 s{sW}, v16')
        a(f's_bfe_u32 s{sQ}, s2, 0x20001')
        a(f's_and_b32 s{sOB}, s2, 1')
        a(f's_lshl_b32 s{sOB}, s{sOB}, 5')
        a('s_lshr_b32 s4, s2, 3')
        a(f's_add_u32 s{sOB}, s{sOB}, s4')
        a('v_and_b32 v22, 3, v0')
        a('v_mul_u32_u24 v19, 80, v16' if not CFG['cmap'] else 'v_lshlrev_b32 v19, 6, v16')
        if CFG['dq']:
            a('v_lshrrev_b32 v18, 2, v17')
            a('v_lshl_add_u32 v18, v22, 4, v18')
            a('v_add_u32 v18, v18, v19')
        else:
            a('v_lshrrev_b32 v18, 4, v17')
            a('v_and_b32 v19, 15, v17')
            a('v_lshl_add_u32 v18, v18, 8, v19')
            a('v_lshl_add_u32 v18, v16, 4, v18')
        a(f'v_mul_u32_u24 v{CBA}, {G.BLK}, v18')
        a('v_lshrrev_b32 v18, 2, v17')
        if CFG['cmap']:
            a('v_lshl_add_u32 v18, v16, 4, v18')
            a('v_add_u32 v18, 0x400, v18')
        else:
            a('v_add3_u32 v18, v18, v19, 64')
        a(f'v_mul_u32_u24 v{CBB}, {G.BLK}, v18')
        a(f'v_lshl_add_u32 v20, v22, 4, v{CBB}')
        a('v_and_b32 v18, 3, v18')
        a('v_lshl_add_u32 v20, v18, 5, v20')
        a(f'v_lshl_add_u32 v25, v22, 5, v{CBA}')
        a(f's_mul_i32 s{sTab}, s{sQ}, 2080')
        a(f's_lshl_b32 s3, s{sOB}, 5')
        a(f's_add_u32 s{sTab}, s{sTab}, s3')
        a(f's_mul_i32 s{sMD}, s{sQ}, {16 * 81920}')
        a(f's_mul_i32 s3, s{sW}, 5120')
        a(f'v_lshl_add_u32 v{FA}, v17, 4, s3')
        a(f's_lshl_b32 s{sM0}, s{sW}, 11')
        a(f's_mul_i32 s100, s{sW}, 3072')
        a('s_waitcnt lgkmcnt(0)')
        G.srd(a, 12, 30, G.TAB_OFF, G.TAB_SZ)
        for k in (0, 2, 1, 3) if not CFG['dq'] else range(4):
            if CFG['dq']:
                a(f'v_subrev_u32 v25, {(64 - 16 * k) * G.BLK:#x}, v20')
                a(f'buffer_load_dwordx4 {vr(DA + 4 * k, 4)}, v25, s[12:15], s{sTab} offen', tag='D')
            else:
                a(f'buffer_load_dwordx4 {vr(DA + 4 * k, 4)}, v25, s[12:15], s{sTab} offen offset:{16 * k}', tag='D')
        a(f'buffer_load_dwordx4 {vr(DB, 4)}, v20, s[12:15], s{sTab} offen', tag='D')
        if CFG['mside']:
            G.srd(a, 16, 30, G.MD_OFF - 81920, G.MD_SZ + 81920)
            a(f's_lshr_b32 s3, s{sW}, 3')
            a('s_lshl_b32 s3, s3, 13')
            a('s_sub_u32 s72, 65536, s3')
            a(f's_add_u32 s{sMD}, s{sMD}, s3')
            a(f's_lshl_b32 s3, s{sW}, 12')
            a(f's_sub_u32 s{sMD}, s{sMD}, s3')
            a(f's_add_u32 s{sMD}, s{sMD}, 81920')
        else:
            G.srd(a, 16, 30, G.MD_OFF, G.MD_SZ)
        G.srd(a, 24, 30, G.WT_OFF, G.WT_SZ)
        a('v_lshlrev_b32 v21, 6, v22')
        a(f'buffer_load_dwordx2 {vr(WD, 2)}, v21, s[24:27], 0 offen offset:40', tag='D')

    st = dict(inloop=False)

    def load_m(n):
        if CFG['ab_nom'] and st['inloop']:
            return
        if CFG['mside']:
            if n:
                a(f's_add_u32 s3, s{sMD}, {"s72" if n == 4 else (n >> 1) * 32768 + (n & 1) * 8192}')
            a(f'buffer_load_dwordx4 {vr(MP[n], 4)}, v{FA}, s[16:19], s{3 if n else sMD} offen{CFG["m_pol"]}', tag=('M', n))
        elif n == 4:
            a(f's_add_u32 s3, s{sMD}, 4096')
            a(f'buffer_load_dwordx4 {vr(MP[n], 4)}, v{FA}, s[16:19], s3 offen{CFG["m_pol"]}', tag=('M', n))
        else:
            a(f'buffer_load_dwordx4 {vr(MP[n], 4)}, v{FA}, s[16:19], s{sMD} offen offset:{n * 1024}{CFG["m_pol"]}', tag=('M', n))

    def load_m_raw(n, p, l16):
        a(f's_mul_i32 s3, s{sQ}, {16 * 80000}')
        a(f's_add_u32 s3, s3, s{sM0 if n < 2 else 100}')
        a(f's_add_u32 s3, s3, {blk(p) * 80000 + (0 if n < 2 else 32768)}')
        a(f'buffer_load_dwordx4 {vr(MP[n], 4)}, v{l16}, s[24:27], s3 offen offset:{1024 * (n if n < 2 else n - 2)}', tag=('M', n))

    def fill(n):
        a.wait_vm([('M', n)])
        if ('rawn', n) in st:
            a(f's_waitcnt vmcnt({a.nvm - st.pop(("rawn", n))})')
        if st.get('raw'):
            a(f'v_subrev_u32 v{RT}, s{100 if n < 2 else sM0}, v{FA}')
            a(f'ds_write_b128 v{RT}, {vr(MP[n], 4)} offset:{n * 1024 if n < 2 else 32768 + (n - 2) * 1024}', tag='F')
            return
        m0 = sM0 if n < 2 else 100
        if st.get('m0') != m0:
            a(f's_mov_b32 m0, s{m0}')
            st['m0'] = m0
        for jd in range(4):
            if CFG['ab'] & 8 and st['inloop']:
                continue
            a(f'ds_write_addtid_b32 v{MP[n] + jd} offset:{(n * 1024 if n < 2 else 32768 + (n - 2) * 1024) + 256 * jd}', tag='F')

    def next_m(p):
        a(f's_add_u32 s{sMD}, s{sMD}, {dblk(p):#x}')

    def head2():
        if CFG['pprio']:
            a('s_setprio 2')
        for n in (4, 2, 3, 0, 1):
            load_m(n)
        next_m(0)
        if CFG['pprio']:
            a('s_setprio 1')
        a(f'v_mad_u32_u24 v{CBB}, v22, 20, v{CBB}')
        a(f'v_or_b32 v{CBB}, 0xf0000000, v{CBB}')
        a(f'v_or_b32 v{CBA}, 0xf0000000, v{CBA}')
        a('v_lshlrev_b32 v23, 2, v22')
        a(f'v_sub_u32 v{SHL}, 28, v23')
        G.ident(a, ID, 18, 0)
        G.ident(a, NID, 18, 0, neg=True)
        a('v_lshlrev_b32 v24, 4, v0')
        a(f'v_lshl_add_u32 v{LA}, v17, 2, s{sM0}')
        a(f'v_mov_b32 v{KF0}, 0xf0000000')
        if PP:
            a(f'v_add_u32 v{LF}, s{sM0}, v{LA}')
            a(f'v_lshrrev_b32 v{LF}, 1, v{LF}')
            a(f'v_and_b32 v{LF}, -4, v{LF}')
        a(f'v_mov_b32 v{KAD}, 0x1fff8')
        a(f'v_mov_b32 v{KCM}, 0x07ff0000')
        for k in range(4):
            a(f's_mov_b32 s{sP[k]}, {0x04000c0c | (k << 16):#x}')
        a(f's_mov_b32 s{sSlow}, 0')
        a(f's_mov_b32 s{sXo}, 0')
        a(f's_mov_b32 s{sPH}, 0')
        a(f's_mov_b64 {PEND}, 0')
        a(f's_mov_b64 {INJ}, 0')
        a(f's_mov_b64 {INJ1}, 0')
        if CFG['fuse']:
            a('s_load_dwordx4 s[96:99], s[6:7], 0')
            a('s_load_dwordx2 s[4:5], s[0:1], 24')
            a('s_waitcnt lgkmcnt(0)')
        G.srd(a, 8, 30, G.REC_OFF, G.REC_SZ)

    if not P1:
        head1()
        head2()
    ool = []
    uid = [0]

    XAND = 0x6A
    sOv = 101

    def x_pre(j):
        uid[0] += 1
        u = uid[0]
        rs, re_ = DA + 2 * j, DA + 8 + 2 * j
        a.wait_vm('D')
        a(f'v_sub_u16 v{xc}, v{re_}, v{rs}')
        a(f'v_and_b32 v{xl}, 3, v{rs}')
        a(f'v_add3_u32 v{xd}, v{xc}, v{xl}, 3')
        a(f'v_and_b32 v{xd}, -4, v{xd}')
        a(f'v_max_u32 v{xd}, 4, v{xd}')
        fill = [f'v_and_b32 v{xo}, 0xfffc, v{rs}',
                f'v_bfm_b32 v{xm}, v{xc}, v{xl}',
                f'v_mad_u32_u24 v{xo}, v{xo}, 5, v{CBA}',
                f'v_cmp_lt_u32 vcc, 16, v{xd}',
                f'v_sub_u32 v{xa}, s{sM0}, v{xd}',
                f'v_lshrrev_b64 {vr(rs, 2)}, 16, {vr(rs, 2)}',
                f'v_lshrrev_b64 {vr(re_, 2)}, 16, {vr(re_, 2)}',
                f's_mov_b32 s{sOv}, 0']
        a(fill.pop(0))
        a(fill.pop(0))
        a(f'v_add_u32_dpp v{xt}, v{xd}, v{xd} row_shr:1 row_mask:0xf bank_mask:0xf bound_ctrl:1')
        for m in ('row_shr:2 row_mask:0xf bank_mask:0xf bound_ctrl:1', 'row_shr:4 row_mask:0xf bank_mask:0xf bound_ctrl:1',
                  'row_shr:8 row_mask:0xf bank_mask:0xf bound_ctrl:1', 'row_bcast:15 row_mask:0xa bank_mask:0xf',
                  'row_bcast:31 row_mask:0xc bank_mask:0xf'):
            for _ in range(2):
                if fill:
                    a(fill.pop(0))
            a(f'v_add_u32_dpp v{xt}, v{xt}, v{xt} {m}')
        a(f'v_add_u32 v{xa}, v{xa}, v{xt}')
        a(f'v_readlane_b32 s{sBase}, v{xt}, 63')
        a(f's_cbranch_vccnz L2_xo{u}')
        a.label(f'L2_xp{u}')
        ool.append([f'L2_xo{u}:',
                    f'v_cmp_lt_u32 vcc, 20, v{xd}',
                    f's_mov_b32 s{sOv}, 1',
                    f's_cbranch_vccz L2_xp{u}',
                    f'v_cmp_lt_u32 vcc, 32, v{xd}',
                    f'v_cmp_lt_u32 {OVF}, 31, v{xc}',
                    f's_mov_b32 s{sOv}, 2',
                    f's_or_b64 vcc, vcc, {OVF}',
                    f's_cbranch_scc0 L2_xp{u}',
                    f's_mov_b32 s{sBase}, 0x10000',
                    f's_branch L2_xp{u}'])

    def x_ent(f, t):
        f(f'v_lshlrev_b32 v{xl}, {28 - 4 * t}, v{xm}')
        if t:
            f(f'v_add_u32 v{xe}, {20 * t}, v{xo}')
        f(f'v_bitop3_b32 v{xe}, v{xl}, v{KF0}, v{xe if t else xo} bitop3:{XAND:#x}')
        f(f'ds_write_b32 v{xa}, v{xe} offset:{4 * t}')

    def x_quad(f, u):
        f(f'v_and_b32 v{xl}, v{KF0}, v{xl}')
        f(f'v_cmp_ne_u32 vcc, 0, v{xl}')
        f(f'v_xor_b32 v{xe}, v{xo}, v{xl}')
        f(f's_add_u32 s3, s{sBase}, s{sM0}')
        f(f'v_mbcnt_lo_u32_b32 v{xa}, vcc_lo, 0')
        f(f'v_mbcnt_hi_u32_b32 v{xa}, vcc_hi, v{xa}')
        f(f's_bcnt1_i32_b64 s{sN}, vcc')
        f(f'v_lshl_add_u32 v{xa}, v{xa}, 2, s3')
        f(f's_lshl2_add_u32 s{sBase}, s{sN}, s{sBase}')
        if L1K:
            f(f's_cmp_gt_u32 s{sBase}, 1020')
            f(f's_cbranch_scc1 L2_xs{u}')
        f('s_mov_b64 exec, vcc')
        f(f'ds_write_b32 v{xa}, v{xe}')
        f('s_mov_b64 exec, -1')

    def x_list(j, E, pbit, split=False):
        uid[0] += 1
        u = uid[0]
        if PP:
            E = (EC, EN)[j & 1]
        else:
            a(f'v_mov_b32 v{ES}, v{E[3]}')
        a(f's_cmp_gt_u32 s{sBase}, {992 if L1K else 1024}')
        a(f's_cbranch_scc1 L2_xs{u}')
        a(f's_cmp_lg_u32 s{sOv}, 0')
        a(f's_cbranch_scc1 L2_xa{u}')
        a.label(f'L2_xb{u}')
        bl = [f'L2_xa{u}:', f's_cmp_eq_u32 s{sOv}, 1', f's_cbranch_scc1 L2_xc{u}']
        x_ent(bl.append, 7)
        x_ent(bl.append, 6)
        x_ent(bl.append, 5)
        bl.append(f'L2_xc{u}:')
        x_ent(bl.append, 4)
        bl.append(f's_branch L2_xb{u}')
        ool.append(bl)
        for t in (3, 2, 1, 0):
            x_ent(a, t)
        r = DB + 2 * (j & 1)
        ls, le = j >> 1, 2 + (j >> 1)
        a(f'v_mov_b32_dpp v{xt}, v{r} quad_perm:[{ls},{ls},{ls},{ls}] row_mask:0xf bank_mask:0xf')
        a(f'v_and_b32 v{xl}, 3, v{xt}')
        a(f'v_and_b32 v{xo}, 0xfffc, v{xt}')
        a(f'v_sub_u16_dpp v{xc}, v{r}, v{xt} quad_perm:[{le},{le},{le},{le}] row_mask:0xf bank_mask:0xf')
        a(f'v_mad_u32_u24 v{xo}, v{xo}, 5, v{CBB}')
        a(f'v_add_u32 v{xd}, v{xc}, v{xl}')
        a(f'v_bfm_b32 v{xm}, v{xc}, v{xl}')
        a(f'v_cmp_lt_u32 {OVF}, 16, v{xd}')
        a(f'v_lshlrev_b32 v{xl}, v{SHL}, v{xm}')
        x_quad(a, u)
        a(f's_cmp_lg_u64 {OVF}, 0')
        a(f's_cbranch_scc1 L2_xe{u}')
        a.label(f'L2_xr{u}')
        bl = [f'L2_xe{u}:',
              f'v_cmp_lt_u32 vcc, 32, v{xd}',
              f'v_cmp_lt_u32 {OVF}, 31, v{xc}',
              f'v_lshrrev_b32 v{xl}, 16, v{xm}',
              f'v_add_u32 v{xo}, 80, v{xo}',
              f's_or_b64 vcc, vcc, {OVF}',
              f's_cbranch_scc1 L2_xs{u}',
              f'v_lshlrev_b32 v{xl}, v{SHL}, v{xl}']
        x_quad(bl.append, u)
        bl.append(f's_branch L2_xr{u}')
        ool.append(bl)
        a(f'v_add_u32 v{xa}, s{sBase}, v{LA}')
        a(f'v_mov_b32 v{xe}, -1')
        if CFG['mpf'] and st['inloop']:
            a(f's_add_u32 s3, s{sMD}, s74')
            a(f's_add_u32 s3, s3, {(dblk(j) + dblk(j + 1)) & 0xffffffff:#x}')
            a('s_mov_b64 exec, s[72:73]')
            a(f'v_lshl_add_u32 v{xe}, v{LA}, 5, s3')
            a('s_mov_b64 exec, -1')
        if L1K:
            a(f's_max_u32 s3, s{sBase}, 768')
            a('s_lshr_b32 s3, s3, 2')
            a('s_lshr_b64 exec, -1, s3')
        a(f'ds_write_b32 v{xa}, v{xe}')
        if L1K:
            a('s_mov_b64 exec, -1')
        a.label(f'L2_xw{u}')
        ool.append([f'L2_xs{u}:', 's_waitcnt lgkmcnt(0)', f's_mov_b32 s{sBase}, 0x10000', f's_branch L2_xw{u}'])

        def back(E=E):
            go = [int(x) for x in CFG['gord'].split()]
            if FOLD:
                go = [0, 1, 2]
                go.insert(FG_, 3)
                if PP:
                    for g in range(4):
                        a(f'ds_read_b32 v{E[g]}, v{LF if g == FG_ else LA} offset:{256 * go[g]}', tag='L')
                else:
                    a(f'v_add_u32 v{xa}, s{sM0}, v{LA}')
                    pr = 0 if FG_ >= 2 else 2
                    a(f'ds_read2st64_b32 {vr(E[pr], 2)}, v{LA} offset0:{go[pr]} offset1:{go[pr + 1]}', tag='L')
                    a(f'ds_read_b32 v{E[FG_ ^ 1]}, v{LA} offset:{256 * go[FG_ ^ 1]}', tag='L')
                    a(f'v_lshrrev_b32 v{xa}, 1, v{xa}')
                    a(f'v_and_b32 v{xa}, -4, v{xa}')
                    a(f'ds_read_b32 v{E[FG_]}, v{xa} offset:768', tag='L')
            else:
                a(f'ds_read2st64_b32 {vr(E[0], 2)}, v{LA} offset0:{go[0]} offset1:{go[1]}', tag='L')
                a(f'ds_read2st64_b32 {vr(E[2], 2)}, v{LA} offset0:{go[2]} offset1:{go[3]}', tag='L')
            E = [E[go.index(g)] for g in range(4)]
            a(f's_sub_u32 s3, s{sBase}, 768')
            a(f's_cmp_gt_u32 s3, {128 if FOLD else 256}')
            a(f's_cbranch_scc1 L2_xf{u}')
            a.label(f'L2_xg{u}')
            bl = [f'L2_xf{u}:',
                  f's_cmp_gt_u32 s{sBase}, 1024',
                  f's_cbranch_scc1 L2_xt{u}']
            if FOLD:
                bl += [f's_cmp_lt_u32 s{sBase}, 768',
                       f's_cbranch_scc1 L2_xl{u}',
                       f'ds_read_b32 v{XN[j & 1]}, v{LF if PP else xa} offset:896',
                       f's_add_u32 s3, s{sPH}, {pbit}',
                       f's_bitset1_b32 s{sXo}, s3',
                       f's_branch L2_xg{u}',
                       f'L2_xl{u}:']
            bl += ['s_waitcnt lgkmcnt(0)',
                   f'v_mov_b32 v{E[3]}, -1',
                  f's_cmp_ge_u32 s{sBase}, 512',
                  f's_cbranch_scc1 L2_xg{u}',
                  f'v_mov_b32 v{E[2]}, -1',
                  f's_cmp_ge_u32 s{sBase}, 256',
                  f's_cbranch_scc1 L2_xg{u}',
                  f'v_mov_b32 v{E[1]}, -1',
                  f's_branch L2_xg{u}',
                  f'L2_xt{u}:',
                  's_waitcnt lgkmcnt(0)']
            bl += [f'v_mov_b32 v{E[g]}, -1' for g in range(4)]
            bl += [f's_add_u32 s3, s{sPH}, {pbit}',
                   f's_bitset1_b32 s{sSlow}, s3',
                   f's_branch L2_xg{u}']
            ool.append(bl)
            if j == 3:
                for h in range(2):
                    a(f'v_lshrrev_b64 {vr(DB + 2 * h, 2)}, 16, {vr(DB + 2 * h, 2)}')

        if split:
            return back
        back()

    def load_rec(g, AI=AI):
        AI = st.get('ai') or AI
        if PP:
            e = (EC, EN)[(ph['p'] + 1) & 1][g]
            a(f'v_and_b32 v{AI}, 0x0fffffff, v{e}')
            issue_rec(g, AI, e)
            return
        E = EN[:3] + [ES]
        a(f'v_and_b32 v{AI}, 0x0fffffff, v{E[g]}')
        if CFG['ab_norec'] and st['inloop']:
            a(f'v_mov_b32 v{AI}, v{E[g]}')
            return
        a(f'v_mov_b32 v{EC[g]}, v{E[g]}')
        issue_rec(g, AI)

    def issue_fold(f, w, bb, e, AI):
        f(f'buffer_load_dword v{bb}, v{AI}, s[8:11], 0 offen offset:16')
        f(f's_mov_b64 exec, {ODD}')
        f(f'v_add_u32 v{AI}, 8, v{AI}')
        f(f'v_lshrrev_b32 v{e}, 2, v{e}')
        f('s_mov_b64 exec, -1')
        f(f'buffer_load_dwordx2 {vr(w, 2)}, v{AI}, s[8:11], 0 offen')

    def ovf_load(xn, d):
        uid[0] += 1
        u = uid[0]
        a(f's_bitcmp1_b32 s{sXo}, s{sPH}')
        a(f's_cbranch_scc1 L2_oa{u}')
        a.label(f'L2_ob{u}')
        bl = [f'L2_oa{u}:', f'v_and_b32 v{AI}, 0x0fffffff, v{xn}']
        issue_fold(bl.append, d, d + 2, xn, AI)
        ool.append(bl + [f's_branch L2_ob{u}'])
        st['ovn'] = a.nvm

    def ovf_run(xn, d):
        uid[0] += 1
        u = uid[0]
        a(f's_bitcmp1_b32 s{sXo}, s{sPH}')
        a(f's_cbranch_scc1 L2_oa{u}')
        a.label(f'L2_ob{u}')
        bl = [f'L2_oa{u}:', f's_waitcnt vmcnt({a.nvm - st["ovn"]})',
              f's_mov_b64 exec, {ODD}', f'v_lshrrev_b32 v{d + 2}, 16, v{d + 2}', 's_mov_b64 exec, -1']
        for h in range(2):
            w = d + h
            bl += [f'v_and_b32 v{NV}, {1 << (28 + h):#x}, v{xn}',
                   f'v_cmpx_eq_u32 vcc, 0, v{NV}',
                   f'v_lshrrev_b32 v{AI}, 14, v{w}',
                   f'v_and_b32 v{AI}, v{KAD}, v{AI}',
                   f'ds_read_b64 {vr(xm, 2)}, v{AI}',
                   f'v_perm_b32 v{xa}, v{w}, v{d + 2}, s{sP[h]}',
                   f'v_bitop3_b32 v{xd}, v{w}, 0.5, -0.5 bitop3:{ORAND:#x}',
                   f'v_bitop3_b32 v{xa}, v{KCM}, v{xa}, v{xd} bitop3:{SEL:#x}',
                   f'v_and_b32 v{AI}, v{KAD}, v{w}',
                   's_waitcnt lgkmcnt(0)',
                   f'{MF} {vr(RT, 4)}, {vr(WD, 2)}, {vr(xm, 2)}, 0']
            bl += [f'v_mul_f32 v{RT + n}, v{xa}, v{RT + n}' for n in range(4)]
            bl += [f'v_cvt_pk_bf16_f32 v{RT}, v{RT}, v{RT + 1}',
                   f'v_cvt_pk_bf16_f32 v{RT + 1}, v{RT + 2}, v{RT + 3}',
                   f'ds_pk_add_bf16 v{AI}, v{RT} offset:{G.A_OFFS}',
                   f'ds_pk_add_bf16 v{AI}, v{RT + 1} offset:{G.A_OFFS + 4}',
                   's_mov_b64 exec, -1']
        ool.append(bl + [f's_branch L2_ob{u}'])

    def issue_rec(g, AI=AI, e=None):
        if FOLD and g == FG_:
            issue_fold(lambda t: a(t, tag=('R', g)), W[g], B[g], e or EC[g], AI)
            return
        if CFG['ab'] & 256 and st['inloop']:
            a(f'buffer_load_dwordx4 {vr(W[g], 4)}, v{AI}, s[8:11], 0 offen', tag=('R', g))
            return
        if CFG['x3'] == 4:
            a(f'buffer_load_dwordx3 {vr(W[g] + 2, 3)}, v{AI}, s[8:11], 0 offen offset:8', tag=('R', g))
            a(f'buffer_load_dwordx2 {vr(W[g], 2)}, v{AI}, s[8:11], 0 offen', tag=('R', g))
            return
        if CFG['x3'] == 2:
            a(f'buffer_load_dwordx2 {vr(W[g], 2)}, v{AI}, s[8:11], 0 offen', tag=('R', g))
        elif CFG['x3'] == 3:
            a(f'buffer_load_dwordx3 {vr(W[g], 3)}, v{AI}, s[8:11], 0 offen', tag=('R', g))
        else:
            a(f'buffer_load_dwordx4 {vr(W[g], 4)}, v{AI}, s[8:11], 0 offen', tag=('R', g))
        if CFG['x3']:
            a(f'buffer_load_dwordx3 {vr(W[g] + 2, 3)}, v{AI}, s[8:11], 0 offen offset:8', tag=('R', g))
        else:
            a(f'buffer_load_dword v{B[g]}, v{AI}, s[8:11], 0 offen offset:16', tag=('R', g))

    ao_done = set()

    def gather(x, b, NV=NV, AI=AI, noao=False, NV0=None):
        NV1 = NV
        g = slot(x, 0)[0]
        a.wait_vm([('R', g)])
        if FOLD and g == FG_:
            a(f's_mov_b64 exec, {ODD}')
            a(f'v_lshrrev_b32 v{B[g]}, 16, v{B[g]}')
            a('s_mov_b64 exec, -1')
        now = x - b < NA and not noao
        for h in (1, 0):
            k = slot(x, h)[1]
            w = W[g] + k
            NV = NV1 if h or NV0 is None else NV0
            a(f'v_and_b32 v{NV}, {1 << (28 + k):#x}, v{cur(g)}')
            a(f'v_lshrrev_b32 v{AI}, 14, v{w}')
            a(f'v_bitop3_b32 v{AI}, v{AI}, v{KAD}, v{NV} bitop3:{ANDOR:#x}')
            a(f'ds_read_b64 {vr(MR[ring(x)][h], 2)}, v{AI}', tag=('m', x))
            if now:
                a(f'v_bitop3_b32 v{AO(x)[h]}, v{w}, v{KAD}, v{NV} bitop3:{ANDOR:#x}')
        if now:
            ao_done.add(x)

    def dec_ao(b):
        if b in ao_done:
            ao_done.discard(b)
            return
        for h in range(2):
            g, k = slot(b, h)
            a(f'v_and_b32 v{NV}, {1 << (28 + k):#x}, v{cur(g)}')
            a(f'v_bitop3_b32 v{AO(b)[h]}, v{W[g] + k}, v{KAD}, v{NV} bitop3:{ANDOR:#x}')

    def dec_c1(b):
        for h in (1, 0):
            g, k = slot(b, h)
            w = W[g] + k
            a(f'v_perm_b32 v{C[h]}, v{w}, v{B[g]}, s{sP[k]}')
            a(f'v_bitop3_b32 v{(AI, NV)[h]}, v{w}, 0.5, -0.5 bitop3:{ORAND:#x}')

    def dec_c2(b):
        for h in (1, 0):
            a(f'v_bitop3_b32 v{C[h]}, v{KCM}, v{C[h]}, v{(AI, NV)[h]} bitop3:{SEL:#x}')

    def flush_pend(mask):
        return [f's_mov_b64 exec, {mask}',
                's_nop 1',
                f'{MF} {vr(RT, 4)}, {vr(NID, 2)}, {vr(P, 2)}, 0',
                's_nop 1',
                f'{MF} {vr(RT, 4)}, {vr(ID, 2)}, {vr(P + 2, 2)}, {vr(RT, 4)}',
                's_nop 4',
                f'v_cvt_pk_bf16_f32 v{RT}, v{RT}, v{RT + 1}',
                f'v_cvt_pk_bf16_f32 v{RT + 1}, v{RT + 2}, v{RT + 3}',
                f'ds_pk_add_bf16 v{PA}, v{RT} offset:{G.A_OFFS}',
                f'ds_pk_add_bf16 v{PA}, v{RT + 1} offset:{G.A_OFFS + 4}']

    def check(b, h):
        if CFG['ab_nofix'] == 1:
            return
        uid[0] += 1
        u = uid[0]
        a(f'v_cmpx_ne_u64 vcc, {vr(OLD2[h], 2)}, {vr(OLD[h], 2)}')
        if CFG['cnt']:
            a('s_bcnt1_i32_b64 s72, vcc')
            a('s_add_u32 s63, s63, s72')
        skip = CFG['zskip'] == 1 or (CFG['zskip'] == 2 and (b & 7) >= 6)
        if skip:
            a(f's_cbranch_execz L2_z{u}')
        a(f's_and_b64 {TMP}, vcc, {PEND}')
        a(f's_cbranch_scc1 L2_c{u}')
        a.label(f'L2_d{u}')
        if CFG['mov64']:
            a(f'v_mov_b64 {vr(P, 2)}, {vr(OLD[h], 2)}')
            a(f'v_mov_b32 v{PA}, v{AO(b)[h]}')
            a(f'v_mov_b64 {vr(P + 2, 2)}, {vr(OLD2[h], 2)}')
        else:
            for n in range(2):
                a(f'v_mov_b32 v{P + n}, v{OLD[h] + n}')
                a(f'v_mov_b32 v{P + 2 + n}, v{OLD2[h] + n}')
            a(f'v_mov_b32 v{PA}, v{AO(b)[h]}')
        if skip:
            a(f's_or_b64 {PEND}, {PEND}, vcc')
            a.label(f'L2_z{u}')
            a('s_mov_b64 exec, -1')
            if h == 0 and inj_on((b + 1) & 7, 0):
                a('s_nop 0')
        else:
            a('s_mov_b64 exec, -1')
            a(f's_or_b64 {PEND}, {PEND}, vcc')
        cnt = [f's_bcnt1_i32_b64 s72, {TMP}', 's_add_u32 s67, s67, s72', 's_add_u32 s67, s67, 0x10000'] if CFG['cnt'] else []
        if not CFG['nbr']:
            ool.append([f'L2_c{u}:'] + cnt + flush_pend(TMP) + ['s_mov_b64 exec, vcc', f's_branch L2_d{u}'])
            return
        CF, TG = 's[50:51]', 's[52:53]'
        bl = [f'L2_c{u}:',
              f's_mov_b64 {CF}, vcc',
              f's_lshl_b64 {TG}, {TMP}, 1',
              f's_andn2_b64 {TG}, {TG}, {PEND}',
              f's_andn2_b64 {TG}, {TG}, {CF}',
              f's_or_b64 {PEND}, {PEND}, {TG}',
              f's_not_b64 vcc, {TG}',
              's_mov_b64 exec, -1']
        for n, r in enumerate((P, P + 1, P + 2, P + 3, PA)):
            bl.append(f'v_cndmask_b32_dpp v{r}, v{r}, v{r}, vcc wave_shr:1 row_mask:0xf bank_mask:0xf')
            if n == 1:
                bl.append(f's_lshr_b64 {TG}, {TG}, 1')
            if n == 3:
                bl.append(f's_andn2_b64 {TMP}, {TMP}, {TG}')
        bl += [f's_mov_b64 vcc, {CF}',
               f's_mov_b64 exec, {CF}',
               f's_cbranch_scc0 L2_d{u}'] + cnt + flush_pend(TMP) + ['s_mov_b64 exec, vcc', f's_branch L2_d{u}']
        ool.append(bl)

    def check2(b, between=None):
        if CFG['ab_nofix'] == 1:
            return
        CM, TG = ['s[50:51]', 's[54:55]'], 's[52:53]'
        a(f'v_cmp_ne_u64 {CM[0]}, {vr(OLD2[0], 2)}, {vr(OLD[0], 2)}')
        a(f'v_cmpx_ne_u64 {CM[1]}, {vr(OLD2[1], 2)}, {vr(OLD[1], 2)}')
        for h in (1, 0):
            uid[0] += 1
            u = uid[0]
            if h == 0:
                if between:
                    a('s_mov_b64 exec, -1')
                    between()
                a(f's_mov_b64 exec, {CM[0]}')
            if CFG['ab_nofix'] != 2:
                a(f's_and_b64 {TMP}, {CM[h]}, {PEND}')
                a(f's_cbranch_scc1 L2_c{u}')
            a.label(f'L2_d{u}')
            a(f'v_mov_b64 {vr(P, 2)}, {vr(OLD[h], 2)}')
            a(f'v_mov_b32 v{PA}, v{AO(b)[h]}')
            a(f'v_mov_b64 {vr(P + 2, 2)}, {vr(OLD2[h], 2)}')
            if h == 0:
                a('s_mov_b64 exec, -1')
            a(f's_or_b64 {PEND}, {PEND}, {CM[h]}')
            bl = [f'L2_c{u}:',
                  f's_lshl_b64 {TG}, {TMP}, 1',
                  f's_andn2_b64 {TG}, {TG}, {PEND}',
                  f's_andn2_b64 {TG}, {TG}, {CM[h]}',
                  f's_or_b64 {PEND}, {PEND}, {TG}',
                  f's_not_b64 vcc, {TG}',
                  's_mov_b64 exec, -1']
            for n, r in enumerate((P, P + 1, P + 2, P + 3, PA)):
                bl.append(f'v_cndmask_b32_dpp v{r}, v{r}, v{r}, vcc wave_shr:1 row_mask:0xf bank_mask:0xf')
                if n == 1:
                    bl.append(f's_lshr_b64 {TG}, {TG}, 1')
                if n == 3:
                    bl.append(f's_andn2_b64 {TMP}, {TMP}, {TG}')
            bl += [f's_mov_b64 exec, {CM[h]}',
                   f's_cbranch_scc0 L2_d{u}'] + flush_pend(TMP) + [f's_mov_b64 exec, {CM[h]}', f's_branch L2_d{u}']
            ool.append(bl)

    def inj_on(b, h):
        if CFG['ab_nofix'] == 1:
            return False
        if st.get('last') and b >= CFG['injl']:
            return True
        if CFG['injm']:
            return CFG['injm'][2 * (b % NB) + h] == '1'
        return (2 * (b % NB) + h) % CFG['injs'] == 0

    def inject(b, h):
        m = INJ1 if h else INJ
        a(f's_and_b64 exec, {m}, {PEND}')
        a(f'{MF} {vr(X[h], 4)}, {vr(NID, 2)}, {vr(P, 2)}, 0')
        a(f'v_mov_b32 v{AO(b)[h]}, v{PA}')
        a(f's_andn2_b64 {PEND}, {PEND}, {m}')
        a(f'{MF} {vr(X[h], 4)}, {vr(ID, 2)}, {vr(P + 2, 2)}, {vr(X[h], 4)}')
        a('s_mov_b64 exec, -1')

    def step_a(b):
        a.wait_lg(('m', b))
        for h in (1, 0):
            a(f'{MF} {vr(X[h], 4)}, {vr(WD, 2)}, {vr(MR[ring(b)][h], 2)}, 0')
        if not CFG['cpos']:
            dec_c2(b)
        if CFG['gearly'] == 4:
            for x in reversed(gs.get(b, [])):
                gather(x, b, noao=True, NV0=xd)
        for h in (1, 0):
            if inj_on(b, h):
                a(f'v_cmp_lt_u32 {INJ1 if h else INJ}, v{KAD}, v{AO(b)[h]}')
        for h in (1, 0):
            if CFG['pkmul']:
                for n in (0, 2):
                    a(f'v_pk_mul_f32 {vr(X[h] + n, 2)}, {vr(X[h] + n, 2)}, {vr(C[0], 2)} op_sel:[0,{h}] op_sel_hi:[1,{h}]')
            else:
                for n in range(4):
                    a(f'v_mul_f32 v{X[h] + n}, v{C[h]}, v{X[h] + n}')

    SB = CFG['sbar']
    sT0, sT1 = 56, 57

    def sb_arrive(c):
        a('s_mov_b64 exec, 1')
        a(f'ds_inc_u32 v{KAD}, v{KF0} offset:{161920 - 0x1fff8 + 8 * c}')
        a('s_mov_b64 exec, -1')

    def sb_look(c):
        a(f'ds_read_b32 v{RT}, v{KAD} offset:{161920 - 0x1fff8 + 8 * c}', tag='sb')

    def sb_wait(c):
        uid[0] += 1
        u = uid[0]
        a(f's_lshl_b32 s3, s{sPH}, 4')
        if c:
            a('s_add_u32 s3, s3, 16')
        a.wait_lg('sb')
        a.label(f'L2_w{u}')
        a(f'v_cmp_gt_u32 vcc, s3, v{RT}')
        a(f's_cbranch_vccnz L2_v{u}')
        ool.append([f'L2_v{u}:', f'ds_read_b32 v{RT}, v{KAD} offset:{161920 - 0x1fff8 + 8 * c}', 's_waitcnt lgkmcnt(0)', f's_branch L2_w{u}'])

    def step_b(b, final=False, mid=None, nogather=False):
        GE = CFG['gearly'] and not final and not nogather
        keep = GE and CFG['gearly'] >= 3 and gs.get(b)
        if GE and not (CFG['gearly'] == 4 and b >= 0):
            for x in reversed(gs.get(b, [])) if keep else gs.get(b, []):
                gather(x, b, noao=True, NV0=xd if keep else NV)
        a.wait_lg('x')

        def rd(h):
            if CFG['injearly'] == 2 and h == 1:
                for k in (1, 0):
                    if inj_on(b, k):
                        inject(b, k)
            if not CFG['injearly'] and inj_on(b, h):
                inject(b, h)
            a(f'ds_read_b64 {vr(OLD[h], 2)}, v{AO(b)[h]} offset:{G.A_OFFS}', tag=('o', h))
        if CFG['chk'] == 1:
            check2(b - 1)
        elif CFG['chk'] == 2:
            check2(b - 1, lambda: rd(1))
        else:
            for h in (1, 0):
                check(b - 1, h)
                if CFG['injearly'] and inj_on(b, h):
                    inject(b, h)
                if CFG['chk'] == 3 and h == 1:
                    rd(1)
        if CFG['chk'] < 2:
            rd(1)
        rd(0)
        if not final:
            if nogather:
                a.wait_vm([('R', 0)])
            elif not GE:
                for x in gs.get(b, []):
                    gather(x, b)
            elif keep:
                for h in range(2):
                    g, k = slot(b + 1, h)
                    a(f'v_bitop3_b32 v{AO(b + 1)[h]}, v{W[g] + k}, v{KAD}, v{(xd, NV)[h]} bitop3:{ANDOR:#x}')
                ao_done.add(b + 1)
            elif CFG['gearly'] >= 2:
                dec_ao(b + 1)
                ao_done.add(b + 1)
            if CFG['cpos'] == 1:
                dec_c1(b + 1)
                dec_c2(b + 1)
            elif CFG['cpos'] == 2:
                dec_c1(b + 1)
            mid()
        if CFG['wprio']:
            a('s_setprio 3')
        if not CFG['osep']:
            a.wait_lg(('o', 0), ('o', 1))
        for h in (1, 0):
            a.wait_lg(('o', h))
            a(f'{MF} {vr(X[h], 4)}, {vr(ID, 2)}, {vr(OLD[h], 2)}, {vr(X[h], 4)}')
        if not final:
            dec_ao(b + 1)
            if not CFG['cpos']:
                dec_c1(b + 1)
            elif CFG['cpos'] == 2:
                dec_c2(b + 1)
        for h in (1, 0):
            a(f'v_cvt_pk_bf16_f32 v{X[h]}, v{X[h]}, v{X[h] + 1}')
            a(f'v_cvt_pk_bf16_f32 v{X[h] + 1}, v{X[h] + 2}, v{X[h] + 3}')
            a(f'ds_wrxchg_rtn_b64 {vr(OLD2[h], 2)}, v{AO(b)[h]}, {vr(X[h], 2)} offset:{G.A_OFFS}', tag='x')

    def stamp(i):
        if not CFG['stamp']:
            return
        a('s_memtime s[70:71]')
        a('s_waitcnt lgkmcnt(0)')
        a('s_sub_u32 s72, s70, s73')
        a('s_mov_b32 s73, s70')
        a(f's_add_u32 s{60 + i}, s{60 + i}, s72')

    ipos = [int(x) for x in CFG['ipos'].split()]
    fpos = [int(x) for x in CFG['fpos'].split()]
    fmpos = [int(x) for x in CFG['fmpos'].split()]

    ipos2 = [int(x) for x in CFG['ipos2'].split()]
    fpos2 = [int(x) for x in CFG['fpos2'].split()]

    def load_own(g):
        if g == 0:
            a('s_mov_b32 s6, 0xaaaaaaaa')
            a('s_mov_b32 s7, 0xaaaaaaaa')
        ai = st.get('ai') or AI
        a(f'v_and_b32 v{ai}, 0x0fffffff, v{EC[g]}')
        issue_rec(g, ai)
    def poll(level, lab):
        if level == 2:
            a(f's_mov_b32 exec_lo, s56')
            a('s_mov_b32 exec_hi, 0')
        else:
            a('s_mov_b64 exec, 0xffff')
        a.label(lab)
        a(f'buffer_load_dword v{RT}, v{PA}, s[60:63], 0 offen sc1')
        a('s_waitcnt vmcnt(0)')
        a(f'v_cmpx_gt_u32 vcc, {level}, v{RT}')
        if CFG['slp%d' % level]:
            a(f's_cbranch_vccnz {lab}s')
            ool.append([f'{lab}s:', f's_sleep {CFG["slp%d" % level]}', f's_branch {lab}'])
        else:
            a(f's_cbranch_vccnz {lab}')
        a('s_mov_b64 exec, -1')

    def signal(level, tmp, adr):
        uid[0] += 1
        a(f's_cmp_lg_u32 s{sW}, 0')
        a(f's_cbranch_scc1 L2_sg{uid[0]}')
        vm, nvm = list(a.vm), a.nvm
        a('s_mov_b32 exec_hi, 0')
        a(f'v_mov_b32 v{tmp}, {level}')
        a(f'buffer_store_dword v{tmp}, v{adr}, s[60:63], s57 offen sc1')
        a('s_mov_b64 exec, -1')
        a.vm, a.nvm = vm, nvm
        a.label(f'L2_sg{uid[0]}')

    if P1:
        T16, sE = 0, 56
        a(f'v_lshlrev_b32 v3, 3, v{T16}')
        a('v_and_b32 v3, 0x80, v3')
        a(f's_cmp_lg_u32 s{sW}, {99 if CFG["ab"] & 16 else 15}')
        a('s_cbranch_scc1 L2_k0')
        vm, nvm = list(a.vm), a.nvm
        a('s_mov_b64 exec, 3')
        a('buffer_load_dword v3, v3, s[68:71], 0 offen sc1')
        a('s_mov_b64 exec, -1')
        a.vm, a.nvm = vm, nvm
        a.label('L2_k0')
        yield
        a('v_and_b32_dpp v3, v3, v3 quad_perm:[1,0,3,2] row_mask:0xf bank_mask:0xf')
        yield
        a(f'v_readlane_b32 s{sE}, v10, 15')
        a(f's_xor_b32 s{sE}, s{sE}, 0x80')
        yield
        a('s_load_dwordx2 s[28:29], s[0:1], 0')
        a('s_load_dwordx2 s[50:51], s[0:1], 40')
        a('s_load_dwordx2 s[52:53], s[0:1], 24')
        yield
        a('s_load_dwordx4 s[96:99], s[50:51], 0')
        a('s_mov_b64 s[4:5], s[52:53]')
        a(f's_bfe_u32 s{sQ}, s2, 0x20001')
        a(f's_and_b32 s{sOB}, s2, 1')
        a(f's_lshl_b32 s{sOB}, s{sOB}, 5')
        a('s_lshr_b32 s3, s2, 3')
        a(f's_add_u32 s{sOB}, s{sOB}, s3')
        a(f's_mul_i32 s{sTab}, s{sQ}, 2080')
        a(f's_lshl_b32 s3, s{sOB}, 5')
        a(f's_add_u32 s{sTab}, s{sTab}, s3')
        a(f's_mul_i32 s{sMD}, s{sQ}, {16 * 81920}')
        next_m(0)
        a(f's_lshl_b32 s{sM0}, s{sW}, 11')
        a(f's_mul_i32 s100, s{sW}, 3072')
        G.srd(a, 8, 30, G.REC_OFF, G.REC_SZ)
        G.srd(a, 12, 30, G.TAB_OFF, G.TAB_SZ)
        G.srd(a, 16, 64, 0, 32)
        G.srd(a, 24, 28, 0, G.E * 8)
        yield
        a(f'v_and_b32 v13, 0x3f0, v{T16}')
        a('v_and_b32 v14, 0x300, v13')
        a('v_bfe_u32 v15, v13, 4, 4')
        a(f's_lshl_b32 s3, s{sW}, 4')
        a('v_add3_u32 v14, v14, v15, s3')
        a(f'v_mul_u32_u24 v{CBA}, {G.BLK}, v14')
        a('v_lshrrev_b32 v14, 6, v13')
        a('s_add_u32 s3, s3, 0x400')
        a('v_add_u32 v14, s3, v14')
        a(f'v_mul_u32_u24 v{CBB}, {G.BLK}, v14')
        a('v_and_b32 v14, 3, v14')
        a('v_and_b32 v15, 0x30, v13')
        a('v_lshl_add_u32 v14, v14, 5, v15')
        a(f'v_add_u32 v6, v14, v{CBB}')
        a(f'v_lshl_add_u32 v5, v15, 1, v{CBA}')
        a('v_lshrrev_b32 v14, 3, v15')
        wb = P1['take'](100)
        for k in range(4):
            if not CFG['ab'] & 128:
                a(f'buffer_load_ushort v{wb + k}, v14, s[16:19], 0 offen offset:{k * 8}', tag='wd')
        a(f's_mul_i32 s3, s{sW}, 5120')
        a(f'v_add_u32 v{FA}, s3, v13')
        a('v_lshrrev_b32 v14, 2, v13')
        a(f'v_add_u32 v14, s{sM0}, v14')
        mo = [4, 2, 3, 0, 1]
        for _ in range(5):
            yield
            if 5 - len(mo) < CFG['m0s']:
                n = mo.pop(0)
                P1['take'](MP[n])
                load_m_raw(n, 0, 13)
        yield
        if not CFG['ab'] & 32:
            signal(1, 11, 14)
        store = P1['store']
        FS = CFG['fs']
        if FS:
            for n in range(10):
                a(f's_waitcnt lgkmcnt({9 - n})')
                store()
                if n == 6:
                    P1['mhook'](30)
            store = lambda: None
            G.tl_mark(a, 76, 21, 1, RT + 2)
        yield
        st['raw'] = True
        a('s_setprio 3')
        a(f'v_mov_b32 v92, v{T16}')
        a('v_mov_b32 v93, v6')
        a('v_mov_b32 v94, v13')
        a('v_mov_b32 v95, v5')
        P1['t16'](92)
        store()
        store()
        a(f'v_mov_b32 v{LA}, v14')
        a(f'v_lshl_add_u32 v{PA}, v13, 3, s{sM0}')
        a('v_lshrrev_b32 v16, 2, v15')
        a(f'v_mad_u32_u24 v{CBB}, v16, 5, v{CBB}')
        a(f'v_or_b32 v{CBB}, 0xf0000000, v{CBB}')
        a(f'v_or_b32 v{CBA}, 0xf0000000, v{CBA}')
        a(f'v_sub_u32 v{SHL}, 28, v16')
        a('v_lshrrev_b32 v17, 2, v16')
        G.ident(a, ID, 18, 17)
        G.ident(a, NID, 18, 17, neg=True)
        a(f'v_mov_b32 v{KF0}, 0xf0000000')
        if PP:
            a(f'v_add_u32 v{LF}, s{sM0}, v{LA}')
            a(f'v_lshrrev_b32 v{LF}, 1, v{LF}')
            a(f'v_and_b32 v{LF}, -4, v{LF}')
        a(f'v_mov_b32 v{KAD}, 0x1fff8')
        a(f'v_mov_b32 v{KCM}, 0x07ff0000')
        for n in range(4):
            a(f'v_mov_b32 v{16 + n}, 0')
        a(f'v_add_u32 v20, {G.A_BASE}, v92')
        a(f'v_add_u32 v21, 0x10000, v20')
        def zero():
            for n in range(5):
                store()
                if n == 2 and FS < 2:
                    a('s_setprio 2')
                a(f'ds_write_b128 v20, v[16:19] offset:{n * 16384}' if n < 4 else 'ds_write_b128 v21, v[16:19]')
        if FS < 2:
            zero()
        a('s_setprio 1')
        for n in range(3):
            store()
        if not FS:
            G.tl_mark(a, 76, 21, 1, RT + 2)
        a(f's_setprio {2 if min(ipos) < 0 else 0}')
        for k in range(4):
            a(f's_mov_b32 s{sP[k]}, {0x04000c0c | (k << 16):#x}')
        a(f's_mov_b32 s{sSlow}, 0')
        a(f's_mov_b32 s{sXo}, 0')
        a(f's_mov_b32 s{sPH}, 0')
        a(f's_mov_b64 {PEND}, 0')
        a(f's_mov_b64 {INJ1}, 0')
        if CFG['mside']:
            G.srd(a, 16, 30, G.MD_OFF - 81920, G.MD_SZ + 81920)
            a(f's_lshr_b32 s3, s{sW}, 3')
            a('s_lshl_b32 s3, s3, 13')
            a('s_sub_u32 s72, 65536, s3')
            a(f's_add_u32 s{sMD}, s{sMD}, s3')
            a(f's_lshl_b32 s3, s{sW}, 12')
            a(f's_sub_u32 s{sMD}, s{sMD}, s3')
            a(f's_add_u32 s{sMD}, s{sMD}, 81920')
        else:
            G.srd(a, 16, 30, G.MD_OFF, G.MD_SZ)
        for n in range(8):
            a(f'v_mov_b32 v{OLD[0] + n}, 0')
        a('s_waitcnt vmcnt(0)')
        a(f'v_lshl_or_b32 v{WD}, v{wb + 1}, 16, v{wb}')
        a(f'v_lshl_or_b32 v{WD + 1}, v{wb + 3}, 16, v{wb + 2}')
        G.tl_end(a, mid=True)
        if CFG['ab'] & 64:
            a('s_endpgm')
        a('s_barrier')
        signal(2, RT, LA)
        if CFG['diag'] == 2:
            a('s_memrealtime s[94:95]')
        a(f's_mov_b64 {INJ}, 0')
        for _ in range(min(CFG['m0e'], len(mo))):
            load_m_raw(mo.pop(0), 0, 94)
        if FS == 2:
            zero()
        a(f's_cmp_eq_u32 s{sE}, 0')
        a('s_cbranch_scc1 L2_e3')
        a('v_lshlrev_b32 v16, 3, v94')
        a('v_and_b32 v16, 0x80, v16')
        a.label('L2_e4')
        a(f'buffer_load_dword v{RT}, v16, s[68:71], 0 offen sc1')
        a('s_waitcnt vmcnt(0)')
        a(f'v_cmp_gt_u32 vcc, 0x80, v{RT}')
        a('s_cbranch_vccnz L2_e4')
        a.label('L2_e3')
        poll(1, 'L2_p1')
        a(f'v_cmp_gt_u32 vcc, 2, v{RT}')
        a(f's_and_b32 s{sE}, vcc_lo, 0xffff')
        for k in (0, 2, 1, 3):
            a(f'buffer_load_dwordx4 {vr(DA + 4 * k, 4)}, v95, s[12:15], s{sTab} offen offset:{16 * k}', tag='D')
        a(f'buffer_load_dwordx4 {vr(DB, 4)}, v93, s[12:15], s{sTab} offen', tag='D')
        while mo:
            load_m_raw(mo.pop(0), 0, 94)
        G.tl_mark(a, 76, 22, 1, RT)
        x_pre(0)
        x_list(0, EN, 0)
        x_pre(1)
        a.wait_lg('L')
        for g in range(4):
            if not PP:
                a(f'v_mov_b32 v{EC[g]}, v{EN[g]}')
        x_list(1, EN, 1)
        for n in (4, 2, 3, 0, 1):
            fill(n)
        G.tl_mark(a, 76, 23, 1, RT)
        if CFG['r0pre']:
            a(f's_cmp_eq_u32 s{sE}, 0')
            a('s_cbranch_scc1 L2_e2')
        assert CFG['r0pre']
        a(f's_mov_b32 exec_lo, s{sE}')
        a('s_mov_b32 exec_hi, 0')
        a(f'buffer_load_dword v{RT}, v{PA}, s[60:63], 0 offen sc1')
        a('s_mov_b64 exec, -1')
        a('s_waitcnt vmcnt(0)')
        a(f'v_cmp_gt_u32 vcc, 2, v{RT}')
        a(f's_and_b32 s{sE}, vcc_lo, s{sE}')
        a('s_cbranch_scc0 L2_e2')
        for n in (4, 2, 3, 0, 1):
            load_m_raw(n, 1, 94)
        poll(2, 'L2_p2')
        a.label('L2_e2')
        G.tl_start(a, mid=True)
        load_own(0)
        for g in range(1, 4):
            if ipos[g - 1] < 0:
                a(f's_setprio {max(0, 2 - g)}')
                load_own(g)
        if CFG['r0pre']:
            a('s_waitcnt lgkmcnt(0)')
            a('s_barrier')
            G.tl_mark(a, 76, 24, 1, RT + 2)
    else:
        if CFG['stamp']:
            for i in range(8):
                a(f's_mov_b32 s{60 + i}, 0')
            a('s_mov_b32 s73, 0')
            stamp(7)
            a('s_mov_b32 s67, 0')

        for n in range(8):
            a(f'v_mov_b32 v{OLD[0] + n}, 0')
        a(f'v_add_u32 v24, {G.A_BASE}, v24')
        for n in range(4):
            a(f'ds_write_b128 v24, {vr(OLD[0], 4)} offset:{n * 16384}')
        a(f'v_add_u32 v{AI}, 0x10000, v24')
        a(f'ds_write_b128 v{AI}, {vr(OLD[0], 4)}')
        G.tl_mark(a, 76, 21, 1, RT)
        a.wait_vm('D')
        G.tl_mark(a, 76, 22, 1, RT)
        if CFG['dq']:
            Z = 26
            for src, dst, bit, qp, ev in ((DA, Z, 1, '[1,0,3,2]', 0x55555555), (Z, DA, 2, '[2,3,0,1]', 0x33333333)):
                for par in range(2):
                    m = ev if par == 0 else ev ^ 0xffffffff
                    a(f's_mov_b32 vcc_lo, {m:#x}')
                    a(f's_mov_b32 vcc_hi, {m:#x}')
                    n = 0
                    for k in range(4):
                        if bool(k & bit) != bool(par):
                            continue
                        for r in range(4):
                            a(f'v_cndmask_b32_dpp v{dst + 4 * k + r}, v{src + 4 * (k ^ bit) + r}, v{src + 4 * k + r}, vcc quad_perm:{qp} row_mask:0xf bank_mask:0xf')
                            n += 1
                            if CFG['dq'] == 2 and n % 2 == 0:
                                a(f'v_mov_b32 v{RT}, 0')
                                a(f'v_mov_b32 v{RT + 1}, 0')
        x_pre(0)
        x_list(0, EN, 0)
        x_pre(1)
        a.wait_lg('L')
        G.tl_mark(a, 76, 23, 1, RT)
        for g in range(4):
            if not PP:
                a(f'v_mov_b32 v{EC[g]}, v{EN[g]}')
        if CFG['pprio'] < 2:
            load_own(0)
        for g in range(1, 4):
            fill((4, 2, 3)[g - 1])
            if ipos[g - 1] < 0 or CFG['ab_norec']:
                load_own(g)
        x_list(1, EN, 1)
        fill(0)
        fill(1)
        if CFG['pprio'] == 2:
            load_own(0)
        a('s_waitcnt lgkmcnt(0)')
        G.tl_mark(a, 76, 24, 1, RT)
        if CFG['ab_norec']:
            a('s_waitcnt vmcnt(0)')
        stamp(0)
    st['inloop'] = True
    if CFG['mpf']:
        a(f's_cmp_lt_u32 s{sW}, 10')
        a('s_cselect_b64 s[72:73], 3, 0')
        a('s_lshr_b32 s3, s2, 3')
        a('s_mul_i32 s74, s3, 2560')
        a(f's_mul_i32 s3, s{sW}, {256 - 65536}')
        a('s_add_u32 s74, s74, s3')
        a(f's_add_u32 s74, s74, {0xf0000000 + G.MD_OFF - G.REC_OFF:#x}')
        a(f's_mov_b32 s10, {G.REC_SZ + G.MD_SZ:#x}')
    prio1 = [int(x) for x in CFG['pr'].split()]
    sites = []
    FW, FM, FD, FL, FG = 48, [MP[1 - OP], 124], [116, 117], [118, 119], [120, 121]

    def fin_preload():
        a(f's_lshl_b32 s3, s{sW}, 12')
        a(f'v_subrev_u32 v122, s3, v{FA}')
        a(f's_mul_i32 s3, s{sQ}, 20000')
        a(f'v_add_u32 v{FL[0]}, s3, v122')
        a(f'v_add_u32 v{FL[1]}, 0x4000, v{FL[0]}')
        a(f's_lshl_b32 s3, s{sOB}, 7')
        for r in range(2):
            a(f'v_lshrrev_b32 v123, 7, v{FL[r]}')
            a(f'v_and_b32 v{FG[r]}, 0x70, v{FL[r]}')
            a(f'v_lshl_add_u32 v{FG[r]}, v123, 13, v{FG[r]}')
            a(f'v_add_u32 v{FG[r]}, s3, v{FG[r]}')
        a(f'v_cmp_le_u32 vcc, {20000 - 16384}, v122')
        a('s_mov_b64 exec, vcc')
        a(f'v_mov_b32 v{FL[1]}, 2.0')
        a(f'v_mov_b32 v{FG[1]}, 2.0')
        a('s_mov_b64 exec, -1')
        a('v_and_b32 v123, 0x30, v122')
        a('v_lshlrev_b32 v123, 2, v123')
        a(f'buffer_load_dwordx4 {vr(FW, 4)}, v123, s[24:27], 0 offen', tag='fin')
        a(f'buffer_load_dwordx4 {vr(FW + 4, 4)}, v123, s[24:27], 0 offen offset:16', tag='fin')
        a(f'buffer_load_dwordx2 {vr(FW + 8, 2)}, v123, s[24:27], 0 offen offset:32', tag='fin')
        G.srd(a, 12, 4, 0, G.E * 2)
        G.srd(a, 16, 28, 0, G.E * 8)
        for r in range(2):
            a(f'v_lshrrev_b32 v123, 2, v{FG[r]}')
            a(f'buffer_load_dword v{FD[r]}, v123, s[12:15], 0 offen', tag='fin')
            a(f'buffer_load_dwordx4 {vr(FM[r], 4)}, v{FG[r]}, s[16:19], 0 offen', tag='fin')

    def half_rec(g, late):
        uid[0] += 1
        a(f's_bitcmp1_b32 s{sW}, {CFG["stag"] - 1}')
        a(f's_cbranch_scc{late ^ CFG["stagi"]} L2_h{uid[0]}')
        vm, nvm = list(a.vm), a.nvm
        load_rec(g, RT)
        if not late:
            a.vm, a.nvm = vm, nvm
            st['stn'] = a.nvm
        elif a.nvm - 2 != st['stn']:
            k = a.nvm - 2 - st['stn']
            a.vm = list(vm) if not vm else vm[:-1] + [frozenset([('R', g)] + (list(vm[-1]) if isinstance(vm[-1], frozenset) else [vm[-1]]))]
            if not vm:
                a.vm = [('R', g)]
            a.nvm = nvm
        a.label(f'L2_h{uid[0]}')

    def setprio(p, on=1):
        if p == 0 and CFG['yb'] and on:
            uid[0] += 1
            a(f's_cmp_ge_u32 s{sW}, {CFG["ybw"]}')
            a(f's_cbranch_scc1 L2_y{uid[0]}')
            a('s_setprio 0')
            a.label(f'L2_y{uid[0]}')
        else:
            a(f's_setprio {p}')

    def phase(jj, kind):
        first, more1, more2 = kind == 'first', kind != 'last', kind in ('first', 'second', 'mid')
        second = kind == 'second'
        ph['par'] = (jj * NB) & 1
        ph['p'] = jj
        assert not PP or (FOLD and rpos[3] >= 10 and CFG['secmid'] and min(dpos[:2]) == 3 and not SB and 9 not in fpos)
        st['last'] = kind == 'last'
        a.c(f'==== phase jj={jj} {kind}')
        site = len(sites)
        sites.append(site)

        def slow_site():
            stamp(5)
            G.tl_mark(a, 76, f's{sPH}', 1, RT)
            a(f's_bitcmp1_b32 s{sSlow}, s{sPH}')
            a('s_cbranch_scc1 L2_slow')
            a.label(f'L2_ret{site}')
        if first or not SB:
            if not (first and P1) and (first or not CFG['ab'] & 1):
                a('s_barrier')
            slow_site()
        hs = [None]
        st['m0'] = None

        def dhook():
            if hs[0] is None:
                return
            if CFG['sprio']:
                setprio(3 - hs[0], CFG['yb'] & 2)
            for n in (4, 2, 3, 0, 1):
                if dpos[n] == hs[0]:
                    fill(n)
                if mpos[n] < 0 and more2 and max(dpos[n], -1 - mpos[n]) == hs[0]:
                    load_m(n)
            hs[0] += 1

        def rhook(pos):
            if FOLD and not CFG['ab'] & 512:
                if pos == 7:
                    ovf_load(XN[jj & 1], X[0] if first else MP[OP])
                if pos == (7 if first else mpos[OP]):
                    ovf_run(XN[jj & 1], X[0] if first else MP[OP])
            if first and not CFG['ab_norec']:
                if pos == 7 and CFG['pprio'] == 3:
                    load_own(0)
                for g in range(1, 4):
                    if ipos[g - 1] == pos:
                        load_own(g)
            elif second:
                for g in range(1, 3):
                    if fpos[g] == 9 and ipos2[g - 1] == pos:
                        load_own(g)
                if ipos2[2] == pos:
                    load_rec(3)
            elif rpos[3] in (pos, pos + 8) and rpos[3] < 10:
                load_rec(3)
            if not more1:
                if pos == CFG['finp'] and CFG['fuse']:
                    fin_preload()
                return
            if CFG['stag'] and not CFG['stagd'] and not first:
                for g in range(3):
                    if rpos[g] >= 10 and rpos[g] == 9 + pos:
                        half_rec(g, 1)
            for n in (4, 2, 3, 0, 1):
                if (fmpos if first else mpos)[n] == pos and not (first and P1):
                    load_m(n)
                elif first and P1 and fmpos[n] == pos:
                    uid[0] += 1
                    a(f'v_and_b32 v{AI}, 0x3f0, v{FA}')
                    a('s_cmp_lg_u32 s56, 0')
                    a(f's_cbranch_scc1 L2_m{uid[0]}')
                    vm, nvm = list(a.vm), a.nvm
                    load_m_raw(n, 1, AI)
                    a.vm, a.nvm = vm, nvm
                    st[('rawn', n)] = a.nvm
                    a.label(f'L2_m{uid[0]}')
            if pos == b1_step - 1:
                next_m(jj + 1)
            for g in range(3):
                if (fpos if first else fpos2 if second else rpos)[g] == pos:
                    load_rec(g)
                if first and fpos[g] == 9 and pos == b1_step:
                    a(f'v_mov_b32 v{EC[g]}, v{EN[g]}')

        for i, b in enumerate(order if SB else []):
            if i == 0 or prio1[i] != prio1[i - 1]:
                a(f's_setprio {prio1[i]}')
            if b >= 0:
                step_a(b)
            if b == CFG['xpre'] and more2:
                x_pre((jj + 2) & 3)
            if b >= 0 or first:
                rhook(b & 7)
            if first and b < 0:
                gather(0, -1)
                dec_ao(0)
                dec_c1(0)
            elif b < 0:
                step_b(b, mid=lambda: sb_look(0), nogather=True)
                sb_wait(0)
                slow_site()
                gather(0, -1, RT, RT + 1, True)
                st['ai'] = RT
                rhook(7)
                st['ai'] = None
            elif b == b1_step - 1 and more1:
                step_b(b, mid=lambda: sb_arrive(1))
            elif b == b1_step and more1:
                step_b(b, mid=lambda: sb_look(1))
            else:
                step_b(b, mid=lambda: None)
            if more1 and not first:
                for g in range(3 if second else 0, 4):
                    if rpos[g] == 10 + b and b < b1_step:
                        load_rec(g, RT)
            if b == b1_step and more1:
                if SB == 2:
                    step_a(LB)
                sb_wait(1)
                hs[0] = 0
                dhook()
                if more2:
                    x_list((jj + 2) & 3, EN, 2)
                else:
                    a(f'v_mov_b32 v{ES}, v{EN[3]}')
                for _ in range(3):
                    dhook()
                sb_arrive(0)
                a(f's_add_u32 s{sPH}, s{sPH}, 1')
                if rpos[3] == 10 + b and not first:
                    a.wait_lg('L')
                    load_rec(3, RT)
        if SB:
            if SB == 1 or not more1:
                step_a(LB)
            return
        for i, b in enumerate(order):
            if b == b1_step and more1:
                a.wait_lg(('m', LB), ('m', LB - 1))
                stamp(1)
                if not CFG['ab'] & 2:
                    a('s_barrier')
                stamp(2)
                hs[0] = 0
                dhook()
            if (i == 0 or prio1[i] != prio1[i - 1] or CFG['wprio']) and not (CFG['sprio'] and b == b1_step):
                setprio(prio1[i])
            hf = CFG['gearly'] == 4 and b != b1_step
            if b >= 0 and not hf:
                step_a(b)
            if FOLD:
                assert CFG['xpre'] >= mpos[OP] >= 0
                rhook(b & 7)
            if b == CFG['xpre'] and more2 and not CFG['ab'] & 4:
                x_pre((jj + 2) & 3)
            if not FOLD:
                rhook(b & 7)
            if b >= 0 and hf:
                assert CFG['cpos']
                step_a(b)
            back = None
            if b == b1_step and more2 and not CFG['ab'] & 4:
                back = x_list((jj + 2) & 3, EN, 2, split=PP)
            elif b == b1_step and more1 and not PP:
                a(f'v_mov_b32 v{ES}, v{EN[3]}')
            dhook()
            if first and b < 0:
                gather(0, -1)
                dec_ao(0)
                dec_c1(0)
                if CFG['cpos']:
                    dec_c2(0)
            else:
                step_b(b, mid=dhook)
            if back:
                back()
            if more1 and (not first or CFG['secmid']):
                for g in range(3 if second or first else 0, 4):
                    if rpos[g] == 10 + b:
                        if CFG['stag'] and g < 3:
                            half_rec(g, 0)
                        else:
                            load_rec(g, RT)
                    if CFG['stag'] and CFG['stagd'] and g < 3 and rpos[g] >= 10 and rpos[g] == 9 + b:
                        half_rec(g, 1)
            if first:
                for g in range(3):
                    if fpos[g] == 10 + b:
                        load_rec(g, RT)
            dhook()
        step_a(LB)
        if more1:
            assert hs[0] > max(dpos)
            a(f's_add_u32 s{sPH}, s{sPH}, 1')
            a.wait_lg('F')
            stamp(4)

    phase(0, 'first')
    st['raw'] = False
    if P1:
        G.srd(a, 24, 30, G.WT_OFF, G.WT_SZ)
    phase(1, 'mid' if CFG['secmid'] else 'second')
    a.vm = merge_vm(a.vm, G.MEMO.get('back', []))
    head_vm, head_lg = list(a.vm), list(a.lg)
    a.label('L2_loop')
    for jj in (2, 3, 0, 1):
        phase(jj, 'mid')
    assert 'back' not in G.MEMO or merge_vm(head_vm, a.vm) == head_vm, (a.vm, head_vm)
    G.MEMO['back'] = list(a.vm)
    assert a.lg == head_lg
    a(f's_cmp_lg_u32 s{sPH}, 14')
    a('s_cbranch_scc1 L2_loop')
    phase(2, 'penult')
    phase(3, 'last')
    step_b(LB, final=True)
    a.wait_lg('x')
    check(LB, 1)
    check(LB, 0)
    if CFG['drain']:
        a(f's_mov_b64 exec, {PEND}')
        a(f'ds_read_b64 {vr(OLD[0], 2)}, v{PA} offset:{G.A_OFFS}')
        a(f'{MF} {vr(X[0], 4)}, {vr(NID, 2)}, {vr(P, 2)}, 0')
        a(f'{MF} {vr(X[0], 4)}, {vr(ID, 2)}, {vr(P + 2, 2)}, {vr(X[0], 4)}')
        a('s_waitcnt lgkmcnt(0)')
        a(f'{MF} {vr(X[0], 4)}, {vr(ID, 2)}, {vr(OLD[0], 2)}, {vr(X[0], 4)}')
        a(f'v_mov_b64 {vr(P, 2)}, {vr(OLD[0], 2)}')
        a(f'v_cvt_pk_bf16_f32 v{X[0]}, v{X[0]}, v{X[0] + 1}')
        a(f'v_cvt_pk_bf16_f32 v{X[0] + 1}, v{X[0] + 2}, v{X[0] + 3}')
        a(f'ds_wrxchg_rtn_b64 {vr(P + 2, 2)}, v{PA}, {vr(X[0], 2)} offset:{G.A_OFFS}')
        a('s_waitcnt lgkmcnt(0)')
        a(f'v_cmp_ne_u64 {PEND}, {vr(P + 2, 2)}, {vr(P, 2)}')
    for ln in flush_pend(PEND):
        a(ln)
    a('s_mov_b64 exec, -1')
    if True:
        a('s_load_dwordx2 s[4:5], s[0:1], 88')
        a('v_add_u32 v123, 0x4000, v122')
        for n in range(4):
            a(f's_lshl_b32 s{50 + 2 * n}, s{96 + n}, 16')
            a(f's_and_b32 s{51 + 2 * n}, s{96 + n}, 0xffff0000')
        a('s_waitcnt lgkmcnt(0)' if CFG['finw'] else 's_waitcnt vmcnt(0) lgkmcnt(0)')
        a('s_barrier')
        G.tl_mark(a, 76, 16, 1, 106)
        GH = [80, 16]
        PL = [32, 60]
        WX = CFG['wavex']
        G.srd(a, 8, 30, G.FLAG_OFF, G.FLAG_SZ)
        G.srd(a, 12, 4, 0, G.E * 8)
        G.srd(a, 20, 30, G.PART_OFF, G.PART_SZ)
        a(f's_lshl2_add_u32 s4, s{sOB}, s{sQ}')
        a('s_mul_i32 s4, s4, 81920')
        for k in range(1, 4):
            a(f's_add_u32 s3, s{sQ}, {k}')
            a('s_and_b32 s3, s3, 3')
            a(f's_mul_i32 s{35 + k}, s3, 20000')
            a(f's_add_u32 s{35 + k}, s{35 + k}, {G.A_BASE}')
            a(f's_mul_i32 s{39 + k}, s3, 20480')
            a(f's_add_u32 s{39 + k}, s{39 + k}, s4')
            a(f's_lshl2_add_u32 s3, s{sOB}, s3')
            a('s_mul_i32 s3, s3, 81920')
            a(f's_mul_i32 s{43 + k}, s{sQ}, 20480')
            a(f's_add_u32 s{43 + k}, s{43 + k}, s3')
        SB_ = [[16, 20, 24], [36, 40, 44]]
        for r in range(2):
            if r:
                a(f's_cmp_ge_u32 s{sW}, 4')
                a('s_cbranch_scc1 L2_g0')
            for k in range(1, 4):
                a(f'v_add_u32 v104, s{35 + k}, v{122 + r}')
                a(f'ds_read_b128 {vr(SB_[r][k - 1], 4)}, v104')
            for k in range(1, 4):
                a(f's_waitcnt lgkmcnt({3 - k})')
                a(f'buffer_store_dwordx4 {vr(SB_[r][k - 1], 4)}, v{122 + r}, s[20:23], s{39 + k} offen sc1')
        a.label('L2_g0')
        if CFG['finw']:
            a('s_waitcnt vmcnt(3)')
        if WX != 2:
            G.fin_gates(a, FD[0], 50, FW, GH[0], 60, ((0, 1), (0,), (0,), ())[CFG['gsp']])
        a(f's_lshl_b32 s3, s{sOB}, 9')
        if WX:
            a(f's_lshl2_add_u32 s3, s{sW}, s3')
        a(f's_lshl_b32 s4, s{sQ}, 7')
        a('s_add_u32 s4, s4, s3')
        a('v_mov_b32 v104, 1')
        a('v_and_b32 v105, 0x3f0, v122')
        a('v_lshlrev_b32 v105, 3, v105')
        if WX != 2:
            for r in range(2):
                a(f'v_add_u32 v106, {G.A_BASE}, v{FL[r]}')
                a(f'ds_read_b128 {vr(PL[r], 4)}, v106')
        a('s_waitcnt vmcnt(0)')
        if not WX:
            a('s_barrier')
        G.tl_mark(a, 76, 18, 1, 106)
        if not WX:
            a(f's_cmp_lg_u32 s{sW}, 0')
            a('s_cbranch_scc1 L2_f2')
        a('s_mov_b64 exec, 1')
        a('buffer_store_dword v104, off, s[8:11], s4 sc1')
        if WX == 2:
            a('s_mov_b64 exec, -1')
            G.fin_gates(a, FD[0], 50, FW, GH[0], 60)
            for r in range(2):
                a(f'v_add_u32 v106, {G.A_BASE}, v{FL[r]}')
                a(f'ds_read_b128 {vr(PL[r], 4)}, v106')
        a('s_mov_b64 exec, 15')
        a(f's_bitset0_b64 exec, s{sQ}')
        a.label('L2_f3')
        a('buffer_load_dword v104, v105, s[8:11], s3 offen sc1')
        a('s_waitcnt vmcnt(0)')
        a('v_cmp_ne_u32 vcc, 1, v104')
        a('s_cbranch_vccnz L2_f3s')
        ool.append(['L2_f3s:'] + ([f's_sleep {CFG["slp3"]}'] if CFG['slp3'] else []) + ['s_branch L2_f3'])
        a('s_mov_b64 exec, -1')
        if not WX:
            a.label('L2_f2')
            if CFG['gsp'] == 2:
                G.fin_gates(a, FD[0], 50, FW, GH[0], (96, 0, [76, 76]), (1,))
            a('s_barrier')
        G.tl_mark(a, 76, 19, 1, 106)
        for r in range(2):
            if r:
                a(f's_cmp_ge_u32 s{sW}, 4')
                a('s_cbranch_scc1 L2_f5')
            for k in range(1, 4):
                a(f'buffer_load_dwordx4 {vr(PL[r] + 4 * k, 4)}, v{122 + r}, s[20:23], s{43 + k} offen sc1')
        if CFG['g1late']:
            G.fin_gates(a, FD[1], 50, FW, GH[1], (96, 0, [104, 76]))
        a.label('L2_f5')
        if CFG['gsp'] in (1, 3):
            a.fence(5)
            G.fin_gates(a, FD[0], 50, FW, GH[0], (96, 0, [104, 76]), (1,) if CFG['gsp'] == 1 else (0, 1))
        a('s_waitcnt vmcnt(0) lgkmcnt(0)')
        G.tl_mark(a, 76, 20, 1, 106)
        for r in range(2):
            if r:
                a(f's_cmp_ge_u32 s{sW}, 4')
                a('s_cbranch_scc1 L2_f6')
            G.fin_out(a, PL[r], GH[r], FW, ID, FM[r], 96)
            a(f'buffer_store_dwordx4 {vr(PL[r] + 4, 4)}, v{FG[r]}, s[12:15], 0 offen{CFG["out_pol"]}')
        a.label('L2_f6')
    if CFG['diag']:
        a('s_waitcnt vmcnt(0)')
        a('s_memrealtime s[76:77]')
        a('s_waitcnt lgkmcnt(0)')
        a(f's_sub_u32 s78, s{76 if CFG["diag"] == 1 else 94}, s88')
        a('s_min_u32 s78, s78, 100000')
        a.label('L2_dg')
        a('s_memrealtime s[86:87]')
        a('s_waitcnt lgkmcnt(0)')
        a('s_sub_u32 s79, s86, s76')
        a('s_cmp_lt_u32 s79, s78')
        a('s_cbranch_scc1 L2_dg')
    G.tl_end(a)
    if CFG['stamp']:
        a('s_waitcnt vmcnt(0)')
        stamp(6)
        a('s_load_dwordx2 s[74:75], s[0:1], 96')
        a('s_waitcnt lgkmcnt(0)')
        G.srd(a, 76, 74, 0, 256)
        a(f's_cmp_lg_u32 s2, {CFG["stamp"]}')
        a('s_cbranch_scc1 L2_end')
        a(f's_and_b32 s3, s{sW}, 3')
        a('s_cmp_lg_u32 s3, 0')
        a('s_cbranch_scc1 L2_end')
        a(f's_lshl_b32 s3, s{sW}, 3')
        a('v_mov_b32 v20, 0')
        for i in range(8):
            a(f'v_mov_b32 v21, s{60 + i}')
            a(f'buffer_store_dword v21, v20, s[76:79], s3 offen offset:{4 * i}')
    a.label('L2_end')
    a('s_endpgm')

    a.label('L2_slow')
    a.reset()
    sC, sS, sE, sO = 50, 51, 52, 53
    pp, t_, wa, ba, w_, b_, ao, c_, ai_ = 102, 103, 104, 105, 106, 107, 96, 97, 98
    m_ = MR[0][0]
    a(f's_lshr_b32 s{sSP}, s{sPH}, 2')
    a(f's_lshl_b32 s{sC}, s{sW}, 4')
    a(f's_and_b32 s3, s{sPH}, 3')
    a(f's_lshl_b32 s{sO}, s3, 3')
    a(f's_add_u32 s{sO}, s{sO}, s{sTab}')
    a(f's_and_b32 s3, s{sSP}, 2')
    a('s_lshl_b32 s3, s3, 1')
    a(f's_add_u32 s{sO}, s{sO}, s3')
    a(f's_and_b32 s54, s{sSP}, 1')
    a('s_lshl_b32 s54, s54, 4')
    a.label('L2_sl_seg')
    a(f's_mul_i32 s55, s{sC}, {G.BLK}')
    a(f's_and_b32 s3, s{sC}, 3')
    a('s_lshl_b32 s3, s3, 5')
    a('s_add_u32 s3, s3, s55')
    a(f's_add_u32 s3, s3, s{sO}')
    a(f'buffer_load_dword v{wa}, off, s[12:15], s3 sc1')
    a(f'buffer_load_dword v{ba}, off, s[12:15], s3 offset:32 sc1')
    a('s_waitcnt vmcnt(0)')
    a(f'v_readfirstlane_b32 s{sS}, v{wa}')
    a(f'v_readfirstlane_b32 s{sE}, v{ba}')
    a(f's_lshr_b32 s{sS}, s{sS}, s54')
    a(f's_and_b32 s{sS}, s{sS}, 0xffff')
    a(f's_lshr_b32 s{sE}, s{sE}, s54')
    a(f's_and_b32 s{sE}, s{sE}, 0xffff')
    a.label('L2_sl_rec')
    a(f's_cmp_ge_u32 s{sS}, s{sE}')
    a('s_cbranch_scc1 L2_sl_next')
    a(f'v_mbcnt_lo_u32_b32 v{pp}, -1, 0')
    a(f'v_mbcnt_hi_u32_b32 v{pp}, -1, v{pp}')
    a(f'v_add_u32 v{pp}, s{sS}, v{pp}')
    a(f'v_and_b32 v{t_}, -4, v{pp}')
    a(f'v_lshl_add_u32 v{wa}, v{pp}, 2, v{t_}')
    a(f'v_lshl_add_u32 v{ba}, v{t_}, 2, v{pp}')
    a(f'v_cmp_gt_u32 vcc, s{sE}, v{pp}')
    a('s_mov_b64 exec, vcc')
    a(f'buffer_load_dword v{w_}, v{wa}, s[8:11], s55 offen')
    a(f'buffer_load_ubyte v{b_}, v{ba}, s[8:11], s55 offen offset:16')
    a('s_waitcnt vmcnt(0)')
    a(f'v_lshrrev_b32 v{ai_}, 14, v{w_}')
    a(f'v_and_b32 v{ai_}, v{KAD}, v{ai_}')
    a(f'ds_read_b64 {vr(m_, 2)}, v{ai_}')
    a(f'v_perm_b32 v{c_}, v{w_}, v{b_}, s{sP[0]}')
    a(f'v_and_b32 v{ao}, v{KAD}, v{w_}')
    a(f'v_bitop3_b32 v{t_}, v{w_}, 0.5, -0.5 bitop3:{ORAND:#x}')
    a(f'v_bitop3_b32 v{c_}, v{KCM}, v{c_}, v{t_} bitop3:{SEL:#x}')
    a('s_waitcnt lgkmcnt(0)')
    a(f'{MF} {vr(RT, 4)}, {vr(WD, 2)}, {vr(m_, 2)}, 0')
    for n in range(4):
        a(f'v_mul_f32 v{RT + n}, v{c_}, v{RT + n}')
    a(f'v_cvt_pk_bf16_f32 v{RT}, v{RT}, v{RT + 1}')
    a(f'v_cvt_pk_bf16_f32 v{RT + 1}, v{RT + 2}, v{RT + 3}')
    a(f'ds_pk_add_bf16 v{ao}, v{RT} offset:{G.A_OFFS}')
    a(f'ds_pk_add_bf16 v{ao}, v{RT + 1} offset:{G.A_OFFS + 4}')
    a('s_mov_b64 exec, -1')
    a(f's_add_u32 s{sS}, s{sS}, 64')
    a('s_branch L2_sl_rec')
    a.label('L2_sl_next')
    a(f's_add_u32 s{sC}, s{sC}, 1')
    a(f's_and_b32 s3, s{sC}, 15')
    a('s_cbranch_scc1 L2_sl_seg')
    a(f's_add_u32 s{sC}, s{sC}, 240')
    a(f's_cmp_lt_u32 s{sC}, {G.NCH}')
    a('s_cbranch_scc1 L2_sl_seg')
    a('s_waitcnt lgkmcnt(0)')
    for ph, k in ((0, 0), (1, 1), (14, 6), (15, 7)):
        a(f's_cmp_eq_u32 s{sPH}, {ph}')
        a(f's_cbranch_scc1 L2_ret{k}')
    a(f's_and_b32 s3, s{sPH}, 3')
    for ph, k in ((2, 2), (3, 3), (0, 4)):
        a(f's_cmp_eq_u32 s3, {ph}')
        a(f's_cbranch_scc1 L2_ret{k}')
    a('s_branch L2_ret5')
    for bl in ool:
        for ln in bl:
            if ln.endswith(':'):
                a.label(ln[:-1])
                a.reset()
            else:
                a(ln)
    yield name
```
